```python
import torch

def _softmax(x, axis=-1):
    return torch.softmax(x, dim=axis)

def _gelu(x):
    return torch.nn.functional.gelu(x, approximate='tanh')

def _silu(x):
    return torch.nn.functional.silu(x)

def _sigmoid(x):
    return torch.sigmoid(x)

def _layernorm(x, axis=-1, eps=1e-05):
    m = x.mean(dim=axis, keepdim=True)
    v = x.var(dim=axis, keepdim=True, unbiased=False)
    return (x - m) / torch.sqrt(v + eps)

def _scatter_add(tgt, idx, src, axis=0):
    return tgt.clone().index_add_(axis, idx, src)

def _segment_sum(src, seg, n):
    out = torch.zeros((n,) + src.shape[1:], dtype=src.dtype)
    return out.index_add_(0, seg, src)

def _pad(x, pw):
    flat = tuple((v for pair in reversed(pw) for v in pair))
    return torch.nn.functional.pad(x, flat)
kernel_name = 'sequential_preLN__memory_aug_recurrent_mem_tr__swiglu_ffn__prompt'

def setup_inputs():

    _w = lambda a: (lambda t: t.to(torch.bfloat16) if t.is_floating_point() else t)(torch.as_tensor(a))

    def _A_setup():
        B, S, Dm = (1, 2048, 576)
        H, Dh = (32, 128)
        M, seg = (8, 32)
        seg = min(seg, S)
        S = S // seg * seg
        return {'x': _w((lambda *s: torch.randn(*s, dtype=torch.bfloat16) * 0.05)(B, S, Dm)), 'mem0': _w((lambda *s: torch.randn(*s, dtype=torch.bfloat16) * 0.2)(B, M, Dm)), 'Wq': _w((lambda *s: torch.randn(*s, dtype=torch.bfloat16) * 1.6)(Dm, H, Dh) * Dm ** (-0.5)), 'Wk': _w((lambda *s: torch.randn(*s, dtype=torch.bfloat16) * 1.6)(Dm, H, Dh) * Dm ** (-0.5)), 'Wv': _w((lambda *s: torch.randn(*s, dtype=torch.bfloat16) * 0.2)(Dm, H, Dh) * Dm ** (-0.5)), 'Wo': _w((lambda *s: torch.randn(*s, dtype=torch.bfloat16) * 0.2)(H, Dh, Dm) * (H * Dh) ** (-0.5)), 'seg_len': seg}
    _A_in = _A_setup()

    def _B_setup():
        B, S, D, F = (1, 2048, 576, 4608)
        return {'x': _w((lambda *s: torch.randn(*s, dtype=torch.bfloat16) * 0.05)(B, S, D)), 'w_gate': _w((lambda *s: torch.randn(*s, dtype=torch.bfloat16) * 0.05)(D, F)), 'w_up': _w((lambda *s: torch.randn(*s, dtype=torch.bfloat16) * 0.05)(D, F)), 'w_down': _w((lambda *s: torch.randn(*s, dtype=torch.bfloat16) * 0.05)(F, D))}
    _B_in = _B_setup()
    return {'A_x': _A_in['x'], 'A_mem0': _A_in['mem0'], 'A_Wq': _A_in['Wq'], 'A_Wk': _A_in['Wk'], 'A_Wv': _A_in['Wv'], 'A_Wo': _A_in['Wo'], 'A_seg_len': _A_in['seg_len'], 'B_x': _B_in['x'], 'B_w_gate': _B_in['w_gate'], 'B_w_up': _B_in['w_up'], 'B_w_down': _B_in['w_down']}

def reference(A_x, A_mem0, A_Wq, A_Wk, A_Wv, A_Wo, A_seg_len, B_x, B_w_gate, B_w_up, B_w_down):

    def _A_ref(x, mem0, Wq, Wk, Wv, Wo, seg_len):
        B, S, Dm = x.shape
        H, Dh = (Wq.shape[1], Wq.shape[2])
        M = mem0.shape[1]
        scale = Dh ** (-0.5)
        n_seg = S // seg_len
        L = M + seg_len
        idx = torch.arange(L)
        mask = (idx[:, None] < M) | (idx[:, None] >= idx[None, :])
        mem = mem0
        outs = []
        for s in range(n_seg):
            xs = x[:, s * seg_len:(s + 1) * seg_len, :].clone()
            h = torch.concatenate([mem, xs], axis=1)
            q = torch.einsum('btd,dhe->bhte', h, Wq)
            k = torch.einsum('btd,dhe->bhte', h, Wk)
            v = torch.einsum('btd,dhe->bhte', h, Wv)
            scores = torch.einsum('bhqe,bhke->bhqk', q, k) * scale
            scores = torch.where(mask[None, None], scores, -1000000000.0)
            p = _softmax(scores, axis=-1)
            o = torch.einsum('bhqk,bhke->bhqe', p, v)
            o = torch.einsum('bhte,hed->btd', o, Wo)
            mem = o[:, :M, :].clone()
            outs.append(o[:, M:, :])
        return torch.concatenate(outs, axis=1)

    def _B_ref(x, w_gate, w_up, w_down):
        g = _silu(x @ w_gate)
        u = x @ w_up
        return g * u @ w_down
    x = A_x
    h = x + _A_ref(_layernorm(x, axis=-1), A_mem0, A_Wq, A_Wk, A_Wv, A_Wo, A_seg_len)
    h2 = h + _B_ref(_layernorm(h, axis=-1), B_w_gate, B_w_up, B_w_down)
    return h2
```

```python
import re

RX = re.compile(r'\b([vas])\[(\d+):(\d+)\]|\b([vas])(\d+)\b|\b(vcc|exec|m0|scc)\b')

def regs_of(tok):
    out = set()
    for m in RX.finditer(tok):
        if m.group(1):
            for i in range(int(m.group(2)), int(m.group(3)) + 1):
                out.add(m.group(1) + str(i))
        elif m.group(4):
            out.add(m.group(4) + m.group(5))
        else:
            out.add(m.group(6))
    return out

def split_ops(s):
    ops = []; cur = ''; d = 0
    for ch in s:
        if ch in '[(': d += 1
        if ch in '])': d -= 1
        if ch == ',' and d == 0:
            ops.append(cur.strip()); cur = ''
        else:
            cur += ch
    if cur.strip(): ops.append(cur.strip())
    return ops

TRANS = ('v_exp_f32', 'v_log_f32', 'v_rcp_f32', 'v_rsq_f32', 'v_sqrt_f32', 'v_sin_f32', 'v_cos_f32', 'v_rcp_iflag_f32')

class Ins:
    __slots__ = ('text', 'op', 'kind', 'dst', 'src', 'A', 'B', 'C', 'passes', 'dpp', 'wide', 'lds_dma', 'states', 'target', 'label', 'D0')
    def __init__(self, text):
        self.text = text
        t = text.split(';')[0].strip()
        self.dst = set(); self.src = set(); self.A = set(); self.B = set(); self.C = set()
        self.passes = 0; self.dpp = False; self.wide = set(); self.lds_dma = False; self.states = 1
        self.target = None; self.label = None; self.D0 = None
        if not t or t.startswith('.'):
            self.op = ''; self.kind = 'none'; self.states = 0; return
        if t.endswith(':'):
            self.op = ''; self.kind = 'label'; self.label = t[:-1]; self.states = 0; return
        p = t.split(None, 1)
        op = p[0]; rest = p[1] if len(p) > 1 else ''
        self.op = op
        ops = split_ops(rest)
        R = [regs_of(o) for o in ops]
        if op.startswith('v_mfma') or op.startswith('v_smfmac'):
            self.kind = 'mfma'
            self.passes = 8 if '32x32' in op else 4
            self.dst = R[0]; self.A = R[1]; self.B = R[2]
            self.D0 = ops[0]
            if op.startswith('v_smfmac'):
                self.C = set(R[0]); self.B = self.B | R[3]
            else:
                self.C = R[3]
            self.src = self.A | self.B | self.C
        elif op.startswith('v_'):
            self.kind = 'valu'
            self.dpp = ('_dpp' in op) or ('row_' in rest) or ('quad_perm' in rest)
            if op.startswith('v_permlane') and 'swap' in op:
                self.dst = R[0] | R[1]; self.src = R[0] | R[1]
            elif op.startswith('v_nop'):
                pass
            else:
                self.dst = set(R[0])
                k = 1
                if re.match(r'v_(add|sub|subrev|addc|subb)_co_', op) or op.startswith('v_div_scale') or op.startswith('v_mad_u64'):
                    self.dst |= R[1]; k = 2
                for r in R[k:]: self.src |= r
                if op.startswith('v_fmac') or op.startswith('v_writelane') or self.dpp or op.startswith('v_dot2c') or op.startswith('v_pk_fmac'):
                    self.src |= R[0]
                if op.startswith('v_cmpx'): self.dst.add('exec')
                if op.startswith('v_div_fmas'): self.src.add('vcc')
        elif op.startswith('ds_'):
            self.kind = 'ds'
            if op.startswith('ds_read') or op.startswith('ds_bpermute') or op.startswith('ds_swizzle') or op.startswith('ds_permute') or '_rtn' in op:
                self.dst = R[0]
                for r in R[1:]: self.src |= r
            else:
                for r in R: self.src |= r
        elif op.startswith('buffer_') or op.startswith('global_'):
            self.kind = 'vmem'
            words = rest.replace(',', ' ').split()
            if 'load' in op and (' lds' in ' ' + ' '.join(words) + ' ' and 'lds' in words or 'load_lds' in op):
                self.lds_dma = True
                for r in R: self.src |= r
                self.src.add('m0')
            elif 'load' in op:
                self.dst = R[0]
                for r in R[1:]: self.src |= r
            elif 'atomic' in op:
                for r in R: self.src |= r
                if 'sc0' in words: self.dst = R[0]
            elif 'store' in op:
                for r in R: self.src |= r
                if 'x3' in op or 'x4' in op:
                    self.wide = R[0] if op.startswith('buffer') else R[1]
        elif op.startswith('s_'):
            self.kind = 'salu'
            if op == 's_nop':
                self.states = int(rest, 0) + 1
            elif op.startswith('s_cbranch') or op == 's_branch':
                self.kind = 'branch'; self.target = rest.strip()
            elif op.startswith('s_load') or op.startswith('s_memtime') or op.startswith('s_memrealtime') or op.startswith('s_buffer_load'):
                self.kind = 'smem'; self.dst = R[0]
                for r in R[1:]: self.src |= r
            elif op.startswith('s_cmp') or op in ('s_waitcnt', 's_barrier', 's_endpgm', 's_sleep', 's_setprio') or op.startswith('s_bitcmp'):
                for r in R: self.src |= r
            else:
                if R: self.dst = set(R[0])
                for r in R[1:]: self.src |= r
                if 'saveexec' in op: self.dst.add('exec')
        else:
            raise ValueError('unknown instr ' + text)

def isv(r): return r[0] in 'va' and r not in ('vcc',)
def iss(r): return (r[0] == 's' and r != 'scc') or r == 'vcc'

def need(p, c):
    n = 0
    if p.kind == 'valu':
        pv = {r for r in p.dst if isv(r)}
        ps = {r for r in p.dst if iss(r)}
        if c.kind == 'mfma' and pv & c.src: n = max(n, 2)
        if p.op.startswith('v_dot') and c.op != p.op and pv & (c.src | c.dst): n = max(n, 3)
        if c.kind == 'valu':
            if pv & c.src:
                if c.op.startswith('v_permlane') or c.dpp: n = max(n, 2)
                if c.op.startswith('v_readlane') or c.op.startswith('v_readfirstlane'): n = max(n, 1)
                if p.op.startswith(TRANS): n = max(n, 1)
                if 'op_sel' in p.text or 'sdwa' in p.text: n = max(n, 1)
            if ps & c.src:
                n = max(n, 4 if (c.op.startswith('v_readlane') or c.op.startswith('v_writelane') or c.op.startswith('v_div_fmas')) else 2)
        if c.kind == 'vmem' and ps & c.src: n = max(n, 5)
        if 'exec' in p.dst and c.kind in ('valu', 'mfma'): n = max(n, 5)
    elif p.kind == 'mfma':
        big = p.passes == 8
        if c.kind == 'mfma':
            if p.dst & (c.A | c.B): n = max(n, 12 if big else 8)
            if p.dst & c.C:
                if not (p.dst == c.C and p.op == c.op): n = max(n, 10 if big else 6)
            elif p.dst & c.dst and not (p.dst == c.dst and p.passes == c.passes):
                n = max(n, 10 if big else 6)
        elif c.kind in ('valu', 'vmem', 'ds'):
            if p.dst & (c.src | c.dst): n = max(n, 12 if big else 8)
            if c.kind == 'valu' and (p.C & c.dst): n = max(n, 7 if big else 3)
    elif p.kind == 'vmem':
        if p.wide and (p.wide & c.dst): n = max(n, 2 if c.kind in ('valu','mfma') else 1)
    elif p.kind == 'salu':
        if 'm0' in p.dst and c.lds_dma: n = max(n, 1)
    return n

STRICT = False
class Asm:
    def __init__(self):
        self.L = []
        self.lq = []
        self.vq = []
        self.smem = False
        self.auto = True
        self.uid = 0
    def newlabel(self, p='L'):
        self.uid += 1
        return f'{p}_{self.uid}'
    def raw(self, text):
        self.L.append(Ins(text))
    def e(self, text):
        for line in text.split('\n'):
            line = line.strip()
            if not line: continue
            self._e(line)
    def _e(self, line):
        i = Ins(line)
        if i.op == 's_waitcnt':
            m = re.search(r'vmcnt\((\d+)\)', line)
            if m:
                n = int(m.group(1)); self.vq = self.vq[len(self.vq) - n:] if n < len(self.vq) and n > 0 else ([] if n == 0 else self.vq)
            m = re.search(r'lgkmcnt\((\d+)\)', line)
            if m:
                n = int(m.group(1))
                if n == 0: self.lq = []; self.smem = False
                elif n < len(self.lq): self.lq = self.lq[len(self.lq) - n:]
            self.L.append(i); return
        if self.auto and i.kind not in ('none', 'label'):
            touched = i.src | i.dst
            w = []
            for k in range(len(self.vq) - 1, -1, -1):
                if self.vq[k] & touched:
                    n = len(self.vq) - 1 - k
                    n = min(n, 63)
                    w.append(f'vmcnt({n})'); self.vq = self.vq[len(self.vq) - n:] if n else []
                    break
            for k in range(len(self.lq) - 1, -1, -1):
                if self.lq[k] & touched:
                    n = len(self.lq) - 1 - k
                    if self.smem: n = 0
                    n = min(n, 15)
                    w.append(f'lgkmcnt({n})'); self.lq = self.lq[len(self.lq) - n:] if n else []
                    if n == 0: self.smem = False
                    break
            if w: self.L.append(Ins('s_waitcnt ' + ' '.join(w)))
        if i.kind == 'ds': self.lq.append(set(i.dst))
        elif i.kind == 'smem': self.lq.append(set(i.dst)); self.smem = True
        elif i.kind == 'vmem': self.vq.append(set(i.dst))
        self.L.append(i)
    def lds_wait_all_but(self, n):
        self.e(f's_waitcnt lgkmcnt({n})')
    def mark_l(self):
        self.uid += 1
        s = {'#tok%d' % self.uid}
        if self.lq: self.lq[-1] = self.lq[-1] | s
        return s
    def wait_l(self, tok):
        for k in range(len(self.lq) - 1, -1, -1):
            if self.lq[k] & tok:
                n = min(len(self.lq) - 1 - k, 15)
                if self.smem: n = 0
                self.e(f's_waitcnt lgkmcnt({n})'); return
    def mark_v(self):
        self.uid += 1
        s = {'#tok%d' % self.uid}
        if self.vq: self.vq[-1] = self.vq[-1] | s
        return s
    def wait_v(self, tok):
        for k in range(len(self.vq) - 1, -1, -1):
            if self.vq[k] & tok:
                n = min(len(self.vq) - 1 - k, 63)
                self.e(f's_waitcnt vmcnt({n})'); return
    def finish(self):
        L = self.L
        out = []
        def req(hist, c):
            H = []
            for p in reversed(hist):
                if p.kind in ('none', 'label'): continue
                if p.op in ('s_branch', 's_endpgm'): break
                H.append(p)
                if len(H) >= 14: break
            H.reverse()
            n = 0
            for k, p in enumerate(H):
                nd = need(p, c)
                if nd == 0: continue
                t = 0; free = 0
                for x in H[k:]:
                    if x.kind == 'mfma' and not STRICT:
                        t = max(t, free); free = t + (2 if 'x16_bf16' in x.op and '16x16' in x.op else x.passes)
                    t += x.states
                if c.kind == 'mfma' and not STRICT and free >= nd + 1: continue
                if nd + 1 - t > n: n = nd + 1 - t
            return n
        for c in L:
            if c.kind not in ('none', 'label'):
                n = req(out[-40:], c)
                if n > 0: out.append(Ins(f's_nop {n-1}'))
            out.append(c)
        changed = True
        while changed:
            changed = False
            pos = {c.label: k for k, c in enumerate(out) if c.kind == 'label'}
            for k, b in enumerate(out):
                if b.kind != 'branch' or b.target not in pos: continue
                hist = [x for x in out[max(0, k - 40):k]] + [Ins('s_nop 0')]
                j = pos[b.target]; worst = 0; d = 0
                while j < len(out) and d < 13:
                    c = out[j]
                    if c.kind not in ('none', 'label'):
                        n = req(hist, c)
                        worst = max(worst, n)
                        if c.op in ('s_branch', 's_endpgm'): break
                        x = Ins('s_nop %d' % (c.states - 1)); hist.append(x); d += c.states
                    j += 1
                if worst > 0:
                    out.insert(k, Ins(f's_nop {worst-1}')); changed = True; break
        self.out = out
        return '\n'.join((c.text if c.kind == 'label' else '  ' + c.text) for c in out) + '\n'

def vr(a, n=1, p='v'):
    return f'{p}{a}' if n == 1 else f'{p}[{a}:{a+n-1}]'
```

```python
FLAGS = 0x0
MRING = 0x6000000
MSTR  = 16384
TS    = 2176
STAMP = 0xF0000
XN    = 0x100000
KV    = 0x400000
H     = 0xC00000
PRING = 0xF00000
PSTR  = 0x80000
RING  = 0x1000000
RSLOT = 0x100000
PS    = 18688
QB    = 0x2200000
KVX   = 0x3800000
WS_BYTES = 0x10000000
OOB = 0x40000000
```

```python
from asmlib import *
from layout import *

S_WS = 4
S_RA = 8
S_RB = 12
P_X, P_MEM0, P_WQ, P_WK, P_WV, P_WO, P_WG, P_WU, P_WD, P_OUT, P_DBG, P_WSP = 16, 18, 20, 22, 24, 26, 32, 34, 36, 38, 40, 42
S_W = 44
S_H = 45
WS = f's[{S_WS}:{S_WS+3}]'

def srd(a, d, ptr, nbytes):
    a.e(f's_mov_b32 s{d}, s{ptr}\ns_mov_b32 s{d+1}, s{ptr+1}\ns_mov_b32 s{d+2}, {nbytes}\ns_mov_b32 s{d+3}, 0x20000')

L_KX = 0
L_MEM = 8192
L_QK = 16384
L_OI = 21504
L_ZERO = 23552
L_DUMMY = 24064
L_W0 = 24576
L_WSTR = 34816

vL16, vW, vZ, vXw, vO, vP, vMst, vIdx, vSel, vT, vT2, vL8 = range(12)
MB = [12, 16, 20]
QA, KA, VA = 24, 32, 64
SB = [40, 48, 56]
SMF = 'v_smfmac_f32_16x16x64_bf16'
MF32 = 'v_mfma_f32_16x16x32_bf16'
MF16 = 'v_mfma_f32_16x16x16_bf16'

(sStep, sME, sML, sM8, sMwr, sPA, sPB, sPD, sPrd, sKx, sKv, sSpin, sT0, sT1, sT2, sC) = range(46, 62)
sOne = 62
sF = 64
sStamp = 76
sFlg, sRdy = 73, 74

P1SEQ = []
for i in range(3): P1SEQ += [('q', i, 0), ('q', i, 1), ('k', i, 0), ('k', i, 1), ('v', i, 0), ('v', i, 1)]
for i in range(3, 7): P1SEQ += [('q', i, 0), ('q', i, 1), ('k', i, 0), ('k', i, 1)]
P1SEQ += [('q', 7, 0), ('q', 7, 1), ('q', 8, 0), ('q', 8, 1), ('k', 7, 0), ('k', 7, 1), ('k', 8, 0), ('k', 8, 1)]
P1_LDS_POS = [0, 2, 4, 16, 18, 20, 25, 27, 29, 34, 36, 38]
LDS_P1 = [P1SEQ[p] for p in P1_LDS_POS]
WO_SEQ = [(4, 0), (0, 0), (1, 0), (2, 0), (3, 0)] + [(4, a) for a in (1, 2, 3)] + \
         [(u, a) for a in (1, 2, 3) for u in (0, 1)] + [(u, a) for a in (1, 2, 3) for u in (2, 3)]
WO_LDS_POS = [3, 4, 9, 14, 17]
LDS_WO = [('o',) + WO_SEQ[p] for p in WO_LDS_POS]

def alloc():
    slots = [('a', 8 * i) for i in range(32)] + [('v', 72 + 8 * i) for i in range(23)]
    reg = {}; lds = {}
    for n, k in enumerate(LDS_P1 + LDS_WO): lds[k] = n * 2048
    assert len(lds) == 17
    k = 0
    for m in 'qkv':
        for i in range(9):
            for t in range(2):
                if (m, i, t) not in lds:
                    reg[(m, i, t)] = slots[k]; k += 1
    for u in range(4):
        for a in range(4):
            if ('o', u, a) not in lds:
                reg[('o', u, a)] = slots[k]; k += 1
    for a in range(4):
        p, b = slots[k + a // 2]
        reg[('o', 4, a)] = (p, b + 4 * (a & 1))
    k += 2
    assert k == 55
    return reg, lds
REG, LDS = alloc()

def frag_of(i, w):
    return w if i == 0 else 4 + w if i == 1 else 8 if i == 2 else (w ^ (i - 2)) if i < 6 else 4 + (w ^ (i - 5))

def rec_setup(a):
    e = a.e
    e(f'''v_and_b32 v12, 63, v0
    v_and_b32 v13, 15, v12
    v_lshrrev_b32 v14, 4, v12
    v_lshlrev_b32 v{vL16}, 4, v12
    v_lshlrev_b32 v{vL8}, 3, v12
    s_mul_i32 s{sT0}, s{S_W}, {L_WSTR}
    s_add_u32 s{sT0}, s{sT0}, {L_W0}
    v_add_u32 v{vW}, s{sT0}, v{vL16}
    v_and_b32 v15, 1, v14
    v_lshrrev_b32 v16, 1, v14
    v_and_b32 v17, 3, v13
    v_lshrrev_b32 v18, 2, v13
    v_lshl_add_u32 v{vXw}, v14, 6, v{vL16}''')
    e(f'''v_and_b32 v19, 1, v13
    v_lshl_add_u32 v19, v18, 1, v19
    v_lshl_add_u32 v19, v14, 3, v19
    v_lshlrev_b32 v{vO}, 4, v19''')
    e(f'''v_mul_u32_u24 v{vZ}, 320, v17
    v_lshl_add_u32 v19, v16, 3, v18
    v_lshl_add_u32 v{vZ}, v19, 4, v{vZ}
    v_lshl_add_u32 v{vZ}, v15, 3, v{vZ}''')
    e(f'''v_lshrrev_b32 v19, 3, v12
    v_mul_u32_u24 v{vP}, {TS}, v19
    v_and_b32 v19, 7, v12
    v_lshl_add_u32 v{vP}, v19, 4, v{vP}
    v_mov_b32 v21, 0x88884444
    v_mov_b32 v22, 0xDDDDEEEE
    v_and_b32 v19, 2, v13
    v_cmp_eq_u32 vcc, 0, v19
    v_cndmask_b32 v{vIdx}, v22, v21, vcc
    v_mov_b32 v21, 0x3f80
    v_mov_b32 v22, 0x3f800000
    v_and_b32 v19, 1, v13
    v_cmp_eq_u32 vcc, 0, v19
    v_cndmask_b32 v{vSel}, v22, v21, vcc''')
    e(f'''s_lshr_b32 s{sT0}, s{S_H}, 3
    s_lshl_b32 s{sT1}, s{S_W}, 2
    s_add_u32 s{sT0}, s{sT0}, s{sT1}
    s_lshl_b32 s{sT0}, s{sT0}, 10
    s_and_b32 s{sT1}, s{S_H}, 1
    s_lshl_b32 s{sT1}, s{sT1}, 9
    s_add_u32 s{sT0}, s{sT0}, s{sT1}
    s_bfe_u32 s{sT1}, s{S_H}, 0x20001
    s_lshl_b32 s{sT1}, s{sT1}, 6
    s_add_u32 s{sT0}, s{sT0}, s{sT1}
    v_lshlrev_b32 v19, 4, v15
    v_lshl_add_u32 v19, v16, 1, v19
    v_add_u32 v19, v19, v18
    v_lshlrev_b32 v19, 4, v19
    v_lshl_add_u32 v19, v17, 2, v19
    v_add_u32 v19, s{sT0}, v19
    s_lshl_b32 s{sT0}, s{S_H}, 5
    s_add_u32 s{sT0}, s{sT0}, 8192
    v_lshl_add_u32 v20, v15, 1, v16
    v_lshlrev_b32 v20, 2, v20
    v_lshl_add_u32 v20, v13, 4, v20
    v_add_u32 v20, s{sT0}, v20
    s_cmp_eq_u32 s{S_W}, 2
    s_cselect_b64 vcc, -1, 0
    s_cselect_b32 s{sT0}, 2, 8
    v_cndmask_b32 v19, v19, v20, vcc''')
    e(f'''v_bfe_u32 v20, v19, 6, 2
    v_bfe_u32 v21, v19, 4, 1
    v_lshl_add_u32 v20, v20, 1, v21
    v_mul_u32_u24 v20, 1152, v20
    v_lshrrev_b32 v21, 8, v19
    v_lshl_add_u32 v20, v21, 5, v20
    v_bfe_u32 v21, v19, 5, 1
    v_lshl_add_u32 v20, v21, 4, v20
    v_and_b32 v21, 8, v19
    v_add_u32 v20, v20, v21
    v_bfe_u32 v21, v19, 2, 1
    v_lshl_add_u32 v20, v21, 1, v20
    v_mov_b32 v21, {OOB}
    v_cmp_gt_u32 vcc, s{sT0}, v13
    v_cndmask_b32 v{vMst}, v21, v19, vcc
    v_cndmask_b32 v20, v21, v20, vcc''')
    e(f'''s_lshl_b32 s{sT0}, s{S_W}, 5
    s_add_u32 s{sT0}, s{sT0}, s{S_H}
    s_mul_i32 s{sPrd}, s{sT0}, {TS}
    s_add_u32 s{sPrd}, s{sPrd}, {PRING}
    s_mul_i32 s{sT0}, s{S_W}, {8*TS}
    s_add_u32 s{sT0}, s{sT0}, {PRING}
    s_lshl_b32 s{sT1}, s{S_H}, 7
    s_add_u32 s{sPA}, s{sT0}, s{sT1}
    s_add_u32 s{sPB}, s{sPA}, {32*TS}
    s_lshr_b32 s{sT1}, s{S_H}, 2
    s_lshl_b32 s{sT1}, s{sT1}, 7
    s_add_u32 s{sPD}, s{sT0}, s{sT1}
    s_and_b32 s{sT1}, s{S_H}, 3
    s_lshl_b32 s{sT1}, s{sT1}, 2
    s_add_u32 s{sPD}, s{sPD}, s{sT1}
    s_add_u32 s{sPD}, s{sPD}, {64*TS}''')
    skip = a.newlabel('R_nopre')
    srd(a, S_RA, P_MEM0, 9216)
    e(f'''v_mov_b32 v24, 0
    v_mov_b32 v25, 0
    ds_write_b64 v{vL8}, v[24:25] offset:{L_ZERO}
    s_cmp_eq_u32 s{S_W}, 3
    s_cbranch_scc1 {skip}
    buffer_load_ushort v22, v20, s[{S_RA}:{S_RA+3}], 0 offen
    buffer_load_ushort v23, v20, s[{S_RA}:{S_RA+3}], 0 offen offset:4
    v_mov_b32 v24, -1
    v_mov_b32 v25, -1
    v_mov_b32 v26, -1
    v_mov_b32 v27, -1
    s_add_u32 s{sT0}, s{sPrd}, {PSTR}''')
    for l in range(4):
        e(f'buffer_store_dwordx4 v[24:27], v{vL16}, {WS}, s{sPrd} offen offset:{l*1024} sc1')
        e(f'buffer_store_dwordx4 v[24:27], v{vL16}, {WS}, s{sT0} offen offset:{l*1024} sc1')
    for k in (1, 2, 3):
        e(f's_mov_b32 s{sT0}, {MRING + k*MSTR}')
        e(f'buffer_store_dword v24, v{vMst}, {WS}, s{sT0} offen sc1')
    e(f'''v_lshl_or_b32 v22, v23, 16, v22
    s_mov_b32 s{sT0}, {MRING}
    buffer_store_dword v22, v{vMst}, {WS}, s{sT0} offen sc1
    s_waitcnt vmcnt(0)
    {skip}:
    s_waitcnt lgkmcnt(0)''')

def rec_load(a):
    e = a.e
    RA = f's[{S_RA}:{S_RA+3}]'; RB = f's[{S_RB}:{S_RB+3}]'
    srd(a, S_RA, P_WO, 32 * 147456)
    e(f'''v_lshl_add_u32 v19, v15, 1, v16
    v_mul_u32_u24 v19, {4*1152}, v19
    v_lshrrev_b32 v20, 1, v13
    v_lshl_add_u32 v19, v20, 4, v19
    v_and_b32 v20, 1, v13
    v_lshl_add_u32 v19, v20, 2, v19
    v_add_u32 v20, {16*1152}, v19
    s_mul_i32 s{sT0}, s{S_H}, 147456
    s_lshl_b32 s{sT1}, s{S_W}, 7
    s_add_u32 s{sT0}, s{sT0}, s{sT1}''')
    for k in range(4):
        e(f'''s_xor_b32 s{sT1}, s{S_W}, {k}
        s_mul_i32 s{sT1}, s{sT1}, {32*1152}
        s_add_u32 s{sF+k}, s{sT0}, s{sT1}''')
    tmp = {k: ('v', 24 + 8 * n) for n, k in enumerate(LDS_WO)}
    for k in range(4):
        for rho in range(8):
            for u in range(4):
                key = ('o', u, k)
                p, b = tmp[key] if key in tmp else REG[key]
                e(f'buffer_load_dword {p}{b+rho}, v{19 + (rho >> 2)}, {RA}, s{sF+k} offen offset:{(rho & 3)*1152 + (u >> 1)*512 + (u & 1)*8}')
    e(f'''v_lshrrev_b32 v21, 1, v12
    v_mul_u32_u24 v21, 1152, v21
    v_and_b32 v22, 1, v12
    v_lshl_add_u32 v21, v22, 4, v21
    s_mul_i32 s{sT1}, s{S_W}, 96
    s_sub_u32 s{sT1}, 1024, s{sT1}
    v_add_u32 v21, s{sT1}, v21
    s_mul_i32 s{sC}, s{S_W}, {L_WSTR}
    s_add_u32 s{sC}, s{sC}, {L_W0}''')
    e(f'''v_lshlrev_b32 v23, 4, v16
    v_lshl_add_u32 v23, v15, 2, v23
    v_add_u32 v22, v23, v18
    v_lshlrev_b32 v22, 5, v22
    v_lshl_add_u32 v22, v17, 3, v22
    v_add_u32 v22, s{sC}, v22''')
    e(f'''v_and_b32 v64, 1, v18
    v_lshl_add_u32 v23, v64, 1, v23
    v_lshrrev_b32 v64, 1, v18
    v_lshl_add_u32 v23, v64, 3, v23
    v_lshlrev_b32 v23, 5, v23
    v_lshl_add_u32 v23, v17, 3, v23
    v_add_u32 v23, s{sC}, v23''')
    NS = 17
    blocks = [('d', 0, 0), ('d', 1, 0)] + [(m, i, t) for m in 'qkv' for i in range(9) for t in range(2) if (m, i, t) not in LDS] + list(LDS_P1)
    nb = len(blocks)
    first_l = nb - len(LDS_P1)
    slot = lambda n: (n - first_l) % NS
    toks = {}
    state = {'m': None}
    def issue(n):
        m, i, t = blocks[n]
        base = slot(n) * 2048
        if m == 'd':
            for k in range(2):
                e(f's_add_u32 m0, s{sC}, {base + k*1024}')
                e(f'buffer_load_dwordx4 v21, {RA}, s{sF+2*i+k} offen lds')
            if i == 1:
                e(f'''v_lshrrev_b32 v21, 1, v12
                v_lshlrev_b32 v21, 13, v21
                v_and_b32 v64, 1, v12
                v_lshl_add_u32 v21, v64, 5, v21
                s_lshl_b32 s{sT0}, s{S_H}, 8
                s_lshl_b32 s{sT1}, s{S_W}, 6
                s_add_u32 s{sT0}, s{sT0}, s{sT1}''')
                for ii in range(9):
                    if ii == 2:
                        e(f's_add_u32 s{sF+ii}, s{sT0}, {8*64*8192}')
                    else:
                        f0 = frag_of(ii, 0)
                        e(f'''s_xor_b32 s{sT1}, s{S_W}, {f0}
                        s_lshl_b32 s{sT1}, s{sT1}, 19
                        s_add_u32 s{sF+ii}, s{sT0}, s{sT1}''')
        else:
            if state['m'] != m:
                srd(a, S_RB, {'q': P_WQ, 'k': P_WK, 'v': P_WV}[m], 576 * 8192)
                state['m'] = m
            for k in range(2):
                e(f's_add_u32 m0, s{sC}, {base + k*1024}')
                e(f's_add_u32 s{sT0}, s{sF+i}, {k*32*8192 + t*16}')
                e(f'buffer_load_dwordx4 v21, {RB}, s{sT0} offen lds')
        toks[n] = a.mark_v()
    def consume(n):
        key = blocks[n]; m, i, t = key
        base = slot(n) * 2048
        a.wait_v(toks[n])
        if m == 'd':
            for k in range(2):
                p, b = REG[('o', 4, 2*i+k)]
                for u in range(2):
                    e(f'ds_read_b64_tr_b16 {vr(b+2*u,2,p)}, v22 offset:{base + k*1024 + u*256}')
        else:
            p, b = REG[key] if key not in LDS else ('v', 64)
            for rho in (0, 2, 4, 6):
                e(f'ds_read_b64_tr_b16 {vr(b+rho,2,p)}, v23 offset:{base + (32*(rho>>2) + ((rho>>1)&1))*32}')
            if key in LDS:
                e('s_waitcnt lgkmcnt(0)')
                assert LDS[key] == base
                for hh in range(2):
                    e(f'ds_write_b128 v{vW}, {vr(64+4*hh,4)} offset:{base + hh*1024}')
        e('s_waitcnt lgkmcnt(0)')
    for n in range(NS): issue(n)
    for n in range(nb):
        if n == first_l:
            for key, (p, b) in tmp.items():
                for hh in range(2):
                    e(f'ds_write_b128 v{vW}, {vr(b+4*hh,4)} offset:{LDS[key] + hh*1024}')
            e('s_waitcnt lgkmcnt(0)')
        consume(n)
        if n + NS < nb: issue(n + NS)

def wfrag(key):
    p, b = REG[key]
    return vr(b, 4 if key[:2] == ('o', 4) else 8, p)

def rec_init(a, rdy0=0):
    e = a.e
    e(f'''s_mov_b32 s{sStep}, 0
    s_lshl_b32 s{sT0}, s{S_H}, 14
    s_lshl_b32 s{sT1}, s{S_W}, 12
    s_add_u32 s{sKx}, s{sT0}, s{sT1}
    s_add_u32 s{sKx}, s{sKx}, {KVX}
    s_lshl_b32 s{sKv}, s{S_H}, 12
    s_mov_b32 s{sRdy}, {rdy0}
    s_lshr_b32 s{sFlg}, s{S_H}, 1
    s_lshl_b32 s{sFlg}, s{sFlg}, 6
    s_add_u32 s{sKv}, s{sKv}, {KV}
    s_mov_b32 s{sC}, 0x3e0293ee
    s_mov_b32 s{sOne}, 0x3f803f80
    s_mov_b32 s{sOne+1}, 0x3f803f80
    s_mov_b32 s{sSpin}, 0x40000''')
    for k in range(4):
        tl, tok = k >> 1, k & 1
        m16 = sum(1 << (4 * tok + 2 * tl + par) for par in range(2))
        m32 = m16 | (m16 << 16)
        e(f's_mov_b32 s{sF+2*k}, {m32}\ns_mov_b32 s{sF+2*k+1}, {m32}')
    for n in range(3):
        for hh in range(2):
            e(f'ds_read_b128 {vr(SB[n]+4*hh,4)}, v{vW} offset:{LDS[LDS_P1[n]] + hh*1024}')
    e('s_waitcnt lgkmcnt(0)')
def rec_disp(a, tag):
    for w in range(1, 4):
        a.e(f's_cmp_eq_u32 s{S_W}, {w}\ns_cbranch_scc1 {tag}{w}_step')

def rec_loop(a, w, stamps=None, fin='R_done', abl=(), tag='R', cs=''):
    e = a.e
    a.lq = []; a.vq = []
    def stamp(name, at=40):
        if stamps is None or name not in stamps: return
        k = stamps.index(name)
        lab = a.newlabel('st')
        a.raw(f's_cmp_eq_u32 s{sStep}, {at}'); a.raw(f's_cbranch_scc0 {lab}')
        a.raw(f's_memtime s[{sStamp+2*k}:{sStamp+2*k+1}]'); a.raw(f'{lab}:')
    def ldw(key, buf, hh): return f'ds_read_b128 {vr(buf+4*hh,4)}, v{vW} offset:{LDS[key] + hh*1024}'
    def ldmem(i, r): return f'ds_read_b128 {vr(r,4)}, v{vL16} offset:{L_MEM + frag_of(i, w)*1024}'
    def ldkx(kap, T, r): return f'ds_read_b128 {vr(r,4)}, v{vL16} offset:{L_KX + kap*2048 + T*1024}'
    def ldzero(r): return f'ds_read_b128 {vr(r,4)}, v{vO} offset:{L_ZERO}'
    def zero(r, n):
        for k in range(0, n, 2): e(f'v_mov_b64 {vr(r+k,2)}, 0')
    lbuf = {k: SB[n % 3] for n, k in enumerate(LDS_P1)}
    L = lambda s: f'{tag}{w}_{s}'
    e(f'{L("step")}:')
    e(f's_cmp_gt_u32 s{sRdy}, s{sStep}\ns_cbranch_scc0 {L("flg")}')
    e(f'''s_and_b32 s{sT0}, s{sStep}, 3
    s_lshl_b32 s{sT0}, s{sT0}, 14
    s_add_u32 s{sM8}, s{sT0}, {MRING + 8192}
    s_add_u32 s{sME}, s{sT0}, {MRING + w*1024}
    s_add_u32 s{sML}, s{sT0}, {MRING + (4+w)*1024}''')
    stamp('step')
    e(f'{L("pollm")}:')
    e(f'''buffer_load_dwordx4 {vr(MB[0],4)}, v{vL16}, {WS}, s{sME} offen sc1
    buffer_load_dwordx4 {vr(MB[1],4)}, v{vL16}, {WS}, s{sML} offen sc1
    buffer_load_dwordx4 {vr(MB[2],4)}, v{vL16}, {WS}, s{sM8} offen sc1
    s_sub_u32 s{sSpin}, s{sSpin}, 1
    s_cbranch_scc1 {fin}''')
    zero(QA, 16); zero(VA, 8)
    e(f's_mov_b32 m0, {L_KX + w*2048}')
    e('s_waitcnt lgkmcnt(0)')
    acc = {'q': QA, 'k': KA, 'v': VA}
    mbuf = {i: MB[i % 3] for i in range(9)}
    fill = {n: [] for n in range(-1, 60)}
    E, Lt, F8 = MB
    X = SB[0]
    fill[-1] += [f'ds_write_b128 v{vL16}, {vr(E,4)} offset:{L_MEM + w*1024}']
    fill[0] += [f'v_max3_u32 v{vT}, v{E}, v{E+1}, v{E+2}']
    fill[3] += [f'ds_write_b128 v{vL16}, {vr(Lt,4)} offset:{L_MEM + (4+w)*1024}', f'v_max3_u32 v{vT}, v{vT}, v{E+3}, v{Lt}']
    fill[4] += [f'v_max3_u32 v{vT}, v{vT}, v{Lt+1}, v{Lt+2}', f'v_max_u32 v{vT}, v{vT}, v{Lt+3}']
    fill[5] += [f'v_cmp_eq_u32 vcc, -1, v{vT}', f's_cbranch_vccnz {L("pollm")}', '#gotm']
    fill[6] += ['s_waitcnt lgkmcnt(0)', 's_barrier', ldmem(3, MB[0])]
    for k in range(3):
        for hh in range(2): fill[7 + 2*k + hh].append(ldw(LDS_P1[3+k], SB[k], hh))
    fill[8] += [f'v_max3_u32 v{vT}, v{F8}, v{F8+1}, v{F8+2}']
    fill[9] += [f'v_max_u32 v{vT}, v{vT}, v{F8+3}']
    fill[10] += [f'v_cmp_eq_u32 vcc, -1, v{vT}', f's_cbranch_vccnz {L("re8")}', f'{L("got8")}:']
    lastuse = {}
    for n, (m, i, t) in enumerate(P1SEQ): lastuse[i] = n
    for i in range(1, 6): fill[lastuse[i]].insert(0, ldmem(i + 3, mbuf[i]))
    for k in range(3, 9):
        for hh in range(2): fill[P1_LDS_POS[k] + hh].append(ldw(LDS_P1[k+3], SB[k % 3], hh))
    fill[12] += [f'buffer_load_dwordx4 v{vL16}, {WS}, s{sKx} offen sc1 lds']
    fill[15] += [f'buffer_load_dwordx4 v{vL16}, {WS}, s{sKx} offen offset:1024 sc1 lds', '#kx']
    if 'nopf' not in abl:
        fill[22] += [f'v_lshlrev_b32 v{vT2}, 2, v{vL16}', f's_mov_b32 m0, {L_DUMMY}', f's_add_u32 s{sT0}, s{sKx}, {32*16384}']
    def add(r): return f'v_add_f32 v{r}, v{r}, v{r+2}'
    def cvt(d, r): return f'v_cvt_pk_bf16_f32 v{d}, v{r}, v{r+1}'
    fill[38] += [add(QA)]
    fill[39] += [add(QA+1)]
    fill[40] += [add(QA+4)]
    fill[41] += [add(QA+5), cvt(X+1, QA), cvt(X+3, QA+4)]
    tok = {}
    def emit(lst):
        for x in lst:
            if x == '#gotm': stamp('gotm'); stamp('gotm2', 41)
            elif x == '#kx': tok['kx'] = a.mark_v()
            else: e(x)
    emit(fill[-1])
    for n, key in enumerate(P1SEQ):
        m, i, t = key
        wv = vr(lbuf[key], 8) if key in LDS else wfrag(key)
        e(f'{SMF} {vr(acc[m]+4*t,4)}, {vr(mbuf[i],4)}, {wv}, v{vIdx}')
        emit(fill[n])
    stamp('p1end')
    def vm(i, t, r): e(f'{SMF} {vr(VA+4*t,4)}, {vr(r,4)}, {wfrag(("v",i,t))}, v{vIdx}')
    VX = QA
    vm(6, 0, MB[0])
    e(add(KA)); e(add(KA+1)); e(cvt(X, KA)); e(cvt(vL8, KA))
    vm(6, 1, MB[0])
    e(add(KA+4)); e(add(KA+5)); e(cvt(X+2, KA+4))
    e(f'ds_write_b128 v{vXw}, {vr(X,4)} offset:{L_QK + w*1280}')
    tokx = a.mark_l()
    e(cvt(vT, KA+4))
    e(ldmem(3, MB[0]))
    vm(7, 0, MB[1])
    e(f'buffer_load_dwordx4 {vr(VX,4)}, v{vL16}, {WS}, s{sKx} offen offset:2048 sc1')
    vm(7, 1, MB[1])
    e(ldmem(4, MB[1]))
    e(f'buffer_load_dwordx4 {vr(VX+4,4)}, v{vL16}, {WS}, s{sKx} offen offset:3072 sc1')
    vm(8, 0, MB[2])
    a.wait_v(tok['kx']); a.wait_l(tokx); e('s_barrier')
    Z = 48
    def ldz(kap, u): e(f'ds_read_b64_tr_b16 {vr(Z+4*kap+2*u,2)}, v{vZ} offset:{L_QK + kap*1280 + u*64}')
    ldz(0, 0); ldz(0, 1)
    vm(8, 1, MB[2])
    e(ldkx(0, 0, X)); e(ldmem(5, MB[2]))
    vm(3, 0, MB[0])
    ldz(1, 0); ldz(1, 1)
    vm(3, 1, MB[0])
    e(ldkx(1, 0, MB[0])); ldz(2, 0)
    vm(4, 0, MB[1])
    ldz(2, 1); ldz(3, 0)
    vm(4, 1, MB[1])
    e(ldkx(2, 0, MB[1])); ldz(3, 1)
    stamp('zrdy')
    T0, T1, Tm = KA, KA + 4, 44
    def sc(T, A, kap): e(f'{MF32} {vr(T,4)}, {vr(A,4)}, {vr(Z+4*kap,4)}, {"0" if kap == 0 else vr(T,4)}')
    sc(T0, X, 0); e(ldkx(3, 0, X))
    vm(5, 0, MB[2])
    vm(5, 1, MB[2]); e(ldkx(0, 1, MB[2]))
    sc(T0, MB[0], 1); e(ldkx(1, 1, MB[0]))
    sc(Tm, Z, 0)
    if 'nopf' not in abl: e(f'buffer_load_dword v{vT2}, {WS}, s{sT0} offen sc1 lds')
    sc(T0, MB[1], 2); e(ldkx(2, 1, MB[1]))
    e(add(VA)); e(add(VA+1))
    sc(Tm, Z+4, 1)
    e(add(VA+4)); e(add(VA+5))
    sc(T0, X, 3); e(ldkx(3, 1, X))
    e(cvt(VA+1, VA)); e(cvt(VA+3, VA+4)); e(f'v_mov_b32 v{VA}, v{vL8}\nv_mov_b32 v{VA+2}, v{vT}')
    sc(Tm, Z+8, 2)
    if 'nokv' not in abl: e(f'buffer_store_dwordx4 {vr(VA,4)}, v{vL16}, {WS}, s{sKv} offen offset:{w*1024} sc1')
    sc(Tm, Z+12, 3)
    e(f's_cmp_eq_u32 s{sStep}, 63\ns_cbranch_scc1 {fin}')
    W = [48, 52, 56, 60, MB[2]]
    ONE, PmQ, P = MB[0], MB[1], X
    m_, t_ = vT, vT2
    sc(T1, MB[2], 0); e(ldzero(W[0]))
    e(f'v_max3_f32 v{m_}, v{T0}, v{T0+1}, v{T0+2}')
    sc(T1, MB[0], 1); e(ldzero(W[1]))
    sc(T1, MB[1], 2); e(ldzero(W[2])); e(ldzero(PmQ))
    e(f'v_max3_f32 v{m_}, v{m_}, v{T0+3}, v{Tm}')
    e(f'v_max_f32 v{m_}, v{m_}, v{Tm+1}')
    sc(T1, X, 3); e(ldzero(W[3]))
    e(f'v_mov_b64 {vr(ONE,2)}, s[{sOne}:{sOne+1}]\nv_mov_b64 {vr(ONE+2,2)}, s[{sOne}:{sOne+1}]')
    stamp('sdone')
    e(f'''v_max3_f32 v{m_}, v{m_}, v{T1}, v{T1+1}
    v_max3_f32 v{t_}, v{m_}, v{T1+2}, v{T1+3}
    v_max3_f32 v{m_}, v{m_}, v{T1+2}, v{T1+3}
    v_permlane32_swap_b32 v{m_}, v{t_}
    v_max_f32 v{m_}, v{m_}, v{t_}
    v_mov_b32 v{t_}, v{m_}
    v_permlane16_swap_b32 v{m_}, v{t_}
    v_max_f32 v{m_}, v{m_}, v{t_}
    v_mul_f32 v{m_}, s{sC}, v{m_}''')
    for r in list(range(T0, T0 + 8)) + [Tm, Tm + 1]:
        e(f'v_fma_f32 v{r}, v{r}, s{sC}, -v{m_}')
    for r in list(range(T0, T0 + 8)): e(f'v_exp_f32 v{r}, v{r}')
    for k in range(4): e(cvt(P+k, T0+2*k))
    e(f'v_exp_f32 v{Tm}, v{Tm}\nv_exp_f32 v{Tm+1}, v{Tm+1}')
    O0, O1, LL = KA, KA + 4, MB[2]
    wb = [QA, VA, KA]
    wbuf = {k: wb[n % 3] for n, k in enumerate(LDS_WO)}
    e(f'{MF32} {vr(LL,4)}, {vr(ONE,4)}, {vr(P,4)}, 0')
    e(cvt(PmQ+1, Tm))
    e(f'{MF32} {vr(O0,4)}, {vr(VX,4)}, {vr(P,4)}, 0')
    e(f'{MF32} {vr(O1,4)}, {vr(VX+4,4)}, {vr(P,4)}, 0')
    e(ldw(LDS_WO[0], wb[0], 0)); e(ldw(LDS_WO[0], wb[0], 1))
    e(f'{MF16} {vr(LL,4)}, {vr(ONE,2)}, {vr(PmQ,2)}, {vr(LL,4)}')
    e(f'{MF16} {vr(O0,4)}, {vr(VA,2)}, {vr(PmQ,2)}, {vr(O0,4)}')
    e(f'{MF16} {vr(O1,4)}, {vr(VA+2,2)}, {vr(PmQ,2)}, {vr(O1,4)}')
    e(ldw(LDS_WO[1], wb[1], 0)); e(ldw(LDS_WO[1], wb[1], 1))
    DQ = 'quad_perm:[2,3,2,3] row_mask:0xf bank_mask:0xf'
    e(f'v_rcp_f32_dpp v{t_}, v{LL} {DQ}')
    stamp('pvdone')
    OF = [X, MB[0], MB[1], 44]
    for k in range(4): e(f'v_mul_f32_dpp v{O0+k}, v{O0+k}, v{t_} {DQ}')
    e(cvt(OF[0], O0)); e(cvt(OF[0]+1, O0+2))
    for k in range(4): e(f'v_mul_f32_dpp v{O1+k}, v{O1+k}, v{t_} {DQ}')
    e(cvt(OF[0]+2, O1)); e(cvt(OF[0]+3, O1+2))
    e(f'ds_write_b128 v{vO}, {vr(OF[0],4)} offset:{L_OI + w*512}')
    toko = a.mark_l()
    def cv2(d, r): return [f'v_cvt_pk_bf16_f32 v{d}, v{r}, v{r+2}', f'v_cvt_pk_bf16_f32 v{d+1}, v{r+1}, v{r+3}']
    fill = {n: [] for n in range(20)}
    fill[0] += [ldw(LDS_WO[2], wb[2], 0)]
    fill[1] += [ldw(LDS_WO[2], wb[2], 1)]
    fill[2] += ['#bar'] + [f'ds_read_b128 {vr(OF[k],4)}, v{vO} offset:{L_OI + (w ^ k)*512}' for k in (1, 2, 3)]
    fill[3] += [ldw(LDS_WO[3], wb[0], 0), ldw(LDS_WO[3], wb[0], 1)]
    fill[4] += [ldw(LDS_WO[4], wb[1], 0), ldw(LDS_WO[4], wb[1], 1)]
    fill[9] += [cvt(W[4], W[4])]
    fill[10] += [f'buffer_store_dword v{W[4]}, v{vP}, {WS}, s{sPD} offen{cs}']
    c0 = cv2(W[0], W[0]); c1 = cv2(W[0] + 2, W[1])
    fill[14] += [c0[0]]
    fill[15] += [c0[1], c1[0]]
    fill[16] += [c1[1], f'buffer_store_dwordx4 {vr(W[0],4)}, v{vP}, {WS}, s{sPA} offen{cs}']
    for n, (u, k) in enumerate(WO_SEQ):
        key = ('o', u, k)
        if u == 4:
            e(f'{MF32} {vr(W[4],4)}, {vr(OF[k],4)}, {wfrag(key)}, {"0" if k == 0 else vr(W[4],4)}')
        else:
            wv = vr(wbuf[key], 8) if key in LDS else wfrag(key)
            e(f'{SMF} {vr(W[u],4)}, {vr(OF[k],4)}, {wv}, v{vIdx} abid:1')
        for x in fill[n]:
            if x == '#bar': a.wait_l(toko); e('s_barrier')
            else: e(x)
    SEL, D, NEG, RD = MB[0], MB[1], MB[2], QA
    for n in range(2):
        for hh in range(2): e(ldw(LDS_P1[n], SB[n], hh))
    for x in cv2(W[2], W[2]) + cv2(W[2] + 2, W[3]): e(x)
    e(f'buffer_store_dwordx4 {vr(W[2],4)}, v{vP}, {WS}, s{sPB} offen{cs}')
    stamp('wodone')
    e(f'''s_add_u32 s{sKv}, s{sKv}, {32*4096}
    s_add_u32 s{sKx}, s{sKx}, {32*16384}
    s_add_u32 s{sStep}, s{sStep}, 1''')
    for hh in range(2): e(ldw(LDS_P1[2], SB[2], hh))
    e(f'''s_xor_b32 s{sPA}, s{sPA}, {PSTR}
    s_xor_b32 s{sPB}, s{sPB}, {PSTR}
    s_xor_b32 s{sPD}, s{sPD}, {PSTR}''')
    if w < 3:
        nl = 4 if w < 2 else 1
        for k in range(4):
            e(f'v_cndmask_b32 v{SEL+k}, 0, v{vSel}, s[{sF+2*k}:{sF+2*k+1}]' if w < 2 else f'v_mov_b32 v{SEL+k}, v{vSel}')
        e(f'''v_mov_b64 {vr(NEG,2)}, -1
        v_mov_b64 {vr(NEG+2,2)}, -1
        s_and_b32 s{sT0}, s{sStep}, 3
        s_lshl_b32 s{sT0}, s{sT0}, 14
        s_xor_b32 s{sT1}, s{sT0}, {2*MSTR}
        s_add_u32 s{sT0}, s{sT0}, {MRING}
        s_add_u32 s{sT1}, s{sT1}, {MRING}
        {L("pollp")}:''')
        for l in range(nl): e(f'buffer_load_dwordx4 {vr(RD+4*l,4)}, v{vL16}, {WS}, s{sPrd} offen offset:{l*1024} sc1')
        e(f's_sub_u32 s{sSpin}, s{sSpin}, 1\ns_cbranch_scc1 {fin}')
        for l in range(nl):
            e(f'{MF32} {vr(D,4)}, {vr(RD+4*l,4)}, {vr(SEL,4)}, {"0" if l == 0 else vr(D,4)}')
            r = RD + 4 * l
            if l == 0: e(f'v_max3_u32 v{vT}, v{r}, v{r+1}, v{r+2}\nv_max_u32 v{vT}, v{vT}, v{r+3}')
            else: e(f'v_max3_u32 v{vT}, v{vT}, v{r}, v{r+1}\nv_max3_u32 v{vT}, v{vT}, v{r+2}, v{r+3}')
        e(f'''v_cmp_eq_u32 vcc, -1, v{vT}
        s_cbranch_vccnz {L("pollp")}''')
        stamp('gotp', 41)
        if w < 2:
            e(f'''v_permlane32_swap_b32 v{D}, v{D+2}
            v_permlane32_swap_b32 v{D+1}, v{D+3}
            v_add_f32 v{D}, v{D}, v{D+2}
            v_add_f32 v{D+1}, v{D+1}, v{D+3}
            v_cvt_pk_bf16_f32 v{D}, v{D}, v{D+1}''')
        else:
            e(f'''v_permlane32_swap_b32 v{D}, v{D+1}
            v_permlane32_swap_b32 v{D+2}, v{D+3}
            v_add_f32 v{D}, v{D}, v{D+1}
            v_add_f32 v{D+2}, v{D+2}, v{D+3}
            v_cvt_pk_bf16_f32 v{D}, v{D}, v{D+2}''')
        e(f'''buffer_store_dword v{D}, v{vMst}, {WS}, s{sT0} offen{cs}
        buffer_store_dword v{NEG}, v{vMst}, {WS}, s{sT1} offen{cs}''')
        for l in range(nl): e(f'buffer_store_dwordx4 {vr(NEG,4)}, v{vL16}, {WS}, s{sPrd} offen offset:{l*1024}{cs}')
        e(f's_xor_b32 s{sPrd}, s{sPrd}, {PSTR}')
    if 'nothr' not in abl: e('s_barrier')
    e(f's_branch {L("step")}')
    e(f'''{L("re8")}:
    buffer_load_dwordx4 {vr(F8,4)}, v{vL16}, {WS}, s{sM8} offen sc1
    s_sub_u32 s{sSpin}, s{sSpin}, 1
    s_cbranch_scc1 {fin}
    s_waitcnt vmcnt(0)
    v_max3_u32 v{vT}, v{F8}, v{F8+1}, v{F8+2}
    v_max_u32 v{vT}, v{vT}, v{F8+3}
    v_cmp_eq_u32 vcc, -1, v{vT}
    s_cbranch_vccnz {L("re8")}
    s_branch {L("got8")}''')

    e(f'''{L("flg")}:
    v_lshrrev_b32 v{vT2}, 2, v{vL16}
    buffer_load_dword v{vT}, v{vT2}, {WS}, s{sFlg} offen sc1
    s_sub_u32 s{sSpin}, s{sSpin}, 1
    s_cbranch_scc1 {fin}
    s_waitcnt vmcnt(0)
    v_readlane_b32 s{sRdy}, v{vT}, 4''')
    for k in range(5, 12): e(f'v_readlane_b32 s{sT0}, v{vT}, {k}\ns_min_u32 s{sRdy}, s{sRdy}, s{sT0}')
    e(f'''s_lshl_b32 s{sRdy}, s{sRdy}, 2
    s_max_u32 s{sRdy}, s{sRdy}, 1
    s_sub_u32 s{sRdy}, s{sRdy}, 1
    s_cmp_eq_u32 s{sRdy}, 63
    s_cselect_b32 s{sRdy}, 128, s{sRdy}
    s_branch {L("step")}''')
```

```python
from asmlib import *
from layout import *
from rec2 import S_WS, S_RA, S_RB, S_W, S_H, WS, srd, P_X, P_WQ, P_WK, P_WV, P_WO, P_WG, P_WU, P_WD, P_OUT, P_DBG, MF32, MF16
S_G = 3
RA = f's[{S_RA}:{S_RA+3}]'; RB = f's[{S_RB}:{S_RB+3}]'
MF3 = 'v_mfma_f32_32x32x16_bf16'
L16, LN, LJ, LG, T0, T1, T2, T3 = 1, 2, 3, 4, 5, 6, 7, 8
(t0, t1, t2, t3, sSpin, sK, sA, sB, sC, sD, sE, sF_, sG_, sH_) = range(46, 60)
sFB = 75
FIN = 'K_end'

def cvt(d, x, y): return f'v_cvt_pk_bf16_f32 v{d}, v{x}, v{y}'

def arrive(a, v=5):
    lab = a.newlabel('arr')
    a.e(f'''s_waitcnt vmcnt(0)
    s_barrier
    s_cmp_eq_u32 s{S_W}, 0
    s_cbranch_scc0 {lab}
    s_getreg_b32 s{t0}, hwreg(HW_REG_XCC_ID, 0, 4)
    s_or_b32 s{t0}, s{t0}, 0x80
    v_mov_b32 v{v}, s{t0}
    v_mov_b32 v{v+1}, s2
    s_mov_b64 exec, 1
    global_store_byte v{v+1}, v{v}, s[{P_DBG}:{P_DBG+1}] sc1
    s_mov_b64 exec, -1
    {lab}:''')

def gbar(a, v, spin, ta, tb, force=None):
    lab = a.newlabel('gb')
    a.e(f'''s_mov_b32 s{spin}, 0x40000
    v_mbcnt_lo_u32_b32 v{v}, -1, 0
    v_mbcnt_hi_u32_b32 v{v}, -1, v{v}
    v_lshlrev_b32 v{v}, 2, v{v}
    {lab}:
    global_load_dword v{v+1}, v{v}, s[{P_DBG}:{P_DBG+1}] sc1
    s_sub_u32 s{spin}, s{spin}, 1
    s_cbranch_scc1 {FIN}
    s_waitcnt vmcnt(0)
    v_and_b32 v{v+2}, 0x80808080, v{v+1}
    v_cmp_ne_u32 vcc, 0x80808080, v{v+2}
    s_cbranch_vccnz {lab}
    v_readlane_b32 s{ta}, v{v+1}, 0
    v_readlane_b32 s{tb}, v{v+1}, 1
    v_and_b32 v{v}, 4, v{v}
    v_mov_b32 v{v+2}, s{ta}
    v_cmp_eq_u32 vcc, 0, v{v}
    v_mov_b32 v{v}, s{tb}
    v_cndmask_b32 v{v+2}, v{v}, v{v+2}, vcc
    v_cmp_ne_u32 vcc, v{v+1}, v{v+2}
    s_cmp_lg_u64 vcc, 0
    s_cselect_b32 s{sFB}, 1, 0''')
    if force is not None: a.e(f's_mov_b32 s{sFB}, {force}')

def w_init(a):
    e = a.e
    e(f'''v_and_b32 v{LN}, 63, v0
    v_lshlrev_b32 v{L16}, 4, v{LN}
    v_and_b32 v{LJ}, 15, v{LN}
    v_lshrrev_b32 v{LG}, 4, v{LN}''')
    X0 = 32
    F0 = 72
    srd(a, S_RA, P_X, 2048 * 1152)
    e(f'''s_sub_u32 s{t0}, s{S_G}, 4
    s_lshl_b32 s{t0}, s{t0}, 5
    s_add_u32 s{t0}, s{t0}, s{S_H}
    s_lshl_b32 s{t0}, s{t0}, 1
    s_add_u32 s{sK}, s{t0}, s{S_W}
    s_cmp_ge_u32 s{S_G}, 4
    s_cselect_b32 s{sA}, 1, 0
    s_cmp_lt_u32 s{S_W}, 2
    s_cselect_b32 s{sA}, s{sA}, 0
    v_and_b32 v{T0}, 7, v{LN}
    v_lshrrev_b32 v{T1}, 3, v{LN}
    v_mul_u32_u24 v{T2}, 1152, v{T0}
    v_lshl_add_u32 v{T2}, v{T1}, 4, v{T2}
    s_mul_i32 s{t0}, s{sK}, {8*1152}
    s_cmp_eq_u32 s{sA}, 0
    s_cbranch_scc1 W_noln_a''')
    for n in range(9): e(f'buffer_load_dwordx4 {vr(X0+4*n,4)}, v{T2}, {RA}, s{t0} offen offset:{n*128}')
    e('W_noln_a:')
    a.vq = []
    e(f'''v_mov_b32 v12, -1
    v_mov_b32 v13, -1
    v_mov_b32 v14, -1
    v_mov_b32 v15, -1
    v_lshlrev_b32 v{T3}, 4, v0
    s_sub_u32 s{t0}, s{S_G}, 1
    s_lshl_b32 s{t0}, s{t0}, 5
    s_add_u32 s{t0}, s{t0}, s{S_H}
    s_mul_i32 s{t0}, s{t0}, {12*4096}
    s_add_u32 s{t0}, s{t0}, {KV}''')
    for n in range(12):
        e(f'buffer_store_dwordx4 v[12:15], v{T3}, {WS}, s{t0} offen sc1\ns_add_u32 s{t0}, s{t0}, 4096')
    e(f'''s_lshl_b32 s{t0}, s{S_G}, 21
    s_mul_i32 s{t1}, s{S_H}, {PS}
    s_add_u32 s{t0}, s{t0}, s{t1}
    s_add_u32 s{t0}, s{t0}, {RING}''')
    for sl in range(2):
        for n in range(5):
            e(f's_add_u32 s{t1}, s{t0}, {sl*RSLOT + n*4096}\nbuffer_store_dwordx4 v[12:15], v{T3}, {WS}, s{t1} offen sc1')
    e(f'''s_sub_u32 s{t0}, s{S_G}, 1
    s_lshr_b32 s{t1}, s{t0}, 1
    s_lshl_b32 s{sE}, s{t1}, 4
    s_and_b32 s{t0}, s{t0}, 1
    s_lshl_b32 s{t0}, s{t0}, 3
    s_and_b32 s{t1}, s{S_H}, 7
    s_add_u32 s{sB}, s{t0}, s{t1}
    s_lshl_b32 s{t0}, s{sB}, 6
    s_add_u32 s{sE}, s{sE}, s{t0}
    s_lshr_b32 s{sC}, s{S_H}, 3
    s_lshl_b32 s{t0}, s{sC}, 2
    s_add_u32 s{sE}, s{sE}, s{t0}
    v_mov_b32 v9, {OOB}
    v_cmp_eq_u32 vcc, 0, v0
    v_cndmask_b32 v9, v9, 0, vcc
    v_mov_b32 v10, 0
    buffer_store_dword v10, v9, {WS}, s{sE} offen sc1
    s_cmp_eq_u32 s{sA}, 0
    s_cbranch_scc1 W_noln_b
    s_waitcnt vmcnt(23)''')
    a.vq = []
    def red(r):
        e(f'''v_add_f32_dpp v{r}, v{r}, v{r} row_ror:8 row_mask:0xf bank_mask:0xf
        v_mov_b32 v17, v{r}
        v_permlane16_swap_b32 v{r}, v17
        v_add_f32 v{r}, v{r}, v17
        v_mov_b32 v17, v{r}
        v_permlane32_swap_b32 v{r}, v17
        v_add_f32 v{r}, v{r}, v17''')
    def unpack(src):
        for k in range(36):
            e(f'v_lshlrev_b32 v{F0+2*k}, 16, v{src+k}\nv_and_b32 v{F0+2*k+1}, 0xffff0000, v{src+k}')
    def rbf(r): e(f'v_cvt_pk_bf16_f32 v{r}, v{r}, v{r}\nv_lshlrev_b32 v{r}, 16, v{r}')
    unpack(X0)
    e(f'v_pk_add_f32 v[20:21], {vr(F0,2)}, {vr(F0+2,2)}')
    for k in range(2, 36): e(f'v_pk_add_f32 v[20:21], v[20:21], {vr(F0+2*k,2)}')
    e('v_add_f32 v16, v20, v21'); red(16)
    e(f'v_mul_f32 v16, {hex(f2u(-1/576))}, v16\nv_mov_b32 v18, 0\nv_mov_b32 v19, 0')
    for k in range(36):
        e(f'v_pk_add_f32 v[20:21], {vr(F0+2*k,2)}, v[16:17] op_sel_hi:[1,0]\nv_pk_fma_f32 v[18:19], v[20:21], v[20:21], v[18:19]')
    e('v_add_f32 v18, v18, v19'); red(18)
    e(f'v_mul_f32 v18, {hex(f2u(1/576))}, v18'); rbf(18)
    e(f'v_add_f32 v18, {hex(f2u(1e-5))}, v18'); rbf(18)
    e('v_sqrt_f32 v18, v18'); rbf(18)
    e('v_rcp_f32 v18, v18'); rbf(16)
    for k in range(36):
        e(f'v_pk_add_f32 v[20:21], {vr(F0+2*k,2)}, v[16:17] op_sel_hi:[1,0]\n' + cvt(X0+k, 20, 21))
    unpack(X0)
    for k in range(36):
        e(f'v_pk_mul_f32 v[20:21], {vr(F0+2*k,2)}, v[18:19] op_sel_hi:[1,0]\n' + cvt(X0+k, 20, 21))
    e(f'''v_lshlrev_b32 v{T2}, 4, v{T0}
    v_lshl_add_u32 v{T2}, v{T1}, 9, v{T2}
    s_lshr_b32 s{t0}, s{sK}, 2
    s_mul_i32 s{t0}, s{t0}, 36864
    s_and_b32 s{t1}, s{sK}, 1
    s_lshl_b32 s{t1}, s{t1}, 8
    s_add_u32 s{t0}, s{t0}, s{t1}
    s_and_b32 s{t1}, s{sK}, 2
    s_lshl_b32 s{t1}, s{t1}, 6
    s_add_u32 s{t0}, s{t0}, s{t1}
    s_add_u32 s{t0}, s{t0}, {XN}''')
    for n in range(9):
        e(f'buffer_store_dwordx4 {vr(X0+4*n,4)}, v{T2}, {WS}, s{t0} offen sc1\ns_add_u32 s{t0}, s{t0}, 4096')
    e('W_noln_b:')
    arrive(a)
    a.vq = []

import struct
def f2u(x): return struct.unpack('<I', struct.pack('<f', x))[0]

def qfrag(n): return ('a', 4 * n) if n < 64 else ('v', 224 + 4 * (n - 64))
def q_load(a):
    e = a.e
    e(f'''s_cmp_ge_u32 s{S_G}, 3
    s_cselect_b32 s{S_RA}, s{P_WK}, s{P_WQ}
    s_cselect_b32 s{S_RA+1}, s{P_WK+1}, s{P_WQ+1}
    s_cmp_ge_u32 s{S_G}, 5
    s_cselect_b32 s{S_RA}, s{P_WV}, s{S_RA}
    s_cselect_b32 s{S_RA+1}, s{P_WV+1}, s{S_RA+1}
    s_cselect_b64 vcc, -1, 0
    s_mov_b32 s{S_RA+2}, {576*8192}
    s_mov_b32 s{S_RA+3}, 0x20000
    v_lshrrev_b32 v{T0}, 3, v{LN}
    v_lshlrev_b32 v{T0}, 13, v{T0}
    v_and_b32 v{T1}, 7, v{LN}
    v_lshl_add_u32 v{T0}, v{T1}, 4, v{T0}
    s_lshl_b32 s{t0}, s{sB}, 9
    s_lshl_b32 s{t1}, s{S_W}, 7
    s_add_u32 s{sA}, s{t0}, s{t1}
    s_mul_i32 s{sD}, s{S_W}, {18*2048}''')
    e(f'''v_and_b32 v{T1}, 3, v{LJ}
    v_and_b32 v{T2}, 1, v{LJ}
    v_bfe_u32 v{T3}, v{LJ}, 1, 1
    v_lshl_add_u32 v{T2}, v{T2}, 1, v{T3}
    v_cndmask_b32 v{T1}, v{T2}, v{T1}, vcc
    v_lshlrev_b32 v{T1}, 3, v{T1}
    v_and_b32 v{T2}, 1, v{LG}
    v_lshl_add_u32 v{T1}, v{T2}, 5, v{T1}
    v_lshrrev_b32 v{T2}, 1, v{LG}
    v_lshrrev_b32 v{T3}, 2, v{LJ}
    v_lshl_add_u32 v{T2}, v{T2}, 3, v{T3}
    v_lshl_add_u32 v{T1}, v{T2}, 7, v{T1}
    v_add_u32 v{T1}, s{sD}, v{T1}''')
    toks = {}
    def issue(n):
        for k in range(2):
            e(f's_add_u32 m0, s{sD}, {(n % 18)*2048 + k*1024}')
            e(f'buffer_load_dwordx4 v{T0}, {RA}, s{sA} offen lds')
            e(f's_add_u32 s{sA}, s{sA}, {8*8192}')
        toks[n] = a.mark_v()
    for n in range(18): issue(n)
    for n in range(36):
        a.wait_v(toks[n])
        for t in range(2):
            p, b = qfrag(2 * n + t)
            for u in range(2):
                e(f'ds_read_b64_tr_b16 {vr(b+2*u,2,p)}, v{T1} offset:{(n % 18)*2048 + t*64 + u*512}')
        if n + 18 < 36:
            e('s_waitcnt lgkmcnt(0)'); issue(n + 18)
    e('s_waitcnt lgkmcnt(0)')

def q_main(a):
    e = a.e
    XB = 32; NB = 8; PF = 4
    ACC = [64, 96]; OUT = 128
    vA, vS, vFl = T0, T1, 9
    e(f'''v_and_b32 v{vS}, 7, v{LN}
    v_lshrrev_b32 v{T2}, 4, v{LN}
    v_lshl_add_u32 v{vS}, v{T2}, 3, v{vS}
    v_lshlrev_b32 v{vS}, 4, v{vS}
    v_bfe_u32 v{T2}, v{LN}, 3, 1
    v_lshl_add_u32 v{vS}, v{T2}, 10, v{vS}''')
    e(f'''s_mul_i32 s{sA}, s{sC}, 36864
    s_mul_i32 s{t0}, s{S_W}, 9216
    s_add_u32 s{sA}, s{sA}, s{t0}
    s_add_u32 s{sA}, s{sA}, {XN}
    s_lshl_b32 s{t1}, s{sC}, 5
    s_lshl_b32 s{t2}, s{sB}, 1
    s_add_u32 s{t1}, s{t1}, s{t2}
    s_lshl_b32 s{t1}, s{t1}, 1
    s_add_u32 s{t1}, s{t1}, s{S_W}
    s_cmp_ge_u32 s{S_G}, 3
    s_cselect_b32 s{t2}, 13, 12
    s_mov_b32 s{sF_}, 2048
    s_mov_b32 s{t3}, {QB}
    s_cselect_b32 s{sF_}, 4096, s{sF_}
    s_cselect_b32 s{t3}, {KVX}, s{t3}
    s_lshl_b32 s{sD}, s{t1}, s{t2}
    s_add_u32 s{sD}, s{sD}, s{t3}
    s_lshl_b32 s{sG_}, s{sF_}, 9
    s_cmp_ge_u32 s{S_G}, 5
    s_cselect_b32 s{t2}, 2048, 0
    s_add_u32 s{sD}, s{sD}, s{t2}
    s_sub_u32 s{sD}, s{sD}, s{sG_}
    s_barrier''')
    def dma(n, m0base):
        return [f's_add_u32 m0, s{m0base}, {n*1024 - (n & 3)*1024}' if (n & 3) == 0 else None,
                f's_add_u32 s{t3}, s{sA}, {n*1024 - (n & 3)*1024}' if (n & 3) == 0 else None,
                f'buffer_load_dwordx4 v{L16}, {WS}, s{t3} offen offset:{(n & 3)*1024} sc1 lds']
    for b in range(2):
        e(f's_add_u32 s{t1}, s{t0}, {b*36864}')
        for n in range(9):
            for x in dma(n, t1):
                if x: e(x)
        e(f's_add_u32 s{sA}, s{sA}, {4*36864}')
    e(f'''s_mov_b32 s{sK}, 0
    s_mov_b32 s{sH_}, 0
    v_mov_b32 v{vA}, v{L16}
    s_waitcnt vmcnt(9)
    s_barrier''')
    def rd(k): return f'ds_read_b128 {vr(XB + 4*(k % NB), 4)}, v{vA} offset:{(k % 36)*1024}'
    for k in range(PF): e(rd(k))
    e(f's_cmp_ge_u32 s{S_G}, 5\ns_cbranch_scc1 QV_loop')
    lq0 = list(a.lq)
    def epi(b):
        r = []
        for t in range(2):
            for c in range(2):
                r += [[cvt(OUT + 8*t + 4*c + k, ACC[b] + 16*t + 8*c + 2*k, ACC[b] + 16*t + 8*c + 2*k + 1) for k in range(4)]]
                r += [[f'buffer_store_dwordx4 {vr(OUT + 8*t + 4*c, 4)}, v{vS}, {WS}, s{sD if t == 0 else t2} offen offset:{c*512} sc1']]
        return r
    for var in ('QK', 'QV'):
        a.lq = list(lq0); a.vq = []
        e(f'{var}_loop:')
        for b in range(2):
            fill = {k: [] for k in range(36)}
            fill[0] += [f's_add_u32 s{t2}, s{sD}, s{sF_}', f's_add_u32 s{t1}, s{sH_}, {2*36864}', f's_cmp_ge_u32 s{t1}, {4*36864}',
                        f's_cselect_b32 s{t3}, {4*36864}, 0', f's_sub_u32 s{t1}, s{t1}, s{t3}', f's_add_u32 s{t1}, s{t1}, s{t0}']
            for n, x in enumerate(epi(1 - b)): fill[1 + n] += x
            for n in range(9): fill[10 + 2*n] += [x for x in dma(n, t1) if x]
            fill[28] += [f's_add_u32 s{sA}, s{sA}, {4*36864}', f's_add_u32 s{sD}, s{sD}, s{sG_}', f's_add_u32 s{sH_}, s{sH_}, 36864',
                         f's_cmp_ge_u32 s{sH_}, {4*36864}', f's_cselect_b32 s{sH_}, 0, s{sH_}', f's_max_u32 s{t3}, s{sK}, 1', f's_sub_u32 s{t3}, s{t3}, 1',
                         f'v_mov_b32 v10, s{t3}']
            fill[30] += ['s_waitcnt vmcnt(13)', 's_barrier', f'buffer_store_dword v10, v{vFl}, {WS}, s{sE} offen sc1', f's_add_u32 s{sK}, s{sK}, 1']
            for k in range(36):
                kk = 36 * b + k
                if k + PF == 36: e(f'v_add_u32 v{vA}, s{sH_}, v{L16}')
                e(rd(kk + PF))
                for t in range(2):
                    p, r = qfrag(2 * k + t)
                    W = vr(r, 4, p); X = vr(XB + 4 * (kk % NB), 4); D = vr(ACC[b] + 16 * t, 16)
                    e(f'{MF3} {D}, {W if var == "QK" else X}, {X if var == "QK" else W}, {"0" if k == 0 else D}')
                for x in fill[k]: e(x)
        e(f's_cmp_lt_u32 s{sK}, 16\ns_cbranch_scc1 {var}_loop')
        if var == 'QK': e('s_branch Q_tail')
    e('Q_tail:')
    e(f's_add_u32 s{t2}, s{sD}, s{sF_}')
    for x in epi(1):
        for y in x: e(y)
    e(f'''v_mov_b32 v10, 16
    s_waitcnt vmcnt(0) lgkmcnt(0)
    s_barrier
    buffer_store_dword v10, v{vFl}, {WS}, s{sE} offen sc1''')
    a.vq = []

SEL, NEG = 24, 28
vPS, vP8, vRD, vRes, vXw, vZ, vTr, vMx = 10, 11, 12, 13, 14, 15, 16, 17
(sPW, sPR, sTask) = (61, 62, 63)
def red_setup(a):
    e = a.e
    e(f'''v_mov_b32 v{T0}, 0x3f80
    v_mov_b32 v{T1}, 0x3f800000
    v_and_b32 v{T2}, 1, v{LJ}
    v_cmp_eq_u32 vcc, 0, v{T2}
    v_cndmask_b32 v{T0}, v{T1}, v{T0}, vcc
    v_lshrrev_b32 v{T2}, 1, v{LJ}''')
    for q in range(4):
        e(f'v_cmp_eq_u32 vcc, {q}, v{T2}\nv_cndmask_b32 v{SEL+q}, 0, v{T0}, vcc\nv_mov_b32 v{NEG+q}, -1')
    e(f'''v_lshrrev_b32 v{T0}, 1, v{LG}
    v_lshlrev_b32 v{vP8}, 4, v{LJ}
    v_lshl_add_u32 v{vP8}, v{T0}, 8, v{vP8}
    v_and_b32 v{T0}, 1, v{LG}
    v_lshl_add_u32 v{vP8}, v{T0}, 3, v{vP8}
    v_add_u32 v{vP8}, 4096, v{vP8}
    v_mul_u32_u24 v{vRD}, {PS}, v{LG}
    v_lshl_add_u32 v{vRD}, v{LJ}, 4, v{vRD}
    s_lshl_b32 s{t0}, s{S_G}, 21
    s_add_u32 s{t0}, s{t0}, {RING}
    s_mul_i32 s{t1}, s{S_H}, {PS}
    s_add_u32 s{sPW}, s{t0}, s{t1}
    s_mul_i32 s{t1}, s{S_W}, 4608
    s_add_u32 s{sPW}, s{sPW}, s{t1}
    s_lshl_b32 s{sTask}, s{S_W}, 5
    s_add_u32 s{sTask}, s{sTask}, s{S_H}
    s_lshl_b32 s{t1}, s{sTask}, 8
    s_add_u32 s{sPR}, s{t0}, s{t1}''')

def proj_epi(u, W, sc):
    if u == 8:
        return [cvt(W + 32, W + 32, W + 33), cvt(W + 33, W + 34, W + 35), f'buffer_store_dwordx2 {vr(W+32,2)}, v{vP8}, {WS}, s{sPW} offen{sc}']
    if u & 1 == 0: return []
    r = W + 4 * (u - 1)
    return [cvt(r + k, r + 2*k, r + 2*k + 1) for k in range(4)] + [f'buffer_store_dwordx4 {vr(r,4)}, v{L16}, {WS}, s{sPW} offen offset:{(u >> 1)*1024}{sc}']

def reduce(a, tag, RD, D, sc, res, out):
    e = a.e
    e(f's_cmp_lt_u32 s{sTask}, 72\ns_cbranch_scc0 {tag}_nored')
    res[1]()
    e(f'{tag}_pollp:')
    for l in range(8):
        e(f's_add_u32 s{t0}, s{sPR}, {4*l*PS}\nbuffer_load_dwordx4 {vr(RD+4*l,4)}, v{vRD}, {WS}, s{t0} offen sc1')
    e(f's_sub_u32 s{sSpin}, s{sSpin}, 1\ns_cbranch_scc1 {FIN}')
    for l in range(8):
        r = RD + 4 * l
        e(f'{MF32} {vr(D,4)}, {vr(SEL,4)}, {vr(r,4)}, {"0" if l == 0 else vr(D,4)}')
        if l == 0: e(f'v_max3_u32 v{vMx}, v{r}, v{r+1}, v{r+2}\nv_max_u32 v{vMx}, v{vMx}, v{r+3}')
        else: e(f'v_max3_u32 v{vMx}, v{vMx}, v{r}, v{r+1}\nv_max3_u32 v{vMx}, v{vMx}, v{r+2}, v{r+3}')
    e(f'v_cmp_eq_u32 vcc, -1, v{vMx}\ns_cbranch_vccnz {tag}_pollp')
    R = res[0]; U = RD
    e(cvt(D, D, D + 1)); e(cvt(D + 1, D + 2, D + 3))
    for k in range(2):
        e(f'''v_lshlrev_b32 v{U}, 16, v{D+k}
        v_and_b32 v{U+1}, 0xffff0000, v{D+k}
        v_lshlrev_b32 v{U+2}, 16, v{R+k}
        v_and_b32 v{U+3}, 0xffff0000, v{R+k}
        v_pk_add_f32 {vr(U,2)}, {vr(U,2)}, {vr(U+2,2)}''')
        e(cvt(D + k, U, U + 1))
    e(f'v_permlane16_swap_b32 v{D}, v{D+2}\nv_permlane16_swap_b32 v{D+1}, v{D+3}')
    out()
    for l in range(8):
        e(f's_add_u32 s{t0}, s{sPR}, {4*l*PS}\nbuffer_store_dwordx4 {vr(NEG,4)}, v{vRD}, {WS}, s{t0} offen{sc}')
    e(f'{tag}_nored:\ns_xor_b32 s{sPR}, s{sPR}, {RSLOT}')
    a.vq = []; a.lq = []

def tr_cols(a, rowexpr):
    a.e(rowexpr)
    a.e(f'''v_mul_u32_u24 v{T0}, 1152, v{T0}
    s_mul_i32 s{t0}, s{S_W}, 288
    v_add_u32 v{T0}, s{t0}, v{T0}
    v_and_b32 v{T1}, 3, v{LJ}
    v_lshl_add_u32 v{vTr}, v{T1}, 4, v{T0}
    v_lshl_add_u32 v{T3}, v{T1}, 3, v{T0}
    v_add_u32 v{T3}, 256, v{T3}''')

LA_BUF = 0; LA_BSTR = 20480; LA_IM = 40960
def a_load(a):
    e = a.e
    srd(a, S_RA, P_WO, 32 * 147456)
    e(f'''s_mul_i32 s{t0}, s{S_H}, 147456
    s_mul_i32 s{t1}, s{S_W}, 36864
    s_add_u32 s{t0}, s{t0}, s{t1}''')
    for n in range(36):
        if n & 3 == 0: e(f's_add_u32 m0, s{t1}, {n*1024}\ns_add_u32 s{t2}, s{t0}, {n*1024}')
        e(f'buffer_load_dwordx4 v{L16}, {RA}, s{t2} offen offset:{(n & 3)*1024} lds')
    red_setup(a)
    tr_cols(a, f'''v_lshrrev_b32 v{T0}, 1, v{LG}
    v_lshlrev_b32 v{T0}, 4, v{T0}
    v_and_b32 v{T1}, 1, v{LG}
    v_lshl_add_u32 v{T0}, v{T1}, 2, v{T0}
    v_lshrrev_b32 v{T1}, 2, v{LJ}
    v_add_u32 v{T0}, v{T0}, v{T1}''')
    e('s_waitcnt vmcnt(0)\ns_barrier')
    for kap in range(4):
        for u in range(9):
            for hh in range(2):
                off = hh * 8 * 1152 + (0 if u == 8 else (u >> 1) * 64 + (u & 1) * 8)
                e(f'ds_read_b64_tr_b16 {vr(16*u + 4*kap + 2*hh, 2, "a")}, v{T3 if u == 8 else vTr} offset:{off}')
        e(f'v_add_u32 v{vTr}, {32*1152}, v{vTr}\nv_add_u32 v{T3}, {32*1152}, v{T3}')
    e('s_waitcnt lgkmcnt(0)')
    e(f'''s_lshr_b32 s{t0}, s{S_H}, 1
    s_lshl_b32 s{t0}, s{t0}, 6
    v_lshlrev_b32 v{T0}, 2, v{LJ}
    s_mov_b32 s{sSpin}, 0x40000
    A_waitq:
    buffer_load_dword v{T1}, v{T0}, {WS}, s{t0} offen sc1
    s_sub_u32 s{sSpin}, s{sSpin}, 1
    s_cbranch_scc1 {FIN}
    s_waitcnt vmcnt(0)
    v_cmp_ne_u32 vcc, 16, v{T1}
    s_and_b32 s{t1}, vcc_lo, 0xfff
    s_cbranch_scc1 A_waitq
    s_barrier''')

AQ, AK, AV, ABI, AS, AZ, AKV, AO, AOF, AW = 32, 48, 80, 112, 120, 132, 148, 164, 196, 212
def a_dma(a):
    a.e(f's_lshl_b32 s{t0}, s{S_W}, 12\ns_add_u32 m0, s{sC}, s{t0}')
    for n in range(4): a.e(f'buffer_load_dwordx4 v{L16}, {WS}, s{sA} offen offset:{n*1024} sc1 lds')
    a.e(f'''s_lshl_b32 s{t0}, s{S_W}, 10
    s_add_u32 s{t0}, s{t0}, 16384
    s_add_u32 m0, s{sC}, s{t0}
    s_add_u32 s{sA}, s{sA}, {32*16384}
    buffer_load_dwordx4 v{L16}, {WS}, s{sB} offen sc1 lds
    s_add_u32 s{sB}, s{sB}, {32*8192}''')

def a_init(a):
    e = a.e
    srd(a, S_RA, P_X, 2048 * 1152)
    e(f'''s_sub_u32 s{t3}, s{S_G}, 1
    s_lshl_b32 s{t0}, s{S_H}, 2
    s_add_u32 s{t0}, s{t0}, s{S_W}
    s_lshl_b32 s{sA}, s{t0}, 12
    s_add_u32 s{sA}, s{sA}, {KVX}
    s_lshl_b32 s{sB}, s{t0}, 11
    s_lshl_b32 s{t1}, s{t3}, 10
    s_add_u32 s{sB}, s{sB}, s{t1}
    s_add_u32 s{sB}, s{sB}, {QB}
    s_lshl_b32 s{sD}, s{t0}, 10
    s_add_u32 s{sD}, s{sD}, {KV}
    s_mov_b32 s{sC}, {LA_BUF}''')
    a_dma(a)
    e(f'''s_mul_i32 s{sE}, s{t3}, {16*1152}
    s_lshl_b32 s{t1}, s{sTask}, 8
    s_add_u32 s{sF_}, s{sE}, s{t1}
    s_add_u32 s{sF_}, s{sF_}, {H}
    s_lshl_b32 s{t1}, s{sTask}, 4
    s_add_u32 s{sE}, s{sE}, s{t1}
    v_mul_u32_u24 v{vRes}, 1152, v{LJ}
    v_lshl_add_u32 v{vRes}, v{LG}, 3, v{vRes}
    v_mov_b32 v{T0}, {OOB}
    v_cmp_gt_u32 vcc, 2, v{LG}
    v_cndmask_b32 v{vRes}, v{T0}, v{vRes}, vcc
    v_cmp_eq_u32 vcc, 0, v{LG}
    v_cndmask_b32 v{vPS}, v{T0}, v{L16}, vcc
    v_lshl_add_u32 v{vXw}, v{LG}, 6, v{L16}
    s_mul_i32 s{t0}, s{S_W}, 1280
    v_add_u32 v{vTr}, s{t0}, v{vXw}''')
    e(f'''v_and_b32 v{T0}, 3, v{LJ}
    v_mul_u32_u24 v{vZ}, 320, v{T0}
    v_lshrrev_b32 v{T0}, 1, v{LG}
    v_lshrrev_b32 v{T1}, 2, v{LJ}
    v_lshl_add_u32 v{T0}, v{T0}, 3, v{T1}
    v_lshl_add_u32 v{vZ}, v{T0}, 4, v{vZ}
    v_and_b32 v{T0}, 1, v{LG}
    v_lshl_add_u32 v{vZ}, v{T0}, 3, v{vZ}''')
    e(f'''s_lshl_b32 s{t1}, s{t3}, 4
    v_add_u32 v{T0}, s{t1}, v{LJ}
    v_lshlrev_b32 v{T1}, 2, v{LG}
    v_sub_u32 v{T0}, v{T0}, v{T1}
    v_mov_b32 v{T1}, {hex(f2u(-1e30))}''')
    for T in range(2):
        for p in range(4):
            e(f'v_cmp_le_i32 vcc, {16*T + p}, v{T0}\nv_cndmask_b32 v{ABI + 4*T + p}, v{T1}, 0, vcc')
    e(f'''s_mov_b32 s{sK}, 0
    s_mov_b32 s{sG_}, 0x3e0293ee
    s_mov_b32 s{sSpin}, 0x100000
    v_mov_b32 v18, 0
    s_waitcnt vmcnt(0)
    s_barrier''')

def a_loop(a, tag, sc):
    e = a.e
    a.lq = []; a.vq = []
    vB = T3
    P = AZ; PM = 18
    def red(tg):
        reduce(a, tg, AO, AOF, sc, (AOF + 4, lambda: e(f'buffer_load_dwordx2 {vr(AOF+4,2)}, v{vRes}, {RA}, s{sE} offen')),
               lambda: e(f'buffer_store_dwordx4 {vr(AOF,4)}, v{vPS}, {WS}, s{sF_} offen sc1'))
        e(f's_add_u32 s{sE}, s{sE}, {32*1152}\ns_add_u32 s{sF_}, s{sF_}, {32*1152}')
    e(f'{tag}_loop:')
    e(f'v_add_u32 v{vB}, s{sC}, v{L16}')
    for kap in range(4):
        e(f'ds_read_b128 {vr(AQ + 4*kap, 4)}, v{vB} offset:{16384 + kap*1024}')
        for T in range(2): e(f'ds_read_b128 {vr(AK + 8*kap + 4*T, 4)}, v{vB} offset:{kap*4096 + T*1024}')
    for kap in range(4):
        for T in range(2):
            e(f'{MF32} {vr(AS + 4*T, 4)}, {vr(AK + 8*kap + 4*T, 4)}, {vr(AQ + 4*kap, 4)}, {vr((ABI if kap == 0 else AS) + 4*T, 4)}')
            e(f'ds_read_b128 {vr(AV + 8*kap + 4*T, 4)}, v{vB} offset:{kap*4096 + 2048 + T*1024}')
    e('s_waitcnt lgkmcnt(0)')
    e(f's_cmp_eq_u32 s{sK}, 0\ns_cbranch_scc1 {tag}_first')
    red(tag + 'a')
    e(f'{tag}_first:')
    e(f'''{tag}_pollk:
    buffer_load_dwordx4 {vr(AKV,4)}, v{L16}, {WS}, s{sD} offen sc1
    s_sub_u32 s{sSpin}, s{sSpin}, 1
    s_cbranch_scc1 {FIN}
    s_waitcnt vmcnt(0)
    v_max3_u32 v{vMx}, v{AKV}, v{AKV+1}, v{AKV+2}
    v_max_u32 v{vMx}, v{vMx}, v{AKV+3}
    v_cmp_eq_u32 vcc, -1, v{vMx}
    s_cbranch_vccnz {tag}_pollk
    ds_write_b128 v{vTr}, {vr(AKV,4)} offset:{LA_IM}
    s_xor_b32 s{sC}, s{sC}, {LA_BSTR}
    s_add_u32 s{sD}, s{sD}, {32*4096}
    s_waitcnt lgkmcnt(0)
    s_barrier''')
    for kap in range(4):
        for u in range(2): e(f'ds_read_b64_tr_b16 {vr(AZ + 4*kap + 2*u, 2)}, v{vZ} offset:{LA_IM + kap*1280 + u*64}')
    for kap in range(4): e(f'ds_read_b128 {vr(AKV + 4*kap, 4)}, v{vXw} offset:{LA_IM + kap*1280}')
    a_dma(a)
    tokd = a.mark_v()
    Tm = AS + 8
    m_, t_ = T0, T1
    e(f'v_max3_f32 v{m_}, v{AS}, v{AS+1}, v{AS+2}\nv_max3_f32 v{m_}, v{m_}, v{AS+3}, v{AS+4}\nv_max3_f32 v{m_}, v{m_}, v{AS+5}, v{AS+6}')
    for kap in range(4):
        e(f'{MF32} {vr(Tm,4)}, {vr(AZ + 4*kap, 4)}, {vr(AQ + 4*kap, 4)}, {"0" if kap == 0 else vr(Tm,4)}')
    def xl(op):
        e(f'''v_mov_b32 v{t_}, v{m_}
        v_permlane32_swap_b32 v{m_}, v{t_}
        {op} v{m_}, v{m_}, v{t_}
        v_mov_b32 v{t_}, v{m_}
        v_permlane16_swap_b32 v{m_}, v{t_}
        {op} v{m_}, v{m_}, v{t_}''')
    e(f'v_max_f32 v{m_}, v{m_}, v{AS+7}\nv_max3_f32 v{m_}, v{m_}, v{Tm}, v{Tm+1}')
    xl('v_max_f32')
    e(f'v_mul_f32 v{m_}, s{sG_}, v{m_}')
    for r in range(AS, AS + 10): e(f'v_fma_f32 v{r}, v{r}, s{sG_}, -v{m_}')
    for r in range(AS, AS + 10): e(f'v_exp_f32 v{r}, v{r}')
    e(f'v_add_f32 v{m_}, v{AS}, v{AS+1}')
    for r in range(AS + 2, AS + 10): e(f'v_add_f32 v{m_}, v{m_}, v{r}')
    xl('v_add_f32')
    e(f'v_rcp_f32 v{m_}, v{m_}')
    for r in range(AS, AS + 10): e(f'v_mul_f32 v{r}, v{r}, v{m_}')
    for k in range(4): e(cvt(P + k, AS + 2*k, AS + 2*k + 1))
    e(cvt(PM + 1, Tm, Tm + 1))
    for n in range(8): e(f'{MF32} {vr(AO + 4*n, 4)}, {vr(AV + 4*n, 4)}, {vr(P,4)}, 0')
    for n in range(8): e(f'{MF16} {vr(AO + 4*n, 4)}, {vr(AKV + 2*n, 2)}, {vr(PM,2)}, {vr(AO + 4*n, 4)}')
    for n in range(16): e(cvt(AOF + n, AO + 2*n, AO + 2*n + 1))
    pend = []
    for grp in ((0, 1, 2), (3, 4, 5), (6, 7, 8)):
        for kap in range(4):
            for u in grp:
                e(f'{MF32} {vr(AW + 4*u, 4)}, {vr(16*u + 4*kap, 4, "a")}, {vr(AOF + 4*kap, 4)}, {"0" if kap == 0 else vr(AW + 4*u, 4)}')
                if kap >= 1:
                    for x in pend[:2]: e(x)
                    pend = pend[2:]
        for u in grp: pend += proj_epi(u, AW, sc)
    for x in pend: e(x)
    a.wait_v(tokd)
    e('s_barrier')
    e(f'''s_xor_b32 s{sPW}, s{sPW}, {RSLOT}
    s_add_u32 s{sK}, s{sK}, 1
    s_cmp_lt_u32 s{sK}, 64
    s_cbranch_scc1 {tag}_loop''')
    a.lq = []; a.vq = []
    red(tag + 'b')
    e(f's_branch {FIN}')

def gfrag(q, k):
    n = 4 * k + q if q < 4 else 72 + k
    return vr(4 * n, 4, 'a') if n < 64 else vr(188 + 4 * (n - 64), 4)
def gparts(q, k):
    n = 4 * k + q if q < 4 else 72 + k
    return ('a', 4 * n) if n < 64 else ('v', 188 + 4 * (n - 64))
FD16, FDR, FCS = 170, 122, 102
LF_H = 0; LF_ACT = 18432; LF_SH = 22528; LF_W = 26624; LF_WSTR = 24576
def f_load(a):
    e = a.e
    red_setup(a)
    srd(a, S_RA, P_WD, 4608 * 1152)
    tr_cols(a, f'v_lshrrev_b32 v{T0}, 2, v{LJ}\nv_lshl_add_u32 v{T0}, v{LG}, 2, v{T0}')
    e(f's_mul_i32 s{sA}, s{S_H}, {144*1152}')
    for rnd, (row0, nk) in enumerate(((0, 27), (96, 14))):
        e(f's_mul_i32 s{t1}, s{S_W}, {nk*1024}\ns_add_u32 s{t0}, s{sA}, s{t1}\ns_add_u32 s{t0}, s{t0}, {row0*1152}')
        for n in range(nk):
            if n & 3 == 0: e(f's_add_u32 m0, s{t1}, {n*1024}\ns_add_u32 s{t2}, s{t0}, {n*1024}')
            e(f'buffer_load_dwordx4 v{L16}, {RA}, s{t2} offen offset:{(n & 3)*1024} lds')
        e('s_waitcnt vmcnt(0)\ns_barrier')
        for kap in ((0, 1, 2), (3, 4))[rnd]:
            for u in range(9):
                col = 0 if u == 8 else (u >> 1) * 64 + (u & 1) * 8
                ad = T3 if u == 8 else vTr
                if kap == 4:
                    e(f'ds_read_b64_tr_b16 {vr(FD16 + 2*u, 2)}, v{ad} offset:{col}')
                else:
                    p, b = ('v', FDR + 16*u + 4*kap) if u < 3 else ('a', 16*(u - 3) + 4*kap)
                    for hh in range(2):
                        e(f'ds_read_b64_tr_b16 {vr(b + 2*hh, 2, p)}, v{ad} offset:{col + hh*16*1152}')
            d = -64 * 1152 if kap == 2 else 32 * 1152
            e(f'v_add_u32 v{vTr}, {d}, v{vTr}\nv_add_u32 v{T3}, {d}, v{T3}')
        e('s_waitcnt lgkmcnt(0)\ns_barrier')
    e(f's_mul_i32 s{t0}, s{S_W}, {LF_WSTR}\ns_add_u32 s{t0}, s{t0}, {LF_W}\nv_add_u32 v{vXw}, s{t0}, v{L16}')
    for n in range(24): e(f'ds_write_b128 v{vXw}, {vr(4*n, 4, "a")} offset:{n*1024}')
    e('s_waitcnt lgkmcnt(0)')
    srd(a, S_RA, P_WG, 576 * 9216); srd(a, S_RB, P_WU, 576 * 9216)
    NS = 7
    e(f'''s_mul_i32 s{sB}, s{S_W}, 6144
    s_lshl_b32 s{sC}, s{S_W}, 13
    s_add_u32 s{sC}, s{sC}, {LF_W + 4*LF_WSTR}
    v_lshrrev_b32 v{T0}, 2, v{LN}
    v_mul_u32_u24 v{T0}, 9216, v{T0}
    v_and_b32 v{T1}, 3, v{LN}
    v_lshl_add_u32 v{T0}, v{T1}, 4, v{T0}
    v_lshrrev_b32 v{T2}, 1, v{LN}
    v_mul_u32_u24 v{T2}, 9216, v{T2}
    v_and_b32 v{T3}, 1, v{LN}
    v_lshl_add_u32 v{T2}, v{T3}, 4, v{T2}
    s_mul_i32 s{sD}, s{S_H}, 288
    s_lshl_b32 s{t0}, s{S_W}, 6
    s_add_u32 s{sA}, s{sD}, s{t0}
    s_and_b32 s{t0}, s{S_W}, 1
    s_mul_i32 s{t0}, s{t0}, {288*9216}
    s_add_u32 s{sD}, s{sD}, s{t0}
    s_add_u32 s{sD}, s{sD}, 256''')
    e(f'''v_lshrrev_b32 v{T3}, 2, v{LJ}
    v_lshl_add_u32 v{T3}, v{LG}, 3, v{T3}
    v_lshlrev_b32 v{T1}, 3, v{T1}
    v_lshl_add_u32 v32, v{T3}, 6, v{T1}
    v_lshl_add_u32 v33, v{T3}, 5, v{T1}
    v_add_u32 v34, s{sC}, v32
    v_add_u32 v35, s{sC}, v33
    v_add_u32 v32, s{sB}, v32
    v_add_u32 v33, s{sB}, v33''')
    blocks = [(m, k) for k in range(18) for m in range(2)] + [(2, k) for k in range(0, 9, 2)]
    toks = {}
    def slot(n):
        s = n % NS
        return (0, s * 2048) if s < 3 else (1, (s - 3) * 2048)
    def issue(n):
        m, k = blocks[n]; hi, off = slot(n)
        if m == 2 and k == 0:
            e(f'''s_cmp_ge_u32 s{S_W}, 2
            s_cselect_b32 s{S_RA}, s{P_WU}, s{P_WG}
            s_cselect_b32 s{S_RA+1}, s{P_WU+1}, s{P_WG+1}''')
        for hh in range(2):
            if m == 2 and k + hh > 8: continue
            e(f's_add_u32 m0, s{sC if hi else sB}, {off + hh*1024}')
            if m < 2:
                e(f's_add_u32 s{t0}, s{sA}, {(32*k + 16*hh)*9216}\nbuffer_load_dwordx4 v{T0}, {RB if m else RA}, s{t0} offen lds')
            else:
                e(f's_add_u32 s{t0}, s{sD}, {32*(k + hh)*9216}\nbuffer_load_dwordx4 v{T2}, {RA}, s{t0} offen lds')
        toks[n] = a.mark_v()
    for n in range(NS): issue(n)
    for n, (m, k) in enumerate(blocks):
        hi, off = slot(n)
        a.wait_v(toks[n])
        for t in range(2):
            if m == 2 and k + t > 8: continue
            p, b = gparts(2 * m + t, k) if m < 2 else gparts(4, k + t)
            for u in range(2):
                if m < 2: e(f'ds_read_b64_tr_b16 {vr(b + 2*u, 2, p)}, v{32 + 2*hi} offset:{off + t*32 + u*256}')
                else: e(f'ds_read_b64_tr_b16 {vr(b + 2*u, 2, p)}, v{33 + 2*hi} offset:{off + t*1024 + u*128}')
        e('s_waitcnt lgkmcnt(0)')
        if n + NS < len(blocks): issue(n + NS)
    for k in range(4): e(f'v_mov_b32 v{32+k}, 0x3f803f80')
    for k in range(18):
        for q in range(5):
            if q == 4 and k >= 9: continue
            e(f'{MF32} {vr(FCS + 4*q, 4)}, {gfrag(q, k)}, v[32:35], {"0" if k == 0 else vr(FCS + 4*q, 4)}')

def f_init(a):
    e = a.e
    srd(a, S_RA, P_OUT, 2048 * 1152)
    e(f'''s_sub_u32 s{sK}, s{S_G}, 3
    s_mul_i32 s{sE}, s{sK}, 18432
    s_mul_i32 s{t0}, s{S_W}, 4608
    s_add_u32 s{sA}, s{sE}, s{t0}
    s_add_u32 s{sA}, s{sA}, {H}
    s_lshl_b32 s{t1}, s{sTask}, 4
    s_add_u32 s{sE}, s{sE}, s{t1}
    v_add_u32 v{vTr}, s{t0}, v{L16}
    v_mul_u32_u24 v{vPS}, 1152, v{LJ}
    v_mov_b32 v{T0}, {OOB}
    v_cmp_eq_u32 vcc, 0, v{LG}
    v_cndmask_b32 v{vPS}, v{T0}, v{vPS}, vcc
    v_lshlrev_b32 v{vRes}, 4, v{LJ}
    v_and_b32 v{T0}, 1, v{LG}
    v_lshl_add_u32 v{vRes}, v{T0}, 3, v{vRes}
    s_min_u32 s{t1}, s{sTask}, 71
    s_lshl_b32 s{t1}, s{t1}, 8
    v_add_u32 v{vRes}, s{t1}, v{vRes}
    v_lshlrev_b32 v{vZ}, 3, v{LN}
    v_add_u32 v18, s{t0}, v{vZ}
    s_lshl_b32 s{t0}, s{S_W}, 10
    v_add_u32 v19, s{t0}, v{L16}
    s_and_b32 s{t0}, s{S_W}, 1
    s_mul_i32 s{t0}, s{t0}, 9216
    v_add_u32 v20, s{t0}, v{L16}
    s_sub_u32 s{t0}, 9216, s{t0}
    v_add_u32 v21, s{t0}, v{L16}
    s_mov_b32 s{sB}, 0x3f803f80
    s_mov_b32 s{sC}, {hex(f2u(-1.4426950408889634))}
    s_mov_b32 s{sSpin}, 0x100000
    s_barrier''')

def f_loop(a, tag, sc):
    e = a.e
    a.lq = []; a.vq = []
    G = 32; XB = 52; W = 32; AF = 68; WB = 86
    e(f'{tag}_loop:')
    for n in range(4): e(f'buffer_load_dwordx4 {vr(G + 4*n, 4)}, v{L16}, {WS}, s{sA} offen offset:{n*1024} sc1')
    e(f'''s_add_u32 s{t0}, s{sA}, 4096
    buffer_load_dwordx2 {vr(G + 16, 2)}, v{vZ}, {WS}, s{t0} offen sc1
    s_sub_u32 s{sSpin}, s{sSpin}, 1
    s_cbranch_scc1 {FIN}
    v_max_u32 v{vMx}, v{G}, v{G+1}''')
    for k in range(2, 18, 2): e(f'v_max3_u32 v{vMx}, v{vMx}, v{G+k}, v{G+k+1}')
    e(f'v_cmp_eq_u32 vcc, -1, v{vMx}\ns_cbranch_vccnz {tag}_loop')
    for n in range(4): e(f'ds_write_b128 v{vTr}, {vr(G + 4*n, 4)} offset:{LF_H + n*1024}')
    e(f'ds_write_b64 v18, {vr(G + 16, 2)} offset:{LF_H + 4096}')
    e(f's_add_u32 s{sA}, s{sA}, {5*18432}\nv_mov_b32 v{T0}, 0\nv_mov_b32 v{T1}, 0\ns_waitcnt lgkmcnt(0)\ns_barrier')
    def rd(k): e(f'ds_read_b128 {vr(XB + 4*(k % 4), 4)}, v{L16} offset:{LF_H + k*1024}')
    def rds(k): e(f'ds_read_b128 {vr(AF + 4*(k % 4), 4)}, v20 offset:{LF_H + k*1024}')
    for k in range(3): rd(k)
    rds(0); rds(1)
    for k in range(18):
        if k + 3 < 18: rd(k + 3)
        if k & 1 == 0 and k // 2 + 2 < 9: rds(k // 2 + 2)
        X = XB + 4 * (k % 4)
        for q in range(4):
            e(f'{MF32} {vr(G + 4*q, 4)}, {gfrag(q, k)}, {vr(X,4)}, {"0" if k == 0 else vr(G + 4*q, 4)}')
            e(f'v_dot2c_f32_bf16 v{T0}, s{sB}, v{X+q}\nv_dot2c_f32_bf16 v{T1}, v{X+q}, v{X+q}')
        if k & 1:
            kk = k // 2
            e(f'{MF32} {vr(G + 16, 4)}, {gfrag(4, kk)}, {vr(AF + 4*(kk % 4), 4)}, {"0" if kk == 0 else vr(G + 16, 4)}')
    def wrd(i): e(f'ds_read_b128 {vr(WB + 4*(i % 4), 4)}, v{vXw} offset:{ORD[i]*1024}')
    ORD = [4 * (u - 3) + kap for grp in ((3, 4, 5), (6, 7, 8)) for kap in range(4) for u in grp]
    for i in range(4): wrd(i)
    def rbf(r): e(f'v_cvt_pk_bf16_f32 v{r}, v{r}, v{r}\nv_lshlrev_b32 v{r}, 16, v{r}')
    for r in (T0, T1):
        e(f'''v_mov_b32 v{T2}, v{r}
        v_permlane32_swap_b32 v{r}, v{T2}
        v_add_f32 v{r}, v{r}, v{T2}
        v_mov_b32 v{T2}, v{r}
        v_permlane16_swap_b32 v{r}, v{T2}
        v_add_f32 v{r}, v{r}, v{T2}''')
    e(f'''v_mul_f32 v{T0}, {hex(f2u(-1/576))}, v{T0}
    v_mul_f32 v{T1}, {hex(f2u(1/576))}, v{T1}
    v_fma_f32 v{T1}, -v{T0}, v{T0}, v{T1}
    v_max_f32 v{T1}, 0, v{T1}''')
    rbf(T0); rbf(T1)
    for k in range(4): e(f'v_fma_f32 v{G+16+k}, v{T0}, v{FCS+16+k}, v{G+16+k}')
    e(f'ds_write_b128 v19, {vr(G+16,4)} offset:{LF_SH}')
    e(f'v_add_f32 v{T1}, {hex(f2u(1e-5))}, v{T1}'); rbf(T1)
    e(f'v_sqrt_f32 v{T1}, v{T1}'); rbf(T1)
    e(f'v_rcp_f32 v{T1}, v{T1}')
    for k in range(16): e(f'v_fma_f32 v{G+k}, v{T0}, v{FCS+k}, v{G+k}')
    def act(g, u, n, tmp):
        for k in range(n): e(f'v_mul_f32 v{g+k}, v{g+k}, v{T1}')
        for k in range(n): e(f'v_mul_f32 v{tmp+k}, s{sC}, v{g+k}')
        for k in range(n): e(f'v_exp_f32 v{tmp+k}, v{tmp+k}\nv_mul_f32 v{u+k}, v{u+k}, v{T1}')
        for k in range(n): e(f'v_add_f32 v{tmp+k}, 1.0, v{tmp+k}')
        for k in range(n): e(f'v_rcp_f32 v{tmp+k}, v{tmp+k}\nv_mul_f32 v{g+k}, v{g+k}, v{u+k}')
        for k in range(n): e(f'v_mul_f32 v{g+k}, v{g+k}, v{tmp+k}')
    act(G, G + 8, 8, XB)
    for k in range(4): e(cvt(G + k, G + 2*k, G + 2*k + 1))
    e(f'ds_write_b128 v19, {vr(G,4)} offset:{LF_ACT}\ns_waitcnt lgkmcnt(0)\ns_barrier')
    for k in range(4): e(f'ds_read_b128 {vr(AF + 4*k, 4)}, v{L16} offset:{LF_ACT + k*1024}')
    SH = W + 12
    for k in range(4): e(f'ds_read_b128 {vr(SH + 4*k, 4)}, v{L16} offset:{LF_SH + k*1024}')
    for kap in range(4):
        for u in range(3):
            e(f'{MF32} {vr(W + 4*u, 4)}, {vr(FDR + 16*u + 4*kap, 4)}, {vr(AF + 4*kap, 4)}, {"0" if kap == 0 else vr(W + 4*u, 4)}')
    for k in range(4): e(f'v_add_f32 v{SH+k}, v{SH+k}, v{SH+4+k}\nv_add_f32 v{SH+8+k}, v{SH+8+k}, v{SH+12+k}')
    act(SH, SH + 8, 4, SH + 4)
    e(cvt(AF + 16, SH, SH + 1)); e(cvt(AF + 17, SH + 2, SH + 3))
    def k16(u): e(f'{MF16} {vr(W + 4*u, 4)}, {vr(FD16 + 2*u, 2)}, {vr(AF + 16, 2)}, {vr(W + 4*u, 4)}')
    for u in range(3): k16(u)
    pend = proj_epi(1, W, sc)
    i = 0
    for grp in ((3, 4, 5), (6, 7, 8)):
        for kap in range(4):
            for u in grp:
                e(f'{MF32} {vr(W + 4*u, 4)}, {vr(WB + 4*(i % 4), 4)}, {vr(AF + 4*kap, 4)}, {"0" if kap == 0 else vr(W + 4*u, 4)}')
                if i + 4 < 24: wrd(i + 4)
                i += 1
                if kap >= 1:
                    for x in pend[:2]: e(x)
                    pend = pend[2:]
        for u in grp: k16(u)
        for u in grp: pend += proj_epi(u, W, sc)
    for x in pend: e(x)
    e(f's_xor_b32 s{sPW}, s{sPW}, {RSLOT}')
    reduce(a, tag, 32, AF, sc, (AF + 4, lambda: e(f'ds_read_b64 {vr(AF+4,2)}, v{vRes} offset:{LF_H}')),
           lambda: e(f'buffer_store_dwordx4 {vr(AF,4)}, v{vPS}, {RA}, s{sE} offen'))
    e(f'''s_add_u32 s{sE}, s{sE}, {5*18432}
    s_add_u32 s{sK}, s{sK}, 5
    s_barrier
    s_cmp_lt_u32 s{sK}, 128
    s_cbranch_scc1 {tag}_loop
    s_branch {FIN}''')
```

```python
import sys
sys.path.insert(0, 'gen')
from asmlib import *
from layout import *
import rec2
from rec2 import *
from work import *
NAME = 'sequential_preLN__memory_aug_recurrent_mem_tr__swiglu_ffn__prompt'

def tstamp(a, k, on):
    if on: a.e(f's_memrealtime s[{96+2*k}:{97+2*k}]\ns_waitcnt lgkmcnt(0)')

def gen(opt=()):
    a = Asm(); e = a.e
    st = 'st' in opt
    force = 1 if 'fb' in opt else None
    e(f'''s_cmp_ge_u32 s2, 256
    s_cbranch_scc1 K_exit
    s_load_dwordx8 s[16:23], s[0:1], 0
    s_load_dwordx4 s[24:27], s[0:1], 32
    s_load_dwordx8 s[32:39], s[0:1], 64
    s_load_dwordx4 s[40:43], s[0:1], 96
    v_lshrrev_b32 v1, 6, v0
    v_readfirstlane_b32 s{S_W}, v1''')
    if 'perm' in opt: e(f's_lshr_b32 s{S_G}, s2, 5\ns_and_b32 s{S_H}, s2, 31')
    else: e(f's_and_b32 s{S_G}, s2, 7\ns_lshr_b32 s{S_H}, s2, 3')
    e(f'''s_waitcnt lgkmcnt(0)
    s_mov_b32 s{S_WS}, s{P_WSP}
    s_mov_b32 s{S_WS+1}, s{P_WSP+1}
    s_mov_b32 s{S_WS+2}, {WS_BYTES}
    s_mov_b32 s{S_WS+3}, 0x20000''')
    if st:
        for k in range(3): tstamp(a, k, st)
        e('s_memrealtime s[94:95]\ns_waitcnt lgkmcnt(0)')
    e(f'''s_cmp_eq_u32 s{S_G}, 0
    s_cbranch_scc0 W_start''')
    rec_setup(a)
    arrive(a, 24)
    rec_load(a)
    tstamp(a, 0, st)
    gbar(a, 24, rec2.sSpin, rec2.sT0, rec2.sT1, force)
    e('s_barrier')
    rec_init(a)
    tstamp(a, 1, st)
    e(f's_cmp_eq_u32 s{sFB}, 0\ns_cbranch_scc0 RF_disp')
    rec_disp(a, 'R')
    for w in range(4): rec_loop(a, w, None, FIN, tag='R')
    e('RF_disp:')
    rec_disp(a, 'RF')
    for w in range(4): rec_loop(a, w, None, FIN, tag='RF', cs=' sc1')
    e('W_start:')
    a.lq = []; a.vq = []
    w_init(a)
    e(f's_cmp_eq_u32 s{S_G}, 7\ns_cbranch_scc1 F_start')
    q_load(a)
    gbar(a, 12, sSpin, t0, t1, force)
    tstamp(a, 0, st)
    q_main(a)
    tstamp(a, 1, st)
    e(f's_cmp_ge_u32 s{S_G}, 3\ns_cbranch_scc1 F_start')
    a_load(a)
    a_init(a)
    tstamp(a, 2, st)
    e(f's_cmp_eq_u32 s{sFB}, 0\ns_cbranch_scc0 AF_loop')
    a_loop(a, 'A', '')
    a_loop(a, 'AF', ' sc1')
    e('F_start:')
    a.lq = []; a.vq = []
    f_load(a)
    gbar(a, 32, sSpin, t0, t1, force)
    f_init(a)
    tstamp(a, 2, st)
    e(f's_cmp_eq_u32 s{sFB}, 0\ns_cbranch_scc0 FF_loop')
    f_loop(a, 'F', '')
    f_loop(a, 'FF', ' sc1')
    e(f'{FIN}:')
    if st:
        e(f'''s_memrealtime s[92:93]
        s_waitcnt vmcnt(0) lgkmcnt(0)
        s_lshl_b32 s46, s2, 2
        s_add_u32 s46, s46, s{S_W}
        s_lshl_b32 s46, s46, 5
        s_add_u32 s46, s46, {STAMP}
        v_mov_b32 v12, 0''')
        for k, s in enumerate(['s94', 's96', 's98', 's100', 's92', f's{sFB}', f's{sSpin}', f's{rec2.sSpin}']):
            e(f'v_mov_b32 v13, {s}\nbuffer_store_dword v13, v12, {WS}, s46 offen offset:{4*k}')
    e('s_waitcnt vmcnt(0)')
    e('K_exit:')
    return a.finish()

def full(body):
    ref = open(f'cdna_kernels/{NAME}.s.ref').read()
    head = ref[:ref.index(f'{NAME}_kernel:\n') + len(NAME) + 9]
    tail = ref[ref.index('s_endpgm'):]
    head = head.replace('; @launch grid=(4608,1,1) block=(256,1,1) lds=0', '; @launch grid=(256,1,1) block=(256,1,1) lds=163840')
    tail = tail.replace('.amdhsa_next_free_vgpr 256', '.amdhsa_next_free_vgpr 512')
    return head + body + tail

if __name__ == '__main__':
    for v in sys.argv[1:]:
        if v == 'final': open(f'cdna_kernels/{NAME}.s', 'w').write(full(gen()))
        else: open(f'full_{v}.txt', 'w').write(gen(v.split('+')))
```

```python
import re

RX = re.compile(r'\b([vas])\[(\d+):(\d+)\]|\b([vas])(\d+)\b|\b(vcc|exec|m0|scc)\b')

def regs_of(tok):
    out = set()
    for m in RX.finditer(tok):
        if m.group(1):
            for i in range(int(m.group(2)), int(m.group(3)) + 1):
                out.add(m.group(1) + str(i))
        elif m.group(4):
            out.add(m.group(4) + m.group(5))
        else:
            out.add(m.group(6))
    return out

def split_ops(s):
    ops = []; cur = ''; d = 0
    for ch in s:
        if ch in '[(': d += 1
        if ch in '])': d -= 1
        if ch == ',' and d == 0:
            ops.append(cur.strip()); cur = ''
        else:
            cur += ch
    if cur.strip(): ops.append(cur.strip())
    return ops

TRANS = ('v_exp_f32', 'v_log_f32', 'v_rcp_f32', 'v_rsq_f32', 'v_sqrt_f32', 'v_sin_f32', 'v_cos_f32', 'v_rcp_iflag_f32')

BUSY = [0]
class Ins:
    __slots__ = ('text', 'op', 'kind', 'dst', 'src', 'A', 'B', 'C', 'passes', 'dpp', 'wide', 'lds_dma', 'states', 'target', 'label', 'D0', 'busy')
    def __init__(self, text):
        self.text = text
        t = text.split(';')[0].strip()
        self.dst = set(); self.src = set(); self.A = set(); self.B = set(); self.C = set()
        self.passes = 0; self.dpp = False; self.wide = set(); self.lds_dma = False; self.states = 1
        self.target = None; self.label = None; self.D0 = None; self.busy = 0
        if not t or t.startswith('.'):
            self.op = ''; self.kind = 'none'; self.states = 0; return
        if t.endswith(':'):
            self.op = ''; self.kind = 'label'; self.label = t[:-1]; self.states = 0; return
        p = t.split(None, 1)
        op = p[0]; rest = p[1] if len(p) > 1 else ''
        self.op = op
        ops = split_ops(rest)
        R = [regs_of(o) for o in ops]
        if op.startswith('v_mfma') or op.startswith('v_smfmac'):
            self.kind = 'mfma'
            self.passes = 8 if '32x32' in op else 4
            self.dst = R[0]; self.A = R[1]; self.B = R[2]
            self.D0 = ops[0]
            if op.startswith('v_smfmac'):
                self.C = set(R[0]); self.B = self.B | R[3]
            else:
                self.C = R[3]
            self.src = self.A | self.B | self.C
        elif op.startswith('v_'):
            self.kind = 'valu'
            self.dpp = ('_dpp' in op) or ('row_' in rest) or ('quad_perm' in rest)
            if op.startswith('v_permlane') and 'swap' in op:
                self.dst = R[0] | R[1]; self.src = R[0] | R[1]
            elif op.startswith('v_nop'):
                pass
            else:
                self.dst = set(R[0])
                k = 1
                if re.match(r'v_(add|sub|subrev|addc|subb)_co_', op) or op.startswith('v_div_scale') or op.startswith('v_mad_u64'):
                    self.dst |= R[1]; k = 2
                for r in R[k:]: self.src |= r
                if op.startswith('v_fmac') or op.startswith('v_writelane') or self.dpp or op.startswith('v_dot2c') or op.startswith('v_pk_fmac'):
                    self.src |= R[0]
                if op.startswith('v_cmpx'): self.dst.add('exec')
                if op.startswith('v_div_fmas'): self.src.add('vcc')
        elif op.startswith('ds_'):
            self.kind = 'ds'
            if op.startswith('ds_read') or op.startswith('ds_bpermute') or op.startswith('ds_swizzle') or op.startswith('ds_permute') or '_rtn' in op:
                self.dst = R[0]
                for r in R[1:]: self.src |= r
            else:
                for r in R: self.src |= r
        elif op.startswith('buffer_') or op.startswith('global_'):
            self.kind = 'vmem'
            words = rest.replace(',', ' ').split()
            if 'load' in op and (' lds' in ' ' + ' '.join(words) + ' ' and 'lds' in words or 'load_lds' in op):
                self.lds_dma = True
                for r in R: self.src |= r
                self.src.add('m0')
            elif 'load' in op:
                self.dst = R[0]
                for r in R[1:]: self.src |= r
            elif 'atomic' in op:
                for r in R: self.src |= r
                if 'sc0' in words: self.dst = R[0]
            elif 'store' in op:
                for r in R: self.src |= r
                if 'x3' in op or 'x4' in op:
                    self.wide = R[0] if op.startswith('buffer') else R[1]
                    self.busy = BUSY[0]
        elif op.startswith('s_'):
            self.kind = 'salu'
            if op == 's_nop':
                self.states = int(rest, 0) + 1
            elif op.startswith('s_cbranch') or op == 's_branch':
                self.kind = 'branch'; self.target = rest.strip()
            elif op.startswith('s_load') or op.startswith('s_memtime') or op.startswith('s_memrealtime') or op.startswith('s_buffer_load'):
                self.kind = 'smem'; self.dst = R[0]
                for r in R[1:]: self.src |= r
            elif op.startswith('s_cmp') or op in ('s_waitcnt', 's_barrier', 's_endpgm', 's_sleep', 's_setprio') or op.startswith('s_bitcmp'):
                for r in R: self.src |= r
            else:
                if R: self.dst = set(R[0])
                for r in R[1:]: self.src |= r
                if 'saveexec' in op: self.dst.add('exec')
        else:
            raise ValueError('unknown instr ' + text)

def isv(r): return r[0] in 'va' and r not in ('vcc',)
def iss(r): return (r[0] == 's' and r != 'scc') or r == 'vcc'

def need(p, c):
    n = 0
    if p.kind == 'valu':
        pv = {r for r in p.dst if isv(r)}
        ps = {r for r in p.dst if iss(r)}
        if c.kind == 'mfma' and pv & c.src: n = max(n, 2)
        if p.op.startswith('v_dot') and c.op != p.op and pv & (c.src | c.dst): n = max(n, 3)
        if c.kind == 'valu':
            if pv & c.src:
                if c.op.startswith('v_permlane') or c.dpp: n = max(n, 2)
                if c.op.startswith('v_readlane') or c.op.startswith('v_readfirstlane'): n = max(n, 1)
                if p.op.startswith(TRANS): n = max(n, 1)
                if 'op_sel' in p.text or 'sdwa' in p.text: n = max(n, 1)
            if ps & c.src:
                n = max(n, 4 if (c.op.startswith('v_readlane') or c.op.startswith('v_writelane') or c.op.startswith('v_div_fmas')) else 2)
        if c.kind == 'vmem' and ps & c.src: n = max(n, 5)
        if 'exec' in p.dst and c.kind in ('valu', 'mfma'): n = max(n, 5)
    elif p.kind == 'mfma':
        big = p.passes == 8
        if c.kind == 'mfma':
            if p.dst & (c.A | c.B): n = max(n, 12 if big else 8)
            if p.dst & c.C:
                if not (p.dst == c.C and p.op == c.op): n = max(n, 10 if big else 6)
            elif p.dst & c.dst and not (p.dst == c.dst and p.passes == c.passes):
                n = max(n, 10 if big else 6)
        elif c.kind in ('valu', 'vmem', 'ds'):
            if p.dst & (c.src | c.dst): n = max(n, 12 if big else 8)
            if c.kind == 'valu' and (p.C & c.dst): n = max(n, 7 if big else 3)
    elif p.kind == 'vmem':
        if p.wide and (p.wide & c.dst): n = max(n, 2 if c.kind in ('valu','mfma') else 1)
    elif p.kind == 'salu':
        if 'm0' in p.dst and c.lds_dma: n = max(n, 1)
    return n

STRICT = False
class Asm:
    def __init__(self):
        self.L = []
        self.lq = []
        self.vq = []
        self.smem = False
        self.auto = True
        self.uid = 0
    def newlabel(self, p='L'):
        self.uid += 1
        return f'{p}_{self.uid}'
    def raw(self, text):
        self.L.append(Ins(text))
    def e(self, text):
        for line in text.split('\n'):
            line = line.strip()
            if not line: continue
            self._e(line)
    def _e(self, line):
        i = Ins(line)
        if i.op == 's_waitcnt':
            m = re.search(r'vmcnt\((\d+)\)', line)
            if m:
                n = int(m.group(1)); self.vq = self.vq[len(self.vq) - n:] if n < len(self.vq) and n > 0 else ([] if n == 0 else self.vq)
            m = re.search(r'lgkmcnt\((\d+)\)', line)
            if m:
                n = int(m.group(1))
                if n == 0: self.lq = []; self.smem = False
                elif n < len(self.lq): self.lq = self.lq[len(self.lq) - n:]
            self.L.append(i); return
        if self.auto and i.kind not in ('none', 'label'): self.waitfor(i.src | i.dst)
        if i.kind == 'ds': self.lq.append(set(i.dst))
        elif i.kind == 'smem': self.lq.append(set(i.dst)); self.smem = True
        elif i.kind == 'vmem': self.vq.append(set(i.dst))
        self.L.append(i)
    def waitfor(self, touched):
        w = []
        for k in range(len(self.vq) - 1, -1, -1):
            if self.vq[k] & touched:
                n = len(self.vq) - 1 - k
                n = min(n, 63)
                w.append(f'vmcnt({n})'); self.vq = self.vq[len(self.vq) - n:] if n else []
                break
        for k in range(len(self.lq) - 1, -1, -1):
            if self.lq[k] & touched:
                n = len(self.lq) - 1 - k
                if self.smem: n = 0
                n = min(n, 15)
                w.append(f'lgkmcnt({n})'); self.lq = self.lq[len(self.lq) - n:] if n else []
                if n == 0: self.smem = False
                break
        if w: self.L.append(Ins('s_waitcnt ' + ' '.join(w)))
    def lds_wait_all_but(self, n):
        self.e(f's_waitcnt lgkmcnt({n})')
    def mark_l(self):
        self.uid += 1
        s = {'#tok%d' % self.uid}
        if self.lq: self.lq[-1] = self.lq[-1] | s
        return s
    def wait_l(self, tok):
        for k in range(len(self.lq) - 1, -1, -1):
            if self.lq[k] & tok:
                n = min(len(self.lq) - 1 - k, 15)
                if self.smem: n = 0
                self.e(f's_waitcnt lgkmcnt({n})'); return
    def mark_v(self):
        self.uid += 1
        s = {'#tok%d' % self.uid}
        if self.vq: self.vq[-1] = self.vq[-1] | s
        return s
    def wait_v(self, tok):
        for k in range(len(self.vq) - 1, -1, -1):
            if self.vq[k] & tok:
                n = min(len(self.vq) - 1 - k, 63)
                self.e(f's_waitcnt vmcnt({n})'); return
    def finish(self):
        L = self.L
        out = []
        def req(hist, c):
            H = []
            for p in reversed(hist):
                if p.kind in ('none', 'label'): continue
                if p.op in ('s_branch', 's_endpgm'): break
                H.append(p)
                if len(H) >= 14: break
            H.reverse()
            n = 0
            for k, p in enumerate(H):
                nd = need(p, c)
                if nd == 0: continue
                t = 0; free = 0
                for x in H[k:]:
                    if x.kind == 'mfma' and not STRICT:
                        t = max(t, free); free = t + (2 if 'x16_bf16' in x.op and '16x16' in x.op else x.passes)
                    t += max(x.states, x.busy) if x is not p else x.states
                if c.kind == 'mfma' and not STRICT and free >= nd + 1: continue
                if nd + 1 - t > n: n = nd + 1 - t
            return n
        for c in L:
            if c.kind not in ('none', 'label'):
                n = req(out[-40:], c)
                if n > 0: out.append(Ins(f's_nop {n-1}'))
            out.append(c)
        changed = True
        while changed:
            changed = False
            pos = {c.label: k for k, c in enumerate(out) if c.kind == 'label'}
            for k, b in enumerate(out):
                if b.kind != 'branch' or b.target not in pos: continue
                hist = [x for x in out[max(0, k - 40):k]] + [Ins('s_nop 0')]
                j = pos[b.target]; worst = 0; d = 0
                while j < len(out) and d < 13:
                    c = out[j]
                    if c.kind not in ('none', 'label'):
                        n = req(hist, c)
                        worst = max(worst, n)
                        if c.op in ('s_branch', 's_endpgm'): break
                        x = Ins('s_nop %d' % (c.states - 1)); hist.append(x); d += c.states
                    j += 1
                if worst > 0:
                    out.insert(k, Ins(f's_nop {worst-1}')); changed = True; break
        self.out = out
        return '\n'.join((c.text if c.kind == 'label' else '  ' + c.text) for c in out) + '\n'

def vr(a, n=1, p='v'):
    return f'{p}{a}' if n == 1 else f'{p}[{a}:{a+n-1}]'
```

```python
from asmlib import *
from layout import *

S_WS = 4
S_RA = 8
S_RB = 12
P_X, P_MEM0, P_WQ, P_WK, P_WV, P_WO, P_WG, P_WU, P_WD, P_OUT, P_DBG, P_WSP = 16, 18, 20, 22, 24, 26, 32, 34, 36, 38, 40, 42
S_W = 44
S_H = 45
WS = f's[{S_WS}:{S_WS+3}]'

def srd(a, d, ptr, nbytes):
    a.e(f's_mov_b32 s{d}, s{ptr}\ns_mov_b32 s{d+1}, s{ptr+1}\ns_mov_b32 s{d+2}, {nbytes}\ns_mov_b32 s{d+3}, 0x20000')

L_BLK = 4352
L_QK = 18432
L_SEL = 23040
L_TAB = 23552
L_W0 = 24576
L_WSTR = 34816

vL16, vW, vZ, vXw, vSel, vP, vMst, vPD, vIdx, vT, vZero, vT2 = range(12)
C4 = 4
DW = 3
MB = [12, 16, 20]
QA, KA, VA, VX = 24, 32, 64, 56
SB = [40, 48]
SMF = 'v_smfmac_f32_16x16x64_bf16'
MF32 = 'v_mfma_f32_16x16x32_bf16'
MF16 = 'v_mfma_f32_16x16x16_bf16'

(sStep, sMs, sMo, sMoD, sPrd, sPrD, sKx, sKv, sSpin, sT0, sT1, sT2, sC, sFlg, sRdy) = range(46, 61)
sOne = 62
sF = 64
sPW = 68
sStamp = 76
(sM1, sM2, sMkD, sPaD, sRedo, sPf, sMst, sMp) = range(16, 24)

P1SEQ = [(m, i, t) for i in range(6) for m in 'qkv' for t in range(2)]
P1SEQ += [('q', 6, 0), ('q', 7, 0), ('q', 6, 1), ('q', 7, 1), ('q', 8, 0), ('q', 8, 1)]
P1SEQ += [('k', i, t) for t in range(2) for i in (6, 7, 8)] + [('v', i, t) for i in (6, 7, 8) for t in range(2)]
P1_LDS_POS = [7, 9, 13, 15, 19, 21, 25, 27, 31, 33, 37, 39]
LDS_P1 = [P1SEQ[p] for p in P1_LDS_POS]
LDS_WO = [('o', 2, 0), ('o', 3, 0), ('o', 2, 1), ('o', 2, 3), ('o', 3, 3)]

def alloc():
    slots = [('a', 8 * i) for i in range(32)] + [('v', 72 + 8 * i) for i in range(23)]
    reg = {}; lds = {}
    for n, k in enumerate(LDS_P1 + LDS_WO): lds[k] = n * 2048
    assert len(lds) == 17
    k = 0
    for m in 'qkv':
        for i in range(9):
            for t in range(2):
                if (m, i, t) not in lds:
                    reg[(m, i, t)] = slots[k]; k += 1
    park = slots[k:]
    for u in range(4):
        for a in range(4):
            if ('o', u, a) not in lds:
                reg[('o', u, a)] = slots[k]; k += 1
    for a in range(4):
        p, b = slots[k + a // 2]
        reg[('o', 4, a)] = (p, b + 4 * (a & 1))
    k += 2
    assert k == 55
    return reg, lds, park
REG, LDS, PARK = alloc()

def frag_of(i, w):
    return i

def rec_setup(a):
    e = a.e
    e(f'''v_and_b32 v12, 63, v0
    v_and_b32 v13, 15, v12
    v_lshrrev_b32 v14, 4, v12
    v_lshlrev_b32 v{vL16}, 4, v12
    v_mov_b32 v{vZero}, 0
    s_mul_i32 s{sT0}, s{S_W}, {L_WSTR}
    s_add_u32 s{sT0}, s{sT0}, {L_W0}
    v_add_u32 v{vW}, s{sT0}, v{vL16}
    v_and_b32 v15, 1, v14
    v_lshrrev_b32 v16, 1, v14
    v_and_b32 v17, 3, v13
    v_lshrrev_b32 v18, 2, v13
    v_mul_u32_u24 v{vXw}, 144, v18
    v_lshl_add_u32 v{vXw}, v14, 5, v{vXw}
    v_lshl_add_u32 v{vXw}, v17, 2, v{vXw}
    s_mul_i32 s{sT0}, s{S_W}, 1152
    s_add_u32 s{sT0}, s{sT0}, {L_QK}
    v_add_u32 v{vXw}, s{sT0}, v{vXw}
    v_and_b32 v{vSel}, 0xf0, v{vL16}''')
    e(f'''v_mul_u32_u24 v{vZ}, 144, v14
    v_lshl_add_u32 v{vZ}, v18, 5, v{vZ}
    v_and_b32 v19, 1, v13
    v_lshl_add_u32 v{vZ}, v19, 4, v{vZ}''')
    e(f'''v_lshrrev_b32 v19, 3, v12
    v_mul_u32_u24 v{vP}, {TS}, v19
    v_and_b32 v19, 7, v12
    v_lshl_add_u32 v{vP}, v19, 3, v{vP}
    v_mul_u32_u24 v{vPD}, {TS}, v14
    v_lshl_add_u32 v{vPD}, v13, 2, v{vPD}
    v_mov_b32 v21, 0x88884444
    v_mov_b32 v22, 0xDDDDEEEE
    v_and_b32 v19, 2, v13
    v_cmp_eq_u32 vcc, 0, v19
    v_cndmask_b32 v{vIdx}, v22, v21, vcc''')
    e(f'''v_lshlrev_b32 v19, 4, v14
    v_lshl_add_u32 v19, v13, 2, v19
    v_mul_u32_u24 v20, 1152, v15
    v_lshl_add_u32 v20, v13, 3, v20
    v_lshl_add_u32 v20, v16, 2, v20
    v_mov_b32 v21, {OOB}
    v_cmp_gt_u32 vcc, 4, v13
    v_cndmask_b32 v28, v21, v19, vcc
    v_cndmask_b32 v20, v21, v20, vcc
    v_add_u32 v19, {2*MSTR - 16}, v19
    v_cmp_eq_u32 vcc, 1, v18
    v_cndmask_b32 v{vMst}, v28, v19, vcc''')
    e(f'''s_lshr_b32 s{sT0}, s{S_H}, 3
    s_lshl_b32 s{sT0}, s{sT0}, 1
    s_and_b32 s{sT1}, s{S_H}, 1
    s_add_u32 s{sT0}, s{sT0}, s{sT1}
    s_lshl_b32 s{sT1}, s{S_W}, 3
    s_add_u32 s{sT0}, s{sT0}, s{sT1}
    s_bfe_u32 s{sT1}, s{S_H}, 0x20001
    s_lshl_b32 s{sMo}, s{sT0}, 8
    s_lshl_b32 s{sT2}, s{sT1}, 6
    s_add_u32 s{sMo}, s{sMo}, s{sT2}
    s_mul_i32 s{sT1}, s{sT1}, 2304
    s_lshl_b32 s{sT0}, s{sT0}, 5
    s_add_u32 s{sF}, s{sT0}, s{sT1}''')
    e(f'''s_lshl_b32 s{sMoD}, s{S_H}, 6
    s_add_u32 s{sMoD}, s{sMoD}, 8192
    s_and_b32 s{sT1}, s{S_H}, 3
    s_mul_i32 s{sT1}, s{sT1}, 2304
    s_lshr_b32 s{sT0}, s{S_H}, 2
    s_lshl_b32 s{sT0}, s{sT0}, 5
    s_add_u32 s{sT0}, s{sT0}, s{sT1}
    s_add_u32 s{sF+1}, s{sT0}, 1024
    s_add_u32 s{sT0}, s{S_H}, 128
    s_mul_i32 s{sPrD}, s{sT0}, {TS}
    s_add_u32 s{sPrD}, s{sPrD}, {PRING}
    s_cmp_eq_u32 s{S_W}, {DW}
    s_cselect_b32 s{sT0}, 16, 0
    s_cmp_lt_u32 s{S_H}, s{sT0}
    s_cselect_b32 s{sMoD}, s{sMoD}, {OOB}
    s_cselect_b32 s{sPrD}, s{sPrD}, {OOB}''')
    e(f'''s_lshl_b32 s{sT0}, s{S_W}, 5
    s_add_u32 s{sT0}, s{sT0}, s{S_H}
    s_mul_i32 s{sPrd}, s{sT0}, {TS}
    s_add_u32 s{sPrd}, s{sPrd}, {PRING}
    s_lshl_b32 s{sT1}, s{S_H}, 6
    s_add_u32 s{sT1}, s{sT1}, {PRING}
    s_mul_i32 s{sT0}, s{S_W}, {8*TS}
    s_add_u32 s{sPW}, s{sT0}, s{sT1}
    s_add_u32 s{sPW+1}, s{sPW}, {32*TS}
    s_add_u32 s{sPW+2}, s{sPW}, {64*TS}
    s_add_u32 s{sPW+3}, s{sPW}, {96*TS}
    s_mul_i32 s{sT0}, s{S_W}, {4*TS}
    s_add_u32 s{sT0}, s{sT0}, s{sT1}
    s_add_u32 s{sPW+4}, s{sT0}, {128*TS}''')
    srd(a, S_RA, P_MEM0, 9216)
    e(f'''buffer_load_dword v22, v20, s[{S_RA}:{S_RA+3}], s{sF} offen
    buffer_load_dword v23, v20, s[{S_RA}:{S_RA+3}], s{sF+1} offen
    v_mov_b32 v24, 0
    v_mov_b32 v25, 0
    v_mov_b32 v26, 0
    v_mov_b32 v27, 0
    v_mov_b32 v29, -1''')
    for r in (sPrd, sPrD):
        for l in range(2): e(f'buffer_store_dwordx4 v[24:27], v{vL16}, {WS}, s{r} offen offset:{l*1024} sc1')
    for k in (1, 2, 0):
        for n, r in enumerate((sMo, sMoD)):
            e(f's_add_u32 s{sT0}, s{r}, {MRING + k*MSTR}')
            e(f'buffer_store_dword v{29 if k else 22+n}, v28, {WS}, s{sT0} offen sc1')
    e(f'''s_add_u32 s{sT0}, s{sPrd}, {32*TS}
    s_add_u32 s{sT1}, s{sMo}, 2048
    s_cmp_eq_u32 s{S_W}, {DW}
    s_cselect_b32 s{sPrD}, s{sPrD}, s{sT0}
    s_cselect_b32 s{sMoD}, s{sMoD}, s{sT1}''')

def rec_load(a, done, mod=''):
    e = a.e
    RA = f's[{S_RA}:{S_RA+3}]'; RB = f's[{S_RB}:{S_RB+3}]'
    NS = 9; L_D = NS * 16384
    e(f'''v_lshlrev_b32 v21, 2, v14
    v_xor_b32 v21, v21, v13
    v_lshlrev_b32 v21, 4, v21
    v_lshl_add_u32 v21, v14, 13, v21
    v_lshl_add_u32 v22, v14, 3, v18
    v_lshlrev_b32 v22, 8, v22
    v_xor_b32 v23, s{S_W}, v18
    v_lshl_add_u32 v22, v23, 6, v22
    v_lshrrev_b32 v23, 1, v17
    v_lshl_add_u32 v22, v23, 5, v22
    v_and_b32 v23, 1, v17
    v_lshl_add_u32 v22, v23, 3, v22
    v_add_u32 v23, 0x10000, v22
    v_add_u32 v64, 0x20000, v22
    s_lshl_b32 s{sC}, s{S_H}, 8
    s_lshl_b32 s{sT0}, s{S_W}, 17
    s_add_u32 s{sC}, s{sC}, s{sT0}''')
    srd(a, S_RA, P_WO, 32 * 147456)
    e(f'''v_lshl_add_u32 v19, v15, 1, v16
    v_mul_u32_u24 v19, {4*1152}, v19
    v_lshl_add_u32 v19, v13, 2, v19
    v_add_u32 v20, {16*1152}, v19
    s_mul_i32 s{sT0}, s{S_H}, 147456
    s_lshl_b32 s{sT1}, s{S_W}, 6
    s_add_u32 s{sT0}, s{sT0}, s{sT1}''')
    for k in range(4):
        e(f'''s_xor_b32 s{sT1}, s{S_W}, {k}
        s_mul_i32 s{sT1}, s{sT1}, {32*1152}
        s_add_u32 s{sF+k}, s{sT0}, s{sT1}''')
    e(f'''v_lshrrev_b32 v65, 1, v12
    v_mul_u32_u24 v65, 1152, v65
    v_and_b32 v66, 1, v12
    v_lshl_add_u32 v65, v66, 4, v65
    s_lshl_b32 s{sT1}, s{S_W}, 5
    s_sub_u32 s{sT1}, 1024, s{sT1}
    v_add_u32 v65, s{sT1}, v65
    v_lshlrev_b32 v66, 4, v16
    v_lshl_add_u32 v66, v15, 2, v66
    v_add_u32 v66, v66, v18
    v_lshlrev_b32 v66, 5, v66
    v_lshl_add_u32 v66, v17, 3, v66
    v_add_u32 v66, {L_D}, v66''')
    for w in range(1, 4): e(f's_cmp_eq_u32 s{S_W}, {w}\ns_cbranch_scc1 RL{w}')
    stages = [(m, f) for m in 'qkv' for f in range(9)]
    tmp = {k: ('v', 24 + 8 * n) for n, k in enumerate(LDS_WO)}
    park = {k: PARK[n] for n, k in enumerate(LDS_P1)}
    def wo(key):
        _, u, k = key
        p, b = tmp[key] if key in tmp else REG[key]
        e(f's_add_u32 s{sT0}, s{sF+k}, {u*256}')
        for rho in range(8):
            e(f'buffer_load_dword {p}{b+rho}, v{19 + (rho >> 2)}, {RA}, s{sT0} offen offset:{(rho & 3)*1152}')
    for w in range(4):
        e(f'RL{w}:')
        a.vq = []; a.lq = []
        inv = {frag_of(i, w): i for i in range(9)}
        toks = {}
        def issue(n):
            m, f = stages[n]
            if f == 0: srd(a, S_RB, {'q': P_WQ, 'k': P_WK, 'v': P_WV}[m], 576 * 8192)
            for k in range(4):
                e(f's_mov_b32 m0, {(n % NS)*16384 + w*4096 + k*1024}')
                e(f's_add_u32 s{sT0}, s{sC}, {(64*f + 4*k)*8192}')
                e(f'buffer_load_dwordx4 v21, {RB}, s{sT0} offen{mod} lds')
            toks[n] = a.mark_v()
        for n in range(NS - 1): issue(n)
        extra = list(LDS_WO)
        for n, (m, f) in enumerate(stages):
            a.wait_v(toks[n])
            e('s_waitcnt lgkmcnt(0)\ns_barrier')
            if n + NS - 1 < len(stages): issue(n + NS - 1)
            elif n == len(stages) - NS + 1:
                for k in range(4):
                    e(f's_mov_b32 m0, {L_D + w*4096 + k*1024}')
                    e(f'buffer_load_dwordx4 v65, {RA}, s{sF+k} offen lds')
                tokd = a.mark_v()
            elif extra: wo(extra.pop(0))
            base = (n % NS) * 16384
            ad = (22, 23, 64)[base >> 16]
            for t in range(2):
                key = (m, inv[f], t)
                p, b = park[key] if key in park else REG[key]
                for rho in (0, 2, 4, 6):
                    e(f'ds_read_b64_tr_b16 {vr(b+rho,2,p)}, v{ad} offset:{(base & 0xffff) + (32*(rho>>2) + 4*((rho>>1)&1))*256 + 16*t}')
        assert not extra
        a.wait_v(tokd)
        dtmp = {0: 68, 1: 12}
        for k in range(4):
            p, b = ('v', dtmp[k]) if k < 2 else REG[('o', 4, k)]
            for u in range(2):
                e(f'ds_read_b64_tr_b16 {vr(b+2*u,2,p)}, v66 offset:{w*4096 + k*1024 + u*256}')
        e('s_waitcnt lgkmcnt(0)\ns_barrier')
        if w < 3: e('s_branch RL_fin')
    e('RL_fin:')
    a.lq = []
    a.vq = [set(f'v{r}' for r in range(24, 64))]
    owner = {v: k for k, v in REG.items() if k[0] == 'o' and k[1] < 4}
    for key, (p, b) in park.items():
        for hh in range(2): e(f'ds_write_b128 v{vW}, {vr(b+4*hh,4,p)} offset:{LDS[key] + hh*1024}')
    e('s_waitcnt lgkmcnt(0)')
    for key, pb in park.items():
        if pb in owner: wo(owner[pb])
    for k in range(2):
        p, b = REG[('o', 4, k)]
        assert p == 'v'
        for r in range(4): e(f'v_mov_b32 v{b+r}, v{dtmp[k]+r}')
    e('s_waitcnt vmcnt(63)')
    a.vq = []
    for key, (p, b) in tmp.items():
        for hh in range(2): e(f'ds_write_b128 v{vW}, {vr(b+4*hh,4)} offset:{LDS[key] + hh*1024}')
    e('s_waitcnt vmcnt(0) lgkmcnt(0)')

def wfrag(key):
    p, b = REG[key]
    return vr(b, 4 if key[:2] == ('o', 4) else 8, p)

def rec_init(a, rdy0=0):
    e = a.e
    e(f'''s_mov_b32 s{sStep}, 0
    s_mov_b32 s{sMs}, {MRING}
    s_lshl_b32 s{sT0}, s{S_H}, 14
    s_lshl_b32 s{sT1}, s{S_W}, 12
    s_add_u32 s{sKx}, s{sT0}, s{sT1}
    s_add_u32 s{sKx}, s{sKx}, {KVX - 256}
    s_mov_b32 s{sPf}, 256
    s_mov_b32 s{sRedo}, -1
    s_cmp_lg_u32 s{sPrD}, {OOB}
    s_cselect_b32 s{sMkD}, 1, 0
    s_lshl_b32 s{sMp}, s{S_H}, 12
    s_add_u32 s{sMp}, s{sMp}, {MRING + 2*MSTR - 256}
    s_cmp_lt_u32 s{S_H}, 3
    s_cselect_b32 s{sMp}, s{sMp}, {OOB}
    s_mul_i32 s{sT0}, s{S_W}, {L_BLK}
    s_mov_b32 m0, s{sT0}
    s_lshl_b32 s{sKv}, s{S_H}, 12
    s_mov_b32 s{sRdy}, {rdy0}
    s_lshr_b32 s{sFlg}, s{S_H}, 1
    s_lshl_b32 s{sFlg}, s{sFlg}, 6
    s_add_u32 s{sKv}, s{sKv}, {KV}
    s_mov_b32 s{sC}, 0x3e0293ee
    s_mov_b32 s{sOne}, 0x3f803f80
    s_mov_b32 s{sOne+1}, 0x3f803f80
    s_mov_b32 s{sSpin}, 0x40000''')
    def m32(f):
        m = sum(1 << j for j in range(16) if f(j)); return hex(m | m << 16)
    def sel(r, vm_, masks):
        e(f'v_mov_b32 v{vT}, 0x3f80\ns_mov_b32 vcc_lo, {vm_}\ns_mov_b32 vcc_hi, {vm_}')
        e(f'v_cndmask_b32 v{vT}, v{vT}, 1.0, vcc')
        for q in range(4):
            e(f's_mov_b32 vcc_lo, {masks[q]}\ns_mov_b32 vcc_hi, {masks[q]}\nv_cndmask_b32 v{r+q}, 0, v{vT}, vcc')
    sel(VA, m32(lambda j: j & 1), [m32(lambda j: j >> 2 == q) for q in range(4)])
    sel(VA + 4, m32(lambda j: (j >> 2) & 1), [m32(lambda j: 2 * (j >> 3) + (j & 1) == q) for q in range(4)])
    e(f'''ds_write_b128 v{vSel}, {vr(VA,4)} offset:{L_SEL}
    ds_write_b128 v{vSel}, {vr(VA+4,4)} offset:{L_SEL+256}
    ds_write_b128 v{vL16}, {vr(C4,4)} offset:{L_TAB}
    s_waitcnt lgkmcnt(0)''')
def rec_disp(a, tag):
    for w in range(3):
        a.e(f's_cmp_eq_u32 s{S_W}, {w}\ns_cbranch_scc1 {tag}{w}_in')
    a.e(f's_branch {tag}3_in')

WO = 'p0,s0,w13,w21,l0,w22,l1,p1,w23,%s,s1,w31,w32,p2,w33,%s,s2,w41,w42,p3a,w43,p3b,%s,s3,p4,%s,s4,'
TAIL = {0: WO % ('rd', 'rd', 'rd,r2', '') + 'neg,ra,bar,rb,mst,r2,zq,zk,up,d28,DA,f0,qa,qb,qc,ms2,f1,zv,d60,DB,f2,d40,f3',
        1: WO % ('', '', '', '') + 'neg,bar,r2,zq,zk,up,d60,DA,f0,d60,f1,qa,qb,qc,DC,f2,d20,f3,ms2,zv',
        2: WO % ('', '', '', '') + 'neg,bar,zq,zk,r2,up,d60,DA,f0,d60,f1,qa,qb,qc,DC,f2,d20,f3,ms2,zv',
        3: WO % ('', '', '', '') + 'neg,bar,zq,zk,up,d40,r2,d20,DA,f0,d60,f1,qa,qb,qc,DC,f2,d20,f3,ms2,zv'}
PAR = dict(l4=6, l5=7, l6=17, l7=18, l8=17, pf=24, qb=49, kv=65)
CHK = '1.3.5,2.9.11,3.15.17,45.21.23,678.33.35'
def opt(abl, key, d=None):
    for x in abl:
        if x.startswith(key + '='): return x[len(key)+1:]
    return d

def rec_loop(a, w, stamps=None, fin='R_done', abl=(), tag='R', cs=''):
    b = Asm(); b.uid = 10000
    rec_body(b, w, None, fin, abl, tag, cs)
    a.vq = list(b.endq[0]); a.lq = list(b.endq[1])
    rec_body(a, w, stamps, fin, abl, tag, cs)

def rec_body(a, w, stamps, fin, abl, tag, cs):
    drops = [re.compile(x[2:].replace('~', ' ')) for x in abl if x.startswith('x=')]
    sec = ['p1']
    def e(text):
        for line in text.split('\n'):
            line = line.strip()
            if 'free' in abl: line = re.sub(r'v_cmp_(eq_u32|ne_u32|u_f32) vcc', 'v_cmp_f_f32 vcc', line)
            if any(d.search(sec[0] + ':' + line) for d in drops): continue
            a.e(line)
    def stamp(name, at=40):
        if name in ('t0', 'sdone', 'pvdone', 'st0', 'st3'): sec[0] = name
        if stamps is None or name not in stamps: return
        k = stamps.index(name)
        lab = a.newlabel('st')
        a.raw(f's_cmp_eq_u32 s{sStep}, {at}'); a.raw(f's_cbranch_scc0 {lab}')
        a.raw(f's_memtime s[{sStamp+2*k}:{sStamp+2*k+1}]'); a.raw(f'{lab}:')
    P_ = {k: int(opt(abl, k, v)) for k, v in PAR.items()}
    def cnt(k):
        if 'cnt' in abl: e(f's_add_u32 s{sF+k}, s{sF+k}, 1')
    FB = [MB[0], MB[1], MB[2], VX, VX + 4, MB[0], MB[1], MB[2], C4]
    def ldw(key, buf, hh): return f'ds_read_b128 {vr(buf+4*hh,4)}, v{vW} offset:{LDS[key] + hh*1024}'
    def ldkx(n): return f'ds_read_b128 {vr(KB[n],4)}, v{vL16} offset:{(w ^ (n >> 1))*L_BLK + 256 + (n & 1)*1024}'
    def ldv(n): return f'ds_read_b128 {vr(VX+4*n,4)}, v{vL16} offset:{w*L_BLK + 2304 + n*1024}'
    def ldz(k, r, kq=0): return f'ds_read_b128 {vr(r,4)}, v{vZ} offset:{L_QK + (w ^ k)*1152 + kq*576}'
    def fillr(r, n, val=0): return '\n'.join(f'v_mov_b64 {vr(r+k,2)}, {val}' for k in range(0, n, 2))
    def zero(r, n): e(fillr(r, n))
    lc = ' sc1' if 'lsc' in abl else cs
    def ldf(i, m=None, r=None):
        return f'buffer_load_dwordx4 {vr(FB[i] if r is None else r,4)}, v{vL16}, {WS}, s{(sMs, sM1, sM2)[i >> 2]} offen offset:{(i & 3)*1024}{lc if m is None else m}'
    def dma(n): return f'buffer_load_dwordx4 v{vL16}, {WS}, s{sKx} offen offset:{256 + n*1024} sc1 lds'
    def blind(line, name):
        a.auto = False; e(line); a.auto = True
        a.vq[-1] = {name}
    def add(r): return f'v_add_f32 v{r}, v{r}, v{r+2}'
    def cvt(d, r, r2=None): return f'v_cvt_pk_bf16_f32 v{d}, v{r}, v{r+1 if r2 is None else r2}'
    def upm(): e(f's_add_u32 s{sM1}, s{sMs}, 4096\ns_add_u32 s{sM2}, s{sMs}, 8192')
    spin = f's_sub_u32 s{sSpin}, s{sSpin}, 1\ns_cbranch_scc1 {fin}'
    lbuf = {k: SB[n % 2] for n, k in enumerate(LDS_P1)}
    L = lambda s: f'{tag}{w}_{s}'
    acc = {'q': QA, 'k': KA, 'v': VA}
    X = SB[0]; Tm = SB[0] + 4
    T = [KA, KA + 4]
    Zq = [QA, QA + 4, SB[1], SB[1] + 4]
    Zk = [VA, MB[0], MB[1], VA + 4]
    KB = [Tm, VX, VX + 4, MB[0], MB[1], MB[2], C4, Tm]
    m_ = vT
    fill = {n: [] for n in range(-1, 70)}
    def put(n, *x): fill[n] += list(x)
    put(-1, f'v_cmp_eq_u32 vcc, -1, v{FB[0]+3}', '#got0')
    put(1, f's_cbranch_vccnz {L("f0")}')
    put(3, '#wr')
    for k, (n0, n1) in enumerate(((0, 2), (3, 4))): put(n0, ldw(LDS_P1[k], SB[k], 0)); put(n1, ldw(LDS_P1[k], SB[k], 1))
    for k in range(10):
        for hh in range(2): put(P1_LDS_POS[k] + hh, ldw(LDS_P1[k+2], SB[k % 2], hh))
    tail = [x for x in opt(abl, f't{w}', TAIL[w]).split(',') if x]
    tail = [f'd{opt(abl, x, 0)}' if x[0] == 'D' else x for x in tail]
    lat = {f: -9 if f'f{f}' in tail else int(opt(abl, f'l{f}', PAR.get(f'l{f}'))) for f in range(9)}
    for f in range(1, 9):
        if lat[f] >= 0: put(lat[f], ldf(f))
    put(P_['pf'] - 2, f'v_lshl_add_u32 v{vT2}, v{vL16}, 2, s{sPf}')
    if 'nopf' not in abl: put(P_['pf'], f'buffer_load_dword v{vT2}, {WS}, s{sKx} offen sc1 lds')
    if w == 1: put(37, f'buffer_load_dword v{vT2}, {WS}, s{sMp} offen sc1 lds')
    put(29, ldkx(1)); put(30, ldkx(2)); put(36, ldkx(3)); put(38, ldkx(0))
    chk = [x.split('.') for x in opt(abl, 'chk', CHK).split(',')]
    for fs, c, b in chk:
        r = [FB[int(f)] + 3 for f in fs]
        if len(r) == 3: put(int(c) - 1, f'v_max_u32 v{vT}, v{r[0]}, v{r[2]}'); r[0] = vT
        put(int(c), f'v_cmp_u_f32 vcc, v{r[0]}, v{r[1]}' if len(r) > 1 else f'v_cmp_eq_u32 vcc, -1, v{r[0]}')
        put(int(b), f's_cbranch_vccnz {L("c" + fs)}', f'{L("g" + fs)}:')
    put(12, '#bar1')
    put(42, add(QA), add(QA + 1))
    put(43, add(QA + 4), add(QA + 5))
    put(44, cvt(X + 1, QA, QA + 4), cvt(X + 3, QA + 1, QA + 5))
    put(45, f'ds_write2_b32 v{vXw}, v{X+1}, v{X+3} offset0:0 offset1:4', '#mw')
    put(46, ldz(0, Zq[0]), add(KA)); put(47, add(KA + 1))
    put(P_['qb'], '#bar', '#qbar')
    put(49, add(KA + 4))
    put(50, ldz(1, Zq[1]), add(KA + 5))
    put(51, ldkx(4), cvt(X, KA, KA + 4))
    put(52, ldkx(5), cvt(X + 2, KA + 1, KA + 5))
    put(53, ldz(2, Zq[2]), ldkx(6), f'ds_write2_b32 v{vXw}, v{X}, v{X+2} offset0:144 offset1:148', '#t0')
    put(54, ldkx(7), '#mw', add(VA)); put(55, ldz(3, Zq[3]), add(VA + 1)); put(56, ldv(0), cvt(X + 1, VA))
    put(57, ldz(0, Zk[0], 1), add(VA + 4))
    put(58, '#bar', ldz(1, Zk[1], 1), add(VA + 5))
    put(59, ldz(2, Zk[2], 1), cvt(X + 3, VA + 4))
    put(60, ldz(3, Zk[3], 1))
    put(61, ldv(1))
    ONE, PmQ, P, LL = MB[0], vZero, VA, MB[2]
    O0, O1 = MB[1], VA + 4
    wb = [QA, SB[1]]
    put(62, f'v_cmp_u_f32 vcc, v{T[0]}, v{T[0]}', f'v_max3_f32 v{m_}, v{T[0]}, v{T[0]+1}, v{T[0]+2}')
    put(63, f'v_max3_f32 v{m_}, v{m_}, v{T[0]+3}, v{T[1]}', f'v_max3_f32 v{m_}, v{m_}, v{T[1]+1}, v{T[1]+2}')
    put(64, f's_cbranch_vccnz {L("fn")}', f'{L("gn")}:')
    if 'nokv' not in abl: put(65, f'buffer_store_dwordx4 {vr(X,4)}, v{vL16}, {WS}, s{sKv} offen offset:{w*1024} sc1')
    put(65, dma(0), dma(1), f'ds_read_b128 {vr(C4,4)}, v{vL16} offset:{L_TAB}', ldw(LDS_WO[0], wb[0], 0), fillr(ONE, 4, f's[{sOne}:{sOne+1}]'), f'v_max_f32 v{m_}, v{m_}, v{T[1]+3}')
    tok = {}
    def mf(n):
        if n < 54:
            key = P1SEQ[n]
            m, i, t = key
            wv = vr(lbuf[key], 8) if key in LDS else wfrag(key)
            return f'{SMF} {vr(acc[m]+4*t,4)}, {vr(FB[i],4)}, {wv}, v{vIdx}'
        if n < 62:
            k = n - 54
            return f'{MF32} {vr(T[k & 1],4)}, {vr(KB[k],4)}, {vr(Zq[k >> 1],4)}, {"0" if k < 2 else vr(T[k & 1],4)}'
        k = n - 62
        return f'{MF32} {vr(Tm,4)}, {vr(Zk[k],4)}, {vr(Zq[k],4)}, {"0" if k == 0 else vr(Tm,4)}'
    def ops(n): return Ins(mf(n)).src if n < 66 else set()
    def emit(n):
        pw = False
        for x in fill[n]:
            if x == '#got0': stamp('got0'); stamp('got0n', 41)
            elif x in ('#bar1', '#qbar', '#t0'): stamp(x[1:])
            elif x == '#mw': tok['mw'] = a.mark_l()
            elif x == '#wr': a.waitfor({f'#r{sPrd}'})
            elif x == '#bar': a.waitfor(tok['mw'] | ops(n + 1)); e('s_barrier')
            else:
                if x[:2] == 'v_' and not pw: a.waitfor(ops(n + 1) | Ins(x.split('\n')[0]).src); pw = True
                e(x)
    e(f'{L("go")}:')
    e(f's_cmp_gt_u32 s{sRdy}, s{sStep}\ns_cbranch_scc0 {L("flg")}')
    a.waitfor({f'v{FB[0]}'})
    e(f'{L("go2")}:')
    if 'tr' in abl and w == 3:
        a.raw('s_memrealtime s[76:77]'); a.raw('s_memtime s[78:79]')
    emit(-1)
    for n in range(66): e(mf(n)); emit(n)
    stamp('sdone')
    e(f'''v_max3_f32 v{Tm+2}, v{m_}, v{Tm}, v{Tm+1}
    v_max3_f32 v{m_}, v{m_}, v{Tm}, v{Tm+1}
    s_add_u32 s{sKv}, s{sKv}, {32*4096}
    s_add_u32 s{sMs}, s{sMs}, {MSTR}
    v_permlane32_swap_b32 v{m_}, v{Tm+2}
    v_max_f32 v{Tm+3}, v{m_}, v{Tm+2}
    v_max_f32 v{m_}, v{m_}, v{Tm+2}
    s_add_u32 s{sMst}, s{sMs}, s{sMo}''')
    a.waitfor({f'v{VX}', f'v{VX+4}'})
    e(f'''v_permlane16_swap_b32 v{m_}, v{Tm+3}
    v_max_f32 v{m_}, v{m_}, v{Tm+3}''')
    T0 = T[0]
    def ex(r): e(f'v_exp_f32 v{r}, v{r}')
    e(f'v_mul_f32 v{Tm+2}, s{sC}, v{m_}')
    for r in (Tm, T0, T0 + 2, T0 + 4, T0 + 6):
        e(f'v_pk_fma_f32 {vr(r,2)}, {vr(r,2)}, s[{sC}:{sC+1}], {vr(Tm+2,2)} op_sel_hi:[1,0,0] neg_lo:[0,0,1] neg_hi:[0,0,1]')
    ex(Tm); ex(Tm + 1); ex(T0); e(cvt(PmQ + 1, Tm)); ex(T0 + 1); ex(T0 + 2)
    e(f'{MF16} {vr(O0,4)}, {vr(X,2)}, {vr(PmQ,2)}, 0')
    e(dma(2))
    e(cvt(P, T0)); ex(T0 + 3)
    e(f'{MF16} {vr(O1,4)}, {vr(X+2,2)}, {vr(PmQ,2)}, 0')
    e(dma(3)); tokd = a.mark_v()
    ex(T0 + 4); e(cvt(P + 1, T0 + 2)); ex(T0 + 5)
    e(f'{MF16} {vr(LL,4)}, {vr(PmQ,2)}, {vr(ONE,2)}, 0')
    e(ldw(LDS_WO[0], wb[0], 1))
    ex(T0 + 6); ex(T0 + 7)
    e(cvt(P + 2, T0 + 4)); e(cvt(P + 3, T0 + 6))
    W = [VX, VX + 4, KA, KA + 4, Tm]
    zero(W[2], 4)
    e(f'{MF32} {vr(O0,4)}, {vr(VX,4)}, {vr(P,4)}, {vr(O0,4)}')
    zero(W[3], 4)
    e(f'{MF32} {vr(O1,4)}, {vr(VX+4,4)}, {vr(P,4)}, {vr(O1,4)}')
    zero(W[0], 4)
    e(f'{MF32} {vr(LL,4)}, {vr(P,4)}, {vr(ONE,4)}, {vr(LL,4)}')
    OF = [P, MB[0], MB[1], VA + 4]
    e(cvt(P, O0)); e(cvt(P + 1, O0 + 2)); zero(W[1], 4); e(cvt(P + 2, O1)); e(cvt(P + 3, O1 + 2))
    e(f'ds_write_b128 v{vZ}, {vr(P,4)} offset:{L_QK + w*1152}')
    toko = a.mark_l()
    e(f's_add_u32 s{sKx}, s{sKx}, {32*16384}')
    stamp('pvdone')
    if 'tr' in abl and w == 3:
        for x in (f'v_mov_b32 v{vT}, s76', f'v_mov_b32 v{vT2}, s78', f's_lshl_b32 s80, s{sStep}, 8', f's_lshl_b32 s81, s{S_H}, 3', 's_add_u32 s80, s80, s81', f's_add_u32 s80, s80, {STAMP + 0x8000}'): a.raw(x)
        e(f'buffer_store_dword v{vT}, v{vZero}, {WS}, s80 offen\nbuffer_store_dword v{vT2}, v{vZero}, {WS}, s80 offen offset:4')
    IV = LL
    wbuf = {k: wb[(0, 1, 0, 1, 0)[n]] for n, k in enumerate(LDS_WO)}
    def wo(u, k):
        key = ('o', u, k)
        if u == 4: e(f'{MF32} {vr(W[4],4)}, {vr(OF[k],4)}, {wfrag(key)}, {"0" if k == 0 else vr(W[4],4)}')
        else: e(f'{SMF} {vr(W[u],4)}, {vr(OF[k],4)}, {vr(wbuf[key], 8) if key in LDS else wfrag(key)}, v{vIdx} abid:1')
    ack = {}
    RDR, SEL, D, R2 = {sPrd: SB[1], sPrD: VX}, VA, X, Tm + 2
    def rdl(s): return [f'buffer_load_dwordx4 {vr(RDR[s]+4*l,4)}, v{vL16}, {WS}, s{s} offen offset:{l*1024} sc1' for l in range(2)]
    nrd = {}
    def rd(s):
        nrd[s] = nrd.get(s, 0) + 1
        for x in rdl(s):
            if nrd[s] == 1: e(x)
            else: blind(x, f'#r{s}')
        if len(nrd) == 1 and nrd[s] == 1: stamp('rd', 41)
    def epi(u):
        r = W[u]
        x = [f'v_mul_f32 v{r+k}, v{r+k}, v{IV + (k & 1)}' for k in ((0, 2, 1, 3) if u < 4 else (0, 1))]
        x += [cvt(r, r, r + 2), cvt(r + 1, r + 1, r + 3)] if u < 4 else [cvt(r, r)]
        return x + [f'v_bfi_b32 v{r+k}, 1, s{sStep}, v{r+k}' for k in range(2 if u < 4 else 1)]
    def st(u):
        r = W[u]
        if u < 4: e(f'buffer_store_dwordx2 {vr(r,2)}, v{vP}, {WS}, s{sPW+u} offen{cs}')
        else: e(f'buffer_store_dword v{r}, v{vPD}, {WS}, s{sPW+4} offen{cs}')
        ack[u] = a.mark_v()
        if u in (0, 3): stamp(f'st{u}', 41)
    wo(4, 0)
    e(ldw(LDS_WO[1], wb[1], 0))
    wo(2, 0)
    e(ldw(LDS_WO[1], wb[1], 1)); e(f's_cmp_eq_u32 s{sStep}, 63')
    wo(0, 0)
    e(f's_cbranch_scc1 {fin}')
    a.wait_l(toko); e('s_barrier')
    wo(1, 0)
    for k in (1, 2, 3): e(ldz(k, OF[k]))
    wo(3, 0)
    e(ldw(LDS_WO[2], wb[0], 0)); e(ldw(LDS_WO[2], wb[0], 1))
    e(f'v_rcp_f32 v{IV}, v{IV}\nv_rcp_f32 v{IV+1}, v{IV+1}')
    wo(0, 1); e(ldw(LDS_WO[3], wb[1], 0))
    wo(0, 2); e(ldw(LDS_WO[3], wb[1], 1))
    wo(0, 3); e(f'ds_read_b128 {vr(SEL,4)}, v{vSel} offset:{L_SEL + (256 if w == DW else 0)}')
    wo(1, 1); e(f's_add_u32 s{sStep}, s{sStep}, 1\ns_add_u32 s{sT1}, s{sMs}, s{sMoD}')
    if w == DW: e(f's_and_b32 s{sPaD}, s{sStep}, s{sMkD}')
    wo(1, 2)
    fails = []
    def rsum(s, part='ab'):
        r = RDR[s]; par = sPaD if w == DW else sStep
        t = (vT, vT2, Tm, Tm + 1)
        if 'a' in part:
            for l in range(2):
                q = r + 4 * l
                for k in range(2): e(f'v_bitop3_b32 v{t[2*l+k]}, v{q+2*k}, v{q+2*k+1}, s{par} bitop3:0x7e')
                e(f'{MF32} {vr(D,4)}, {vr(SEL,4)}, {vr(q,4)}, {"0" if l == 0 else vr(D,4)}')
            e(f'v_or3_b32 v{vT}, v{vT}, v{vT2}, v{Tm}\nv_bitop3_b32 v{vT}, v{vT}, v{Tm+1}, 1 bitop3:0xa8\nv_cmp_ne_u32 vcc, 0, v{vT}')
        if 'b' in part:
            for k in range(2): e(f'v_add_f32_dpp v{D+k}, v{D+k}, v{D+k} row_ror:8 row_mask:0xf bank_mask:0xf')
    def rchk(nm, s):
        e(f's_cbranch_vccnz {L("f" + nm)}\n{L(nm)}:')
        assert ('f0' if s == sPrd else 'f3') not in done and 's4' in done
        fails.append((nm, s, [len(a.vq) - 1 - k for k, q in enumerate(a.vq) if f'#r{s}' in q][1::2]))
    def rfin():
        for k in range(2): e(f'v_add_f32_dpp v{R2+k}, v{D+k}, v{D+k} row_ror:4 row_mask:0xf bank_mask:0x1')
        e(cvt(vT, R2))
    done = []
    assert tail.count('bar') == 1
    for x in tail:
        done.append(x)
        if x == 'ra': rsum(sPrd); rchk('rp', sPrd)
        elif x == 'qa': rsum(sPrD, 'a')
        elif x == 'qb': rsum(sPrD, 'b'); rchk('rq', sPrD)
        elif x in ('rb', 'qc'): rfin()
        elif x == 'up':
            upm()
            if w == 1: e(f's_add_u32 s{sMp}, s{sMp}, {MSTR}')
        elif x == 'neg': e(fillr(R2, 2, -1))
        elif x == 'zq': zero(QA, 8)
        elif x == 'zk': zero(KA, 8)
        elif x == 'zv': zero(VA, 8)
        elif x == 'rd': rd(sPrd)
        elif x == 'r2': rd(sPrD)
        elif x == 'wr': a.wait_v({f'v{RDR[sPrD]}'})
        elif x in ('mst', 'ms2'):
            e(f'buffer_store_dword v{vT}, v{vMst}, {WS}, s{sMst if x == "mst" else sT1} offen{cs}')
            if x == 'mst':
                assert done[-4:] == ['ra', 'bar', 'rb', 'mst']
                e(f'{L("yrp")}:')
            ack['m'] = a.mark_v(); stamp('mst' if x == 'mst' or w else 'zrdy', 41)
        elif x == 'bar': a.wait_v(tokd); e('s_barrier')
        elif x[0] == 'f':
            e(ldf(int(x[1])))
            if x == 'f0': stamp('e0', 41)
        elif x[0] == 'w': wo(int(x[1]), int(x[2]))
        elif x[0] == 'l': e(ldw(LDS_WO[4], wb[0], int(x[1])))
        elif x[0] == 'p':
            y = epi(int(x[1]))
            e('\n'.join(y if len(x) == 2 else y[:2] if x[2] == 'a' else y[2:]))
        elif x[0] == 's': st(int(x[1]))
        elif x[0] == 'a': a.wait_v(ack[int(x[1:]) if x[1:] != 'm' else 'm'])
        elif x[0] == 'd':
            n = int(x[1:]) // 4
            while n > 0:
                k = min(n, 16); e(f's_nop {k-1}'); n -= k
        else: raise ValueError(x)
    a.endq = (list(a.vq), list(a.lq))
    e(f's_branch {L("go")}')
    sec[0] = 'rare'
    def clr(): a.vq = []; a.lq = []
    early = [int(x[1]) for x in tail if x[0] == 'f']
    def flags(name, back):
        e(f'''{name}:
        v_lshrrev_b32 v{vT}, 2, v{vL16}
        buffer_load_dword v{vT}, v{vT}, {WS}, s{sFlg} offen sc1
        {spin}
        s_waitcnt vmcnt(0)
        v_readlane_b32 s{sRdy}, v{vT}, 4''')
        for k in range(5, 12): e(f'v_readlane_b32 s{sT0}, v{vT}, {k}\ns_min_u32 s{sRdy}, s{sRdy}, s{sT0}')
        e(f'''s_lshl_b32 s{sRdy}, s{sRdy}, 2
        s_max_u32 s{sRdy}, s{sRdy}, 1
        s_sub_u32 s{sRdy}, s{sRdy}, 1
        s_cmp_eq_u32 s{sRdy}, 63
        s_cselect_b32 s{sRdy}, 128, s{sRdy}
        s_branch {back}''')
    clr()
    e(f'{L("in")}:\ns_cmp_gt_u32 s{sRdy}, 0\ns_cbranch_scc0 {L("flg0")}')
    for n in range(4): e(dma(n))
    e(f's_add_u32 s{sKx}, s{sKx}, {32*16384}'); upm()
    e(f'{L("in2")}:')
    for f in early: e(ldf(f))
    zero(QA, 16); zero(VA, 8)
    e(f's_waitcnt vmcnt(0)\ns_barrier\ns_branch {L("go2")}')
    clr()
    e(f'{L("f0")}:'); e(ldf(0, ' sc1')); e(spin); cnt(0); e('s_nop 3')
    zero(QA, 8)
    oth = [f for f in range(1, 9) if lat[f] < 0]
    for f in oth: e(ldf(f, ' sc1'))
    e(f's_waitcnt vmcnt(0) lgkmcnt(0)\ns_branch {L("go2")}')
    for fs, c, b in chk:
        clr()
        e(f'{L("c" + fs)}:')
        for f in fs: e(ldf(int(f), ' sc1'))
        e(spin); cnt(1)
        for f in range(int(fs[-1]) + 1, 9):
            if lat[f] <= int(b): e(ldf(f, ' sc1'))
        r = [FB[int(f)] + 3 for f in fs] * 3
        e(f's_waitcnt vmcnt(0)\nv_max3_u32 v{vT}, v{r[0]}, v{r[1]}, v{r[2]}\nv_cmp_eq_u32 vcc, -1, v{vT}')
        e(f's_cbranch_vccnz {L("c" + fs)}\ns_branch {L("g" + fs)}')
    clr()
    e(f'{L("fn")}:')
    e(f's_cmp_eq_u32 s{sRedo}, s{sStep}\ns_cbranch_scc1 {L("gn")}\ns_mov_b32 s{sRedo}, s{sStep}'); cnt(2)
    e(f's_waitcnt vmcnt(0) lgkmcnt(0)\ns_nop 7\n{L("fl")}:')
    for f in range(9): e(ldf(f, ' sc1', 12 + 4 * f))
    e(spin)
    e(f'v_max_u32 v{vT}, v12, v13')
    for r in range(14, 48, 2): e(f'v_max3_u32 v{vT}, v{vT}, v{r}, v{r+1}')
    e(f'v_cmp_eq_u32 vcc, -1, v{vT}\ns_cbranch_vccnz {L("fl")}')
    e(f's_barrier\nbuffer_inv sc1\ns_waitcnt vmcnt(0)\ns_barrier\ns_branch {L("in2")}')
    for nm, s, pend in fails:
        a.auto = False
        more = rdl(s) + (rdl(sPrD) if s == sPrd else [])
        c = 3 if s == sPrD else 2
        if s == sPrd:
            e(f'{L("xrp")}:'); rfin()
            e(f'buffer_store_dword v{vT}, v{vMst}, {WS}, s{sMst} offen{cs}')
            e(f's_waitcnt vmcnt({opt(abl, "xw", 5)})\ns_barrier\ns_branch {L("yrp")}')
        ok = L('xrp' if s == sPrd else nm)
        e(f'{L("f" + nm)}:')
        for k, n in enumerate(pend):
            e('\n'.join(more)); cnt(c)
            e(f's_waitcnt vmcnt({n + len(more) * (k + 1)})'); rsum(s); e(f's_cbranch_vccz {ok}')
        e(f'{L("l" + nm)}:'); e('\n'.join(more)); e(spin); cnt(c)
        e(f's_waitcnt vmcnt({len(more) * (len(pend) + 1) - 2})'); rsum(s); e(f's_cbranch_vccz {ok}\ns_branch {L("l" + nm)}')
        a.auto = True
    clr(); flags(L('flg'), L('go'))
    clr(); flags(L('flg0'), L('in'))
```

```python
from asmlib import *
from layout import *
from rec6 import S_WS, S_RA, S_RB, S_W, S_H, WS, srd, P_X, P_WQ, P_WK, P_WV, P_WO, P_WG, P_WU, P_WD, P_OUT, P_DBG, MF32, MF16
S_G = 3
RA = f's[{S_RA}:{S_RA+3}]'; RB = f's[{S_RB}:{S_RB+3}]'
MF3 = 'v_mfma_f32_32x32x16_bf16'
L16, LN, LJ, LG, T0, T1, T2, T3 = 1, 2, 3, 4, 5, 6, 7, 8
(t0, t1, t2, t3, sSpin, sK, sA, sB, sC, sD, sE, sF_, sG_, sH_) = range(46, 60)
sFB = 75
FIN = 'K_end'

def cvt(d, x, y): return f'v_cvt_pk_bf16_f32 v{d}, v{x}, v{y}'

def arrive(a, v=5):
    lab = a.newlabel('arr')
    a.e(f'''s_waitcnt vmcnt(0)
    s_barrier
    s_cmp_eq_u32 s{S_W}, 0
    s_cbranch_scc0 {lab}
    s_getreg_b32 s{t0}, hwreg(HW_REG_XCC_ID, 0, 4)
    s_or_b32 s{t0}, s{t0}, 0x80
    v_mov_b32 v{v}, s{t0}
    v_mov_b32 v{v+1}, s2
    s_mov_b64 exec, 1
    global_store_byte v{v+1}, v{v}, s[{P_DBG}:{P_DBG+1}] sc1
    s_mov_b64 exec, -1
    {lab}:''')

def gbar(a, v, spin, ta, tb, force=None):
    lab = a.newlabel('gb')
    a.e(f'''s_mov_b32 s{spin}, 0x40000
    v_mbcnt_lo_u32_b32 v{v}, -1, 0
    v_mbcnt_hi_u32_b32 v{v}, -1, v{v}
    v_lshlrev_b32 v{v}, 2, v{v}
    {lab}:
    global_load_dword v{v+1}, v{v}, s[{P_DBG}:{P_DBG+1}] sc1
    s_sub_u32 s{spin}, s{spin}, 1
    s_cbranch_scc1 {FIN}
    s_waitcnt vmcnt(0)
    v_and_b32 v{v+2}, 0x80808080, v{v+1}
    v_cmp_ne_u32 vcc, 0x80808080, v{v+2}
    s_cbranch_vccnz {lab}
    v_readlane_b32 s{ta}, v{v+1}, 0
    v_readlane_b32 s{tb}, v{v+1}, 1
    v_and_b32 v{v}, 4, v{v}
    v_mov_b32 v{v+2}, s{ta}
    v_cmp_eq_u32 vcc, 0, v{v}
    v_mov_b32 v{v}, s{tb}
    v_cndmask_b32 v{v+2}, v{v}, v{v+2}, vcc
    v_cmp_ne_u32 vcc, v{v+1}, v{v+2}
    s_cmp_lg_u64 vcc, 0
    s_cselect_b32 s{sFB}, 1, 0''')
    if force is not None: a.e(f's_mov_b32 s{sFB}, {force}')

def w_init(a):
    e = a.e
    e(f'''v_and_b32 v{LN}, 63, v0
    v_lshlrev_b32 v{L16}, 4, v{LN}
    v_and_b32 v{LJ}, 15, v{LN}
    v_lshrrev_b32 v{LG}, 4, v{LN}''')
    X0 = 32
    F0 = 72
    srd(a, S_RA, P_X, 2048 * 1152)
    e(f'''s_sub_u32 s{t0}, s{S_G}, 4
    s_lshl_b32 s{t0}, s{t0}, 5
    s_add_u32 s{t0}, s{t0}, s{S_H}
    s_lshl_b32 s{t0}, s{t0}, 1
    s_add_u32 s{sK}, s{t0}, s{S_W}
    s_cmp_ge_u32 s{S_G}, 4
    s_cselect_b32 s{sA}, 1, 0
    s_cmp_lt_u32 s{S_W}, 2
    s_cselect_b32 s{sA}, s{sA}, 0
    v_and_b32 v{T0}, 7, v{LN}
    v_lshrrev_b32 v{T1}, 3, v{LN}
    v_mul_u32_u24 v{T2}, 1152, v{T0}
    v_lshl_add_u32 v{T2}, v{T1}, 4, v{T2}
    s_mul_i32 s{t0}, s{sK}, {8*1152}
    s_cmp_eq_u32 s{sA}, 0
    s_cbranch_scc1 W_noln_a''')
    for n in range(9): e(f'buffer_load_dwordx4 {vr(X0+4*n,4)}, v{T2}, {RA}, s{t0} offen offset:{n*128}')
    e('W_noln_a:')
    a.vq = []
    e(f'''v_mov_b32 v12, -1
    v_mov_b32 v13, -1
    v_mov_b32 v14, -1
    v_mov_b32 v15, -1
    v_lshlrev_b32 v{T3}, 4, v0
    s_sub_u32 s{t0}, s{S_G}, 1
    s_lshl_b32 s{t0}, s{t0}, 5
    s_add_u32 s{t0}, s{t0}, s{S_H}
    s_mul_i32 s{t0}, s{t0}, {12*4096}
    s_add_u32 s{t0}, s{t0}, {KV}''')
    for n in range(12):
        e(f'buffer_store_dwordx4 v[12:15], v{T3}, {WS}, s{t0} offen sc1\ns_add_u32 s{t0}, s{t0}, 4096')
    e(f'''s_lshl_b32 s{t0}, s{S_G}, 21
    s_mul_i32 s{t1}, s{S_H}, {PS}
    s_add_u32 s{t0}, s{t0}, s{t1}
    s_add_u32 s{t0}, s{t0}, {RING}''')
    for sl in range(2):
        for n in range(5):
            e(f's_add_u32 s{t1}, s{t0}, {sl*RSLOT + n*4096}\nbuffer_store_dwordx4 v[12:15], v{T3}, {WS}, s{t1} offen sc1')
    e(f'''s_sub_u32 s{t0}, s{S_G}, 1
    s_lshr_b32 s{t1}, s{t0}, 1
    s_lshl_b32 s{sE}, s{t1}, 4
    s_and_b32 s{t0}, s{t0}, 1
    s_lshl_b32 s{t0}, s{t0}, 3
    s_and_b32 s{t1}, s{S_H}, 7
    s_add_u32 s{sB}, s{t0}, s{t1}
    s_lshl_b32 s{t0}, s{sB}, 6
    s_add_u32 s{sE}, s{sE}, s{t0}
    s_lshr_b32 s{sC}, s{S_H}, 3
    s_lshl_b32 s{t0}, s{sC}, 2
    s_add_u32 s{sE}, s{sE}, s{t0}
    v_mov_b32 v9, {OOB}
    v_cmp_eq_u32 vcc, 0, v0
    v_cndmask_b32 v9, v9, 0, vcc
    v_mov_b32 v10, 0
    buffer_store_dword v10, v9, {WS}, s{sE} offen sc1
    s_cmp_eq_u32 s{sA}, 0
    s_cbranch_scc1 W_noln_b
    s_waitcnt vmcnt(23)''')
    a.vq = []
    def red(r):
        e(f'''v_add_f32_dpp v{r}, v{r}, v{r} row_ror:8 row_mask:0xf bank_mask:0xf
        v_mov_b32 v17, v{r}
        v_permlane16_swap_b32 v{r}, v17
        v_add_f32 v{r}, v{r}, v17
        v_mov_b32 v17, v{r}
        v_permlane32_swap_b32 v{r}, v17
        v_add_f32 v{r}, v{r}, v17''')
    def unpack(src):
        for k in range(36):
            e(f'v_lshlrev_b32 v{F0+2*k}, 16, v{src+k}\nv_and_b32 v{F0+2*k+1}, 0xffff0000, v{src+k}')
    def rbf(r): e(f'v_cvt_pk_bf16_f32 v{r}, v{r}, v{r}\nv_lshlrev_b32 v{r}, 16, v{r}')
    unpack(X0)
    e(f'v_pk_add_f32 v[20:21], {vr(F0,2)}, {vr(F0+2,2)}')
    for k in range(2, 36): e(f'v_pk_add_f32 v[20:21], v[20:21], {vr(F0+2*k,2)}')
    e('v_add_f32 v16, v20, v21'); red(16)
    e(f'v_mul_f32 v16, {hex(f2u(-1/576))}, v16\nv_mov_b32 v18, 0\nv_mov_b32 v19, 0')
    for k in range(36):
        e(f'v_pk_add_f32 v[20:21], {vr(F0+2*k,2)}, v[16:17] op_sel_hi:[1,0]\nv_pk_fma_f32 v[18:19], v[20:21], v[20:21], v[18:19]')
    e('v_add_f32 v18, v18, v19'); red(18)
    e(f'v_mul_f32 v18, {hex(f2u(1/576))}, v18'); rbf(18)
    e(f'v_add_f32 v18, {hex(f2u(1e-5))}, v18'); rbf(18)
    e('v_sqrt_f32 v18, v18'); rbf(18)
    e('v_rcp_f32 v18, v18'); rbf(16)
    for k in range(36):
        e(f'v_pk_add_f32 v[20:21], {vr(F0+2*k,2)}, v[16:17] op_sel_hi:[1,0]\n' + cvt(X0+k, 20, 21))
    unpack(X0)
    for k in range(36):
        e(f'v_pk_mul_f32 v[20:21], {vr(F0+2*k,2)}, v[18:19] op_sel_hi:[1,0]\n' + cvt(X0+k, 20, 21))
    e(f'''v_lshlrev_b32 v{T2}, 4, v{T0}
    v_lshl_add_u32 v{T2}, v{T1}, 9, v{T2}
    s_lshr_b32 s{t0}, s{sK}, 2
    s_mul_i32 s{t0}, s{t0}, 36864
    s_and_b32 s{t1}, s{sK}, 1
    s_lshl_b32 s{t1}, s{t1}, 8
    s_add_u32 s{t0}, s{t0}, s{t1}
    s_and_b32 s{t1}, s{sK}, 2
    s_lshl_b32 s{t1}, s{t1}, 6
    s_add_u32 s{t0}, s{t0}, s{t1}
    s_add_u32 s{t0}, s{t0}, {XN}''')
    for n in range(9):
        e(f'buffer_store_dwordx4 {vr(X0+4*n,4)}, v{T2}, {WS}, s{t0} offen sc1\ns_add_u32 s{t0}, s{t0}, 4096')
    e('W_noln_b:')
    arrive(a)
    a.vq = []

import struct
def f2u(x): return struct.unpack('<I', struct.pack('<f', x))[0]

def qfrag(n): return ('a', 4 * n) if n < 64 else ('v', 224 + 4 * (n - 64))
def q_load(a):
    e = a.e
    e(f'''s_cmp_ge_u32 s{S_G}, 3
    s_cselect_b32 s{S_RA}, s{P_WK}, s{P_WQ}
    s_cselect_b32 s{S_RA+1}, s{P_WK+1}, s{P_WQ+1}
    s_cmp_ge_u32 s{S_G}, 5
    s_cselect_b32 s{S_RA}, s{P_WV}, s{S_RA}
    s_cselect_b32 s{S_RA+1}, s{P_WV+1}, s{S_RA+1}
    s_mov_b32 s{S_RA+2}, {576*8192}
    s_mov_b32 s{S_RA+3}, 0x20000
    v_lshrrev_b32 v{T0}, 3, v{LN}
    v_lshlrev_b32 v{T0}, 13, v{T0}
    v_and_b32 v{T1}, 7, v{LN}
    v_lshl_add_u32 v{T0}, v{T1}, 4, v{T0}
    s_lshl_b32 s{t0}, s{sB}, 9
    s_lshl_b32 s{t1}, s{S_W}, 7
    s_add_u32 s{sA}, s{t0}, s{t1}
    s_mul_i32 s{sD}, s{S_W}, {18*2048}''')
    e(f'''v_and_b32 v{T1}, 3, v{LJ}
    v_lshlrev_b32 v{T1}, 3, v{T1}
    v_and_b32 v{T2}, 1, v{LG}
    v_lshl_add_u32 v{T1}, v{T2}, 5, v{T1}
    v_lshrrev_b32 v{T2}, 1, v{LG}
    v_lshrrev_b32 v{T3}, 2, v{LJ}
    v_lshl_add_u32 v{T2}, v{T2}, 3, v{T3}
    v_lshl_add_u32 v{T1}, v{T2}, 7, v{T1}
    v_add_u32 v{T1}, s{sD}, v{T1}''')
    toks = {}
    def issue(n):
        for k in range(2):
            e(f's_add_u32 m0, s{sD}, {(n % 18)*2048 + k*1024}')
            e(f'buffer_load_dwordx4 v{T0}, {RA}, s{sA} offen lds')
            e(f's_add_u32 s{sA}, s{sA}, {8*8192}')
        toks[n] = a.mark_v()
    for n in range(18): issue(n)
    for n in range(36):
        a.wait_v(toks[n])
        for t in range(2):
            p, b = qfrag(2 * n + t)
            for u in range(2):
                e(f'ds_read_b64_tr_b16 {vr(b+2*u,2,p)}, v{T1} offset:{(n % 18)*2048 + t*64 + u*512}')
        if n + 18 < 36:
            e('s_waitcnt lgkmcnt(0)'); issue(n + 18)
    e('s_waitcnt lgkmcnt(0)')

def q_main(a):
    e = a.e
    XB = 32; NB = 8; PF = 4
    ACC = [64, 96]; OUT = 128
    vA, vS, vFl = T0, T1, 9
    e(f'''v_and_b32 v{vS}, 7, v{LN}
    v_lshrrev_b32 v{T2}, 4, v{LN}
    v_lshl_add_u32 v{vS}, v{T2}, 3, v{vS}
    v_lshlrev_b32 v{vS}, 4, v{vS}
    v_bfe_u32 v{T2}, v{LN}, 3, 1
    v_lshl_add_u32 v{vS}, v{T2}, 10, v{vS}''')
    e(f'''s_mul_i32 s{sA}, s{sC}, 36864
    s_mul_i32 s{t0}, s{S_W}, 9216
    s_add_u32 s{sA}, s{sA}, s{t0}
    s_add_u32 s{sA}, s{sA}, {XN}
    s_lshl_b32 s{t1}, s{sC}, 5
    s_lshl_b32 s{t2}, s{sB}, 1
    s_add_u32 s{t1}, s{t1}, s{t2}
    s_lshl_b32 s{t1}, s{t1}, 1
    s_add_u32 s{t1}, s{t1}, s{S_W}
    s_cmp_ge_u32 s{S_G}, 3
    s_cselect_b32 s{t2}, 13, 12
    s_mov_b32 s{sF_}, 2048
    s_mov_b32 s{t3}, {QB}
    s_cselect_b32 s{sF_}, 4096, s{sF_}
    s_cselect_b32 s{t3}, {KVX}, s{t3}
    s_lshl_b32 s{sD}, s{t1}, s{t2}
    s_add_u32 s{sD}, s{sD}, s{t3}
    s_lshl_b32 s{sG_}, s{sF_}, 9
    s_cmp_ge_u32 s{S_G}, 5
    s_cselect_b32 s{t2}, 2048, 0
    s_add_u32 s{sD}, s{sD}, s{t2}
    s_sub_u32 s{sD}, s{sD}, s{sG_}
    s_barrier''')
    def dma(n, m0base):
        return [f's_add_u32 m0, s{m0base}, {n*1024 - (n & 3)*1024}' if (n & 3) == 0 else None,
                f's_add_u32 s{t3}, s{sA}, {n*1024 - (n & 3)*1024}' if (n & 3) == 0 else None,
                f'buffer_load_dwordx4 v{L16}, {WS}, s{t3} offen offset:{(n & 3)*1024} sc1 lds']
    for b in range(2):
        e(f's_add_u32 s{t1}, s{t0}, {b*36864}')
        for n in range(9):
            for x in dma(n, t1):
                if x: e(x)
        e(f's_add_u32 s{sA}, s{sA}, {4*36864}')
    e(f'''s_mov_b32 s{sK}, 0
    s_mov_b32 s{sH_}, 0
    v_mov_b32 v{vA}, v{L16}
    s_waitcnt vmcnt(9)
    s_barrier''')
    def rd(k): return f'ds_read_b128 {vr(XB + 4*(k % NB), 4)}, v{vA} offset:{(k % 36)*1024}'
    for k in range(PF): e(rd(k))
    e(f's_cmp_ge_u32 s{S_G}, 5\ns_cbranch_scc1 QV_loop')
    lq0 = list(a.lq)
    def epi(b, var):
        r = []
        for t in range(2):
            for c in range(2):
                q = ACC[b] + 16*t + 8*c
                r += [[cvt(OUT + 8*t + 4*c + k, *((q + k, q + 4 + k) if var == 'QK' else (q + 2*k, q + 2*k + 1))) for k in range(4)]]
                r += [[f'buffer_store_dwordx4 {vr(OUT + 8*t + 4*c, 4)}, v{vS}, {WS}, s{sD if t == 0 else t2} offen offset:{c*512} sc1']]
        return r
    for var in ('QK', 'QV'):
        a.lq = list(lq0); a.vq = []
        e(f'{var}_loop:')
        for b in range(2):
            fill = {k: [] for k in range(36)}
            fill[0] += [f's_add_u32 s{t2}, s{sD}, s{sF_}', f's_add_u32 s{t1}, s{sH_}, {2*36864}', f's_cmp_ge_u32 s{t1}, {4*36864}',
                        f's_cselect_b32 s{t3}, {4*36864}, 0', f's_sub_u32 s{t1}, s{t1}, s{t3}', f's_add_u32 s{t1}, s{t1}, s{t0}']
            for n, x in enumerate(epi(1 - b, var)): fill[1 + n] += x
            for n in range(9): fill[10 + 2*n] += [x for x in dma(n, t1) if x]
            fill[28] += [f's_add_u32 s{sA}, s{sA}, {4*36864}', f's_add_u32 s{sD}, s{sD}, s{sG_}', f's_add_u32 s{sH_}, s{sH_}, 36864',
                         f's_cmp_ge_u32 s{sH_}, {4*36864}', f's_cselect_b32 s{sH_}, 0, s{sH_}', f's_max_u32 s{t3}, s{sK}, 1', f's_sub_u32 s{t3}, s{t3}, 1',
                         f'v_mov_b32 v10, s{t3}']
            fill[30] += ['s_waitcnt vmcnt(13)', 's_barrier', f'buffer_store_dword v10, v{vFl}, {WS}, s{sE} offen sc1', f's_add_u32 s{sK}, s{sK}, 1']
            for k in range(36):
                kk = 36 * b + k
                if k + PF == 36: e(f'v_add_u32 v{vA}, s{sH_}, v{L16}')
                e(rd(kk + PF))
                for t in range(2):
                    p, r = qfrag(2 * k + t)
                    W = vr(r, 4, p); X = vr(XB + 4 * (kk % NB), 4); D = vr(ACC[b] + 16 * t, 16)
                    e(f'{MF3} {D}, {W if var == "QK" else X}, {X if var == "QK" else W}, {"0" if k == 0 else D}')
                for x in fill[k]: e(x)
        e(f's_cmp_lt_u32 s{sK}, 16\ns_cbranch_scc1 {var}_loop')
        e(f's_add_u32 s{t2}, s{sD}, s{sF_}')
        for x in epi(1, var):
            for y in x: e(y)
        if var == 'QK': e('s_branch Q_tail')
    e('Q_tail:')
    e(f'''v_mov_b32 v10, 16
    s_waitcnt vmcnt(0) lgkmcnt(0)
    s_barrier
    buffer_store_dword v10, v{vFl}, {WS}, s{sE} offen sc1''')
    a.vq = []

SEL, NEG = 24, 28
vPS, vP8, vRD, vRes, vXw, vZ, vTr, vMx = 10, 11, 12, 13, 14, 15, 16, 17
(sPW, sPR, sTask, sTW, sTR, sCnt) = range(61, 67)
import os
NA = int(os.environ.get('NA', 3)); NF = 7 - NA
def red_setup(a):
    e = a.e
    e(f'''v_mov_b32 v{T0}, 0x3f80
    v_mov_b32 v{T1}, 0x3f800000
    v_and_b32 v{T2}, 1, v{LJ}
    v_cmp_eq_u32 vcc, 0, v{T2}
    v_cndmask_b32 v{T0}, v{T1}, v{T0}, vcc
    v_lshrrev_b32 v{T2}, 1, v{LJ}''')
    for q in range(4):
        e(f'v_cmp_eq_u32 vcc, {q}, v{T2}\nv_cndmask_b32 v{SEL+q}, 0, v{T0}, vcc')
    e(f'''v_lshrrev_b32 v{T0}, 1, v{LG}
    v_lshlrev_b32 v{vP8}, 4, v{LJ}
    v_lshl_add_u32 v{vP8}, v{T0}, 8, v{vP8}
    v_and_b32 v{T0}, 1, v{LG}
    v_lshl_add_u32 v{vP8}, v{T0}, 3, v{vP8}
    v_add_u32 v{vP8}, 4096, v{vP8}
    v_mul_u32_u24 v{vRD}, {PS}, v{LG}
    v_lshl_add_u32 v{vRD}, v{LJ}, 4, v{vRD}
    s_lshl_b32 s{t0}, s{S_G}, 21
    s_add_u32 s{t0}, s{t0}, {RING}
    s_mul_i32 s{t1}, s{S_H}, {PS}
    s_add_u32 s{sPW}, s{t0}, s{t1}
    s_mul_i32 s{t1}, s{S_W}, 4608
    s_add_u32 s{sPW}, s{sPW}, s{t1}
    s_lshl_b32 s{sTask}, s{S_W}, 5
    s_add_u32 s{sTask}, s{sTask}, s{S_H}
    s_lshl_b32 s{t1}, s{sTask}, 8
    s_add_u32 s{sPR}, s{t0}, s{t1}
    s_mov_b32 s{sTW}, 0
    s_mov_b32 s{sCnt}, 0''')

def tagb(r): return f'v_bfi_b32 v{r}, 1, s{sTW}, v{r}'
def next_slot(a):
    a.e(f'''s_xor_b32 s{sPW}, s{sPW}, {RSLOT}
    s_mov_b32 s{sTR}, s{sTW}
    s_add_u32 s{sCnt}, s{sCnt}, 1
    s_lshr_b32 s{sTW}, s{sCnt}, 1''')
def proj_epi(u, W, sc):
    if u == 8:
        return [cvt(W + 32, W + 32, W + 33), cvt(W + 33, W + 34, W + 35), tagb(W + 32), tagb(W + 33), f'buffer_store_dwordx2 {vr(W+32,2)}, v{vP8}, {WS}, s{sPW} offen{sc}']
    if u & 1 == 0: return []
    r = W + 4 * (u - 1)
    return [cvt(r + k, r + 2*k, r + 2*k + 1) for k in range(4)] + [tagb(r + k) for k in range(4)] + [f'buffer_store_dwordx4 {vr(r,4)}, v{L16}, {WS}, s{sPW} offen offset:{(u >> 1)*1024}{sc}']

def reduce(a, tag, RD, D, sc, res, out):
    e = a.e
    e(f's_cmp_lt_u32 s{sTask}, 72\ns_cbranch_scc0 {tag}_nored')
    res[1]()
    e(f'{tag}_pollp:')
    for l in range(8):
        e(f's_add_u32 s{t0}, s{sPR}, {4*l*PS}\nbuffer_load_dwordx4 {vr(RD+4*l,4)}, v{vRD}, {WS}, s{t0} offen sc1')
    e(f's_sub_u32 s{sSpin}, s{sSpin}, 1\ns_cbranch_scc1 {FIN}')
    for l in range(8):
        r = RD + 4 * l
        e(f'{MF32} {vr(D,4)}, {vr(SEL,4)}, {vr(r,4)}, {"0" if l == 0 else vr(D,4)}')
        for k in range(2): e(f'v_bitop3_b32 v{NEG+k}, v{r+2*k}, v{r+2*k+1}, s{sTR} bitop3:0x7e')
        e(f'v_or_b32 v{vMx}, v{NEG}, v{NEG+1}' if l == 0 else f'v_or3_b32 v{vMx}, v{vMx}, v{NEG}, v{NEG+1}')
    e(f'v_and_b32 v{vMx}, 1, v{vMx}\nv_cmp_ne_u32 vcc, 0, v{vMx}\ns_cbranch_vccnz {tag}_pollp')
    R = res[0]; U = RD
    e(cvt(D, D, D + 1)); e(cvt(D + 1, D + 2, D + 3))
    for k in range(2):
        e(f'''v_lshlrev_b32 v{U}, 16, v{D+k}
        v_and_b32 v{U+1}, 0xffff0000, v{D+k}
        v_lshlrev_b32 v{U+2}, 16, v{R+k}
        v_and_b32 v{U+3}, 0xffff0000, v{R+k}
        v_pk_add_f32 {vr(U,2)}, {vr(U,2)}, {vr(U+2,2)}''')
        e(cvt(D + k, U, U + 1))
    e(f'v_permlane16_swap_b32 v{D}, v{D+2}\nv_permlane16_swap_b32 v{D+1}, v{D+3}')
    out()
    e(f'{tag}_nored:\ns_xor_b32 s{sPR}, s{sPR}, {RSLOT}')
    a.vq = []; a.lq = []

def tr_cols(a, rowexpr):
    a.e(rowexpr)
    a.e(f'''v_mul_u32_u24 v{T0}, 1152, v{T0}
    s_mul_i32 s{t0}, s{S_W}, 288
    v_add_u32 v{T0}, s{t0}, v{T0}
    v_and_b32 v{T1}, 3, v{LJ}
    v_lshl_add_u32 v{vTr}, v{T1}, 4, v{T0}
    v_lshl_add_u32 v{T3}, v{T1}, 3, v{T0}
    v_add_u32 v{T3}, 256, v{T3}''')

LA_BUF = 0; LA_BSTR = 20480; LA_IM = 40960
def a_load(a):
    e = a.e
    srd(a, S_RA, P_WO, 32 * 147456)
    e(f'''s_mul_i32 s{t0}, s{S_H}, 147456
    s_mul_i32 s{t1}, s{S_W}, 36864
    s_add_u32 s{t0}, s{t0}, s{t1}''')
    for n in range(36):
        if n & 3 == 0: e(f's_add_u32 m0, s{t1}, {n*1024}\ns_add_u32 s{t2}, s{t0}, {n*1024}')
        e(f'buffer_load_dwordx4 v{L16}, {RA}, s{t2} offen offset:{(n & 3)*1024} lds')
    red_setup(a)
    tr_cols(a, f'''v_lshrrev_b32 v{T0}, 1, v{LG}
    v_lshlrev_b32 v{T0}, 4, v{T0}
    v_and_b32 v{T1}, 1, v{LG}
    v_lshl_add_u32 v{T0}, v{T1}, 2, v{T0}
    v_lshrrev_b32 v{T1}, 2, v{LJ}
    v_add_u32 v{T0}, v{T0}, v{T1}''')
    e('s_waitcnt vmcnt(0)\ns_barrier')
    for kap in range(4):
        for u in range(9):
            for hh in range(2):
                off = hh * 8 * 1152 + (0 if u == 8 else (u >> 1) * 64 + (u & 1) * 8)
                e(f'ds_read_b64_tr_b16 {vr(16*u + 4*kap + 2*hh, 2, "a")}, v{T3 if u == 8 else vTr} offset:{off}')
        e(f'v_add_u32 v{vTr}, {32*1152}, v{vTr}\nv_add_u32 v{T3}, {32*1152}, v{T3}')
    e('s_waitcnt lgkmcnt(0)')
    e(f'''s_lshr_b32 s{t0}, s{S_H}, 1
    s_lshl_b32 s{t0}, s{t0}, 6
    v_lshlrev_b32 v{T0}, 2, v{LJ}
    s_mov_b32 s{sSpin}, 0x40000
    A_waitq:
    buffer_load_dword v{T1}, v{T0}, {WS}, s{t0} offen sc1
    s_sub_u32 s{sSpin}, s{sSpin}, 1
    s_cbranch_scc1 {FIN}
    s_waitcnt vmcnt(0)
    v_cmp_ne_u32 vcc, 16, v{T1}
    s_and_b32 s{t1}, vcc_lo, 0xfff
    s_cbranch_scc1 A_waitq
    s_barrier''')

AQ, AK, AV, ABI, AS, AZ, AKV, AO, AOF, AW = 32, 48, 80, 112, 120, 132, 148, 164, 196, 212
AKN, TRI, vKw = 248, 252, 20
LA_IK = LA_IM + 5120
sU = 67
def a_dma(a):
    a.e(f'''s_lshl_b32 s{t0}, s{S_W}, 12
    s_add_u32 m0, s{sC}, s{t0}
    s_lshr_b32 s{t1}, s{sU}, 1
    s_lshl_b32 s{t2}, s{t1}, 19
    s_add_u32 s{t2}, s{t2}, s{sA}''')
    for n in range(4): a.e(f'buffer_load_dwordx4 v{L16}, {WS}, s{t2} offen offset:{n*1024} sc1 lds')
    a.e(f'''s_lshl_b32 s{t0}, s{S_W}, 10
    s_add_u32 s{t0}, s{t0}, 16384
    s_add_u32 m0, s{sC}, s{t0}
    s_lshl_b32 s{t2}, s{t1}, 18
    s_add_u32 s{t2}, s{t2}, s{sB}
    s_and_b32 s{t0}, s{sU}, 1
    s_lshl_b32 s{t0}, s{t0}, 10
    s_add_u32 s{t2}, s{t2}, s{t0}
    buffer_load_dwordx4 v{L16}, {WS}, s{t2} offen sc1 lds
    s_lshl_b32 s{t1}, s{t1}, 17
    s_add_u32 s{sH_}, s{t1}, s{sD}
    buffer_load_dwordx4 {vr(AKN,4)}, v{L16}, {WS}, s{sH_} offen sc1''')
def a_bias(a):
    a.e(f's_bitcmp1_b32 s{sU}, 0\ns_cselect_b64 vcc, -1, 0')
    for p in range(4):
        a.e(f'v_cndmask_b32 v{ABI + p}, v{TRI + p}, v18, vcc\nv_cndmask_b32 v{ABI + 4 + p}, v21, v{TRI + p}, vcc')

def a_init(a):
    e = a.e
    srd(a, S_RA, P_X, 2048 * 1152)
    e(f'''s_sub_u32 s{sU}, s{S_G}, 1
    s_lshl_b32 s{t0}, s{S_H}, 2
    s_add_u32 s{t0}, s{t0}, s{S_W}
    s_lshl_b32 s{sA}, s{t0}, 12
    s_add_u32 s{sA}, s{sA}, {KVX}
    s_lshl_b32 s{sB}, s{t0}, 11
    s_add_u32 s{sB}, s{sB}, {QB}
    s_lshl_b32 s{sD}, s{t0}, 10
    s_add_u32 s{sD}, s{sD}, {KV}
    s_mov_b32 s{sC}, {LA_BUF}''')
    a_dma(a)
    e(f'''s_mul_i32 s{sE}, s{sU}, {16*1152}
    s_lshl_b32 s{t1}, s{sTask}, 8
    s_add_u32 s{sF_}, s{sE}, s{t1}
    s_add_u32 s{sF_}, s{sF_}, {H}
    s_lshl_b32 s{t1}, s{sTask}, 4
    s_add_u32 s{sE}, s{sE}, s{t1}
    v_mul_u32_u24 v{vRes}, 1152, v{LJ}
    v_lshl_add_u32 v{vRes}, v{LG}, 3, v{vRes}
    v_mov_b32 v{T0}, {OOB}
    v_cmp_gt_u32 vcc, 2, v{LG}
    v_cndmask_b32 v{vRes}, v{T0}, v{vRes}, vcc
    v_cmp_eq_u32 vcc, 0, v{LG}
    v_cndmask_b32 v{vPS}, v{T0}, v{L16}, vcc
    s_lshl_b32 s{t0}, s{S_W}, 10
    v_add_u32 v{vTr}, s{t0}, v{L16}''')
    e(f'''v_lshrrev_b32 v{T1}, 2, v{LJ}
    v_mul_u32_u24 v{vKw}, 144, v{T1}
    v_lshl_add_u32 v{vKw}, v{LG}, 5, v{vKw}
    v_and_b32 v{T0}, 3, v{LJ}
    v_lshl_add_u32 v{vKw}, v{T0}, 2, v{vKw}
    s_mul_i32 s{t0}, s{S_W}, 576
    s_add_u32 s{t0}, s{t0}, {LA_IK}
    v_add_u32 v{vKw}, s{t0}, v{vKw}
    v_mul_u32_u24 v{vZ}, 144, v{LG}
    v_lshl_add_u32 v{vZ}, v{T1}, 5, v{vZ}
    v_and_b32 v{T0}, 1, v{LJ}
    v_lshl_add_u32 v{vZ}, v{T0}, 4, v{vZ}''')
    e(f'''v_lshlrev_b32 v{T1}, 2, v{LG}
    v_sub_u32 v{T0}, v{LJ}, v{T1}
    v_mov_b32 v21, {hex(f2u(-1e30))}
    v_mov_b32 v18, 0''')
    for p in range(4):
        e(f'v_cmp_le_i32 vcc, {p}, v{T0}\nv_cndmask_b32 v{TRI + p}, v21, 0, vcc')
    a_bias(a)
    e(f'''s_mov_b32 s{sG_}, 0x3e0293ee
    s_mov_b32 s{sSpin}, 0x100000
    s_waitcnt vmcnt(0)
    s_barrier''')

def a_loop(a, tag, sc):
    e = a.e
    a.lq = []; a.vq = []
    vB = T3
    P = AZ; PM = 18
    def red(tg):
        reduce(a, tg, AO, AOF, sc, (AOF + 4, lambda: e(f'buffer_load_dwordx2 {vr(AOF+4,2)}, v{vRes}, {RA}, s{sE} offen')),
               lambda: e(f'buffer_store_dwordx4 {vr(AOF,4)}, v{vPS}, {WS}, s{sF_} offen sc1'))
        e(f's_add_u32 s{sE}, s{sE}, {NA*18432}\ns_add_u32 s{sF_}, s{sF_}, {NA*18432}')
    e(f'{tag}_loop:')
    e(f'v_add_u32 v{vB}, s{sC}, v{L16}')
    for kap in range(4):
        e(f'ds_read_b128 {vr(AQ + 4*kap, 4)}, v{vB} offset:{16384 + kap*1024}')
        for T in range(2): e(f'ds_read_b128 {vr(AK + 8*kap + 4*T, 4)}, v{vB} offset:{kap*4096 + T*1024}')
    for kap in range(4):
        for T in range(2):
            e(f'{MF32} {vr(AS + 4*T, 4)}, {vr(AK + 8*kap + 4*T, 4)}, {vr(AQ + 4*kap, 4)}, {vr((ABI if kap == 0 else AS) + 4*T, 4)}')
            e(f'ds_read_b128 {vr(AV + 8*kap + 4*T, 4)}, v{vB} offset:{kap*4096 + 2048 + T*1024}')
    e('s_waitcnt lgkmcnt(0)')
    e(f's_cmp_eq_u32 s{sCnt}, 0\ns_cbranch_scc1 {tag}_first')
    red(tag + 'a')
    e(f'''{tag}_first:
    v_max3_u32 v{vMx}, v{AKN}, v{AKN+1}, v{AKN+2}
    v_max_u32 v{vMx}, v{vMx}, v{AKN+3}
    v_cmp_eq_u32 vcc, -1, v{vMx}
    s_cbranch_vccnz {tag}_pollk
    ds_write2_b32 v{vKw}, v{AKN}, v{AKN+2} offset0:0 offset1:4
    ds_write_b128 v{vTr}, {vr(AKN,4)} offset:{LA_IM}
    s_xor_b32 s{sC}, s{sC}, {LA_BSTR}
    s_add_u32 s{sU}, s{sU}, {NA}
    s_waitcnt lgkmcnt(0)
    s_barrier''')
    for kap in range(4): e(f'ds_read_b128 {vr(AZ + 4*kap, 4)}, v{vZ} offset:{LA_IK + kap*576}')
    for kap in range(4): e(f'ds_read_b128 {vr(AKV + 4*kap, 4)}, v{L16} offset:{LA_IM + kap*1024}')
    a_dma(a)
    tokd = a.mark_v()
    Tm = AS + 8
    m_, t_ = T0, T1
    e(f'v_max3_f32 v{m_}, v{AS}, v{AS+1}, v{AS+2}\nv_max3_f32 v{m_}, v{m_}, v{AS+3}, v{AS+4}\nv_max3_f32 v{m_}, v{m_}, v{AS+5}, v{AS+6}')
    for kap in range(4):
        e(f'{MF32} {vr(Tm,4)}, {vr(AZ + 4*kap, 4)}, {vr(AQ + 4*kap, 4)}, {"0" if kap == 0 else vr(Tm,4)}')
    def xl(op):
        e(f'''v_mov_b32 v{t_}, v{m_}
        v_permlane32_swap_b32 v{m_}, v{t_}
        {op} v{m_}, v{m_}, v{t_}
        v_mov_b32 v{t_}, v{m_}
        v_permlane16_swap_b32 v{m_}, v{t_}
        {op} v{m_}, v{m_}, v{t_}''')
    e(f'v_max_f32 v{m_}, v{m_}, v{AS+7}\nv_max3_f32 v{m_}, v{m_}, v{Tm}, v{Tm+1}')
    xl('v_max_f32')
    e(f'v_mul_f32 v{m_}, s{sG_}, v{m_}')
    for r in range(AS, AS + 10): e(f'v_fma_f32 v{r}, v{r}, s{sG_}, -v{m_}')
    for r in range(AS, AS + 10): e(f'v_exp_f32 v{r}, v{r}')
    e(f'v_add_f32 v{m_}, v{AS}, v{AS+1}')
    for r in range(AS + 2, AS + 10): e(f'v_add_f32 v{m_}, v{m_}, v{r}')
    xl('v_add_f32')
    e(f'v_rcp_f32 v{m_}, v{m_}')
    for r in range(AS, AS + 10): e(f'v_mul_f32 v{r}, v{r}, v{m_}')
    for k in range(4): e(cvt(P + k, AS + 2*k, AS + 2*k + 1))
    e(cvt(PM + 1, Tm, Tm + 1))
    for n in range(8): e(f'{MF32} {vr(AO + 4*n, 4)}, {vr(AV + 4*n, 4)}, {vr(P,4)}, 0')
    for n in range(8): e(f'{MF16} {vr(AO + 4*n, 4)}, {vr(AKV + 2*n, 2)}, {vr(PM,2)}, {vr(AO + 4*n, 4)}')
    for n in range(16): e(cvt(AOF + n, AO + 2*n, AO + 2*n + 1))
    pend = []
    for grp in ((0, 1, 2), (3, 4, 5), (6, 7, 8)):
        for kap in range(4):
            for u in grp:
                e(f'{MF32} {vr(AW + 4*u, 4)}, {vr(16*u + 4*kap, 4, "a")}, {vr(AOF + 4*kap, 4)}, {"0" if kap == 0 else vr(AW + 4*u, 4)}')
                if kap >= 1:
                    for x in pend[:3]: e(x)
                    pend = pend[3:]
        for u in grp: pend += proj_epi(u, AW, sc)
    for x in pend: e(x)
    a_bias(a)
    next_slot(a)
    a.wait_v(tokd)
    e(f'''s_barrier
    s_cmp_lt_u32 s{sU}, 128
    s_cbranch_scc1 {tag}_loop''')
    a.lq = []; a.vq = []
    red(tag + 'b')
    e(f'''s_branch {FIN}
    {tag}_pollk:
    buffer_load_dwordx4 {vr(AKN,4)}, v{L16}, {WS}, s{sH_} offen sc1
    s_sub_u32 s{sSpin}, s{sSpin}, 1
    s_cbranch_scc1 {FIN}
    s_waitcnt vmcnt(0)
    s_branch {tag}_first''')

def gfrag(q, k):
    n = 4 * k + q if q < 4 else 72 + k
    return vr(4 * n, 4, 'a') if n < 64 else vr(188 + 4 * (n - 64), 4)
def gparts(q, k):
    n = 4 * k + q if q < 4 else 72 + k
    return ('a', 4 * n) if n < 64 else ('v', 188 + 4 * (n - 64))
FD16, FDR, FCS = 170, 122, 102
LF_H = 0; LF_ACT = 18432; LF_SH = 22528; LF_W = 26624; LF_WSTR = 24576
def f_load(a):
    e = a.e
    red_setup(a)
    srd(a, S_RA, P_WD, 4608 * 1152)
    tr_cols(a, f'v_lshrrev_b32 v{T0}, 2, v{LJ}\nv_lshl_add_u32 v{T0}, v{LG}, 2, v{T0}')
    e(f's_mul_i32 s{sA}, s{S_H}, {144*1152}')
    for rnd, (row0, nk) in enumerate(((0, 27), (96, 14))):
        e(f's_mul_i32 s{t1}, s{S_W}, {nk*1024}\ns_add_u32 s{t0}, s{sA}, s{t1}\ns_add_u32 s{t0}, s{t0}, {row0*1152}')
        for n in range(nk):
            if n & 3 == 0: e(f's_add_u32 m0, s{t1}, {n*1024}\ns_add_u32 s{t2}, s{t0}, {n*1024}')
            e(f'buffer_load_dwordx4 v{L16}, {RA}, s{t2} offen offset:{(n & 3)*1024} lds')
        e('s_waitcnt vmcnt(0)\ns_barrier')
        for kap in ((0, 1, 2), (3, 4))[rnd]:
            for u in range(9):
                col = 0 if u == 8 else (u >> 1) * 64 + (u & 1) * 8
                ad = T3 if u == 8 else vTr
                if kap == 4:
                    e(f'ds_read_b64_tr_b16 {vr(FD16 + 2*u, 2)}, v{ad} offset:{col}')
                else:
                    p, b = ('v', FDR + 16*u + 4*kap) if u < 3 else ('a', 16*(u - 3) + 4*kap)
                    for hh in range(2):
                        e(f'ds_read_b64_tr_b16 {vr(b + 2*hh, 2, p)}, v{ad} offset:{col + hh*16*1152}')
            d = -64 * 1152 if kap == 2 else 32 * 1152
            e(f'v_add_u32 v{vTr}, {d}, v{vTr}\nv_add_u32 v{T3}, {d}, v{T3}')
        e('s_waitcnt lgkmcnt(0)\ns_barrier')
    e(f's_mul_i32 s{t0}, s{S_W}, {LF_WSTR}\ns_add_u32 s{t0}, s{t0}, {LF_W}\nv_add_u32 v{vXw}, s{t0}, v{L16}')
    for n in range(24): e(f'ds_write_b128 v{vXw}, {vr(4*n, 4, "a")} offset:{n*1024}')
    e('s_waitcnt lgkmcnt(0)')
    srd(a, S_RA, P_WG, 576 * 9216); srd(a, S_RB, P_WU, 576 * 9216)
    NS = 7
    e(f'''s_mul_i32 s{sB}, s{S_W}, 6144
    s_lshl_b32 s{sC}, s{S_W}, 13
    s_add_u32 s{sC}, s{sC}, {LF_W + 4*LF_WSTR}
    v_lshrrev_b32 v{T0}, 2, v{LN}
    v_mul_u32_u24 v{T0}, 9216, v{T0}
    v_and_b32 v{T1}, 3, v{LN}
    v_lshl_add_u32 v{T0}, v{T1}, 4, v{T0}
    v_lshrrev_b32 v{T2}, 1, v{LN}
    v_mul_u32_u24 v{T2}, 9216, v{T2}
    v_and_b32 v{T3}, 1, v{LN}
    v_lshl_add_u32 v{T2}, v{T3}, 4, v{T2}
    s_mul_i32 s{sD}, s{S_H}, 288
    s_lshl_b32 s{t0}, s{S_W}, 6
    s_add_u32 s{sA}, s{sD}, s{t0}
    s_and_b32 s{t0}, s{S_W}, 1
    s_mul_i32 s{t0}, s{t0}, {288*9216}
    s_add_u32 s{sD}, s{sD}, s{t0}
    s_add_u32 s{sD}, s{sD}, 256''')
    e(f'''v_lshrrev_b32 v{T3}, 2, v{LJ}
    v_lshl_add_u32 v{T3}, v{LG}, 3, v{T3}
    v_lshlrev_b32 v{T1}, 3, v{T1}
    v_lshl_add_u32 v32, v{T3}, 6, v{T1}
    v_lshl_add_u32 v33, v{T3}, 5, v{T1}
    v_add_u32 v34, s{sC}, v32
    v_add_u32 v35, s{sC}, v33
    v_add_u32 v32, s{sB}, v32
    v_add_u32 v33, s{sB}, v33''')
    blocks = [(m, k) for k in range(18) for m in range(2)] + [(2, k) for k in range(0, 9, 2)]
    toks = {}
    def slot(n):
        s = n % NS
        return (0, s * 2048) if s < 3 else (1, (s - 3) * 2048)
    def issue(n):
        m, k = blocks[n]; hi, off = slot(n)
        if m == 2 and k == 0:
            e(f'''s_cmp_ge_u32 s{S_W}, 2
            s_cselect_b32 s{S_RA}, s{P_WU}, s{P_WG}
            s_cselect_b32 s{S_RA+1}, s{P_WU+1}, s{P_WG+1}''')
        for hh in range(2):
            if m == 2 and k + hh > 8: continue
            e(f's_add_u32 m0, s{sC if hi else sB}, {off + hh*1024}')
            if m < 2:
                e(f's_add_u32 s{t0}, s{sA}, {(32*k + 16*hh)*9216}\nbuffer_load_dwordx4 v{T0}, {RB if m else RA}, s{t0} offen lds')
            else:
                e(f's_add_u32 s{t0}, s{sD}, {32*(k + hh)*9216}\nbuffer_load_dwordx4 v{T2}, {RA}, s{t0} offen lds')
        toks[n] = a.mark_v()
    for n in range(NS): issue(n)
    for n, (m, k) in enumerate(blocks):
        hi, off = slot(n)
        a.wait_v(toks[n])
        for t in range(2):
            if m == 2 and k + t > 8: continue
            p, b = gparts(2 * m + t, k) if m < 2 else gparts(4, k + t)
            for u in range(2):
                if m < 2: e(f'ds_read_b64_tr_b16 {vr(b + 2*u, 2, p)}, v{32 + 2*hi} offset:{off + t*32 + u*256}')
                else: e(f'ds_read_b64_tr_b16 {vr(b + 2*u, 2, p)}, v{33 + 2*hi} offset:{off + t*1024 + u*128}')
        e('s_waitcnt lgkmcnt(0)')
        if n + NS < len(blocks): issue(n + NS)
    for k in range(4): e(f'v_mov_b32 v{32+k}, 0x3f803f80')
    for k in range(18):
        for q in range(5):
            if q == 4 and k >= 9: continue
            e(f'{MF32} {vr(FCS + 4*q, 4)}, {gfrag(q, k)}, v[32:35], {"0" if k == 0 else vr(FCS + 4*q, 4)}')

def f_init(a):
    e = a.e
    srd(a, S_RA, P_OUT, 2048 * 1152)
    e(f'''s_sub_u32 s{sK}, s{S_G}, {1 + NA}
    s_mul_i32 s{sE}, s{sK}, 18432
    s_mul_i32 s{t0}, s{S_W}, 4608
    s_add_u32 s{sA}, s{sE}, s{t0}
    s_add_u32 s{sA}, s{sA}, {H}
    s_lshl_b32 s{t1}, s{sTask}, 4
    s_add_u32 s{sE}, s{sE}, s{t1}
    v_add_u32 v{vTr}, s{t0}, v{L16}
    v_mul_u32_u24 v{vPS}, 1152, v{LJ}
    v_mov_b32 v{T0}, {OOB}
    v_cmp_eq_u32 vcc, 0, v{LG}
    v_cndmask_b32 v{vPS}, v{T0}, v{vPS}, vcc
    v_lshlrev_b32 v{vRes}, 4, v{LJ}
    v_and_b32 v{T0}, 1, v{LG}
    v_lshl_add_u32 v{vRes}, v{T0}, 3, v{vRes}
    s_min_u32 s{t1}, s{sTask}, 71
    s_lshl_b32 s{t1}, s{t1}, 8
    v_add_u32 v{vRes}, s{t1}, v{vRes}
    v_lshlrev_b32 v{vZ}, 3, v{LN}
    v_add_u32 v18, s{t0}, v{vZ}
    s_lshl_b32 s{t0}, s{S_W}, 10
    v_add_u32 v19, s{t0}, v{L16}
    s_and_b32 s{t0}, s{S_W}, 1
    s_mul_i32 s{t0}, s{t0}, 9216
    v_add_u32 v20, s{t0}, v{L16}
    s_sub_u32 s{t0}, 9216, s{t0}
    v_add_u32 v21, s{t0}, v{L16}
    s_mov_b32 s{sB}, 0x3f803f80
    s_mov_b32 s{sC}, {hex(f2u(-1.4426950408889634))}
    s_mov_b32 s{sSpin}, 0x100000
    s_barrier''')

def f_loop(a, tag, sc):
    e = a.e
    a.lq = []; a.vq = []
    G = 32; XB = 52; W = 32; AF = 68; WB = 86
    e(f'{tag}_loop:')
    for n in range(4): e(f'buffer_load_dwordx4 {vr(G + 4*n, 4)}, v{L16}, {WS}, s{sA} offen offset:{n*1024} sc1')
    e(f'''s_add_u32 s{t0}, s{sA}, 4096
    buffer_load_dwordx2 {vr(G + 16, 2)}, v{vZ}, {WS}, s{t0} offen sc1
    s_sub_u32 s{sSpin}, s{sSpin}, 1
    s_cbranch_scc1 {FIN}
    v_max_u32 v{vMx}, v{G}, v{G+1}''')
    for k in range(2, 18, 2): e(f'v_max3_u32 v{vMx}, v{vMx}, v{G+k}, v{G+k+1}')
    e(f'v_cmp_eq_u32 vcc, -1, v{vMx}\ns_cbranch_vccnz {tag}_loop')
    for n in range(4): e(f'ds_write_b128 v{vTr}, {vr(G + 4*n, 4)} offset:{LF_H + n*1024}')
    e(f'ds_write_b64 v18, {vr(G + 16, 2)} offset:{LF_H + 4096}')
    e(f's_add_u32 s{sA}, s{sA}, {NF*18432}\nv_mov_b32 v{T0}, 0\nv_mov_b32 v{T1}, 0\ns_waitcnt lgkmcnt(0)\ns_barrier')
    def rd(k): e(f'ds_read_b128 {vr(XB + 4*(k % 4), 4)}, v{L16} offset:{LF_H + k*1024}')
    def rds(k): e(f'ds_read_b128 {vr(AF + 4*(k % 4), 4)}, v20 offset:{LF_H + k*1024}')
    for k in range(3): rd(k)
    rds(0); rds(1)
    for k in range(18):
        if k + 3 < 18: rd(k + 3)
        if k & 1 == 0 and k // 2 + 2 < 9: rds(k // 2 + 2)
        X = XB + 4 * (k % 4)
        for q in range(4):
            e(f'{MF32} {vr(G + 4*q, 4)}, {gfrag(q, k)}, {vr(X,4)}, {"0" if k == 0 else vr(G + 4*q, 4)}')
            e(f'v_dot2c_f32_bf16 v{T0}, s{sB}, v{X+q}\nv_dot2c_f32_bf16 v{T1}, v{X+q}, v{X+q}')
        if k & 1:
            kk = k // 2
            e(f'{MF32} {vr(G + 16, 4)}, {gfrag(4, kk)}, {vr(AF + 4*(kk % 4), 4)}, {"0" if kk == 0 else vr(G + 16, 4)}')
    def wrd(i): e(f'ds_read_b128 {vr(WB + 4*(i % 4), 4)}, v{vXw} offset:{ORD[i]*1024}')
    ORD = [4 * (u - 3) + kap for grp in ((3, 4, 5), (6, 7, 8)) for kap in range(4) for u in grp]
    for i in range(4): wrd(i)
    def rbf(r): e(f'v_cvt_pk_bf16_f32 v{r}, v{r}, v{r}\nv_lshlrev_b32 v{r}, 16, v{r}')
    for r in (T0, T1):
        e(f'''v_mov_b32 v{T2}, v{r}
        v_permlane32_swap_b32 v{r}, v{T2}
        v_add_f32 v{r}, v{r}, v{T2}
        v_mov_b32 v{T2}, v{r}
        v_permlane16_swap_b32 v{r}, v{T2}
        v_add_f32 v{r}, v{r}, v{T2}''')
    e(f'''v_mul_f32 v{T0}, {hex(f2u(-1/576))}, v{T0}
    v_mul_f32 v{T1}, {hex(f2u(1/576))}, v{T1}
    v_fma_f32 v{T1}, -v{T0}, v{T0}, v{T1}
    v_max_f32 v{T1}, 0, v{T1}''')
    rbf(T0); rbf(T1)
    for k in range(4): e(f'v_fma_f32 v{G+16+k}, v{T0}, v{FCS+16+k}, v{G+16+k}')
    e(f'ds_write_b128 v19, {vr(G+16,4)} offset:{LF_SH}')
    e(f'v_add_f32 v{T1}, {hex(f2u(1e-5))}, v{T1}'); rbf(T1)
    e(f'v_sqrt_f32 v{T1}, v{T1}'); rbf(T1)
    e(f'v_rcp_f32 v{T1}, v{T1}')
    for k in range(16): e(f'v_fma_f32 v{G+k}, v{T0}, v{FCS+k}, v{G+k}')
    def act(g, u, n, tmp):
        for k in range(n): e(f'v_mul_f32 v{g+k}, v{g+k}, v{T1}')
        for k in range(n): e(f'v_mul_f32 v{tmp+k}, s{sC}, v{g+k}')
        for k in range(n): e(f'v_exp_f32 v{tmp+k}, v{tmp+k}\nv_mul_f32 v{u+k}, v{u+k}, v{T1}')
        for k in range(n): e(f'v_add_f32 v{tmp+k}, 1.0, v{tmp+k}')
        for k in range(n): e(f'v_rcp_f32 v{tmp+k}, v{tmp+k}\nv_mul_f32 v{g+k}, v{g+k}, v{u+k}')
        for k in range(n): e(f'v_mul_f32 v{g+k}, v{g+k}, v{tmp+k}')
    act(G, G + 8, 8, XB)
    for k in range(4): e(cvt(G + k, G + 2*k, G + 2*k + 1))
    e(f'ds_write_b128 v19, {vr(G,4)} offset:{LF_ACT}\ns_waitcnt lgkmcnt(0)\ns_barrier')
    for k in range(4): e(f'ds_read_b128 {vr(AF + 4*k, 4)}, v{L16} offset:{LF_ACT + k*1024}')
    SH = W + 12
    for k in range(4): e(f'ds_read_b128 {vr(SH + 4*k, 4)}, v{L16} offset:{LF_SH + k*1024}')
    for kap in range(4):
        for u in range(3):
            e(f'{MF32} {vr(W + 4*u, 4)}, {vr(FDR + 16*u + 4*kap, 4)}, {vr(AF + 4*kap, 4)}, {"0" if kap == 0 else vr(W + 4*u, 4)}')
    for k in range(4): e(f'v_add_f32 v{SH+k}, v{SH+k}, v{SH+4+k}\nv_add_f32 v{SH+8+k}, v{SH+8+k}, v{SH+12+k}')
    act(SH, SH + 8, 4, SH + 4)
    e(cvt(AF + 16, SH, SH + 1)); e(cvt(AF + 17, SH + 2, SH + 3))
    def k16(u): e(f'{MF16} {vr(W + 4*u, 4)}, {vr(FD16 + 2*u, 2)}, {vr(AF + 16, 2)}, {vr(W + 4*u, 4)}')
    for u in range(3): k16(u)
    pend = proj_epi(1, W, sc)
    i = 0
    for grp in ((3, 4, 5), (6, 7, 8)):
        for kap in range(4):
            for u in grp:
                e(f'{MF32} {vr(W + 4*u, 4)}, {vr(WB + 4*(i % 4), 4)}, {vr(AF + 4*kap, 4)}, {"0" if kap == 0 else vr(W + 4*u, 4)}')
                if i + 4 < 24: wrd(i + 4)
                i += 1
                if kap >= 1:
                    for x in pend[:3]: e(x)
                    pend = pend[3:]
        for u in grp: k16(u)
        for u in grp: pend += proj_epi(u, W, sc)
    for x in pend: e(x)
    next_slot(a)
    reduce(a, tag, 32, AF, sc, (AF + 4, lambda: e(f'ds_read_b64 {vr(AF+4,2)}, v{vRes} offset:{LF_H}')),
           lambda: e(f'buffer_store_dwordx4 {vr(AF,4)}, v{vPS}, {RA}, s{sE} offen'))
    e(f'''s_add_u32 s{sE}, s{sE}, {NF*18432}
    s_add_u32 s{sK}, s{sK}, {NF}
    s_barrier
    s_cmp_lt_u32 s{sK}, 128
    s_cbranch_scc1 {tag}_loop
    s_branch {FIN}''')
```

```python
import sys
sys.path.insert(0, 'gen')
from asmlib import *
from layout import *
import rec6 as rec2
from rec6 import *
from work import *
NAME = 'sequential_preLN__memory_aug_recurrent_mem_tr__swiglu_ffn__prompt'

def tstamp(a, k, on):
    if on: a.e(f's_memrealtime s[{96+2*k}:{97+2*k}]\ns_waitcnt lgkmcnt(0)')

def gen(opt=()):
    a = Asm(); e = a.e
    st = 'st' in opt
    force = 1 if 'fb' in opt else None
    e(f'''s_cmp_ge_u32 s2, 256
    s_cbranch_scc1 K_exit
    s_load_dwordx8 s[16:23], s[0:1], 0
    s_load_dwordx4 s[24:27], s[0:1], 32
    s_load_dwordx8 s[32:39], s[0:1], 64
    s_load_dwordx4 s[40:43], s[0:1], 96
    v_lshrrev_b32 v1, 6, v0
    v_readfirstlane_b32 s{S_W}, v1''')
    if 'perm' in opt: e(f's_lshr_b32 s{S_G}, s2, 5\ns_and_b32 s{S_H}, s2, 31')
    else: e(f's_and_b32 s{S_G}, s2, 7\ns_lshr_b32 s{S_H}, s2, 3')
    e(f'''s_waitcnt lgkmcnt(0)
    s_mov_b32 s{S_WS}, s{P_WSP}
    s_mov_b32 s{S_WS+1}, s{P_WSP+1}
    s_mov_b32 s{S_WS+2}, {WS_BYTES}
    s_mov_b32 s{S_WS+3}, 0x20000''')
    if st:
        for k in range(3): tstamp(a, k, st)
        e('s_memrealtime s[94:95]\ns_waitcnt lgkmcnt(0)')
    e(f'''s_cmp_eq_u32 s{S_G}, 0
    s_cbranch_scc0 W_start''')
    rec_setup(a)
    arrive(a, 24)
    rec_load(a, None)
    tstamp(a, 0, st)
    gbar(a, 24, rec2.sSpin, rec2.sT0, rec2.sT1, force)
    e('s_barrier')
    rec_init(a, 0)
    tstamp(a, 1, st)
    e(f's_cmp_eq_u32 s{sFB}, 0\ns_cbranch_scc0 RF_disp')
    rec_disp(a, 'R')
    for w in range(4): rec_loop(a, w, None, FIN, ['pf=36'] + list(opt), tag='R')
    e('RF_disp:')
    rec_disp(a, 'RF')
    for w in range(4): rec_loop(a, w, None, FIN, ['pf=36'], tag='RF', cs=' sc1')
    e('W_start:')
    a.lq = []; a.vq = []
    w_init(a)
    e(f's_cmp_eq_u32 s{S_G}, 7\ns_cbranch_scc1 F_start')
    q_load(a)
    gbar(a, 12, sSpin, t0, t1, force)
    tstamp(a, 0, st)
    q_main(a)
    tstamp(a, 1, st)
    e(f's_cmp_gt_u32 s{S_G}, {NA}\ns_cbranch_scc1 F_start')
    a_load(a)
    a_init(a)
    tstamp(a, 2, st)
    e(f's_cmp_eq_u32 s{sFB}, 0\ns_cbranch_scc0 AF_loop')
    a_loop(a, 'A', '')
    a_loop(a, 'AF', ' sc1')
    e('F_start:')
    a.lq = []; a.vq = []
    f_load(a)
    gbar(a, 32, sSpin, t0, t1, force)
    f_init(a)
    tstamp(a, 2, st)
    e(f's_cmp_eq_u32 s{sFB}, 0\ns_cbranch_scc0 FF_loop')
    f_loop(a, 'F', '')
    f_loop(a, 'FF', ' sc1')
    e(f'{FIN}:')
    if st:
        e(f'''s_memrealtime s[92:93]
        s_waitcnt vmcnt(0) lgkmcnt(0)
        s_lshl_b32 s46, s2, 2
        s_add_u32 s46, s46, s{S_W}
        s_lshl_b32 s46, s46, 5
        s_add_u32 s46, s46, {STAMP}
        v_mov_b32 v12, 0''')
        for k, s in enumerate(['s94', 's96', 's98', 's100', 's92', f's{sFB}', f's{sSpin}', f's{rec2.sSpin}']):
            e(f'v_mov_b32 v13, {s}\nbuffer_store_dword v13, v12, {WS}, s46 offen offset:{4*k}')
    e('s_waitcnt vmcnt(0)')
    e('K_exit:')
    return a.finish()

def full(body):
    ref = open(f'cdna_kernels/{NAME}.s.ref').read()
    head = ref[:ref.index(f'{NAME}_kernel:\n') + len(NAME) + 9]
    tail = ref[ref.index('s_endpgm'):]
    head = head.replace('; @launch grid=(4608,1,1) block=(256,1,1) lds=0', '; @launch grid=(256,1,1) block=(256,1,1) lds=163840')
    tail = tail.replace('.amdhsa_next_free_vgpr 256', '.amdhsa_next_free_vgpr 512')
    return head + body + tail

if __name__ == '__main__':
    for v in sys.argv[1:]:
        if v == 'final': open(f'cdna_kernels/{NAME}.s', 'w').write(full(gen()))
        else: open(f'full_{v}.txt', 'w').write(gen(v.split('+')))
```

```python
FLAGS = 0x0
PROG  = 0x800
MRING = 0x6000000
MSTR  = 16384
TS    = 2176
STAMP = 0xF0000
XN    = 0x100000
KV    = 0x400000
H     = 0xC00000
PRING = 0xF00000
PSTR  = 0x80000
RING  = 0x400000
RSLOT = 0x200000
PS    = 18688
PSA   = 37120
KVX   = 0x3800000
WS_BYTES = 0x10000000
OOB = 0x40000000
```

```python
from asmlib import *
from layout import *

S_WS = 4
S_RA = 8
S_RB = 12
P_X, P_MEM0, P_WQ, P_WK, P_WV, P_WO, P_WG, P_WU, P_WD, P_OUT, P_DBG, P_WSP = 16, 18, 20, 22, 24, 26, 32, 34, 36, 38, 40, 42
S_W = 44
S_H = 45
WS = f's[{S_WS}:{S_WS+3}]'

def srd(a, d, ptr, nbytes):
    a.e(f's_mov_b32 s{d}, s{ptr}\ns_mov_b32 s{d+1}, s{ptr+1}\ns_mov_b32 s{d+2}, {nbytes}\ns_mov_b32 s{d+3}, 0x20000')

L_BLK = 4352
L_QK = 18432
L_SEL = 23040
L_TAB = 23552
L_W0 = 24576
L_WSTR = 34816

vL16, vW, vZ, vXw, vSel, vP, vMst, vPD, vIdx, vT, vZero, vT2 = range(12)
C4 = 4
DW = 3
MB = [12, 16, 20]
QA, KA, VA, VX = 24, 32, 64, 56
SB = [40, 48]
SMF = 'v_smfmac_f32_16x16x64_bf16'
MF32 = 'v_mfma_f32_16x16x32_bf16'
MF16 = 'v_mfma_f32_16x16x16_bf16'

(sStep, sMs, sMo, sMoD, sPrd, sPrD, sKx, sKv, sSpin, sT0, sT1, sT2, sC, sFlg, sRdy) = range(46, 61)
sPg = 61
sOne = 62
sF = 64
sPW = 68
sStamp = 76
(sM1, sM2, sMkD, sPaD, sRedo, sPf, sMst, sMp) = range(16, 24)

P1SEQ = [(m, i, t) for i in range(6) for m in 'qkv' for t in range(2)]
P1SEQ += [('q', 6, 0), ('q', 7, 0), ('q', 6, 1), ('q', 7, 1), ('q', 8, 0), ('q', 8, 1)]
P1SEQ += [('k', i, t) for t in range(2) for i in (6, 7, 8)] + [('v', i, t) for i in (6, 7, 8) for t in range(2)]
P1_LDS_POS = [7, 9, 13, 15, 19, 21, 25, 27, 31, 33, 37, 39]
LDS_P1 = [P1SEQ[p] for p in P1_LDS_POS]
LDS_WO = [('o', 2, 0), ('o', 3, 0), ('o', 2, 1), ('o', 2, 3), ('o', 3, 3)]

def alloc():
    slots = [('a', 8 * i) for i in range(32)] + [('v', 72 + 8 * i) for i in range(23)]
    reg = {}; lds = {}
    for n, k in enumerate(LDS_P1 + LDS_WO): lds[k] = n * 2048
    assert len(lds) == 17
    k = 0
    for m in 'qkv':
        for i in range(9):
            for t in range(2):
                if (m, i, t) not in lds:
                    reg[(m, i, t)] = slots[k]; k += 1
    park = slots[k:]
    for u in range(4):
        for a in range(4):
            if ('o', u, a) not in lds:
                reg[('o', u, a)] = slots[k]; k += 1
    for a in range(4):
        p, b = slots[k + a // 2]
        reg[('o', 4, a)] = (p, b + 4 * (a & 1))
    k += 2
    assert k == 55
    return reg, lds, park
REG, LDS, PARK = alloc()

def frag_of(i, w):
    return i

def rec_setup(a):
    e = a.e
    e(f'''v_and_b32 v12, 63, v0
    v_and_b32 v13, 15, v12
    v_lshrrev_b32 v14, 4, v12
    v_lshlrev_b32 v{vL16}, 4, v12
    v_mov_b32 v{vZero}, 0
    s_mul_i32 s{sT0}, s{S_W}, {L_WSTR}
    s_add_u32 s{sT0}, s{sT0}, {L_W0}
    v_add_u32 v{vW}, s{sT0}, v{vL16}
    v_and_b32 v15, 1, v14
    v_lshrrev_b32 v16, 1, v14
    v_and_b32 v17, 3, v13
    v_lshrrev_b32 v18, 2, v13
    v_mul_u32_u24 v{vXw}, 144, v18
    v_lshl_add_u32 v{vXw}, v14, 5, v{vXw}
    v_lshl_add_u32 v{vXw}, v17, 2, v{vXw}
    s_mul_i32 s{sT0}, s{S_W}, 1152
    s_add_u32 s{sT0}, s{sT0}, {L_QK}
    v_add_u32 v{vXw}, s{sT0}, v{vXw}
    v_and_b32 v{vSel}, 0xf0, v{vL16}''')
    e(f'''v_mul_u32_u24 v{vZ}, 144, v14
    v_lshl_add_u32 v{vZ}, v18, 5, v{vZ}
    v_and_b32 v19, 1, v13
    v_lshl_add_u32 v{vZ}, v19, 4, v{vZ}''')
    e(f'''v_lshrrev_b32 v19, 3, v12
    v_mul_u32_u24 v{vP}, {TS}, v19
    v_and_b32 v19, 7, v12
    v_lshl_add_u32 v{vP}, v19, 3, v{vP}
    v_mul_u32_u24 v{vPD}, {TS}, v14
    v_lshl_add_u32 v{vPD}, v13, 2, v{vPD}
    v_mov_b32 v21, 0x88884444
    v_mov_b32 v22, 0xDDDDEEEE
    v_and_b32 v19, 2, v13
    v_cmp_eq_u32 vcc, 0, v19
    v_cndmask_b32 v{vIdx}, v22, v21, vcc''')
    e(f'''v_lshlrev_b32 v19, 4, v14
    v_lshl_add_u32 v19, v13, 2, v19
    v_mul_u32_u24 v20, 1152, v15
    v_lshl_add_u32 v20, v13, 3, v20
    v_lshl_add_u32 v20, v16, 2, v20
    v_mov_b32 v21, {OOB}
    v_cmp_gt_u32 vcc, 4, v13
    v_cndmask_b32 v28, v21, v19, vcc
    v_cndmask_b32 v20, v21, v20, vcc
    v_add_u32 v19, {2*MSTR - 16}, v19
    v_cmp_eq_u32 vcc, 1, v18
    v_cndmask_b32 v{vMst}, v28, v19, vcc''')
    e(f'''s_lshr_b32 s{sT0}, s{S_H}, 3
    s_lshl_b32 s{sT0}, s{sT0}, 1
    s_and_b32 s{sT1}, s{S_H}, 1
    s_add_u32 s{sT0}, s{sT0}, s{sT1}
    s_lshl_b32 s{sT1}, s{S_W}, 3
    s_add_u32 s{sT0}, s{sT0}, s{sT1}
    s_bfe_u32 s{sT1}, s{S_H}, 0x20001
    s_lshl_b32 s{sMo}, s{sT0}, 8
    s_lshl_b32 s{sT2}, s{sT1}, 6
    s_add_u32 s{sMo}, s{sMo}, s{sT2}
    s_mul_i32 s{sT1}, s{sT1}, 2304
    s_lshl_b32 s{sT0}, s{sT0}, 5
    s_add_u32 s{sF}, s{sT0}, s{sT1}''')
    e(f'''s_lshl_b32 s{sMoD}, s{S_H}, 6
    s_add_u32 s{sMoD}, s{sMoD}, 8192
    s_and_b32 s{sT1}, s{S_H}, 3
    s_mul_i32 s{sT1}, s{sT1}, 2304
    s_lshr_b32 s{sT0}, s{S_H}, 2
    s_lshl_b32 s{sT0}, s{sT0}, 5
    s_add_u32 s{sT0}, s{sT0}, s{sT1}
    s_add_u32 s{sF+1}, s{sT0}, 1024
    s_add_u32 s{sT0}, s{S_H}, 128
    s_mul_i32 s{sPrD}, s{sT0}, {TS}
    s_add_u32 s{sPrD}, s{sPrD}, {PRING}
    s_cmp_eq_u32 s{S_W}, {DW}
    s_cselect_b32 s{sT0}, 16, 0
    s_cmp_lt_u32 s{S_H}, s{sT0}
    s_cselect_b32 s{sMoD}, s{sMoD}, {OOB}
    s_cselect_b32 s{sPrD}, s{sPrD}, {OOB}''')
    e(f'''s_lshl_b32 s{sT0}, s{S_W}, 5
    s_add_u32 s{sT0}, s{sT0}, s{S_H}
    s_mul_i32 s{sPrd}, s{sT0}, {TS}
    s_add_u32 s{sPrd}, s{sPrd}, {PRING}
    s_lshl_b32 s{sT1}, s{S_H}, 6
    s_add_u32 s{sT1}, s{sT1}, {PRING}
    s_mul_i32 s{sT0}, s{S_W}, {8*TS}
    s_add_u32 s{sPW}, s{sT0}, s{sT1}
    s_add_u32 s{sPW+1}, s{sPW}, {32*TS}
    s_add_u32 s{sPW+2}, s{sPW}, {64*TS}
    s_add_u32 s{sPW+3}, s{sPW}, {96*TS}
    s_mul_i32 s{sT0}, s{S_W}, {4*TS}
    s_add_u32 s{sT0}, s{sT0}, s{sT1}
    s_add_u32 s{sPW+4}, s{sT0}, {128*TS}''')
    srd(a, S_RA, P_MEM0, 9216)
    e(f'''buffer_load_dword v22, v20, s[{S_RA}:{S_RA+3}], s{sF} offen
    buffer_load_dword v23, v20, s[{S_RA}:{S_RA+3}], s{sF+1} offen
    v_mov_b32 v24, 0
    v_mov_b32 v25, 0
    v_mov_b32 v26, 0
    v_mov_b32 v27, 0
    v_mov_b32 v29, -1''')
    for r in (sPrd, sPrD):
        for l in range(2): e(f'buffer_store_dwordx4 v[24:27], v{vL16}, {WS}, s{r} offen offset:{l*1024} sc1')
    for k in (1, 2, 0):
        for n, r in enumerate((sMo, sMoD)):
            e(f's_add_u32 s{sT0}, s{r}, {MRING + k*MSTR}')
            e(f'buffer_store_dword v{29 if k else 22+n}, v28, {WS}, s{sT0} offen sc1')
    e(f'''s_add_u32 s{sT0}, s{sPrd}, {32*TS}
    s_add_u32 s{sT1}, s{sMo}, 2048
    s_cmp_eq_u32 s{S_W}, {DW}
    s_cselect_b32 s{sPrD}, s{sPrD}, s{sT0}
    s_cselect_b32 s{sMoD}, s{sMoD}, s{sT1}''')

def rec_load(a, done, mod=''):
    e = a.e
    RA = f's[{S_RA}:{S_RA+3}]'; RB = f's[{S_RB}:{S_RB+3}]'
    NS = 9; L_D = NS * 16384
    e(f'''v_lshlrev_b32 v21, 2, v14
    v_xor_b32 v21, v21, v13
    v_lshlrev_b32 v21, 4, v21
    v_lshl_add_u32 v21, v14, 13, v21
    v_lshl_add_u32 v22, v14, 3, v18
    v_lshlrev_b32 v22, 8, v22
    v_xor_b32 v23, s{S_W}, v18
    v_lshl_add_u32 v22, v23, 6, v22
    v_lshrrev_b32 v23, 1, v17
    v_lshl_add_u32 v22, v23, 5, v22
    v_and_b32 v23, 1, v17
    v_lshl_add_u32 v22, v23, 3, v22
    v_add_u32 v23, 0x10000, v22
    v_add_u32 v64, 0x20000, v22
    s_lshl_b32 s{sC}, s{S_H}, 8
    s_lshl_b32 s{sT0}, s{S_W}, 17
    s_add_u32 s{sC}, s{sC}, s{sT0}''')
    srd(a, S_RA, P_WO, 32 * 147456)
    e(f'''v_lshl_add_u32 v19, v15, 1, v16
    v_mul_u32_u24 v19, {4*1152}, v19
    v_lshl_add_u32 v19, v13, 2, v19
    v_add_u32 v20, {16*1152}, v19
    s_mul_i32 s{sT0}, s{S_H}, 147456
    s_lshl_b32 s{sT1}, s{S_W}, 6
    s_add_u32 s{sT0}, s{sT0}, s{sT1}''')
    for k in range(4):
        e(f'''s_xor_b32 s{sT1}, s{S_W}, {k}
        s_mul_i32 s{sT1}, s{sT1}, {32*1152}
        s_add_u32 s{sF+k}, s{sT0}, s{sT1}''')
    e(f'''v_lshrrev_b32 v65, 1, v12
    v_mul_u32_u24 v65, 1152, v65
    v_and_b32 v66, 1, v12
    v_lshl_add_u32 v65, v66, 4, v65
    s_lshl_b32 s{sT1}, s{S_W}, 5
    s_sub_u32 s{sT1}, 1024, s{sT1}
    v_add_u32 v65, s{sT1}, v65
    v_lshlrev_b32 v66, 4, v16
    v_lshl_add_u32 v66, v15, 2, v66
    v_add_u32 v66, v66, v18
    v_lshlrev_b32 v66, 5, v66
    v_lshl_add_u32 v66, v17, 3, v66
    v_add_u32 v66, {L_D}, v66''')
    for w in range(1, 4): e(f's_cmp_eq_u32 s{S_W}, {w}\ns_cbranch_scc1 RL{w}')
    stages = [(m, f) for m in 'qkv' for f in range(9)]
    tmp = {k: ('v', 24 + 8 * n) for n, k in enumerate(LDS_WO)}
    park = {k: PARK[n] for n, k in enumerate(LDS_P1)}
    def wo(key):
        _, u, k = key
        p, b = tmp[key] if key in tmp else REG[key]
        e(f's_add_u32 s{sT0}, s{sF+k}, {u*256}')
        for rho in range(8):
            e(f'buffer_load_dword {p}{b+rho}, v{19 + (rho >> 2)}, {RA}, s{sT0} offen offset:{(rho & 3)*1152}')
    for w in range(4):
        e(f'RL{w}:')
        a.vq = []; a.lq = []
        inv = {frag_of(i, w): i for i in range(9)}
        toks = {}
        def issue(n):
            m, f = stages[n]
            if f == 0: srd(a, S_RB, {'q': P_WQ, 'k': P_WK, 'v': P_WV}[m], 576 * 8192)
            for k in range(4):
                e(f's_mov_b32 m0, {(n % NS)*16384 + w*4096 + k*1024}')
                e(f's_add_u32 s{sT0}, s{sC}, {(64*f + 4*k)*8192}')
                e(f'buffer_load_dwordx4 v21, {RB}, s{sT0} offen{mod} lds')
            toks[n] = a.mark_v()
        for n in range(NS - 1): issue(n)
        extra = list(LDS_WO)
        for n, (m, f) in enumerate(stages):
            a.wait_v(toks[n])
            e('s_waitcnt lgkmcnt(0)\ns_barrier')
            if n + NS - 1 < len(stages): issue(n + NS - 1)
            elif n == len(stages) - NS + 1:
                for k in range(4):
                    e(f's_mov_b32 m0, {L_D + w*4096 + k*1024}')
                    e(f'buffer_load_dwordx4 v65, {RA}, s{sF+k} offen lds')
                tokd = a.mark_v()
            elif extra: wo(extra.pop(0))
            base = (n % NS) * 16384
            ad = (22, 23, 64)[base >> 16]
            for t in range(2):
                key = (m, inv[f], t)
                p, b = park[key] if key in park else REG[key]
                for rho in (0, 2, 4, 6):
                    e(f'ds_read_b64_tr_b16 {vr(b+rho,2,p)}, v{ad} offset:{(base & 0xffff) + (32*(rho>>2) + 4*((rho>>1)&1))*256 + 16*t}')
        assert not extra
        a.wait_v(tokd)
        dtmp = {0: 68, 1: 12}
        for k in range(4):
            p, b = ('v', dtmp[k]) if k < 2 else REG[('o', 4, k)]
            for u in range(2):
                e(f'ds_read_b64_tr_b16 {vr(b+2*u,2,p)}, v66 offset:{w*4096 + k*1024 + u*256}')
        e('s_waitcnt lgkmcnt(0)\ns_barrier')
        if w < 3: e('s_branch RL_fin')
    e('RL_fin:')
    a.lq = []
    a.vq = [set(f'v{r}' for r in range(24, 64))]
    owner = {v: k for k, v in REG.items() if k[0] == 'o' and k[1] < 4}
    for key, (p, b) in park.items():
        for hh in range(2): e(f'ds_write_b128 v{vW}, {vr(b+4*hh,4,p)} offset:{LDS[key] + hh*1024}')
    e('s_waitcnt lgkmcnt(0)')
    for key, pb in park.items():
        if pb in owner: wo(owner[pb])
    for k in range(2):
        p, b = REG[('o', 4, k)]
        assert p == 'v'
        for r in range(4): e(f'v_mov_b32 v{b+r}, v{dtmp[k]+r}')
    e('s_waitcnt vmcnt(63)')
    a.vq = []
    for key, (p, b) in tmp.items():
        for hh in range(2): e(f'ds_write_b128 v{vW}, {vr(b+4*hh,4)} offset:{LDS[key] + hh*1024}')
    e('s_waitcnt vmcnt(0) lgkmcnt(0)')

def wfrag(key):
    p, b = REG[key]
    return vr(b, 4 if key[:2] == ('o', 4) else 8, p)

def rec_init(a, rdy0=0):
    e = a.e
    e(f'''s_mov_b32 s{sStep}, 0
    s_mov_b32 s{sMs}, {MRING}
    s_lshl_b32 s{sT0}, s{S_H}, 14
    s_lshl_b32 s{sT1}, s{S_W}, 12
    s_add_u32 s{sKx}, s{sT0}, s{sT1}
    s_add_u32 s{sKx}, s{sKx}, {KVX - 256}
    s_mov_b32 s{sPf}, 256
    s_mov_b32 s{sRedo}, -1
    s_cmp_lg_u32 s{sPrD}, {OOB}
    s_cselect_b32 s{sMkD}, 1, 0
    s_lshl_b32 s{sMp}, s{S_H}, 12
    s_add_u32 s{sMp}, s{sMp}, {MRING + 2*MSTR - 256}
    s_cmp_lt_u32 s{S_H}, 3
    s_cselect_b32 s{sMp}, s{sMp}, {OOB}
    s_mul_i32 s{sT0}, s{S_W}, {L_BLK}
    s_mov_b32 m0, s{sT0}
    s_lshl_b32 s{sKv}, s{S_H}, 12
    s_lshl_b32 s{sFlg}, s{S_H}, 6
    s_mov_b32 s{sPg}, {PROG}
    s_cmp_eq_u32 s{S_H}, 31
    s_cselect_b32 s{sPg}, s{sPg}, {OOB}
    s_add_u32 s{sKv}, s{sKv}, {KV}
    s_mov_b32 s{sC}, 0x3e0293ee
    s_mov_b32 s{sOne}, 0x3f803f80
    s_mov_b32 s{sOne+1}, 0x3f803f80
    s_mov_b32 s{sSpin}, 0x40000''')
    def m32(f):
        m = sum(1 << j for j in range(16) if f(j)); return hex(m | m << 16)
    def sel(r, vm_, masks):
        e(f'v_mov_b32 v{vT}, 0x3f80\ns_mov_b32 vcc_lo, {vm_}\ns_mov_b32 vcc_hi, {vm_}')
        e(f'v_cndmask_b32 v{vT}, v{vT}, 1.0, vcc')
        for q in range(4):
            e(f's_mov_b32 vcc_lo, {masks[q]}\ns_mov_b32 vcc_hi, {masks[q]}\nv_cndmask_b32 v{r+q}, 0, v{vT}, vcc')
    sel(VA, m32(lambda j: j & 1), [m32(lambda j: j >> 2 == q) for q in range(4)])
    sel(VA + 4, m32(lambda j: (j >> 2) & 1), [m32(lambda j: 2 * (j >> 3) + (j & 1) == q) for q in range(4)])
    e(f'''ds_write_b128 v{vSel}, {vr(VA,4)} offset:{L_SEL}
    ds_write_b128 v{vSel}, {vr(VA+4,4)} offset:{L_SEL+256}
    ds_write_b128 v{vL16}, {vr(C4,4)} offset:{L_TAB}
    s_waitcnt lgkmcnt(0)''')
def rec_disp(a, tag):
    for w in range(3):
        a.e(f's_cmp_eq_u32 s{S_W}, {w}\ns_cbranch_scc1 {tag}{w}_in')
    a.e(f's_branch {tag}3_in')

WO = 'p0,s0,w13,w21,l0,w22,l1,p1,w23,%s,s1,w31,w32,p2,w33,%s,s2,w41,w42,p3a,w43,p3b,%s,s3,p4,%s,s4,'
TAIL = {0: WO % ('rd', 'rd', 'rd,r2', '') + 'neg,ra,bar,rb,mst,r2,zq,zk,up,d28,DA,f0,qa,qb,qc,ms2,f1,zv,d60,DB,f2,d40,f3',
        1: WO % ('', '', '', '') + 'neg,bar,r2,zq,zk,up,d60,DA,f0,d60,f1,qa,qb,qc,DC,f2,d20,f3,ms2,zv',
        2: WO % ('', '', '', '') + 'neg,bar,zq,zk,r2,up,d60,DA,f0,d60,f1,qa,qb,qc,DC,f2,d20,f3,ms2,zv',
        3: WO % ('', '', '', '') + 'neg,bar,zq,zk,up,d40,r2,d20,DA,f0,d60,f1,qa,qb,qc,DC,f2,d20,f3,ms2,zv'}
PAR = dict(l4=6, l5=7, l6=17, l7=18, l8=17, pf=24, qb=49, kv=65)
CHK = '1.3.5,2.9.11,3.15.17,45.21.23,678.33.35'
def opt(abl, key, d=None):
    for x in abl:
        if x.startswith(key + '='): return x[len(key)+1:]
    return d

def rec_loop(a, w, stamps=None, fin='R_done', abl=(), tag='R', cs=''):
    b = Asm(); b.uid = 10000
    rec_body(b, w, None, fin, abl, tag, cs)
    a.vq = list(b.endq[0]); a.lq = list(b.endq[1])
    rec_body(a, w, stamps, fin, abl, tag, cs)

def rec_body(a, w, stamps, fin, abl, tag, cs):
    drops = [re.compile(x[2:].replace('~', ' ')) for x in abl if x.startswith('x=')]
    sec = ['p1']
    def e(text):
        for line in text.split('\n'):
            line = line.strip()
            if 'free' in abl: line = re.sub(r'v_cmp_(eq_u32|ne_u32|u_f32) vcc', 'v_cmp_f_f32 vcc', line)
            if any(d.search(sec[0] + ':' + line) for d in drops): continue
            a.e(line)
    def stamp(name, at=40):
        if name in ('t0', 'sdone', 'pvdone', 'st0', 'st3'): sec[0] = name
        if stamps is None or name not in stamps: return
        k = stamps.index(name)
        lab = a.newlabel('st')
        a.raw(f's_cmp_eq_u32 s{sStep}, {at}'); a.raw(f's_cbranch_scc0 {lab}')
        a.raw(f's_memtime s[{sStamp+2*k}:{sStamp+2*k+1}]'); a.raw(f'{lab}:')
    P_ = {k: int(opt(abl, k, v)) for k, v in PAR.items()}
    def cnt(k):
        if 'cnt' in abl: e(f's_add_u32 s{sF+k}, s{sF+k}, 1')
    FB = [MB[0], MB[1], MB[2], VX, VX + 4, MB[0], MB[1], MB[2], C4]
    def ldw(key, buf, hh): return f'ds_read_b128 {vr(buf+4*hh,4)}, v{vW} offset:{LDS[key] + hh*1024}'
    def ldkx(n): return f'ds_read_b128 {vr(KB[n],4)}, v{vL16} offset:{(w ^ (n >> 1))*L_BLK + 256 + (n & 1)*1024}'
    def ldv(n): return f'ds_read_b128 {vr(VX+4*n,4)}, v{vL16} offset:{w*L_BLK + 2304 + n*1024}'
    def ldz(k, r, kq=0): return f'ds_read_b128 {vr(r,4)}, v{vZ} offset:{L_QK + (w ^ k)*1152 + kq*576}'
    def fillr(r, n, val=0): return '\n'.join(f'v_mov_b64 {vr(r+k,2)}, {val}' for k in range(0, n, 2))
    def zero(r, n): e(fillr(r, n))
    lc = ' sc1' if 'lsc' in abl else cs
    def ldf(i, m=None, r=None):
        return f'buffer_load_dwordx4 {vr(FB[i] if r is None else r,4)}, v{vL16}, {WS}, s{(sMs, sM1, sM2)[i >> 2]} offen offset:{(i & 3)*1024}{lc if m is None else m}'
    def dma(n): return f'buffer_load_dwordx4 v{vL16}, {WS}, s{sKx} offen offset:{256 + n*1024} sc1 lds'
    def blind(line, name):
        a.auto = False; e(line); a.auto = True
        a.vq[-1] = {name}
    def add(r): return f'v_add_f32 v{r}, v{r}, v{r+2}'
    def cvt(d, r, r2=None): return f'v_cvt_pk_bf16_f32 v{d}, v{r}, v{r+1 if r2 is None else r2}'
    def upm(): e(f's_add_u32 s{sM1}, s{sMs}, 4096\ns_add_u32 s{sM2}, s{sMs}, 8192')
    spin = f's_sub_u32 s{sSpin}, s{sSpin}, 1\ns_cbranch_scc1 {fin}'
    lbuf = {k: SB[n % 2] for n, k in enumerate(LDS_P1)}
    L = lambda s: f'{tag}{w}_{s}'
    acc = {'q': QA, 'k': KA, 'v': VA}
    X = SB[0]; Tm = SB[0] + 4
    T = [KA, KA + 4]
    Zq = [QA, QA + 4, SB[1], SB[1] + 4]
    Zk = [VA, MB[0], MB[1], VA + 4]
    KB = [Tm, VX, VX + 4, MB[0], MB[1], MB[2], C4, Tm]
    m_ = vT
    fill = {n: [] for n in range(-1, 70)}
    def put(n, *x): fill[n] += list(x)
    put(-1, f'v_cmp_eq_u32 vcc, -1, v{FB[0]+3}', '#got0')
    put(1, f's_cbranch_vccnz {L("f0")}')
    put(3, '#wr')
    for k, (n0, n1) in enumerate(((0, 2), (3, 4))): put(n0, ldw(LDS_P1[k], SB[k], 0)); put(n1, ldw(LDS_P1[k], SB[k], 1))
    for k in range(10):
        for hh in range(2): put(P1_LDS_POS[k] + hh, ldw(LDS_P1[k+2], SB[k % 2], hh))
    tail = [x for x in opt(abl, f't{w}', TAIL[w]).split(',') if x]
    tail = [f'd{opt(abl, x, 0)}' if x[0] == 'D' else x for x in tail]
    lat = {f: -9 if f'f{f}' in tail else int(opt(abl, f'l{f}', PAR.get(f'l{f}'))) for f in range(9)}
    for f in range(1, 9):
        if lat[f] >= 0: put(lat[f], ldf(f))
    put(P_['pf'] - 2, f'v_lshl_add_u32 v{vT2}, v{vL16}, 2, s{sPf}')
    if 'nopf' not in abl: put(P_['pf'], f'buffer_load_dword v{vT2}, {WS}, s{sKx} offen sc1 lds')
    if w == 1: put(37, f'buffer_load_dword v{vT2}, {WS}, s{sMp} offen sc1 lds')
    put(29, ldkx(1)); put(30, ldkx(2)); put(36, ldkx(3)); put(38, ldkx(0))
    chk = [x.split('.') for x in opt(abl, 'chk', CHK).split(',')]
    for fs, c, b in chk:
        r = [FB[int(f)] + 3 for f in fs]
        if len(r) == 3: put(int(c) - 1, f'v_max_u32 v{vT}, v{r[0]}, v{r[2]}'); r[0] = vT
        put(int(c), f'v_cmp_u_f32 vcc, v{r[0]}, v{r[1]}' if len(r) > 1 else f'v_cmp_eq_u32 vcc, -1, v{r[0]}')
        put(int(b), f's_cbranch_vccnz {L("c" + fs)}', f'{L("g" + fs)}:')
    put(12, '#bar1')
    put(42, add(QA), add(QA + 1))
    put(43, add(QA + 4), add(QA + 5))
    put(44, cvt(X + 1, QA, QA + 4), cvt(X + 3, QA + 1, QA + 5))
    put(45, f'ds_write2_b32 v{vXw}, v{X+1}, v{X+3} offset0:0 offset1:4', '#mw')
    put(46, ldz(0, Zq[0]), add(KA)); put(47, add(KA + 1))
    put(P_['qb'], '#bar', '#qbar')
    put(49, add(KA + 4))
    put(50, ldz(1, Zq[1]), add(KA + 5))
    put(51, ldkx(4), cvt(X, KA, KA + 4))
    put(52, ldkx(5), cvt(X + 2, KA + 1, KA + 5))
    put(53, ldz(2, Zq[2]), ldkx(6), f'ds_write2_b32 v{vXw}, v{X}, v{X+2} offset0:144 offset1:148', '#t0')
    put(54, ldkx(7), '#mw', add(VA)); put(55, ldz(3, Zq[3]), add(VA + 1)); put(56, ldv(0), cvt(X + 1, VA))
    put(57, ldz(0, Zk[0], 1), add(VA + 4))
    put(58, '#bar', ldz(1, Zk[1], 1), add(VA + 5))
    put(59, ldz(2, Zk[2], 1), cvt(X + 3, VA + 4))
    put(60, ldz(3, Zk[3], 1))
    put(61, ldv(1))
    ONE, PmQ, P, LL = MB[0], vZero, VA, MB[2]
    O0, O1 = MB[1], VA + 4
    wb = [QA, SB[1]]
    put(62, f'v_cmp_u_f32 vcc, v{T[0]}, v{T[0]}', f'v_max3_f32 v{m_}, v{T[0]}, v{T[0]+1}, v{T[0]+2}')
    put(63, f'v_max3_f32 v{m_}, v{m_}, v{T[0]+3}, v{T[1]}', f'v_max3_f32 v{m_}, v{m_}, v{T[1]+1}, v{T[1]+2}')
    put(64, f's_cbranch_vccnz {L("fn")}', f'{L("gn")}:')
    if 'nokv' not in abl: put(65, f'buffer_store_dwordx4 {vr(X,4)}, v{vL16}, {WS}, s{sKv} offen offset:{w*1024} sc1')
    put(65, dma(0), dma(1), f'ds_read_b128 {vr(C4,4)}, v{vL16} offset:{L_TAB}', ldw(LDS_WO[0], wb[0], 0), fillr(ONE, 4, f's[{sOne}:{sOne+1}]'), f'v_max_f32 v{m_}, v{m_}, v{T[1]+3}')
    tok = {}
    def mf(n):
        if n < 54:
            key = P1SEQ[n]
            m, i, t = key
            wv = vr(lbuf[key], 8) if key in LDS else wfrag(key)
            return f'{SMF} {vr(acc[m]+4*t,4)}, {vr(FB[i],4)}, {wv}, v{vIdx}'
        if n < 62:
            k = n - 54
            return f'{MF32} {vr(T[k & 1],4)}, {vr(KB[k],4)}, {vr(Zq[k >> 1],4)}, {"0" if k < 2 else vr(T[k & 1],4)}'
        k = n - 62
        return f'{MF32} {vr(Tm,4)}, {vr(Zk[k],4)}, {vr(Zq[k],4)}, {"0" if k == 0 else vr(Tm,4)}'
    def ops(n): return Ins(mf(n)).src if n < 66 else set()
    def emit(n):
        pw = False
        for x in fill[n]:
            if x == '#got0': stamp('got0'); stamp('got0n', 41)
            elif x in ('#bar1', '#qbar', '#t0'): stamp(x[1:])
            elif x == '#mw': tok['mw'] = a.mark_l()
            elif x == '#wr': a.waitfor({f'#r{sPrd}'})
            elif x == '#bar': a.waitfor(tok['mw'] | ops(n + 1)); e('s_barrier')
            else:
                if x[:2] == 'v_' and not pw: a.waitfor(ops(n + 1) | Ins(x.split('\n')[0]).src); pw = True
                e(x)
    e(f'{L("go")}:')
    a.waitfor({f'v{FB[0]}'})
    e(f'{L("go2")}:')
    if 'tr' in abl and w == 3:
        a.raw('s_memrealtime s[76:77]'); a.raw('s_memtime s[78:79]')
    if opt(abl, 'ts'):
        lab = a.newlabel('ts')
        a.raw(f's_cmp_eq_u32 s{sStep}, {opt(abl, "ts")}'); a.raw(f's_cbranch_scc0 {lab}'); a.raw('s_memrealtime s[100:101]'); a.raw(f'{lab}:')
    emit(-1)
    for n in range(66): e(mf(n)); emit(n)
    stamp('sdone')
    e(f'''v_max3_f32 v{Tm+2}, v{m_}, v{Tm}, v{Tm+1}
    v_max3_f32 v{m_}, v{m_}, v{Tm}, v{Tm+1}
    s_add_u32 s{sKv}, s{sKv}, {32*4096}
    s_add_u32 s{sMs}, s{sMs}, {MSTR}
    v_permlane32_swap_b32 v{m_}, v{Tm+2}
    v_max_f32 v{Tm+3}, v{m_}, v{Tm+2}
    v_max_f32 v{m_}, v{m_}, v{Tm+2}
    s_add_u32 s{sMst}, s{sMs}, s{sMo}''')
    a.waitfor({f'v{VX}', f'v{VX+4}'})
    e(f'''v_permlane16_swap_b32 v{m_}, v{Tm+3}
    v_max_f32 v{m_}, v{m_}, v{Tm+3}''')
    T0 = T[0]
    def ex(r): e(f'v_exp_f32 v{r}, v{r}')
    e(f'v_mul_f32 v{Tm+2}, s{sC}, v{m_}')
    for r in (Tm, T0, T0 + 2, T0 + 4, T0 + 6):
        e(f'v_pk_fma_f32 {vr(r,2)}, {vr(r,2)}, s[{sC}:{sC+1}], {vr(Tm+2,2)} op_sel_hi:[1,0,0] neg_lo:[0,0,1] neg_hi:[0,0,1]')
    ex(Tm); ex(Tm + 1); ex(T0); e(cvt(PmQ + 1, Tm)); ex(T0 + 1); ex(T0 + 2)
    e(f'{MF16} {vr(O0,4)}, {vr(X,2)}, {vr(PmQ,2)}, 0')
    e(dma(2))
    e(cvt(P, T0)); ex(T0 + 3)
    e(f'{MF16} {vr(O1,4)}, {vr(X+2,2)}, {vr(PmQ,2)}, 0')
    e(dma(3)); tokd = a.mark_v()
    def prog(at):
        if w == DW and opt(abl, 'pg', 'a') == at: e(f'v_add_u32 v{vT}, s{sStep}, 1\nbuffer_store_dword v{vT}, v{vMst}, {WS}, s{sPg} offen sc1')
    prog('a')
    ex(T0 + 4); e(cvt(P + 1, T0 + 2)); ex(T0 + 5)
    e(f'{MF16} {vr(LL,4)}, {vr(PmQ,2)}, {vr(ONE,2)}, 0')
    e(ldw(LDS_WO[0], wb[0], 1))
    ex(T0 + 6); ex(T0 + 7)
    e(cvt(P + 2, T0 + 4)); e(cvt(P + 3, T0 + 6))
    W = [VX, VX + 4, KA, KA + 4, Tm]
    zero(W[2], 4)
    e(f'{MF32} {vr(O0,4)}, {vr(VX,4)}, {vr(P,4)}, {vr(O0,4)}')
    zero(W[3], 4)
    e(f'{MF32} {vr(O1,4)}, {vr(VX+4,4)}, {vr(P,4)}, {vr(O1,4)}')
    zero(W[0], 4)
    e(f'{MF32} {vr(LL,4)}, {vr(P,4)}, {vr(ONE,4)}, {vr(LL,4)}')
    OF = [P, MB[0], MB[1], VA + 4]
    e(cvt(P, O0)); e(cvt(P + 1, O0 + 2)); zero(W[1], 4); e(cvt(P + 2, O1)); e(cvt(P + 3, O1 + 2))
    e(f'ds_write_b128 v{vZ}, {vr(P,4)} offset:{L_QK + w*1152}')
    toko = a.mark_l()
    e(f's_add_u32 s{sKx}, s{sKx}, {32*16384}')
    prog('b')
    stamp('pvdone')
    if 'tr' in abl and w == 3:
        for x in (f'v_mov_b32 v{vT}, s76', f'v_mov_b32 v{vT2}, s78', f's_lshl_b32 s80, s{sStep}, 8', f's_lshl_b32 s81, s{S_H}, 3', 's_add_u32 s80, s80, s81', f's_add_u32 s80, s80, {STAMP + 0x8000}'): a.raw(x)
        e(f'buffer_store_dword v{vT}, v{vZero}, {WS}, s80 offen\nbuffer_store_dword v{vT2}, v{vZero}, {WS}, s80 offen offset:4')
    IV = LL
    wbuf = {k: wb[(0, 1, 0, 1, 0)[n]] for n, k in enumerate(LDS_WO)}
    def wo(u, k):
        key = ('o', u, k)
        if u == 4: e(f'{MF32} {vr(W[4],4)}, {vr(OF[k],4)}, {wfrag(key)}, {"0" if k == 0 else vr(W[4],4)}')
        else: e(f'{SMF} {vr(W[u],4)}, {vr(OF[k],4)}, {vr(wbuf[key], 8) if key in LDS else wfrag(key)}, v{vIdx} abid:1')
    ack = {}
    RDR, SEL, D, R2 = {sPrd: SB[1], sPrD: VX}, VA, X, Tm + 2
    def rdl(s): return [f'buffer_load_dwordx4 {vr(RDR[s]+4*l,4)}, v{vL16}, {WS}, s{s} offen offset:{l*1024} sc1' for l in range(2)]
    nrd = {}
    def rd(s):
        nrd[s] = nrd.get(s, 0) + 1
        for x in rdl(s):
            if nrd[s] == 1: e(x)
            else: blind(x, f'#r{s}')
        if len(nrd) == 1 and nrd[s] == 1: stamp('rd', 41)
    def epi(u):
        r = W[u]
        x = [f'v_mul_f32 v{r+k}, v{r+k}, v{IV + (k & 1)}' for k in ((0, 2, 1, 3) if u < 4 else (0, 1))]
        x += [cvt(r, r, r + 2), cvt(r + 1, r + 1, r + 3)] if u < 4 else [cvt(r, r)]
        return x + [f'v_bfi_b32 v{r+k}, 1, s{sStep}, v{r+k}' for k in range(2 if u < 4 else 1)]
    def st(u):
        r = W[u]
        if u < 4: e(f'buffer_store_dwordx2 {vr(r,2)}, v{vP}, {WS}, s{sPW+u} offen{cs}')
        else: e(f'buffer_store_dword v{r}, v{vPD}, {WS}, s{sPW+4} offen{cs}')
        ack[u] = a.mark_v()
        if u in (0, 3): stamp(f'st{u}', 41)
    wo(4, 0)
    e(ldw(LDS_WO[1], wb[1], 0))
    wo(2, 0)
    e(ldw(LDS_WO[1], wb[1], 1)); e(f's_cmp_eq_u32 s{sStep}, 63')
    wo(0, 0)
    e(f's_cbranch_scc1 {fin}')
    a.wait_l(toko); e('s_barrier')
    wo(1, 0)
    for k in (1, 2, 3): e(ldz(k, OF[k]))
    wo(3, 0)
    e(ldw(LDS_WO[2], wb[0], 0)); e(ldw(LDS_WO[2], wb[0], 1))
    e(f'v_rcp_f32 v{IV}, v{IV}\nv_rcp_f32 v{IV+1}, v{IV+1}')
    wo(0, 1); e(ldw(LDS_WO[3], wb[1], 0))
    wo(0, 2); e(ldw(LDS_WO[3], wb[1], 1))
    wo(0, 3); e(f'ds_read_b128 {vr(SEL,4)}, v{vSel} offset:{L_SEL + (256 if w == DW else 0)}')
    wo(1, 1); e(f's_add_u32 s{sStep}, s{sStep}, 1\ns_add_u32 s{sT1}, s{sMs}, s{sMoD}')
    if w == DW: e(f's_and_b32 s{sPaD}, s{sStep}, s{sMkD}')
    wo(1, 2)
    fails = []
    ldfl = f's_load_dword s{sRdy}, s[{P_WSP}:{P_WSP+1}], s{sFlg} glc'
    def rsum(s, part='ab'):
        r = RDR[s]; par = sPaD if w == DW else sStep
        t = (vT, vT2, Tm, Tm + 1)
        if 'a' in part:
            for l in range(2):
                q = r + 4 * l
                for k in range(2): e(f'v_bitop3_b32 v{t[2*l+k]}, v{q+2*k}, v{q+2*k+1}, s{par} bitop3:0x7e')
                e(f'{MF32} {vr(D,4)}, {vr(SEL,4)}, {vr(q,4)}, {"0" if l == 0 else vr(D,4)}')
            e(f'v_or3_b32 v{vT}, v{vT}, v{vT2}, v{Tm}\nv_bitop3_b32 v{vT}, v{vT}, v{Tm+1}, 1 bitop3:0xa8\nv_cmp_ne_u32 vcc, 0, v{vT}')
        if 'b' in part:
            for k in range(2): e(f'v_add_f32_dpp v{D+k}, v{D+k}, v{D+k} row_ror:8 row_mask:0xf bank_mask:0xf')
    def rchk(nm, s):
        e(f's_cbranch_vccnz {L("f" + nm)}\n{L(nm)}:')
        assert ('f0' if s == sPrd else 'f3') not in done and 's4' in done
        fails.append((nm, s, [len(a.vq) - 1 - k for k, q in enumerate(a.vq) if f'#r{s}' in q][1::2]))
    def rfin():
        for k in range(2): e(f'v_add_f32_dpp v{R2+k}, v{D+k}, v{D+k} row_ror:4 row_mask:0xf bank_mask:0x1')
        e(cvt(vT, R2))
    done = []
    assert tail.count('bar') == 1
    for x in tail:
        done.append(x)
        if x == 'ra': rsum(sPrd); rchk('rp', sPrd)
        elif x == 'qa': rsum(sPrD, 'a')
        elif x == 'qb': rsum(sPrD, 'b'); rchk('rq', sPrD)
        elif x in ('rb', 'qc'): rfin()
        elif x == 'up':
            upm()
            if w == 1: e(f's_add_u32 s{sMp}, s{sMp}, {MSTR}')
        elif x == 'neg': e(fillr(R2, 2, -1))
        elif x == 'zq': zero(QA, 8)
        elif x == 'zk': zero(KA, 8)
        elif x == 'zv': zero(VA, 8)
        elif x == 'rd': rd(sPrd)
        elif x == 'r2': rd(sPrD)
        elif x == 'wr': a.wait_v({f'v{RDR[sPrD]}'})
        elif x in ('mst', 'ms2'):
            e(f'buffer_store_dword v{vT}, v{vMst}, {WS}, s{sMst if x == "mst" else sT1} offen{cs}')
            if x == 'mst':
                assert done[-4:] == ['ra', 'bar', 'rb', 'mst']
                e(f'{L("yrp")}:')
            ack['m'] = a.mark_v(); stamp('mst' if x == 'mst' or w else 'zrdy', 41)
        elif x == 'bar':
            if w == DW: e(f's_add_u32 s{sT0}, s{sStep}, 1\n{L("fc")}:\ns_cmp_gt_u32 s{sRdy}, s{sT0}\ns_cbranch_scc0 {L("flg")}')
            a.wait_v(tokd); e('s_barrier')
            if w == DW: a.raw(ldfl)
        elif x[0] == 'f':
            e(ldf(int(x[1])))
            if x == 'f0': stamp('e0', 41)
        elif x[0] == 'w': wo(int(x[1]), int(x[2]))
        elif x[0] == 'l': e(ldw(LDS_WO[4], wb[0], int(x[1])))
        elif x[0] == 'p':
            y = epi(int(x[1]))
            e('\n'.join(y if len(x) == 2 else y[:2] if x[2] == 'a' else y[2:]))
        elif x[0] == 's': st(int(x[1]))
        elif x[0] == 'a': a.wait_v(ack[int(x[1:]) if x[1:] != 'm' else 'm'])
        elif x[0] == 'd':
            n = int(x[1:]) // 4
            while n > 0:
                k = min(n, 16); e(f's_nop {k-1}'); n -= k
        else: raise ValueError(x)
    a.endq = (list(a.vq), list(a.lq))
    e(f's_branch {L("go")}')
    sec[0] = 'rare'
    def clr(): a.vq = []; a.lq = []
    early = [int(x[1]) for x in tail if x[0] == 'f']
    clr()
    e(f'{L("in")}:\n{ldfl}\n{spin}\ns_waitcnt lgkmcnt(0)\ns_cmp_gt_u32 s{sRdy}, 1\ns_cbranch_scc0 {L("in")}')
    for n in range(4): e(dma(n))
    e(f's_add_u32 s{sKx}, s{sKx}, {32*16384}'); upm()
    e(f'{L("in2")}:')
    for f in early: e(ldf(f))
    zero(QA, 16); zero(VA, 8)
    e(f's_waitcnt vmcnt(0)\ns_barrier\ns_branch {L("go2")}')
    clr()
    e(f'{L("f0")}:'); e(ldf(0, ' sc1')); e(spin); cnt(0); e('s_nop 3')
    zero(QA, 8)
    oth = [f for f in range(1, 9) if lat[f] < 0]
    for f in oth: e(ldf(f, ' sc1'))
    e(f's_waitcnt vmcnt(0) lgkmcnt(0)\ns_branch {L("go2")}')
    for fs, c, b in chk:
        clr()
        e(f'{L("c" + fs)}:')
        for f in fs: e(ldf(int(f), ' sc1'))
        e(spin); cnt(1)
        for f in range(int(fs[-1]) + 1, 9):
            if lat[f] <= int(b): e(ldf(f, ' sc1'))
        r = [FB[int(f)] + 3 for f in fs] * 3
        e(f's_waitcnt vmcnt(0)\nv_max3_u32 v{vT}, v{r[0]}, v{r[1]}, v{r[2]}\nv_cmp_eq_u32 vcc, -1, v{vT}')
        e(f's_cbranch_vccnz {L("c" + fs)}\ns_branch {L("g" + fs)}')
    clr()
    e(f'{L("fn")}:')
    e(f's_cmp_eq_u32 s{sRedo}, s{sStep}\ns_cbranch_scc1 {L("gn")}\ns_mov_b32 s{sRedo}, s{sStep}'); cnt(2)
    e(f's_waitcnt vmcnt(0) lgkmcnt(0)\ns_nop 7\n{L("fl")}:')
    for f in range(9): e(ldf(f, ' sc1', 12 + 4 * f))
    e(spin)
    e(f'v_max_u32 v{vT}, v12, v13')
    for r in range(14, 48, 2): e(f'v_max3_u32 v{vT}, v{vT}, v{r}, v{r+1}')
    e(f'v_cmp_eq_u32 vcc, -1, v{vT}\ns_cbranch_vccnz {L("fl")}')
    e(f's_barrier\nbuffer_inv sc1\ns_waitcnt vmcnt(0)\ns_barrier\ns_branch {L("in2")}')
    for nm, s, pend in fails:
        a.auto = False
        more = rdl(s) + (rdl(sPrD) if s == sPrd else [])
        c = 3 if s == sPrD else 2
        if s == sPrd:
            e(f'{L("xrp")}:'); rfin()
            e(f'buffer_store_dword v{vT}, v{vMst}, {WS}, s{sMst} offen{cs}')
            e(f's_waitcnt vmcnt({opt(abl, "xw", 5)})\ns_barrier\ns_branch {L("yrp")}')
        ok = L('xrp' if s == sPrd else nm)
        e(f'{L("f" + nm)}:')
        for k, n in enumerate(pend):
            e('\n'.join(more)); cnt(c)
            e(f's_waitcnt vmcnt({n + len(more) * (k + 1)})'); rsum(s); e(f's_cbranch_vccz {ok}')
        e(f'{L("l" + nm)}:'); e('\n'.join(more)); e(spin); cnt(c)
        e(f's_waitcnt vmcnt({len(more) * (len(pend) + 1) - 2})'); rsum(s); e(f's_cbranch_vccz {ok}\ns_branch {L("l" + nm)}')
        a.auto = True
    if w == DW:
        clr(); e(f'{L("flg")}:\n{ldfl}\n{spin}\ns_waitcnt lgkmcnt(0)\ns_branch {L("fc")}')
```

```python
from asmlib import *
from layout import *
from rec6 import S_WS, S_RA, S_RB, S_W, S_H, WS, srd, P_X, P_WQ, P_WK, P_WV, P_WO, P_WG, P_WU, P_WD, P_OUT, P_DBG, MF32, MF16
S_G = 3
RA = f's[{S_RA}:{S_RA+3}]'; RB = f's[{S_RB}:{S_RB+3}]'
MF3 = 'v_mfma_f32_32x32x16_bf16'
L16, LN, LJ, LG, T0, T1, T2, T3 = 1, 2, 3, 4, 5, 6, 7, 8
(t0, t1, t2, t3, sSpin, sK, sA, sB, sC, sD, sE, sF_, sG_, sH_) = range(46, 60)
sFB = 75
FIN = 'K_end'

def cvt(d, x, y): return f'v_cvt_pk_bf16_f32 v{d}, v{x}, v{y}'

def arrive(a, v=5):
    lab = a.newlabel('arr')
    a.e(f'''s_waitcnt vmcnt(0)
    s_barrier
    s_cmp_eq_u32 s{S_W}, 0
    s_cbranch_scc0 {lab}
    s_getreg_b32 s28, hwreg(HW_REG_XCC_ID, 0, 3)
    s_lshl_b32 s29, s{sFB}, 6
    s_or_b32 s28, s28, s29
    s_or_b32 s28, s28, 0x80
    v_mov_b32 v{v}, s28
    v_mov_b32 v{v+1}, s2
    s_mov_b64 exec, 1
    global_store_byte v{v+1}, v{v}, s[{P_DBG}:{P_DBG+1}] sc1
    s_mov_b64 exec, -1
    {lab}:''')

def gbar(a, v, spin, ta, tb, force=None):
    lab = a.newlabel('gb')
    a.e(f'''s_mov_b32 s{spin}, 0x40000
    v_mbcnt_lo_u32_b32 v{v}, -1, 0
    v_mbcnt_hi_u32_b32 v{v}, -1, v{v}
    v_lshlrev_b32 v{v}, 2, v{v}
    s_lshr_b32 s{ta}, 0x80808080, s{sFB}
    {lab}:
    global_load_dword v{v+1}, v{v}, s[{P_DBG}:{P_DBG+1}] sc1
    s_sub_u32 s{spin}, s{spin}, 1
    s_cbranch_scc1 {FIN}
    s_waitcnt vmcnt(0)
    v_and_b32 v{v+2}, s{ta}, v{v+1}
    v_cmp_ne_u32 vcc, s{ta}, v{v+2}
    s_cbranch_vccnz {lab}
    v_and_b32 v{v+1}, 0x07070707, v{v+1}
    v_lshlrev_b32 v{v+2}, v{v+1}, 1''')
    for k in range(3): a.e(f'v_lshrrev_b32 v{v+1}, 8, v{v+1}\nv_lshlrev_b32 v{v}, v{v+1}, 1\nv_or_b32 v{v+2}, v{v+2}, v{v}')
    a.e(f'''v_or_b32_dpp v{v+2}, v{v+2}, v{v+2} quad_perm:[1,0,3,2] row_mask:0xf bank_mask:0xf
    v_cmp_ne_u32 vcc, {0x100 if force else 0xff}, v{v+2}
    s_cmp_lg_u64 vcc, 0
    s_cselect_b32 s{ta}, 1, 0
    s_cmp_gt_u32 s{ta}, s{sFB}
    s_cbranch_scc1 K_again''')

def w_init(a):
    e = a.e
    e(f'''v_and_b32 v{LN}, 63, v0
    v_lshlrev_b32 v{L16}, 4, v{LN}
    v_and_b32 v{LJ}, 15, v{LN}
    v_lshrrev_b32 v{LG}, 4, v{LN}''')
    X0 = 32
    F0 = 72
    srd(a, S_RA, P_X, 2048 * 1152)
    e(f'''s_sub_u32 s{t0}, s{S_G}, 4
    s_lshl_b32 s{t0}, s{t0}, 5
    s_add_u32 s{t0}, s{t0}, s{S_H}
    s_lshl_b32 s{t0}, s{t0}, 1
    s_add_u32 s{sK}, s{t0}, s{S_W}
    s_cmp_ge_u32 s{S_G}, 4
    s_cselect_b32 s{sA}, 1, 0
    s_cmp_lt_u32 s{S_W}, 2
    s_cselect_b32 s{sA}, s{sA}, 0
    v_and_b32 v{T0}, 7, v{LN}
    v_lshrrev_b32 v{T1}, 3, v{LN}
    v_mul_u32_u24 v{T2}, 1152, v{T0}
    v_lshl_add_u32 v{T2}, v{T1}, 4, v{T2}
    s_mul_i32 s{t0}, s{sK}, {8*1152}
    s_cmp_eq_u32 s{sA}, 0
    s_cbranch_scc1 W_noln_a''')
    for n in range(9): e(f'buffer_load_dwordx4 {vr(X0+4*n,4)}, v{T2}, {RA}, s{t0} offen offset:{n*128}')
    e('W_noln_a:')
    a.vq = []
    e(f'''v_mov_b32 v12, -1
    v_mov_b32 v13, -1
    v_mov_b32 v14, -1
    v_mov_b32 v15, -1
    v_lshlrev_b32 v{T3}, 4, v0
    s_sub_u32 s{t0}, s{S_G}, 1
    s_lshl_b32 s{t0}, s{t0}, 5
    s_add_u32 s{t0}, s{t0}, s{S_H}
    s_mul_i32 s{t0}, s{t0}, {12*4096}
    s_add_u32 s{t0}, s{t0}, {KV}''')
    for n in range(12):
        e(f'buffer_store_dwordx4 v[12:15], v{T3}, {WS}, s{t0} offen sc1\ns_add_u32 s{t0}, s{t0}, 4096')
    e(f'''s_mov_b32 s{t1}, {PS}
    s_cmp_lt_u32 s{S_G}, 5
    s_cselect_b32 s{t1}, {PSA}, s{t1}
    s_cselect_b32 s{t2}, 0, {OOB}
    s_mul_i32 s{t1}, s{S_H}, s{t1}
    s_lshl_b32 s{t0}, s{S_G}, 22
    s_add_u32 s{t0}, s{t0}, s{t1}
    s_add_u32 s{t0}, s{t0}, {RING}
    s_cmp_lt_u32 s{S_G}, 3
    s_cselect_b32 s{t0}, {OOB}, s{t0}
    s_add_u32 s{t2}, s{t2}, s{t0}''')
    for sl in range(2):
        for n in range(9):
            e(f's_add_u32 s{t1}, s{t0 if n < 5 else t2}, {sl*RSLOT + n*4096}\nbuffer_store_dwordx4 v[12:15], v{T3}, {WS}, s{t1} offen sc1')
    e(f'''s_lshl_b32 s{sE}, s{S_H}, 6
    s_cmp_gt_u32 s{S_G}, 1
    s_cselect_b32 s{sE}, {PROG}, s{sE}
    v_mov_b32 v9, {OOB}
    v_cmp_eq_u32 vcc, 0, v0
    v_cndmask_b32 v9, v9, 0, vcc
    v_mov_b32 v10, 0
    buffer_store_dword v10, v9, {WS}, s{sE} offen sc1
    s_cmp_eq_u32 s{sA}, 0
    s_cbranch_scc1 W_noln_b
    s_waitcnt vmcnt(31)''')
    a.vq = []
    def red(r):
        e(f'''v_add_f32_dpp v{r}, v{r}, v{r} row_ror:8 row_mask:0xf bank_mask:0xf
        v_mov_b32 v17, v{r}
        v_permlane16_swap_b32 v{r}, v17
        v_add_f32 v{r}, v{r}, v17
        v_mov_b32 v17, v{r}
        v_permlane32_swap_b32 v{r}, v17
        v_add_f32 v{r}, v{r}, v17''')
    def unpack(src):
        for k in range(36):
            e(f'v_lshlrev_b32 v{F0+2*k}, 16, v{src+k}\nv_and_b32 v{F0+2*k+1}, 0xffff0000, v{src+k}')
    def rbf(r): e(f'v_cvt_pk_bf16_f32 v{r}, v{r}, v{r}\nv_lshlrev_b32 v{r}, 16, v{r}')
    unpack(X0)
    e(f'v_pk_add_f32 v[20:21], {vr(F0,2)}, {vr(F0+2,2)}')
    for k in range(2, 36): e(f'v_pk_add_f32 v[20:21], v[20:21], {vr(F0+2*k,2)}')
    e('v_add_f32 v16, v20, v21'); red(16)
    e(f'v_mul_f32 v16, {hex(f2u(-1/576))}, v16\nv_mov_b32 v18, 0\nv_mov_b32 v19, 0')
    for k in range(36):
        e(f'v_pk_add_f32 v[20:21], {vr(F0+2*k,2)}, v[16:17] op_sel_hi:[1,0]\nv_pk_fma_f32 v[18:19], v[20:21], v[20:21], v[18:19]')
    e('v_add_f32 v18, v18, v19'); red(18)
    e(f'v_mul_f32 v18, {hex(f2u(1/576))}, v18'); rbf(18)
    e(f'v_add_f32 v18, {hex(f2u(1e-5))}, v18'); rbf(18)
    e('v_sqrt_f32 v18, v18'); rbf(18)
    e('v_rcp_f32 v18, v18'); rbf(16)
    for k in range(36):
        e(f'v_pk_add_f32 v[20:21], {vr(F0+2*k,2)}, v[16:17] op_sel_hi:[1,0]\n' + cvt(X0+k, 20, 21))
    unpack(X0)
    for k in range(36):
        e(f'v_pk_mul_f32 v[20:21], {vr(F0+2*k,2)}, v[18:19] op_sel_hi:[1,0]\n' + cvt(X0+k, 20, 21))
    e(f'''v_lshlrev_b32 v{T2}, 4, v{T0}
    v_lshl_add_u32 v{T2}, v{T1}, 9, v{T2}
    s_lshr_b32 s{t0}, s{sK}, 2
    s_mul_i32 s{t0}, s{t0}, 36864
    s_and_b32 s{t1}, s{sK}, 1
    s_lshl_b32 s{t1}, s{t1}, 8
    s_add_u32 s{t0}, s{t0}, s{t1}
    s_and_b32 s{t1}, s{sK}, 2
    s_lshl_b32 s{t1}, s{t1}, 6
    s_add_u32 s{t0}, s{t0}, s{t1}
    s_add_u32 s{t0}, s{t0}, {XN}''')
    for n in range(9):
        e(f'buffer_store_dwordx4 {vr(X0+4*n,4)}, v{T2}, {WS}, s{t0} offen sc1\ns_add_u32 s{t0}, s{t0}, 4096')
    e('W_noln_b:')
    arrive(a)
    a.vq = []

import struct
def f2u(x): return struct.unpack('<I', struct.pack('<f', x))[0]

def qfrag(n): return ('a', 4 * n) if n < 64 else ('v', 224 + 4 * (n - 64))
def q_load(a):
    e = a.e
    e(f'''s_cmp_ge_u32 s{S_W}, 2
    s_cselect_b32 s{S_RA}, s{P_WV}, s{P_WK}
    s_cselect_b32 s{S_RA+1}, s{P_WV+1}, s{P_WK+1}
    s_lshl_b32 s{t0}, s{S_H}, 1
    s_and_b32 s{t1}, s{S_W}, 1
    s_add_u32 s{sB}, s{t0}, s{t1}
    s_mov_b32 s{S_RA+2}, {576*8192}
    s_mov_b32 s{S_RA+3}, 0x20000
    v_lshrrev_b32 v{T0}, 3, v{LN}
    v_lshlrev_b32 v{T0}, 13, v{T0}
    v_and_b32 v{T1}, 7, v{LN}
    v_lshl_add_u32 v{T0}, v{T1}, 4, v{T0}
    s_lshl_b32 s{sA}, s{sB}, 7
    s_mul_i32 s{sD}, s{S_W}, {18*2048}''')
    e(f'''v_and_b32 v{T1}, 3, v{LJ}
    v_lshlrev_b32 v{T1}, 3, v{T1}
    v_and_b32 v{T2}, 1, v{LG}
    v_lshl_add_u32 v{T1}, v{T2}, 5, v{T1}
    v_lshrrev_b32 v{T2}, 1, v{LG}
    v_lshrrev_b32 v{T3}, 2, v{LJ}
    v_lshl_add_u32 v{T2}, v{T2}, 3, v{T3}
    v_lshl_add_u32 v{T1}, v{T2}, 7, v{T1}
    v_add_u32 v{T1}, s{sD}, v{T1}''')
    toks = {}
    def issue(n):
        for k in range(2):
            e(f's_add_u32 m0, s{sD}, {(n % 18)*2048 + k*1024}')
            e(f'buffer_load_dwordx4 v{T0}, {RA}, s{sA} offen lds')
            e(f's_add_u32 s{sA}, s{sA}, {8*8192}')
        toks[n] = a.mark_v()
    for n in range(18): issue(n)
    for n in range(36):
        a.wait_v(toks[n])
        for t in range(2):
            p, b = qfrag(2 * n + t)
            for u in range(2):
                e(f'ds_read_b64_tr_b16 {vr(b+2*u,2,p)}, v{T1} offset:{(n % 18)*2048 + t*64 + u*512}')
        if n + 18 < 36:
            e('s_waitcnt lgkmcnt(0)'); issue(n + 18)
    e('s_waitcnt lgkmcnt(0)')

def q_main(a):
    e = a.e
    XB = 32; NB = 8; PF = 4
    ACC = [64, 96]; OUT = 128
    vA, vS, vFl = T0, T1, 9
    e(f'''v_and_b32 v{vS}, 7, v{LN}
    v_lshrrev_b32 v{T2}, 4, v{LN}
    v_lshl_add_u32 v{vS}, v{T2}, 3, v{vS}
    v_lshlrev_b32 v{vS}, 4, v{vS}
    v_bfe_u32 v{T2}, v{LN}, 3, 1
    v_lshl_add_u32 v{vS}, v{T2}, 10, v{vS}''')
    OSTEP = 32 * 16384
    e(f'''s_mul_i32 s{t0}, s{S_W}, 9216
    s_add_u32 s{sA}, s{t0}, {XN}
    s_lshl_b32 s{t1}, s{sB}, 13
    s_lshr_b32 s{t2}, s{S_W}, 1
    s_lshl_b32 s{t2}, s{t2}, 11
    s_add_u32 s{t1}, s{t1}, s{t2}
    s_add_u32 s{sD}, s{t1}, {KVX - OSTEP}
    s_barrier''')
    def dma(n, m0base):
        return [f's_add_u32 m0, s{m0base}, {n*1024 - (n & 3)*1024}' if (n & 3) == 0 else None,
                f's_add_u32 s{t3}, s{sA}, {n*1024 - (n & 3)*1024}' if (n & 3) == 0 else None,
                f'buffer_load_dwordx4 v{L16}, {WS}, s{t3} offen offset:{(n & 3)*1024} sc1 lds']
    for b in range(2):
        e(f's_add_u32 s{t1}, s{t0}, {b*36864}')
        for n in range(9):
            for x in dma(n, t1):
                if x: e(x)
        e(f's_add_u32 s{sA}, s{sA}, 36864')
    e(f'''s_mov_b32 s{sK}, 0
    s_mov_b32 s{sH_}, 0
    v_mov_b32 v{vA}, v{L16}
    s_waitcnt vmcnt(9)
    s_barrier''')
    def rd(k): return f'ds_read_b128 {vr(XB + 4*(k % NB), 4)}, v{vA} offset:{(k % 36)*1024}'
    for k in range(PF): e(rd(k))
    e(f's_cmp_ge_u32 s{S_W}, 2\ns_cbranch_scc1 QV_loop')
    lq0 = list(a.lq)
    def epi(b, var):
        r = []
        for t in range(2):
            for c in range(2):
                q = ACC[b] + 16*t + 8*c
                r += [[cvt(OUT + 8*t + 4*c + k, *((q + k, q + 4 + k) if var == 'QK' else (q + 2*k, q + 2*k + 1))) for k in range(4)]]
                r += [[f'buffer_store_dwordx4 {vr(OUT + 8*t + 4*c, 4)}, v{vS}, {WS}, s{sD if t == 0 else t2} offen offset:{c*512} sc1']]
        return r
    for var in ('QK', 'QV'):
        a.lq = list(lq0); a.vq = []
        e(f'{var}_loop:')
        for b in range(2):
            fill = {k: [] for k in range(36)}
            fill[0] += [f's_add_u32 s{t2}, s{sD}, 4096', f's_add_u32 s{t1}, s{sH_}, {2*36864}', f's_cmp_ge_u32 s{t1}, {4*36864}',
                        f's_cselect_b32 s{t3}, {4*36864}, 0', f's_sub_u32 s{t1}, s{t1}, s{t3}', f's_add_u32 s{t1}, s{t1}, s{t0}']
            for n, x in enumerate(epi(1 - b, var)): fill[1 + n] += x
            for n in range(9): fill[10 + 2*n] += [x for x in dma(n, t1) if x]
            fill[28] += [f's_add_u32 s{sA}, s{sA}, 36864', f's_add_u32 s{sD}, s{sD}, {OSTEP}', f's_add_u32 s{sH_}, s{sH_}, 36864',
                         f's_cmp_ge_u32 s{sH_}, {4*36864}', f's_cselect_b32 s{sH_}, 0, s{sH_}', f's_max_u32 s{t3}, s{sK}, 1', f's_sub_u32 s{t3}, s{t3}, 1',
                         f'v_mov_b32 v10, s{t3}']
            fill[30] += ['s_waitcnt vmcnt(13)', 's_barrier', f'buffer_store_dword v10, v{vFl}, {WS}, s{sE} offen sc1', f's_add_u32 s{sK}, s{sK}, 1']
            for k in range(36):
                kk = 36 * b + k
                if k + PF == 36: e(f'v_add_u32 v{vA}, s{sH_}, v{L16}')
                e(rd(kk + PF))
                for t in range(2):
                    p, r = qfrag(2 * k + t)
                    W = vr(r, 4, p); X = vr(XB + 4 * (kk % NB), 4); D = vr(ACC[b] + 16 * t, 16)
                    e(f'{MF3} {D}, {W if var == "QK" else X}, {X if var == "QK" else W}, {"0" if k == 0 else D}')
                for x in fill[k]: e(x)
        e(f's_cmp_lt_u32 s{sK}, 64\ns_cbranch_scc1 {var}_loop')
        e(f's_add_u32 s{t2}, s{sD}, 4096')
        for x in epi(1, var):
            for y in x: e(y)
        if var == 'QK': e('s_branch Q_tail')
    e('Q_tail:')
    e(f'''v_mov_b32 v10, 128
    s_waitcnt vmcnt(0) lgkmcnt(0)
    s_barrier
    buffer_store_dword v10, v{vFl}, {WS}, s{sE} offen sc1''')
    a.vq = []

SEL, NEG = 24, 28
vPS, vP8, vRD, vRes, vXw, vZ, vTr, vMx = 10, 11, 12, 13, 14, 15, 16, 17
(sPW, sPR, sTask, sTW, sTR, sCnt) = range(61, 67)
import os
NA = 2; NF = 3
def red_setup(a, PS=PS):
    e = a.e
    e(f'''v_mov_b32 v{T0}, 0x3f80
    v_mov_b32 v{T1}, 0x3f800000
    v_and_b32 v{T2}, 1, v{LJ}
    v_cmp_eq_u32 vcc, 0, v{T2}
    v_cndmask_b32 v{T0}, v{T1}, v{T0}, vcc
    v_lshrrev_b32 v{T2}, 1, v{LJ}''')
    for q in range(4):
        e(f'v_cmp_eq_u32 vcc, {q}, v{T2}\nv_cndmask_b32 v{SEL+q}, 0, v{T0}, vcc')
    e(f'''v_lshrrev_b32 v{T0}, 1, v{LG}
    v_lshlrev_b32 v{vP8}, 4, v{LJ}
    v_lshl_add_u32 v{vP8}, v{T0}, 8, v{vP8}
    v_and_b32 v{T0}, 1, v{LG}
    v_lshl_add_u32 v{vP8}, v{T0}, 3, v{vP8}
    v_add_u32 v{vP8}, 4096, v{vP8}
    v_mul_u32_u24 v{vRD}, {PS}, v{LG}
    v_lshl_add_u32 v{vRD}, v{LJ}, 4, v{vRD}
    s_lshl_b32 s{t0}, s{S_G}, 22
    s_add_u32 s{t0}, s{t0}, {RING}
    s_mul_i32 s{t1}, s{S_H}, {PS}
    s_add_u32 s{sPW}, s{t0}, s{t1}
    s_mul_i32 s{t1}, s{S_W}, 4608
    s_add_u32 s{sPW}, s{sPW}, s{t1}
    s_lshl_b32 s{sTask}, s{S_W}, 5
    s_add_u32 s{sTask}, s{sTask}, s{S_H}
    s_lshl_b32 s{t1}, s{sTask}, 8
    s_add_u32 s{sPR}, s{t0}, s{t1}
    s_mov_b32 s{sTW}, 0
    s_mov_b32 s{sCnt}, 0''')

def tagb(r): return f'v_bfi_b32 v{r}, 1, s{sTW}, v{r}'
def next_slot(a):
    a.e(f'''s_xor_b32 s{sPW}, s{sPW}, {RSLOT}
    s_mov_b32 s{sTR}, s{sTW}
    s_add_u32 s{sCnt}, s{sCnt}, 1
    s_lshr_b32 s{sTW}, s{sCnt}, 1''')
def proj_epi(u, W, sc, sPW=sPW):
    if u == 8:
        return [cvt(W + 32, W + 32, W + 33), cvt(W + 33, W + 34, W + 35), tagb(W + 32), tagb(W + 33), f'buffer_store_dwordx2 {vr(W+32,2)}, v{vP8}, {WS}, s{sPW} offen{sc}']
    if u & 1 == 0: return []
    r = W + 4 * (u - 1)
    return [cvt(r + k, r + 2*k, r + 2*k + 1) for k in range(4)] + [tagb(r + k) for k in range(4)] + [f'buffer_store_dwordx4 {vr(r,4)}, v{L16}, {WS}, s{sPW} offen offset:{(u >> 1)*1024}{sc}']

def red_ld(a, RD, PS=PS, off=0):
    for l in range(8):
        a.e(f's_add_u32 s{t0}, s{sPR}, {4*l*PS + off}\nbuffer_load_dwordx4 {vr(RD+4*l,4)}, v{vRD}, {WS}, s{t0} offen sc1')
def red_sum(a, RD, D, again):
    e = a.e
    for l in range(8):
        r = RD + 4 * l
        e(f'{MF32} {vr(D,4)}, {vr(SEL,4)}, {vr(r,4)}, {"0" if l == 0 else vr(D,4)}')
        for k in range(2): e(f'v_bitop3_b32 v{T2+k}, v{r+2*k}, v{r+2*k+1}, s{sTR} bitop3:0x7e')
        e(f'v_or_b32 v{vMx}, v{T2}, v{T3}' if l == 0 else f'v_or3_b32 v{vMx}, v{vMx}, v{T2}, v{T3}')
    e(f'v_and_b32 v{vMx}, 1, v{vMx}\nv_cmp_ne_u32 vcc, 0, v{vMx}\ns_cbranch_vccnz {again}')
def red_fin(a, U, D, R):
    e = a.e
    e(cvt(D, D, D + 1)); e(cvt(D + 1, D + 2, D + 3))
    for k in range(2):
        e(f'''v_lshlrev_b32 v{U}, 16, v{D+k}
        v_and_b32 v{U+1}, 0xffff0000, v{D+k}
        v_lshlrev_b32 v{U+2}, 16, v{R+k}
        v_and_b32 v{U+3}, 0xffff0000, v{R+k}
        v_pk_add_f32 {vr(U,2)}, {vr(U,2)}, {vr(U+2,2)}''')
        e(cvt(D + k, U, U + 1))
    e(f'v_permlane16_swap_b32 v{D}, v{D+2}\nv_permlane16_swap_b32 v{D+1}, v{D+3}')
SPIN = f's_sub_u32 s{sSpin}, s{sSpin}, 1\ns_cbranch_scc1 {FIN}'
def tr_cols(a, rowexpr):
    a.e(rowexpr)
    a.e(f'''v_mul_u32_u24 v{T0}, 1152, v{T0}
    s_mul_i32 s{t0}, s{S_W}, 288
    v_add_u32 v{T0}, s{t0}, v{T0}
    v_and_b32 v{T1}, 3, v{LJ}
    v_lshl_add_u32 v{vTr}, v{T1}, 4, v{T0}
    v_lshl_add_u32 v{T3}, v{T1}, 3, v{T0}
    v_add_u32 v{T3}, 256, v{T3}''')

LA_Q, LA_O, LA_IM, LA_IK, LA_KV, LA_X = 0, 8192, 16384, 20480, 24576, 40960
def aq(n): return ('a', 144 + 4 * n) if n < 28 else ('v', 224 + 4 * (n - 28))
def a_load(a):
    e = a.e
    srd(a, S_RB, P_WQ, 576 * 8192)
    e(f'''v_lshlrev_b32 v{T0}, 2, v{LG}
    v_xor_b32 v{T0}, v{T0}, v{LJ}
    v_lshlrev_b32 v{T0}, 4, v{T0}
    v_lshl_add_u32 v{T0}, v{LG}, 13, v{T0}
    s_mul_i32 s{t1}, s{S_W}, 36864
    s_mul_i32 s{t0}, s{S_W}, {144*8192}
    s_lshl_b32 s{t2}, s{S_H}, 8
    s_add_u32 s{t0}, s{t0}, s{t2}''')
    for n in range(36):
        e(f's_add_u32 m0, s{t1}, {n*1024}\ns_add_u32 s{t2}, s{t0}, {n*4*8192}')
        e(f'buffer_load_dwordx4 v{T0}, {RB}, s{t2} offen lds')
    red_setup(a, PSA)
    e(f'''v_lshrrev_b32 v{T0}, 2, v{LJ}
    v_xor_b32 v{T1}, s{S_W}, v{T0}
    v_lshlrev_b32 v{T1}, 6, v{T1}
    v_lshl_add_u32 v{T1}, v{T0}, 8, v{T1}
    v_lshrrev_b32 v{T0}, 1, v{LG}
    v_lshl_add_u32 v{T1}, v{T0}, 11, v{T1}
    v_and_b32 v{T0}, 1, v{LG}
    v_lshl_add_u32 v{T1}, v{T0}, 5, v{T1}
    v_and_b32 v{T0}, 3, v{LJ}
    v_lshl_add_u32 v{T1}, v{T0}, 3, v{T1}
    s_waitcnt vmcnt(0)
    s_barrier''')
    for n in range(36):
        p, b = aq(n)
        for u in range(2): e(f'ds_read_b64_tr_b16 {vr(b + 2*u, 2, p)}, v{T1} offset:{(n % 12)*4096 + u*1024}')
        if n % 12 == 11: e(f'v_add_u32 v{T1}, {12*4096}, v{T1}')
    e('s_waitcnt lgkmcnt(0)\ns_barrier')
    srd(a, S_RA, P_WO, 32 * 147456)
    e(f'''s_mul_i32 s{t0}, s{S_H}, 147456
    s_mul_i32 s{t1}, s{S_W}, 36864
    s_add_u32 s{t0}, s{t0}, s{t1}''')
    for n in range(36):
        if n & 3 == 0: e(f's_add_u32 m0, s{t1}, {n*1024}\ns_add_u32 s{t2}, s{t0}, {n*1024}')
        e(f'buffer_load_dwordx4 v{L16}, {RA}, s{t2} offen offset:{(n & 3)*1024} lds')
    tr_cols(a, f'''v_lshrrev_b32 v{T0}, 1, v{LG}
    v_lshlrev_b32 v{T0}, 4, v{T0}
    v_and_b32 v{T1}, 1, v{LG}
    v_lshl_add_u32 v{T0}, v{T1}, 2, v{T0}
    v_lshrrev_b32 v{T1}, 2, v{LJ}
    v_add_u32 v{T0}, v{T0}, v{T1}''')
    e('s_waitcnt vmcnt(0)\ns_barrier')
    for kap in range(4):
        for u in range(9):
            for hh in range(2):
                off = hh * 8 * 1152 + (0 if u == 8 else (u >> 1) * 64 + (u & 1) * 8)
                e(f'ds_read_b64_tr_b16 {vr(16*u + 4*kap + 2*hh, 2, "a")}, v{T3 if u == 8 else vTr} offset:{off}')
        e(f'v_add_u32 v{vTr}, {32*1152}, v{vTr}\nv_add_u32 v{T3}, {32*1152}, v{T3}')
    e('s_waitcnt lgkmcnt(0)')

AKN, ABI, AQ, AK, AV, AS, AZ, AKV, AO, AOF, AW, AXB, ARD, AD, ARS = 28, 32, 40, 56, 88, 104, 116, 132, 140, 56, 140, 104, 148, 212, 220
vQw, vKw, vX, vPg, vHf, vOw = 14, 20, 21, 22, 23, 9
sSeg, sRdy, sProg, sFl, sPW2, sTwo, sE2 = range(67, 74)
def a_dma(a, tag):
    a.e(f'''{tag}_dm:
    s_cmp_gt_u32 s{sRdy}, s{sSeg}
    s_cbranch_scc0 {tag}_fl
    s_cmp_lt_u32 s{sSeg}, 64
    s_cselect_b32 s{t1}, s{sSeg}, 0x2000
    s_mul_i32 s{t2}, s{t1}, 36864
    s_add_u32 s{t2}, s{t2}, s{sB}''')
    for n in range(9):
        if n & 3 == 0: a.e(f's_add_u32 m0, s{sC}, {n*1024}' + (f'\ns_add_u32 s{t2}, s{t2}, 4096' if n else ''))
        a.e(f'buffer_load_dwordx4 v{L16}, {WS}, s{t2} offen offset:{(n & 3)*1024} sc1 lds')
    a.e(f'''s_lshl_b32 s{t0}, s{S_W}, 12
    s_add_u32 m0, s{t0}, {LA_KV}
    s_min_u32 s{t1}, s{t1}, 0x800
    s_lshl_b32 s{t2}, s{t1}, 19
    s_add_u32 s{t2}, s{t2}, s{sA}''')
    for n in range(4): a.e(f'buffer_load_dwordx4 v{L16}, {WS}, s{t2} offen offset:{n*1024} sc1 lds')
    a.e(f's_lshl_b32 s{t1}, s{t1}, 17\ns_add_u32 s{sH_}, s{t1}, s{sD}')
def a_flags(a, tag):
    a.vq = []; a.lq = []
    a.e(f'''{tag}_fl:
    buffer_load_dword v{vPg}, off, {WS}, s{sFl} sc1
    {SPIN}
    v_readfirstlane_b32 s{sRdy}, v{vPg}
    s_branch {tag}_dm''')

def a_init(a):
    e = a.e
    srd(a, S_RA, P_X, 2048 * 1152)
    e(f'''s_sub_u32 s{sSeg}, s{S_G}, 3
    s_mov_b32 s{sRdy}, 0
    s_mov_b32 s{sProg}, 0
    s_lshl_b32 s{sFl}, s{S_H}, 6
    s_mov_b32 s{sSpin}, 0x100000
    s_barrier
    s_lshl_b32 s{t0}, s{S_H}, 2
    s_add_u32 s{t0}, s{t0}, s{S_W}
    s_lshl_b32 s{sA}, s{t0}, 12
    s_add_u32 s{sA}, s{sA}, {KVX}
    s_mul_i32 s{sC}, s{S_W}, 9216
    s_add_u32 s{sB}, s{sC}, {XN}
    s_add_u32 s{sC}, s{sC}, {LA_X}
    s_lshl_b32 s{sD}, s{t0}, 10
    s_add_u32 s{sD}, s{sD}, {KV}''')
    a_dma(a, 'AI')
    e(f'''s_mul_i32 s{sE}, s{sSeg}, 36864
    s_lshl_b32 s{t1}, s{sTask}, 8
    s_add_u32 s{sF_}, s{sE}, s{t1}
    s_add_u32 s{sF_}, s{sF_}, {H}
    s_lshl_b32 s{t1}, s{sTask}, 4
    s_add_u32 s{sE}, s{sE}, s{t1}
    s_add_u32 s{sE2}, s{sE}, {18432 + 56*16}
    s_cmp_ge_u32 s{sTask}, 72
    s_cselect_b32 s{t1}, {18432 - 72*16}, 0
    s_add_u32 s{sE}, s{sE}, s{t1}
    s_cmp_lt_u32 s{sTask}, 16
    s_cselect_b32 s{sTwo}, 1, 0
    v_mul_u32_u24 v{vRes}, 1152, v{LJ}
    v_lshl_add_u32 v{vRes}, v{LG}, 3, v{vRes}
    v_mov_b32 v{T0}, {OOB}
    v_cmp_gt_u32 vcc, 2, v{LG}
    v_cndmask_b32 v{vRes}, v{T0}, v{vRes}, vcc
    v_cmp_eq_u32 vcc, 0, v{LG}
    v_cndmask_b32 v{vPS}, v{T0}, v{L16}, vcc
    s_lshl_b32 s{t0}, s{S_W}, 10
    v_add_u32 v{vTr}, s{t0}, v{L16}
    v_add_u32 v{vX}, {LA_X}, v{L16}
    s_lshl_b32 s{t0}, s{S_W}, 11
    v_add_u32 v{vOw}, s{t0}, v{L16}''')
    e(f'''v_and_b32 v{vQw}, 7, v{LN}
    v_lshl_add_u32 v{vQw}, v{LG}, 3, v{vQw}
    v_lshlrev_b32 v{vQw}, 4, v{vQw}
    v_bfe_u32 v{T2}, v{LN}, 3, 1
    v_lshl_add_u32 v{vQw}, v{T2}, 10, v{vQw}
    v_add_u32 v{vQw}, s{t0}, v{vQw}
    s_lshr_b32 s{t3}, s{S_W}, 1
    s_lshl_b32 s{t0}, s{t3}, 10
    v_add_u32 v{vHf}, s{t0}, v{L16}''')
    e(f'''v_lshrrev_b32 v{T1}, 2, v{LJ}
    v_mul_u32_u24 v{vKw}, 144, v{T1}
    v_lshl_add_u32 v{vKw}, v{LG}, 5, v{vKw}
    v_and_b32 v{T0}, 3, v{LJ}
    v_lshl_add_u32 v{vKw}, v{T0}, 2, v{vKw}
    s_mul_i32 s{t0}, s{S_W}, 576
    s_add_u32 s{t0}, s{t0}, {LA_IK}
    v_add_u32 v{vKw}, s{t0}, v{vKw}
    v_mul_u32_u24 v{vZ}, 144, v{LG}
    v_lshl_add_u32 v{vZ}, v{T1}, 5, v{vZ}
    v_and_b32 v{T0}, 1, v{LJ}
    v_lshl_add_u32 v{vZ}, v{T0}, 4, v{vZ}''')
    e(f'''s_lshl_b32 s{t1}, s{t3}, 4
    v_add_u32 v{T0}, s{t1}, v{LJ}
    v_lshlrev_b32 v{T1}, 2, v{LG}
    v_sub_u32 v{T0}, v{T0}, v{T1}
    v_mov_b32 v{T1}, {hex(f2u(-1e30))}
    v_mov_b32 v18, 0''')
    for T in range(2):
        for p in range(4):
            e(f'v_cmp_le_i32 vcc, {16*T + p}, v{T0}\nv_cndmask_b32 v{ABI + 4*T + p}, v{T1}, 0, vcc')
    e(f'''s_and_b32 s{t0}, s{S_W}, 1
    s_lshl_b32 s{t1}, s{t0}, 13
    v_add_u32 v{LN}, s{t1}, v{L16}
    s_lshl_b32 s{t1}, s{t0}, 11
    v_add_u32 v{LJ}, s{t1}, v{L16}
    s_mov_b32 s{sG_}, 0x3e0293ee
    s_waitcnt vmcnt(0)''')

def a_loop(a, tag, sc):
    e = a.e
    a.lq = []; a.vq = []
    P = AZ; PM = 18
    vV, vVm = LN, LJ
    def rld(k):
        e(f'buffer_load_dwordx2 {vr(ARS + 2*k, 2)}, v{vRes}, {RA}, s{(sE, sE2)[k]} offen')
        red_ld(a, ARD + 32*k, PSA, 32768 * k)
    def rld2(lab):
        rld(0)
        e(f's_cmp_eq_u32 s{sTwo}, 0\ns_cbranch_scc1 {lab}')
        rld(1)
        e(f'{lab}:')
    rare = []
    def rsum(tg):
        for k in range(2):
            if k: e(f's_cmp_eq_u32 s{sTwo}, 0\ns_cbranch_scc1 {tg}_e')
            e(f'{tg}_s{k}:')
            a.vq = []
            red_sum(a, ARD + 32*k, AD + 4*k, f'{tg}_r{k}')
            red_fin(a, ARD + 32*k, AD + 4*k, ARS + 2*k)
            if k: e(f's_add_u32 s{t0}, s{sF_}, 32768')
            e(f'buffer_store_dwordx4 {vr(AD + 4*k, 4)}, v{vPS}, {WS}, s{t0 if k else sF_} offen sc1')
            rare.append((tg, k))
        e(f'{tg}_e:')
        for r in (sE, sE2, sF_): e(f's_add_u32 s{r}, s{r}, {2*36864}')
        e(f's_xor_b32 s{sPR}, s{sPR}, {RSLOT}')
        a.vq = []
    e(f'{tag}_loop:\ns_barrier')
    NB = 8; PF = 5
    def rd(k): e(f'ds_read_b128 {vr(AXB + 4*(k % NB), 4)}, v{vX} offset:{k*1024}')
    for k in range(PF): rd(k)
    kv = [f'ds_read_b128 {vr(AK + 4*n, 4)}, v{L16} offset:{LA_KV + (n >> 1)*4096 + (n & 1)*1024}' for n in range(8)]
    kv += [f'ds_read_b128 {vr(AV + 4*n, 4)}, v{vV} offset:{LA_KV + (n >> 1)*4096 + 2048 + (n & 1)*1024}' for n in range(4)]
    for k in range(36):
        if k + PF < 36: rd(k + PF)
        p, r = aq(k)
        e(f'{MF3} {vr(AQ,16)}, {vr(r, 4, p)}, {vr(AXB + 4*(k % NB), 4)}, {"0" if k == 0 else vr(AQ,16)}')
        if k & 1 and kv: e(kv.pop(0))
        if k == 18:
            e(f'buffer_load_dword v{vPg}, off, {WS}, 0 offset:{PROG} sc1')
            e(f's_cmp_eq_u32 s{sCnt}, 0\ns_cbranch_scc1 {tag}_n1')
            rld2(f'{tag}_n1')
    e(f'''s_waitcnt vmcnt(0)
    v_readfirstlane_b32 s{sProg}, v{vPg}
    v_mov_b32 v{AKN}, -1
    s_cmp_gt_u32 s{sProg}, s{sSeg}
    s_cbranch_scc0 {tag}_nk
    buffer_load_dwordx4 {vr(AKN,4)}, v{L16}, {WS}, s{sH_} offen sc1
    {tag}_nk:''')
    a.vq = []
    for c in range(2):
        q = AQ + 8 * c
        for k in range(4): e(cvt(q + k, q + k, q + 4 + k))
        e(f'ds_write_b128 v{vQw}, {vr(q,4)} offset:{LA_Q + c*512}')
    e('s_waitcnt lgkmcnt(0)\ns_barrier')
    for kap in range(4): e(f'ds_read_b128 {vr(AQ + 4*kap, 4)}, v{vHf} offset:{LA_Q + kap*2048}')
    e(f's_cmp_eq_u32 s{sCnt}, 0\ns_cbranch_scc1 {tag}_f0')
    lq = list(a.lq)
    rsum(tag + 'a')
    e(f'{tag}_first:')
    a.lq = lq
    for kap in range(4):
        for T in range(2):
            e(f'{MF32} {vr(AS + 4*T, 4)}, {vr(AK + 8*kap + 4*T, 4)}, {vr(AQ + 4*kap, 4)}, {vr((ABI if kap == 0 else AS) + 4*T, 4)}')
    e(f'''s_cmp_eq_u32 s{sTwo}, 0
    s_cbranch_scc1 {tag}_w1
    s_waitcnt vmcnt(2)
    s_branch {tag}_chk
    {tag}_w1:
    s_waitcnt vmcnt(1)
    {tag}_chk:
    v_max3_u32 v{vMx}, v{AKN}, v{AKN+1}, v{AKN+2}
    v_max_u32 v{vMx}, v{vMx}, v{AKN+3}
    v_cmp_eq_u32 vcc, -1, v{vMx}
    s_cbranch_vccnz {tag}_pollk
    ds_write2_b32 v{vKw}, v{AKN}, v{AKN+2} offset0:0 offset1:4
    ds_write_b128 v{vTr}, {vr(AKN,4)} offset:{LA_IM}
    s_add_u32 s{sSeg}, s{sSeg}, 2
    s_waitcnt lgkmcnt(0)
    s_barrier''')
    for kap in range(4): e(f'ds_read_b128 {vr(AZ + 4*kap, 4)}, v{vZ} offset:{LA_IK + kap*576}')
    for kap in range(2): e(f'ds_read_b128 {vr(AKV + 4*kap, 4)}, v{vVm} offset:{LA_IM + kap*1024}')
    Tm = AS + 8
    m_, t_ = T0, T1
    e(f'v_max3_f32 v{m_}, v{AS}, v{AS+1}, v{AS+2}\nv_max3_f32 v{m_}, v{m_}, v{AS+3}, v{AS+4}\nv_max3_f32 v{m_}, v{m_}, v{AS+5}, v{AS+6}\nv_max_f32 v{m_}, v{m_}, v{AS+7}')
    for kap in range(4):
        e(f'{MF32} {vr(Tm,4)}, {vr(AZ + 4*kap, 4)}, {vr(AQ + 4*kap, 4)}, {"0" if kap == 0 else vr(Tm,4)}')
    def xl(op):
        e(f'''v_mov_b32 v{t_}, v{m_}
        v_permlane32_swap_b32 v{m_}, v{t_}
        {op} v{m_}, v{m_}, v{t_}
        v_mov_b32 v{t_}, v{m_}
        v_permlane16_swap_b32 v{m_}, v{t_}
        {op} v{m_}, v{m_}, v{t_}''')
    e(f'v_max3_f32 v{m_}, v{m_}, v{Tm}, v{Tm+1}')
    xl('v_max_f32')
    e(f'v_mul_f32 v{T1}, s{sG_}, v{m_}')
    for r in range(AS, AS + 10, 2): e(f'v_pk_fma_f32 {vr(r,2)}, {vr(r,2)}, s[{sG_}:{sG_+1}], {vr(T1,2)} op_sel_hi:[1,0,0] neg_lo:[0,0,1] neg_hi:[0,0,1]')
    for r in range(AS, AS + 10): e(f'v_exp_f32 v{r}, v{r}')
    e(f'v_pk_add_f32 {vr(Tm+2,2)}, {vr(AS,2)}, {vr(AS+2,2)}')
    for r in range(AS + 4, AS + 10, 2): e(f'v_pk_add_f32 {vr(Tm+2,2)}, {vr(Tm+2,2)}, {vr(r,2)}')
    for k in range(4): e(cvt(P + k, AS + 2*k, AS + 2*k + 1))
    e(cvt(PM + 1, Tm, Tm + 1))
    e(f'v_add_f32 v{m_}, v{Tm+2}, v{Tm+3}')
    for n in range(4): e(f'{MF32} {vr(AO + 4*n, 4)}, {vr(AV + 4*n, 4)}, {vr(P,4)}, 0')
    for n in range(4): e(f'{MF16} {vr(AO + 4*n, 4)}, {vr(AKV + 2*n, 2)}, {vr(PM,2)}, {vr(AO + 4*n, 4)}')
    xl('v_add_f32')
    e(f'v_rcp_f32 v{T1}, v{m_}')
    for h in range(2):
        for n in range(4):
            r = AO + 8*h + 2*n
            e(f'v_pk_mul_f32 {vr(r,2)}, {vr(r,2)}, {vr(T1,2)} op_sel_hi:[1,0]')
        for n in range(4): e(cvt(AO + 8*h + n, AO + 8*h + 2*n, AO + 8*h + 2*n + 1))
        e(f'ds_write_b128 v{vOw}, {vr(AO + 8*h, 4)} offset:{LA_O + h*1024}')
    tok = a.mark_l()
    a_dma(a, tag)
    tokd = a.mark_v()
    e(f's_add_u32 s{sPW2}, s{sPW}, 18432')
    a.wait_l(tok)
    e('s_barrier')
    for n in range(8): e(f'ds_read_b128 {vr(AOF + 4*n, 4)}, v{L16} offset:{LA_O + n*1024}')
    pend = []
    for h in range(2):
        W = AW + 36 * h
        for grp in ((0, 1, 2), (3, 4, 5), (6, 7, 8)):
            for kap in range(4):
                for u in grp:
                    e(f'{MF32} {vr(W + 4*u, 4)}, {vr(16*u + 4*kap, 4, "a")}, {vr(AOF + 16*h + 4*kap, 4)}, {"0" if kap == 0 else vr(W + 4*u, 4)}')
                    if kap >= 1:
                        for x in pend[:2]: e(x)
                        pend = pend[2:]
            for u in grp: pend += proj_epi(u, W, sc, (sPW, sPW2)[h])
    for x in pend: e(x)
    next_slot(a)
    a.wait_v(tokd)
    e(f's_cmp_lt_u32 s{sSeg}, 64\ns_cbranch_scc1 {tag}_loop')
    a.lq = []; a.vq = []
    rld2(f'{tag}_n2')
    e('s_waitcnt vmcnt(0)')
    rsum(tag + 'b')
    e(f'''s_branch {FIN}
    {tag}_pollk:
    {SPIN}
    s_cmp_ge_u32 s{sSeg}, 63
    s_cbranch_scc1 {tag}_pk
    s_cmp_gt_u32 s{sProg}, s{sSeg}
    s_cbranch_scc1 {tag}_pk
    buffer_load_dword v{vPg}, off, {WS}, 0 offset:{PROG} sc1
    s_waitcnt vmcnt(0)
    v_readfirstlane_b32 s{sProg}, v{vPg}
    s_branch {tag}_pollk
    {tag}_pk:
    buffer_load_dwordx4 {vr(AKN,4)}, v{L16}, {WS}, s{sH_} offen sc1
    s_waitcnt vmcnt(0)
    s_branch {tag}_chk''')
    e(f'{tag}_f0:\ns_waitcnt vmcnt(0)\ns_branch {tag}_first')
    for tg, k in rare:
        e(f'{tg}_r{k}:')
        red_ld(a, ARD + 32*k, PSA, 32768 * k); e(SPIN)
        e(f's_waitcnt vmcnt(0)\ns_branch {tg}_s{k}')
    a_flags(a, tag)

def gfrag(q, k):
    n = 4 * k + q if q < 4 else 72 + k
    return vr(4 * n, 4, 'a') if n < 64 else vr(188 + 4 * (n - 64), 4)
def gparts(q, k):
    n = 4 * k + q if q < 4 else 72 + k
    return ('a', 4 * n) if n < 64 else ('v', 188 + 4 * (n - 64))
FD16, FDR, FCS = 170, 122, 102
LF_H = 0; LF_ACT = 18432; LF_SH = 22528; LF_W = 26624; LF_WSTR = 24576
LF_ST = 124928; LF_Z = LF_ST + 512; LF_X = 0x20000
FLT = [1, 2, 4, 5, 7, 8]
def f_load(a):
    e = a.e
    red_setup(a)
    srd(a, S_RA, P_WD, 4608 * 1152)
    tr_cols(a, f'v_lshrrev_b32 v{T0}, 2, v{LJ}\nv_lshl_add_u32 v{T0}, v{LG}, 2, v{T0}')
    e(f's_mul_i32 s{sA}, s{S_H}, {144*1152}')
    for rnd, (row0, nk) in enumerate(((0, 27), (96, 14))):
        e(f's_mul_i32 s{t1}, s{S_W}, {nk*1024}\ns_add_u32 s{t0}, s{sA}, s{t1}\ns_add_u32 s{t0}, s{t0}, {row0*1152}')
        for n in range(nk):
            if n & 3 == 0: e(f's_add_u32 m0, s{t1}, {n*1024}\ns_add_u32 s{t2}, s{t0}, {n*1024}')
            e(f'buffer_load_dwordx4 v{L16}, {RA}, s{t2} offen offset:{(n & 3)*1024} lds')
        e('s_waitcnt vmcnt(0)\ns_barrier')
        for kap in ((0, 1, 2), (3, 4))[rnd]:
            for u in range(9):
                col = 0 if u == 8 else (u >> 1) * 64 + (u & 1) * 8
                ad = T3 if u == 8 else vTr
                if kap == 4:
                    e(f'ds_read_b64_tr_b16 {vr(FD16 + 2*u, 2)}, v{ad} offset:{col}')
                else:
                    p, b = ('v', FDR + 16*(u // 3) + 4*kap) if u % 3 == 0 else ('a', 16*FLT.index(u) + 4*kap)
                    for hh in range(2):
                        e(f'ds_read_b64_tr_b16 {vr(b + 2*hh, 2, p)}, v{ad} offset:{col + hh*16*1152}')
            d = -64 * 1152 if kap == 2 else 32 * 1152
            e(f'v_add_u32 v{vTr}, {d}, v{vTr}\nv_add_u32 v{T3}, {d}, v{T3}')
        e('s_waitcnt lgkmcnt(0)\ns_barrier')
    e(f's_mul_i32 s{t0}, s{S_W}, {LF_WSTR}\ns_add_u32 s{t0}, s{t0}, {LF_W}\nv_add_u32 v{vXw}, s{t0}, v{L16}')
    for n in range(24): e(f'ds_write_b128 v{vXw}, {vr(4*n, 4, "a")} offset:{n*1024}')
    e('s_waitcnt lgkmcnt(0)')
    srd(a, S_RA, P_WG, 576 * 9216); srd(a, S_RB, P_WU, 576 * 9216)
    NS = 7
    e(f'''s_mul_i32 s{sB}, s{S_W}, 6144
    s_lshl_b32 s{sC}, s{S_W}, 13
    s_add_u32 s{sC}, s{sC}, {LF_W + 4*LF_WSTR}
    v_lshrrev_b32 v{T0}, 2, v{LN}
    v_mul_u32_u24 v{T0}, 9216, v{T0}
    v_and_b32 v{T1}, 3, v{LN}
    v_lshl_add_u32 v{T0}, v{T1}, 4, v{T0}
    v_lshrrev_b32 v{T2}, 1, v{LN}
    v_mul_u32_u24 v{T2}, 9216, v{T2}
    v_and_b32 v{T3}, 1, v{LN}
    v_lshl_add_u32 v{T2}, v{T3}, 4, v{T2}
    s_mul_i32 s{sD}, s{S_H}, 288
    s_lshl_b32 s{t0}, s{S_W}, 6
    s_add_u32 s{sA}, s{sD}, s{t0}
    s_and_b32 s{t0}, s{S_W}, 1
    s_mul_i32 s{t0}, s{t0}, {288*9216}
    s_add_u32 s{sD}, s{sD}, s{t0}
    s_add_u32 s{sD}, s{sD}, 256''')
    e(f'''v_lshrrev_b32 v{T3}, 2, v{LJ}
    v_lshl_add_u32 v{T3}, v{LG}, 3, v{T3}
    v_lshlrev_b32 v{T1}, 3, v{T1}
    v_lshl_add_u32 v32, v{T3}, 6, v{T1}
    v_lshl_add_u32 v33, v{T3}, 5, v{T1}
    v_add_u32 v34, s{sC}, v32
    v_add_u32 v35, s{sC}, v33
    v_add_u32 v32, s{sB}, v32
    v_add_u32 v33, s{sB}, v33''')
    blocks = [(m, k) for k in range(18) for m in range(2)] + [(2, k) for k in range(0, 9, 2)]
    toks = {}
    def slot(n):
        s = n % NS
        return (0, s * 2048) if s < 3 else (1, (s - 3) * 2048)
    def issue(n):
        m, k = blocks[n]; hi, off = slot(n)
        if m == 2 and k == 0:
            e(f'''s_cmp_ge_u32 s{S_W}, 2
            s_cselect_b32 s{S_RA}, s{P_WU}, s{P_WG}
            s_cselect_b32 s{S_RA+1}, s{P_WU+1}, s{P_WG+1}''')
        for hh in range(2):
            if m == 2 and k + hh > 8: continue
            e(f's_add_u32 m0, s{sC if hi else sB}, {off + hh*1024}')
            if m < 2:
                e(f's_add_u32 s{t0}, s{sA}, {(32*k + 16*hh)*9216}\nbuffer_load_dwordx4 v{T0}, {RB if m else RA}, s{t0} offen lds')
            else:
                e(f's_add_u32 s{t0}, s{sD}, {32*(k + hh)*9216}\nbuffer_load_dwordx4 v{T2}, {RA}, s{t0} offen lds')
        toks[n] = a.mark_v()
    for n in range(NS): issue(n)
    for n, (m, k) in enumerate(blocks):
        hi, off = slot(n)
        a.wait_v(toks[n])
        for t in range(2):
            if m == 2 and k + t > 8: continue
            p, b = gparts(2 * m + t, k) if m < 2 else gparts(4, k + t)
            for u in range(2):
                if m < 2: e(f'ds_read_b64_tr_b16 {vr(b + 2*u, 2, p)}, v{32 + 2*hi} offset:{off + t*32 + u*256}')
                else: e(f'ds_read_b64_tr_b16 {vr(b + 2*u, 2, p)}, v{33 + 2*hi} offset:{off + t*1024 + u*128}')
        e('s_waitcnt lgkmcnt(0)')
        if n + NS < len(blocks): issue(n + NS)
    for k in range(4): e(f'v_mov_b32 v{32+k}, 0x3f803f80')
    for k in range(18):
        for q in range(5):
            if q == 4 and k >= 9: continue
            e(f'{MF32} {vr(FCS + 4*q, 4)}, {gfrag(q, k)}, v[32:35], {"0" if k == 0 else vr(FCS + 4*q, 4)}')

sPend, sX5, sM0 = 67, 68, 69
def f_dma(a, tag):
    r = []
    lab = a.newlabel(tag)
    for n in range(5):
        x = [f's_add_u32 m0, s{sM0}, {n*4096}', f's_add_u32 s{t0}, s{sA}, {n*4096}', f'buffer_load_dwordx4 v{L16}, {WS}, s{t0} offen sc1 lds']
        r.append(x if n < 4 else [f's_cmp_lt_u32 s{S_W}, 2', f's_cbranch_scc0 {lab}'] + x + [f'{lab}:'])
    return [r[4]] + r[:4]

def f_init(a):
    e = a.e
    srd(a, S_RA, P_OUT, 2048 * 1152)
    e(f'''s_sub_u32 s{sK}, s{S_G}, {8 - NF}
    s_mul_i32 s{sE}, s{sK}, 18432
    s_lshl_b32 s{sM0}, s{S_W}, 10
    s_add_u32 s{sA}, s{sE}, s{sM0}
    s_add_u32 s{sA}, s{sA}, {H}
    s_lshl_b32 s{t1}, s{sTask}, 4
    s_add_u32 s{sE}, s{sE}, s{t1}
    v_mul_u32_u24 v{vPS}, 1152, v{LJ}
    v_mov_b32 v{T0}, {OOB}
    v_cmp_eq_u32 vcc, 0, v{LG}
    v_cndmask_b32 v{vPS}, v{T0}, v{vPS}, vcc
    v_lshlrev_b32 v{vRes}, 4, v{LJ}
    v_and_b32 v{T0}, 1, v{LG}
    v_lshl_add_u32 v{vRes}, v{T0}, 3, v{vRes}
    s_min_u32 s{t1}, s{sTask}, 71
    s_lshl_b32 s{t1}, s{t1}, 8
    v_add_u32 v{vRes}, s{t1}, v{vRes}
    v_mov_b32 v{vTr}, v{L16}
    v_add_u32 v19, s{sM0}, v{L16}
    v_mov_b32 v18, v19
    v_add_u32 v9, 16384, v19
    v_mov_b32 v{T0}, {LF_Z}
    s_cmp_lt_u32 s{S_W}, 2
    s_cselect_b32 s{sX5}, {LF_X}, 0
    s_cselect_b64 vcc, -1, 0
    v_cndmask_b32 v9, v{T0}, v9, vcc
    s_and_b32 s{t0}, s{S_W}, 1
    s_mul_i32 s{t0}, s{t0}, 9216
    v_add_u32 v20, s{t0}, v{L16}
    v_lshlrev_b32 v21, 5, v{LJ}
    v_add_u32 v21, {LF_ST}, v21
    s_lshl_b32 s{t0}, s{S_W}, 3
    v_add_u32 v{vZ}, s{t0}, v21
    v_mov_b64 v[28:29], 0
    v_mov_b64 v[30:31], 0
    s_mov_b32 s{sB}, 0x3f803f80
    s_mov_b32 s{sC}, {hex(f2u(-1.4426950408889634))}
    s_mov_b32 s{sSpin}, 0x100000
    s_mov_b32 s{sPend}, 0
    s_barrier
    ds_write_b128 v{T0}, v[28:31]''')
    for x in f_dma(a, 'fd'): e('\n'.join(x))
    e('s_waitcnt vmcnt(0) lgkmcnt(0)')

def f_loop(a, tag, sc):
    e = a.e
    a.lq = []; a.vq = []
    G = 32; XB = 52; W = 32; AF = 68; WB = 86; RD = 52; D = 28; RES = 22
    M, CR, R2 = 2, 3, 4
    vH, vHs, vC, vC5 = vTr, 20, 18, 9
    def rbf(r): return [f'v_cvt_pk_bf16_f32 v{r}, v{r}, v{r}', f'v_lshlrev_b32 v{r}, 16, v{r}']
    def fin():
        red_fin(a, RD, D, RES)
        e(f'''buffer_store_dwordx4 {vr(D,4)}, v{vPS}, {RA}, s{sE} offen
        s_add_u32 s{sE}, s{sE}, {NF*18432}
        s_xor_b32 s{sPR}, s{sPR}, {RSLOT}
        s_mov_b32 s{sPend}, 0''')
    e(f'{tag}_loop:')
    for n in range(4): e(f'ds_read_b128 {vr(G + 4*n, 4)}, v{vC} offset:{n*4096}')
    e(f'ds_read_b128 {vr(G + 16, 4)}, v{vC5}')
    e(f'v_mov_b64 {vr(M,2)}, 0\nv_max_u32 v{vMx}, v{G}, v{G+1}')
    for k in range(2, 20, 2): e(f'v_max3_u32 v{vMx}, v{vMx}, v{G+k}, v{G+k+1}')
    e(f'v_cmp_eq_u32 vcc, -1, v{vMx}')
    for k in range(20):
        e(f'v_dot2c_f32_bf16 v{M}, s{sB}, v{G+k}\nv_dot2c_f32_bf16 v{M+1}, v{G+k}, v{G+k}')
        if k == 3: e(f's_cbranch_vccnz {tag}_wait')
    e(f'''v_mov_b64 {vr(G,2)}, {vr(M,2)}
    v_permlane32_swap_b32 v{M}, v{G}
    v_permlane32_swap_b32 v{M+1}, v{G+1}
    v_pk_add_f32 {vr(M,2)}, {vr(M,2)}, {vr(G,2)}
    v_mov_b64 {vr(G,2)}, {vr(M,2)}
    v_permlane16_swap_b32 v{M}, v{G}
    v_permlane16_swap_b32 v{M+1}, v{G+1}
    v_pk_add_f32 {vr(M,2)}, {vr(M,2)}, {vr(G,2)}
    ds_write_b64 v{vZ}, {vr(M,2)}
    s_add_u32 s{sA}, s{sA}, {NF*18432}
    s_cmp_lt_u32 s{sK}, {128 - NF}
    s_cselect_b32 s{sA}, s{sA}, {OOB}
    s_xor_b32 s{sM0}, s{sM0}, {LF_X}
    s_waitcnt lgkmcnt(0)
    s_barrier''')
    def rd(k): e(f'ds_read_b128 {vr(XB + 4*(k % 4), 4)}, v{vH} offset:{k*1024}')
    def rds(k): e(f'ds_read_b128 {vr(AF + 4*(k % 4), 4)}, v{vHs} offset:{k*1024}')
    for k in range(3): rd(k)
    rds(0); rds(1)
    S = WB
    st = [f'v_add_f32 v{S+k}, v{S+k}, v{S+4+k}' for k in range(4)] + [f'v_add_f32 v{M+k}, v{S+k}, v{S+2+k}' for k in range(2)]
    st += [f'v_mul_f32 v{M}, {hex(f2u(-1/576))}, v{M}', f'v_mul_f32 v{CR}, {hex(f2u(1/576))}, v{CR}', f'v_fma_f32 v{CR}, -v{M}, v{M}, v{CR}', f'v_max_f32 v{CR}, 0, v{CR}']
    st += rbf(M) + rbf(CR) + [f'v_add_f32 v{CR}, {hex(f2u(1e-5))}, v{CR}'] + rbf(CR) + [f'v_sqrt_f32 v{CR}, v{CR}'] + rbf(CR)
    st += [f'v_rcp_f32 v{CR}, v{CR}', f'v_mul_f32 v{R2}, v{CR}, v{CR}', f'v_mul_f32 v{CR}, s{sC}, v{CR}']
    st += [f'v_xor_b32 v{vC}, {LF_X}, v{vC}', f'v_xor_b32 v{vC5}, s{sX5}, v{vC5}']
    for k in range(18):
        if k + 3 < 18: rd(k + 3)
        if k & 1 == 0 and k // 2 + 2 < 9: rds(k // 2 + 2)
        if k == 1: e(f'ds_read_b128 {vr(S,4)}, v21\nds_read_b128 {vr(S+4,4)}, v21 offset:16')
        X = XB + 4 * (k % 4)
        if k & 1:
            kk = k // 2
            e(f'{MF32} {vr(G + 16, 4)}, {gfrag(4, kk)}, {vr(AF + 4*(kk % 4), 4)}, {"0" if kk == 0 else vr(G + 16, 4)}')
        for q in range(4):
            e(f'{MF32} {vr(G + 4*q, 4)}, {gfrag(q, k)}, {vr(X,4)}, {"0" if k == 0 else vr(G + 4*q, 4)}')
            if k >= 4 and st: e(st.pop(0))
            if k == 17 and q: e(f'v_fma_f32 v{G+15+q}, v{M}, v{FCS+15+q}, v{G+15+q}')
    assert not st
    e(f's_cmp_eq_u32 s{sPend}, 0\ns_cbranch_scc1 {tag}_nl')
    red_ld(a, RD)
    vq = list(a.vq)
    e(f'{tag}_nl:')
    e(f'v_fma_f32 v{G+19}, v{M}, v{FCS+19}, v{G+19}')
    e(f'ds_write_b128 v19, {vr(G+16,4)} offset:{LF_SH}')
    for k in range(0, 16, 2): e(f'v_pk_fma_f32 {vr(G+k,2)}, {vr(M,2)}, {vr(FCS+k,2)}, {vr(G+k,2)} op_sel_hi:[0,1,1]')
    U = G + 8
    for k in range(0, 8, 2): e(f'v_pk_mul_f32 {vr(S+k,2)}, {vr(G+k,2)}, {vr(M,2)} op_sel:[0,1] op_sel_hi:[1,1]')
    for k in range(8):
        e(f'v_exp_f32 v{S+k}, v{S+k}')
        if k & 1: e(f'v_pk_mul_f32 {vr(G+k-1,2)}, {vr(G+k-1,2)}, {vr(U+k-1,2)}')
    for k in range(0, 8, 2): e(f'v_pk_add_f32 {vr(S+k,2)}, {vr(S+k,2)}, 1.0 op_sel_hi:[1,0]')
    for k in range(8):
        e(f'v_rcp_f32 v{S+k}, v{S+k}')
        if k & 1: e(f'v_pk_mul_f32 {vr(G+k-1,2)}, {vr(G+k-1,2)}, {vr(R2,2)} op_sel_hi:[1,0]')
    for k in range(0, 8, 2): e(f'v_pk_mul_f32 {vr(G+k,2)}, {vr(G+k,2)}, {vr(S+k,2)}')
    for k in range(4): e(cvt(G + k, G + 2*k, G + 2*k + 1))
    e(f'ds_write_b128 v19, {vr(G,4)} offset:{LF_ACT}')
    ORD = [4 * FLT.index(u) + kap for g in range(3) for kap in range(4) for u in (3*g + 1, 3*g + 2)]
    def wrd(i): e(f'ds_read_b128 {vr(WB + 4*(i % 4), 4)}, v{vXw} offset:{ORD[i]*1024}')
    tok = a.mark_l()
    for i in range(4): wrd(i)
    e(f's_cmp_eq_u32 s{sPend}, 0\ns_cbranch_scc1 {tag}_nr\n{tag}_rs:')
    red_sum(a, RD, D, f'{tag}_ra')
    fin()
    e(f'{tag}_nr:')
    a.vq = []
    a.wait_l(tok)
    e('s_barrier')
    SH = W + 12
    e(f'ds_read_b128 {vr(AF, 4)}, v{L16} offset:{LF_ACT}')
    for k in range(4): e(f'ds_read_b128 {vr(SH + 4*k, 4)}, v{L16} offset:{LF_SH + k*1024}')
    for k in range(1, 4): e(f'ds_read_b128 {vr(AF + 4*k, 4)}, v{L16} offset:{LF_ACT + k*1024}')
    e(f'ds_read_b64 {vr(RES,2)}, v{vRes}')
    dm = f_dma(a, tag + 'd')
    e('\n'.join(dm.pop(0)))
    g, tm, u_ = SH, SH + 4, SH + 8
    sa = [f'v_add_f32 v{g+k}, v{g+k}, v{g+4+k}' for k in range(4)] + [f'v_mul_f32 v{tm+k}, v{g+k}, v{CR}' for k in range(4)]
    for k in range(4): sa += [f'v_exp_f32 v{tm+k}, v{tm+k}', f'v_add_f32 v{u_+k}, v{u_+k}, v{u_+4+k}']
    for k in range(4): sa += [f'v_add_f32 v{tm+k}, 1.0, v{tm+k}', f'v_mul_f32 v{g+k}, v{g+k}, v{u_+k}']
    for k in range(4): sa += [f'v_rcp_f32 v{tm+k}, v{tm+k}', f'v_mul_f32 v{g+k}, v{g+k}, v{R2}']
    sa += [f'v_mul_f32 v{g+k}, v{g+k}, v{tm+k}' for k in range(4)] + [cvt(AF + 16, g, g + 1), cvt(AF + 17, g + 2, g + 3)]
    def k16(u, c): e(f'{MF16} {vr(W + 4*u, 4)}, {vr(FD16 + 2*u, 2)}, {vr(AF + 16, 2)}, {c}')
    pend = sa
    i = 0
    for grp in range(3):
        for kap in range(4):
            for u in range(3*grp, 3*grp + 3):
                wv = FDR + 16*grp + 4*kap if u % 3 == 0 else WB + 4*(i % 4)
                e(f'{MF32} {vr(W + 4*u, 4)}, {vr(wv, 4)}, {vr(AF + 4*kap, 4)}, {"0" if kap == 0 and grp == 0 else vr(W + 4*u, 4)}')
                if u % 3:
                    if i + 4 < 24: wrd(i + 4)
                    i += 1
                elif dm:
                    e('\n'.join(dm.pop(0)))
                    if not dm: tokd = a.mark_v()
                if kap >= 1 or grp == 0:
                    for x in pend[:3]: e(x)
                    pend = pend[3:]
        if grp == 0:
            for x in pend: e(x)
            pend = []
            for u in range(3, 9): k16(u, '0')
            for u in range(3): k16(u, vr(W + 4*u, 4))
            for r in (vH, vHs, vRes): e(f'v_xor_b32 v{r}, {LF_X}, v{r}')
        for u in range(3*grp, 3*grp + 3): pend += proj_epi(u, W, sc)
    for x in pend: e(x)
    next_slot(a)
    e(f'''s_cmp_lt_u32 s{sTask}, 72
    s_cselect_b32 s{sPend}, 1, 0
    s_add_u32 s{sK}, s{sK}, {NF}
    s_cmp_lt_u32 s{sK}, 128
    s_cbranch_scc0 {tag}_wait''')
    a.wait_v(tokd)
    e(f's_branch {tag}_loop')
    a.lq = []; a.vq = []
    e(f'{tag}_wait:\ns_cmp_eq_u32 s{sPend}, 0\ns_cbranch_scc1 {tag}_w2\n{tag}_w1:')
    red_ld(a, RD); e(SPIN)
    red_sum(a, RD, D, f'{tag}_w1')
    fin()
    e(f'{tag}_w2:\ns_cmp_lt_u32 s{sK}, 128\ns_cbranch_scc0 {FIN}')
    for x in f_dma(a, tag + 'w'): e('\n'.join(x))
    e(SPIN)
    e(f's_waitcnt vmcnt(0)\ns_branch {tag}_loop')
    a.vq = []
    e(f'{tag}_ra:')
    red_ld(a, RD); e(SPIN)
    e(f's_waitcnt vmcnt(0)\ns_branch {tag}_rs')
```

```python
import sys
sys.path.insert(0, 'gen')
from asmlib import *
from layout import *
import rec6 as rec2
from rec6 import *
from work import *
NAME = 'sequential_preLN__memory_aug_recurrent_mem_tr__swiglu_ffn__prompt'

MAP = '31204567'
def tstamp(a, k, on):
    if on: a.e(f's_memrealtime s[{96+2*k}:{97+2*k}]\ns_waitcnt lgkmcnt(0)')

def gen(opt=()):
    a = Asm(); e = a.e
    st = 'st' in opt
    force = 1 if 'fb' in opt else None
    e(f'''s_cmp_ge_u32 s2, 256
    s_cbranch_scc1 K_exit
    s_load_dwordx8 s[16:23], s[0:1], 0
    s_load_dwordx4 s[24:27], s[0:1], 32
    s_load_dwordx8 s[32:39], s[0:1], 64
    s_load_dwordx4 s[40:43], s[0:1], 96
    v_lshrrev_b32 v1, 6, v0
    v_readfirstlane_b32 s{S_W}, v1''')
    tab = rec2.opt(opt, 'map', MAP)
    e(f'''s_getreg_b32 s{S_G}, hwreg(HW_REG_XCC_ID, 0, 3)
    s_lshl_b32 s{S_G}, s{S_G}, 2
    s_lshr_b32 s{S_G}, 0x{tab[::-1]}, s{S_G}
    s_and_b32 s{S_G}, s{S_G}, 7
    s_lshr_b32 s{S_H}, s2, 3
    s_mov_b32 s{sFB}, 0''')
    e(f'''s_waitcnt lgkmcnt(0)
    s_mov_b32 s{S_WS}, s{P_WSP}
    s_mov_b32 s{S_WS+1}, s{P_WSP+1}
    s_mov_b32 s{S_WS+2}, {WS_BYTES}
    s_mov_b32 s{S_WS+3}, 0x20000''')
    if st:
        for k in range(3): tstamp(a, k, st)
        e('s_memrealtime s[94:95]\ns_waitcnt lgkmcnt(0)')
    e(f'''K_go:
    s_cmp_eq_u32 s{S_G}, 0
    s_cbranch_scc0 W_start''')
    rec_setup(a)
    arrive(a, 24)
    rec_load(a, None)
    tstamp(a, 0, st)
    gbar(a, 24, rec2.sSpin, rec2.sT0, rec2.sT1, force)
    e('s_barrier')
    rec_init(a, 0)
    tstamp(a, 1, st)
    e(f's_cmp_eq_u32 s{sFB}, 0\ns_cbranch_scc0 RF_disp')
    rec_disp(a, 'R')
    for w in range(4): rec_loop(a, w, None, FIN, ['pf=36'] + list(opt), tag='R')
    e('RF_disp:')
    rec_disp(a, 'RF')
    for w in range(4): rec_loop(a, w, None, FIN, ['pf=36'], tag='RF', cs=' sc1')
    e(f'''K_again:
    s_mov_b32 s{sFB}, 1
    v_mbcnt_lo_u32_b32 v0, -1, 0
    v_mbcnt_hi_u32_b32 v0, -1, v0
    s_lshl_b32 s28, s{S_W}, 6
    v_add_u32 v0, s28, v0''')
    if 'perm' in opt: e(f's_lshr_b32 s{S_G}, s2, 5\ns_and_b32 s{S_H}, s2, 31')
    else: e(f's_and_b32 s{S_G}, s2, 7')
    e('s_branch K_go')
    e('W_start:')
    a.lq = []; a.vq = []
    w_init(a)
    e(f's_cmp_gt_u32 s{S_G}, {2 + NA}\ns_cbranch_scc1 F_start')
    e(f's_cmp_gt_u32 s{S_G}, 2\ns_cbranch_scc1 A_start')
    e(f's_cmp_eq_u32 s{S_G}, 2\ns_cbranch_scc1 I_start')
    q_load(a)
    gbar(a, 12, sSpin, t0, t1, force)
    tstamp(a, 0, st)
    q_main(a)
    tstamp(a, 1, st)
    e(f's_branch {FIN}')
    e('I_start:')
    gbar(a, 12, sSpin, t0, t1, force)
    e(f's_branch {FIN}')
    a_flags(a, 'AI')
    e('A_start:')
    a_load(a)
    gbar(a, 32, sSpin, t0, t1, force)
    a_init(a)
    tstamp(a, 2, st)
    e(f's_cmp_eq_u32 s{sFB}, 0\ns_cbranch_scc0 AF_loop')
    a_loop(a, 'A', '')
    a_loop(a, 'AF', ' sc1')
    e('F_start:')
    a.lq = []; a.vq = []
    f_load(a)
    gbar(a, 32, sSpin, t0, t1, force)
    f_init(a)
    tstamp(a, 2, st)
    e(f's_cmp_eq_u32 s{sFB}, 0\ns_cbranch_scc0 FF_loop')
    f_loop(a, 'F', '')
    f_loop(a, 'FF', ' sc1')
    e(f'{FIN}:')
    if st:
        e(f'''s_memrealtime s[92:93]
        s_waitcnt vmcnt(0) lgkmcnt(0)
        s_lshl_b32 s46, s2, 2
        s_add_u32 s46, s46, s{S_W}
        s_lshl_b32 s46, s46, 5
        s_add_u32 s46, s46, {STAMP}
        v_mov_b32 v12, 0''')
        for k, s in enumerate(['s94', 's96', 's98', 's100', 's92', f's{S_G}', f's{sSpin}', f's{rec2.sSpin}']):
            e(f'v_mov_b32 v13, {s}\nbuffer_store_dword v13, v12, {WS}, s46 offen offset:{4*k}')
    e('s_waitcnt vmcnt(0)')
    e('K_exit:')
    return a.finish()

def full(body):
    ref = open(f'cdna_kernels/{NAME}.s.ref').read()
    head = ref[:ref.index(f'{NAME}_kernel:\n') + len(NAME) + 9]
    tail = ref[ref.index('s_endpgm'):]
    head = head.replace('; @launch grid=(4608,1,1) block=(256,1,1) lds=0', '; @launch grid=(256,1,1) block=(256,1,1) lds=163840')
    tail = tail.replace('.amdhsa_next_free_vgpr 256', '.amdhsa_next_free_vgpr 512')
    return head + body + tail

if __name__ == '__main__':
    for v in sys.argv[1:]:
        if v == 'final': open(f'cdna_kernels/{NAME}.s', 'w').write(full(gen()))
        else: open(f'full_{v}.txt', 'w').write(gen(v.split('+')))
```

```python
import sys
sys.path.insert(0, 'gen')
from asmlib import *
from layout import *
import rec6 as rec2
from rec6 import *
from work import *
NAME = 'sequential_preLN__memory_aug_recurrent_mem_tr__swiglu_ffn__prompt'

MAP = '31204567'
def tstamp(a, k, on):
    if on: a.e(f's_memrealtime s[{96+2*k}:{97+2*k}]\ns_waitcnt lgkmcnt(0)')

def gen(opt=()):
    a = Asm(); e = a.e
    st = 'st' in opt
    force = 1 if 'fb' in opt else None
    e(f'''s_cmp_ge_u32 s2, 256
    s_cbranch_scc1 K_exit
    s_load_dwordx8 s[16:23], s[0:1], 0
    s_load_dwordx4 s[24:27], s[0:1], 32
    s_load_dwordx8 s[32:39], s[0:1], 64
    s_load_dwordx4 s[40:43], s[0:1], 96
    v_lshrrev_b32 v1, 6, v0
    v_readfirstlane_b32 s{S_W}, v1''')
    tab = rec2.opt(opt, 'map', MAP)
    e(f'''s_getreg_b32 s{S_G}, hwreg(HW_REG_XCC_ID, 0, 3)
    s_lshl_b32 s{S_G}, s{S_G}, 2
    s_lshr_b32 s{S_G}, 0x{tab[::-1]}, s{S_G}
    s_and_b32 s{S_G}, s{S_G}, 7
    s_lshr_b32 s{S_H}, s2, 3
    s_mov_b32 s{sFB}, 0''')
    e(f'''s_waitcnt lgkmcnt(0)
    s_mov_b32 s{S_WS}, s{P_WSP}
    s_mov_b32 s{S_WS+1}, s{P_WSP+1}
    s_mov_b32 s{S_WS+2}, {WS_BYTES}
    s_mov_b32 s{S_WS+3}, 0x20000''')
    if st:
        for k in range(3): tstamp(a, k, st)
        e('s_memrealtime s[94:95]\ns_waitcnt lgkmcnt(0)')
    e(f'''K_go:
    s_cmp_eq_u32 s{S_G}, 0
    s_cbranch_scc0 W_start''')
    rec_setup(a)
    arrive(a, 24)
    rec_load(a, None)
    tstamp(a, 0, st)
    gbar(a, 24, rec2.sSpin, rec2.sT0, rec2.sT1, force)
    e('s_barrier')
    rec_init(a, 0)
    tstamp(a, 1, st)
    e(f's_cmp_eq_u32 s{sFB}, 0\ns_cbranch_scc0 RF_disp')
    rec_disp(a, 'R')
    for w in range(4): rec_loop(a, w, None, FIN, ['pf=36'] + list(opt), tag='R')
    e('RF_disp:')
    rec_disp(a, 'RF')
    for w in range(4): rec_loop(a, w, None, FIN, ['pf=36'], tag='RF', cs=' sc1')
    e(f'''K_again:
    s_mov_b32 s{sFB}, 1
    v_mbcnt_lo_u32_b32 v0, -1, 0
    v_mbcnt_hi_u32_b32 v0, -1, v0
    s_lshl_b32 s28, s{S_W}, 6
    v_add_u32 v0, s28, v0''')
    if 'perm' in opt: e(f's_lshr_b32 s{S_G}, s2, 5\ns_and_b32 s{S_H}, s2, 31')
    else: e(f's_and_b32 s{S_G}, s2, 7')
    e('s_branch K_go')
    e('W_start:')
    a.lq = []; a.vq = []
    w_init(a)
    e(f's_cmp_gt_u32 s{S_G}, {2 + NA}\ns_cbranch_scc1 F_start')
    e(f's_cmp_gt_u32 s{S_G}, 2\ns_cbranch_scc1 A_start')
    e(f's_cmp_eq_u32 s{S_G}, 2\ns_cbranch_scc1 I_start')
    q_load(a)
    gbar(a, 12, sSpin, t0, t1, force)
    tstamp(a, 0, st)
    q_main(a)
    tstamp(a, 1, st)
    e(f's_branch {FIN}')
    e('I_start:')
    gbar(a, 12, sSpin, t0, t1, force)
    e(f's_branch {FIN}')
    a_flags(a, 'AI')
    e('A_start:')
    a_load(a)
    gbar(a, 32, sSpin, t0, t1, force)
    a_init(a)
    tstamp(a, 2, st)
    e(f's_cmp_eq_u32 s{sFB}, 0\ns_cbranch_scc0 AF_loop')
    a_loop(a, 'A', '')
    a_loop(a, 'AF', ' sc1')
    e('F_start:')
    a.lq = []; a.vq = []
    f_load(a)
    gbar(a, 32, sSpin, t0, t1, force)
    f_init(a)
    tstamp(a, 2, st)
    e(f's_cmp_eq_u32 s{sFB}, 0\ns_cbranch_scc0 FF_loop')
    f_loop(a, 'F', '')
    f_loop(a, 'FF', ' sc1')
    e(f'{FIN}:')
    if st:
        e(f'''s_memrealtime s[92:93]
        s_waitcnt vmcnt(0) lgkmcnt(0)
        s_lshl_b32 s46, s2, 2
        s_add_u32 s46, s46, s{S_W}
        s_lshl_b32 s46, s46, 5
        s_add_u32 s46, s46, {STAMP}
        v_mov_b32 v12, 0''')
        for k, s in enumerate(['s94', 's96', 's98', 's100', 's92', f's{S_G}', f's{sSpin}', f's{rec2.sSpin}']):
            e(f'v_mov_b32 v13, {s}\nbuffer_store_dword v13, v12, {WS}, s46 offen offset:{4*k}')
    dg = rec2.opt(opt, 'dg')
    if dg:
        g, k = dg.split('.')
        e(f'''s_cmp_eq_u32 s{S_G}, {g}
        s_cbranch_scc0 K_dg
        s_add_u32 s46, s{k}, 20000
        K_dl:
        s_memrealtime s[48:49]
        s_waitcnt lgkmcnt(0)
        s_sub_u32 s47, s48, s46
        s_cmp_lt_i32 s47, 0
        s_cbranch_scc1 K_dl
        K_dg:''')
    e('s_waitcnt vmcnt(0)')
    e('K_exit:')
    return a.finish()

def full(body):
    ref = open(f'cdna_kernels/{NAME}.s.ref').read()
    head = ref[:ref.index(f'{NAME}_kernel:\n') + len(NAME) + 9]
    tail = ref[ref.index('s_endpgm'):]
    head = head.replace('; @launch grid=(4608,1,1) block=(256,1,1) lds=0', '; @launch grid=(256,1,1) block=(256,1,1) lds=163840')
    tail = tail.replace('.amdhsa_next_free_vgpr 256', '.amdhsa_next_free_vgpr 512')
    return head + body + tail

if __name__ == '__main__':
    for v in sys.argv[1:]:
        if v == 'final': open(f'cdna_kernels/{NAME}.s', 'w').write(full(gen()))
        elif v[0] == '@': open(f'x_{v[1:].replace("=", "-")}.s', 'w').write(full(gen(v[1:].split('+'))))
        else: open(f'full_{v}.txt', 'w').write(gen(v.split('+')))
```

```python
from asmlib import *
from layout import *

S_WS = 4
S_RA = 8
S_RB = 12
P_X, P_MEM0, P_WQ, P_WK, P_WV, P_WO, P_WG, P_WU, P_WD, P_OUT, P_DBG, P_WSP = 16, 18, 20, 22, 24, 26, 32, 34, 36, 38, 40, 42
S_W = 44
S_H = 45
WS = f's[{S_WS}:{S_WS+3}]'

def srd(a, d, ptr, nbytes):
    a.e(f's_mov_b32 s{d}, s{ptr}\ns_mov_b32 s{d+1}, s{ptr+1}\ns_mov_b32 s{d+2}, {nbytes}\ns_mov_b32 s{d+3}, 0x20000')

L_BLK = 4352
L_QK = 18432
L_SEL = 23040
L_TAB = 23552
L_W0 = 24576
L_WSTR = 34816

vL16, vW, vZ, vXw, vSel, vP, vMst, vPD, vIdx, vT, vZero, vT2 = range(12)
C4 = 4
DW = 3
MB = [12, 16, 20]
QA, KA, VA, VX = 24, 32, 64, 56
SB = [40, 48]
SMF = 'v_smfmac_f32_16x16x64_bf16'
MF32 = 'v_mfma_f32_16x16x32_bf16'
MF16 = 'v_mfma_f32_16x16x16_bf16'

(sStep, sMs, sMo, sMoD, sPrd, sPrD, sKx, sKv, sSpin, sT0, sT1, sT2, sC, sFlg, sRdy) = range(46, 61)
sPg = 61
sOne = 62
sF = 64
sPW = 68
sStamp = 76
(sM1, sM2, sMkD, sPaD, sRedo, sPf, sMst, sMp) = range(16, 24)

P1SEQ = [(m, 0, t) for m in 'qkv' for t in range(2)]
P1SEQ += [(m, i, t) for i in range(1, 6) for m, t in (('q', 0), ('k', 0), ('q', 1), ('k', 1), ('v', 0), ('v', 1))]
P1SEQ += [('q', 6, 0), ('q', 7, 0), ('q', 6, 1), ('q', 7, 1), ('q', 8, 0), ('q', 8, 1)]
P1SEQ += [('k', i, t) for t in range(2) for i in (6, 7, 8)] + [('v', i, t) for i in (6, 7, 8) for t in range(2)]
P1_LDS_POS = [7, 9, 13, 15, 19, 21, 25, 27, 31, 33, 37, 39]
LDS_P1 = [P1SEQ[p] for p in P1_LDS_POS]
LDS_WO = [('o', 2, 0), ('o', 3, 0), ('o', 2, 1), ('o', 2, 3), ('o', 3, 3)]
STAGES = [(m, f) for m in 'qvk' for f in range(9) if (m, f, 0) not in LDS_P1] + [k[:2] for k in LDS_P1[::2]]

def alloc():
    slots = [('a', 8 * i) for i in range(32)] + [('v', 72 + 8 * i) for i in range(23)]
    reg = {}; lds = {}
    for m, i, t in LDS_P1: lds[(m, i, t)] = (STAGES.index((m, i)) - 1) % 8 * 4096 + t * 2048
    for n, k in enumerate(LDS_WO): lds[k] = (8192, 10240, 12288, 14336, 32768)[n]
    assert len(set(lds.values())) == 17
    assert len(lds) == 17
    k = 0
    for m in 'qkv':
        for i in range(9):
            for t in range(2):
                if (m, i, t) not in lds:
                    reg[(m, i, t)] = slots[k]; k += 1
    park = slots[k:]
    for u in range(4):
        for a in range(4):
            if ('o', u, a) not in lds:
                reg[('o', u, a)] = slots[k]; k += 1
    for a in range(4):
        p, b = slots[k + a // 2]
        reg[('o', 4, a)] = (p, b + 4 * (a & 1))
    k += 2
    assert k == 55
    return reg, lds, park
REG, LDS, PARK = alloc()

def frag_of(i, w):
    return i

def rec_setup(a, fill):
    e = a.e
    e(f'''v_and_b32 v12, 63, v0
    v_and_b32 v13, 15, v12
    v_lshrrev_b32 v14, 4, v12
    v_lshlrev_b32 v{vL16}, 4, v12
    v_mov_b32 v{vZero}, 0
    s_mul_i32 s{sT0}, s{S_W}, {L_WSTR}
    s_add_u32 s{sT0}, s{sT0}, {L_W0}
    v_add_u32 v{vW}, s{sT0}, v{vL16}
    v_and_b32 v15, 1, v14
    v_lshrrev_b32 v16, 1, v14
    v_and_b32 v17, 3, v13
    v_lshrrev_b32 v18, 2, v13
    v_mul_u32_u24 v{vXw}, 144, v18
    v_lshl_add_u32 v{vXw}, v14, 5, v{vXw}
    v_lshl_add_u32 v{vXw}, v17, 2, v{vXw}
    s_mul_i32 s{sT0}, s{S_W}, 1152
    s_add_u32 s{sT0}, s{sT0}, {L_QK}
    v_add_u32 v{vXw}, s{sT0}, v{vXw}
    v_and_b32 v{vSel}, 0xf0, v{vL16}''')
    e(f'''v_mul_u32_u24 v{vZ}, 144, v14
    v_lshl_add_u32 v{vZ}, v18, 5, v{vZ}
    v_and_b32 v19, 1, v13
    v_lshl_add_u32 v{vZ}, v19, 4, v{vZ}''')
    e(f'''v_lshrrev_b32 v19, 3, v12
    v_mul_u32_u24 v{vP}, {TS}, v19
    v_and_b32 v19, 7, v12
    v_lshl_add_u32 v{vP}, v19, 3, v{vP}
    v_mul_u32_u24 v{vPD}, {TS}, v14
    v_lshl_add_u32 v{vPD}, v13, 2, v{vPD}
    v_mov_b32 v21, 0x88884444
    v_mov_b32 v22, 0xDDDDEEEE
    v_and_b32 v19, 2, v13
    v_cmp_eq_u32 vcc, 0, v19
    v_cndmask_b32 v{vIdx}, v22, v21, vcc''')
    e(f'''v_lshlrev_b32 v19, 4, v14
    v_lshl_add_u32 v19, v13, 2, v19
    v_mul_u32_u24 v20, 1152, v15
    v_lshl_add_u32 v20, v13, 3, v20
    v_lshl_add_u32 v20, v16, 2, v20
    v_mov_b32 v21, {OOB}
    v_cmp_gt_u32 vcc, 4, v13
    v_cndmask_b32 v28, v21, v19, vcc
    v_cndmask_b32 v20, v21, v20, vcc
    v_add_u32 v19, {2*MSTR - 16}, v19
    v_cmp_eq_u32 vcc, 1, v18
    v_cndmask_b32 v{vMst}, v28, v19, vcc''')
    e(f'''s_lshr_b32 s{sT0}, s{S_H}, 3
    s_lshl_b32 s{sT0}, s{sT0}, 1
    s_and_b32 s{sT1}, s{S_H}, 1
    s_add_u32 s{sT0}, s{sT0}, s{sT1}
    s_lshl_b32 s{sT1}, s{S_W}, 3
    s_add_u32 s{sT0}, s{sT0}, s{sT1}
    s_bfe_u32 s{sT1}, s{S_H}, 0x20001
    s_lshl_b32 s{sMo}, s{sT0}, 8
    s_lshl_b32 s{sT2}, s{sT1}, 6
    s_add_u32 s{sMo}, s{sMo}, s{sT2}
    s_mul_i32 s{sT1}, s{sT1}, 2304
    s_lshl_b32 s{sT0}, s{sT0}, 5
    s_add_u32 s{sF}, s{sT0}, s{sT1}''')
    e(f'''s_lshl_b32 s{sMoD}, s{S_H}, 6
    s_add_u32 s{sMoD}, s{sMoD}, 8192
    s_and_b32 s{sT1}, s{S_H}, 3
    s_mul_i32 s{sT1}, s{sT1}, 2304
    s_lshr_b32 s{sT0}, s{S_H}, 2
    s_lshl_b32 s{sT0}, s{sT0}, 5
    s_add_u32 s{sT0}, s{sT0}, s{sT1}
    s_add_u32 s{sF+1}, s{sT0}, 1024
    s_add_u32 s{sT0}, s{S_H}, 128
    s_mul_i32 s{sPrD}, s{sT0}, {TS}
    s_add_u32 s{sPrD}, s{sPrD}, {PRING}
    s_cmp_eq_u32 s{S_W}, {DW}
    s_cselect_b32 s{sT0}, 16, 0
    s_cmp_lt_u32 s{S_H}, s{sT0}
    s_cselect_b32 s{sMoD}, s{sMoD}, {OOB}
    s_cselect_b32 s{sPrD}, s{sPrD}, {OOB}''')
    e(f'''s_lshl_b32 s{sT0}, s{S_W}, 5
    s_add_u32 s{sT0}, s{sT0}, s{S_H}
    s_mul_i32 s{sPrd}, s{sT0}, {TS}
    s_add_u32 s{sPrd}, s{sPrd}, {PRING}
    s_lshl_b32 s{sT1}, s{S_H}, 6
    s_add_u32 s{sT1}, s{sT1}, {PRING}
    s_mul_i32 s{sT0}, s{S_W}, {8*TS}
    s_add_u32 s{sPW}, s{sT0}, s{sT1}
    s_add_u32 s{sPW+1}, s{sPW}, {32*TS}
    s_add_u32 s{sPW+2}, s{sPW}, {64*TS}
    s_add_u32 s{sPW+3}, s{sPW}, {96*TS}
    s_mul_i32 s{sT0}, s{S_W}, {4*TS}
    s_add_u32 s{sT0}, s{sT0}, s{sT1}
    s_add_u32 s{sPW+4}, s{sT0}, {128*TS}''')
    if not fill:
        e(f'''s_add_u32 s{sT0}, s{sPrd}, {32*TS}
        s_add_u32 s{sT1}, s{sMo}, 2048
        s_cmp_eq_u32 s{S_W}, {DW}
        s_cselect_b32 s{sPrD}, s{sPrD}, s{sT0}
        s_cselect_b32 s{sMoD}, s{sMoD}, s{sT1}''')
        return
    srd(a, S_RA, P_MEM0, 9216)
    e(f'''buffer_load_dword v22, v20, s[{S_RA}:{S_RA+3}], s{sF} offen
    buffer_load_dword v23, v20, s[{S_RA}:{S_RA+3}], s{sF+1} offen
    v_mov_b32 v24, 0
    v_mov_b32 v25, 0
    v_mov_b32 v26, 0
    v_mov_b32 v27, 0
    v_mov_b32 v29, -1''')
    for r in (sPrd, sPrD):
        for l in range(2): e(f'buffer_store_dwordx4 v[24:27], v{vL16}, {WS}, s{r} offen offset:{l*1024} sc1')
    for k in (1, 2, 0):
        for n, r in enumerate((sMo, sMoD)):
            e(f's_add_u32 s{sT0}, s{r}, {MRING + k*MSTR}')
            e(f'buffer_store_dword v{29 if k else 22+n}, v28, {WS}, s{sT0} offen sc1')

def rec_load(a, mod='', pre=None, stp=None, w0=0, wn=5):
    e = a.e
    RA = f's[{S_RA}:{S_RA+3}]'; RB = f's[{S_RB}:{S_RB+3}]'
    NS = 8; L_D = 0
    e(f'''v_lshlrev_b32 v21, 2, v14
    v_xor_b32 v21, v21, v13
    v_lshlrev_b32 v21, 4, v21
    v_lshl_add_u32 v21, v14, 13, v21
    v_lshl_add_u32 v22, v15, 3, v18
    v_lshlrev_b32 v22, 8, v22
    v_xor_b32 v23, s{S_W}, v18
    v_lshl_add_u32 v22, v23, 6, v22
    v_lshrrev_b32 v23, 1, v17
    v_lshl_add_u32 v22, v23, 5, v22
    v_and_b32 v23, 1, v17
    v_lshl_add_u32 v22, v23, 3, v22
    v_mul_u32_u24 v23, {L_WSTR}, v16
    v_add_u32 v22, v22, v23
    v_add_u32 v22, {L_W0}, v22
    v_add_u32 v23, {2*L_WSTR}, v22
    s_lshl_b32 s{sC}, s{S_H}, 8
    s_lshl_b32 s{sT0}, s{S_W}, 17
    s_add_u32 s{sC}, s{sC}, s{sT0}
    s_mul_i32 s{sT2}, s{S_W}, {L_WSTR}
    s_add_u32 s{sT2}, s{sT2}, {L_W0}''')
    srd(a, S_RA, P_WO, 32 * 147456)
    e(f'''v_lshl_add_u32 v19, v15, 1, v16
    v_mul_u32_u24 v19, {4*1152}, v19
    v_lshl_add_u32 v19, v13, 2, v19
    v_add_u32 v20, {16*1152}, v19
    s_mul_i32 s{sT0}, s{S_H}, 147456
    s_lshl_b32 s{sT1}, s{S_W}, 6
    s_add_u32 s{sT0}, s{sT0}, s{sT1}''')
    for k in range(4):
        e(f'''s_xor_b32 s{sT1}, s{S_W}, {k}
        s_mul_i32 s{sT1}, s{sT1}, {32*1152}
        s_add_u32 s{sF+k}, s{sT0}, s{sT1}''')
    e(f'''v_lshrrev_b32 v65, 1, v12
    v_mul_u32_u24 v65, 1152, v65
    v_and_b32 v66, 1, v12
    v_lshl_add_u32 v65, v66, 4, v65
    s_lshl_b32 s{sT1}, s{S_W}, 5
    s_sub_u32 s{sT1}, 1024, s{sT1}
    v_add_u32 v65, s{sT1}, v65
    v_lshlrev_b32 v66, 4, v16
    v_lshl_add_u32 v66, v15, 2, v66
    v_add_u32 v66, v66, v18
    v_lshlrev_b32 v66, 5, v66
    v_lshl_add_u32 v66, v17, 3, v66
    s_lshl_b32 s{sT1}, s{S_W}, 12
    v_add_u32 v66, s{sT1}, v66''')
    tmp = {k: ('v', 24 + 8 * n) for n, k in enumerate(LDS_WO)}
    wol = []
    for u in range(4):
        for k in range(4):
            p, b = tmp.get(('o', u, k)) or REG[('o', u, k)]
            wol += [f'buffer_load_dword {p}{b+rho}, v{19 + (rho >> 2)}, {RA}, s{sF+k} offen offset:{(rho & 3)*1152 + u*256}' for rho in range(8)]
    assert 3*1152 + 2*256 < 4096
    toks = {}
    cur = [None]
    def issue(n):
        m, f = STAGES[n]
        if cur[0] != m: srd(a, S_RB, {'q': P_WQ, 'k': P_WK, 'v': P_WV}[m], 576 * 8192); cur[0] = m
        for k in range(4):
            e(f's_add_u32 m0, s{sT2}, {(n % NS)*4096 + k*1024}')
            e(f's_add_u32 s{sT0}, s{sC}, {(64*f + 4*k)*8192}')
            e(f'buffer_load_dwordx4 v21, {RB}, s{sT0} offen{mod} lds')
        toks[n] = a.mark_v()
        if n == len(STAGES) - 9:
            for k in range(4):
                e(f's_add_u32 m0, s{sT1}, {L_D + k*1024}')
                e(f'buffer_load_dwordx4 v65, {RA}, s{sF+k} offen lds')
        for k in range(wn if w0 <= n < len(STAGES) - 1 else 0):
            if wol:
                x = wol.pop(0)
                if len(wol) == 31: e('v_add_u32 v19, 768, v19\nv_add_u32 v20, 768, v20')
                if len(wol) < 32: x = re.sub(r'offset:(\d+)', lambda m_: f'offset:{int(m_.group(1)) - 768}', x)
                e(x)
    for n in range(NS - 1): issue(n)
    for n, (m, f) in enumerate(STAGES):
        a.wait_v(toks[n])
        e('s_waitcnt lgkmcnt(0)\ns_barrier')
        if stp and n in stp: a.raw(f's_memrealtime s[{96+2*stp.index(n)}:{97+2*stp.index(n)}]')
        if n + NS - 1 < len(STAGES): issue(n + NS - 1)
        for t in range(2):
            key = (m, f, t)
            for rho in (0, 2, 4, 6):
                p, b = ('v', (12, 64)[rho >> 2]) if key in LDS else REG[key]
                e(f'ds_read_b64_tr_b16 {vr(b+rho,2,p)}, v{22 + (rho >> 2)} offset:{(n % NS)*4096 + 4*((rho>>1)&1)*256 + 16*t}')
            if key in LDS:
                for hh in range(2): e(f'ds_write_b128 v{vW}, {vr((12, 68)[hh],4)} offset:{LDS[key] + hh*1024}')
                e('s_waitcnt lgkmcnt(0)')
        if n == len(STAGES) - 3 and pre: pre()
        if n == len(STAGES) - 7:
            for k in range(4):
                p, b = REG[('o', 4, k)]
                for u in range(2):
                    e(f'ds_read_b64_tr_b16 {vr(b+2*u,2,p)}, v66 offset:{L_D + k*1024 + u*256}')
    assert not wol
    e('s_waitcnt vmcnt(0)\ns_barrier')
    for key, (p, b) in tmp.items():
        for hh in range(2): e(f'ds_write_b128 v{vW}, {vr(b+4*hh,4)} offset:{LDS[key] + hh*1024}')
    e('s_waitcnt lgkmcnt(0)')

def wfrag(key):
    p, b = REG[key]
    return vr(b, 4 if key[:2] == ('o', 4) else 8, p)

def rec_init(a, rdy0=0):
    e = a.e
    e(f'''s_mov_b32 s{sStep}, 0
    s_mov_b32 s{sMs}, {MRING}
    s_lshl_b32 s{sT0}, s{S_H}, 14
    s_lshl_b32 s{sT1}, s{S_W}, 12
    s_add_u32 s{sKx}, s{sT0}, s{sT1}
    s_add_u32 s{sKx}, s{sKx}, {KVX - 256}
    s_mov_b32 s{sPf}, 256
    s_mov_b32 s{sRedo}, -1
    s_cmp_lg_u32 s{sPrD}, {OOB}
    s_cselect_b32 s{sMkD}, 1, 0
    s_lshl_b32 s{sMp}, s{S_H}, 12
    s_add_u32 s{sMp}, s{sMp}, {MRING + 2*MSTR - 256}
    s_cmp_lt_u32 s{S_H}, 3
    s_cselect_b32 s{sMp}, s{sMp}, {OOB}
    s_mul_i32 s{sT0}, s{S_W}, {L_BLK}
    s_mov_b32 m0, s{sT0}
    s_lshl_b32 s{sKv}, s{S_H}, 12
    s_lshl_b32 s{sFlg}, s{S_H}, 6
    s_mov_b32 s{sPg}, {PROG}
    s_cmp_eq_u32 s{S_H}, 31
    s_cselect_b32 s{sPg}, s{sPg}, {OOB}
    s_add_u32 s{sKv}, s{sKv}, {KV}
    s_mov_b32 s{sC}, 0x3e0293ee
    s_mov_b32 s{sOne}, 0x3f803f80
    s_mov_b32 s{sOne+1}, 0x3f803f80
    s_mov_b32 s{sSpin}, 0x40000''')
    def m32(f):
        m = sum(1 << j for j in range(16) if f(j)); return hex(m | m << 16)
    def sel(r, vm_, masks):
        e(f'v_mov_b32 v{vT}, 0x3f80\ns_mov_b32 vcc_lo, {vm_}\ns_mov_b32 vcc_hi, {vm_}')
        e(f'v_cndmask_b32 v{vT}, v{vT}, 1.0, vcc')
        for q in range(4):
            e(f's_mov_b32 vcc_lo, {masks[q]}\ns_mov_b32 vcc_hi, {masks[q]}\nv_cndmask_b32 v{r+q}, 0, v{vT}, vcc')
    sel(VA, m32(lambda j: j & 1), [m32(lambda j: j >> 2 == q) for q in range(4)])
    sel(VA + 4, m32(lambda j: (j >> 2) & 1), [m32(lambda j: 2 * (j >> 3) + (j & 1) == q) for q in range(4)])
    e(f'''ds_write_b128 v{vSel}, {vr(VA,4)} offset:{L_SEL}
    ds_write_b128 v{vSel}, {vr(VA+4,4)} offset:{L_SEL+256}
    ds_write_b128 v{vL16}, {vr(C4,4)} offset:{L_TAB}
    s_waitcnt lgkmcnt(0)''')
def rec_disp(a, tag):
    for w in range(3):
        a.e(f's_cmp_eq_u32 s{S_W}, {w}\ns_cbranch_scc1 {tag}{w}_in')
    a.e(f's_branch {tag}3_in')

WO = 'p0,s0,w13,w21,l0,w22,l1,p1,w23,%s,s1,w31,w32,p2,w33,%s,s2,w41,w42,p3a,w43,p3b,%s,s3,p4,%s,s4,'
TAIL = {0: WO % ('rd', 'rd', 'rd,r2', '') + 'neg,ra,bar,rb,mst,r2,zq,zk,up,d28,DA,f0,qa,qb,qc,ms2,f1,zv,d60,DB,f2,d40,f3',
        1: WO % ('', '', '', '') + 'neg,bar,r2,zq,zk,up,d60,DA,f0,d60,f1,qa,qb,qc,DC,f2,d20,f3,ms2,zv',
        2: WO % ('', '', '', '') + 'neg,bar,zq,zk,r2,up,d60,DA,f0,d60,f1,qa,qb,qc,DC,f2,d20,f3,ms2,zv',
        3: WO % ('', '', '', '') + 'neg,bar,zq,zk,up,d40,r2,d20,DA,f0,d60,f1,qa,qb,qc,DC,f2,d20,f3,ms2,zv'}
PAR = dict(l4=6, l5=7, l6=17, l7=18, l8=17, pf=24, qb=49, kv=65)
CHK = '1.3.5,2.9.11,3.15.17,45.21.23,678.33.35'
def opt(abl, key, d=None):
    for x in abl:
        if x.startswith(key + '='): return x[len(key)+1:]
    return d

def rec_loop(a, w, stamps=None, fin='R_done', abl=(), tag='R', cs=''):
    b = Asm(); b.uid = 10000
    rec_body(b, w, None, fin, abl, tag, cs)
    a.vq = list(b.endq[0]); a.lq = list(b.endq[1])
    rec_body(a, w, stamps, fin, abl, tag, cs)

def rec_body(a, w, stamps, fin, abl, tag, cs):
    drops = [re.compile(x[2:].replace('~', ' ')) for x in abl if x.startswith('x=')]
    if 'nodma' in abl: drops.append(re.compile(r'(t0|sdone):buffer_load.*lds'))
    sec = ['p1']
    def e(text):
        for line in text.split('\n'):
            line = line.strip()
            if 'free' in abl: line = re.sub(r'v_cmp_(eq_u32|ne_u32|u_f32) vcc', 'v_cmp_f_f32 vcc', line)
            if any(d.search(sec[0] + ':' + line) for d in drops): continue
            a.e(line)
    def stamp(name, at=40):
        if name in ('t0', 'sdone', 'pvdone', 'st0', 'st3'): sec[0] = name
        if stamps is None or name not in stamps: return
        k = stamps.index(name)
        lab = a.newlabel('st')
        a.raw(f's_cmp_eq_u32 s{sStep}, {at}'); a.raw(f's_cbranch_scc0 {lab}')
        a.raw(f's_memtime s[{sStamp+2*k}:{sStamp+2*k+1}]'); a.raw(f'{lab}:')
    P_ = {k: int(opt(abl, k, v)) for k, v in PAR.items()}
    def cnt(k):
        if 'cnt' in abl: e(f's_add_u32 s{sF+k}, s{sF+k}, 1')
    FB = [MB[0], MB[1], MB[2], VX, VX + 4, MB[0], MB[1], MB[2], C4]
    def ldw(key, buf, hh): return f'ds_read_b128 {vr(buf+4*hh,4)}, v{vW} offset:{LDS[key] + hh*1024}'
    def ldkx(n): return f'ds_read_b128 {vr(KB[n],4)}, v{vL16} offset:{(w ^ (n >> 1))*L_BLK + 256 + (n & 1)*1024}'
    def ldv(n): return f'ds_read_b128 {vr(VX+4*n,4)}, v{vL16} offset:{w*L_BLK + 2304 + n*1024}'
    def ldz(k, r, kq=0): return f'ds_read_b128 {vr(r,4)}, v{vZ} offset:{L_QK + (w ^ k)*1152 + kq*576}'
    def fillr(r, n, val=0): return '\n'.join(f'v_mov_b64 {vr(r+k,2)}, {val}' for k in range(0, n, 2))
    def zero(r, n): e(fillr(r, n))
    lc = ' sc1' if 'lsc' in abl else cs
    def ldf(i, m=None, r=None):
        return f'buffer_load_dwordx4 {vr(FB[i] if r is None else r,4)}, v{vL16}, {WS}, s{(sMs, sM1, sM2)[i >> 2]} offen offset:{(i & 3)*1024}{lc if m is None else m}'
    def dma(n): return f'buffer_load_dwordx4 v{vL16}, {WS}, s{sKx} offen offset:{256 + n*1024} sc1 lds'
    def blind(line, name):
        a.auto = False; e(line); a.auto = True
        a.vq[-1] = {name}
    def add(r): return f'v_add_f32 v{r}, v{r}, v{r+2}'
    def cvt(d, r, r2=None): return f'v_cvt_pk_bf16_f32 v{d}, v{r}, v{r+1 if r2 is None else r2}'
    def upm(): e(f's_add_u32 s{sM1}, s{sMs}, 4096\ns_add_u32 s{sM2}, s{sMs}, 8192')
    spin = f's_sub_u32 s{sSpin}, s{sSpin}, 1\ns_cbranch_scc1 {fin}'
    lbuf = {k: SB[n % 2] for n, k in enumerate(LDS_P1)}
    L = lambda s: f'{tag}{w}_{s}'
    acc = {'q': QA, 'k': KA, 'v': VA}
    X = SB[0]; Tm = SB[0] + 4
    T = [KA, KA + 4]
    Zq = [QA, QA + 4, SB[1], SB[1] + 4]
    Zk = [VA, MB[0], MB[1], VA + 4]
    KB = [Tm, VX, VX + 4, MB[0], MB[1], MB[2], C4, Tm]
    m_ = vT
    fill = {n: [] for n in range(-1, 70)}
    def put(n, *x): fill[n] += list(x)
    put(-1, f'v_cmp_eq_u32 vcc, -1, v{FB[0]+3}', '#got0')
    put(1, f's_cbranch_vccnz {L("f0")}')
    put(3, '#wr')
    for k, (n0, n1) in enumerate(((0, 2), (3, 4))): put(n0, ldw(LDS_P1[k], SB[k], 0)); put(n1, ldw(LDS_P1[k], SB[k], 1))
    for k in range(10):
        for hh in range(2): put(P1_LDS_POS[k] + hh, ldw(LDS_P1[k+2], SB[k % 2], hh))
    tail = [x for x in opt(abl, f't{w}', TAIL[w]).split(',') if x]
    tail = [f'd{opt(abl, x, 0)}' if x[0] == 'D' else x for x in tail]
    lat = {f: -9 if f'f{f}' in tail else int(opt(abl, f'l{f}', PAR.get(f'l{f}'))) for f in range(9)}
    for f in range(1, 9):
        if lat[f] >= 0: put(lat[f], ldf(f))
    put(P_['pf'] - 2, f'v_lshl_add_u32 v{vT2}, v{vL16}, 2, s{sPf}')
    if 'nopf' not in abl: put(P_['pf'], f'buffer_load_dword v{vT2}, {WS}, s{sKx} offen sc1 lds')
    if w == 1 and 'nomp' not in abl: put(37, f'buffer_load_dword v{vT2}, {WS}, s{sMp} offen sc1 lds')
    pgc = opt(abl, 'pc')
    if pgc and w == DW: put(int(pgc), f'v_mov_b32 v{vT}, s{sStep}', f'buffer_store_dword v{vT}, v{vZero}, {WS}, s{sPg} offen sc1')
    put(29, ldkx(1)); put(30, ldkx(2)); put(36, ldkx(3)); put(38, ldkx(0))
    chk = [x.split('.') for x in opt(abl, 'chk', CHK).split(',')]
    for fs, c, b in chk:
        r = [FB[int(f)] + 3 for f in fs]
        if len(r) == 3: put(int(c) - 1, f'v_max_u32 v{vT}, v{r[0]}, v{r[2]}'); r[0] = vT
        put(int(c), f'v_cmp_u_f32 vcc, v{r[0]}, v{r[1]}' if len(r) > 1 else f'v_cmp_eq_u32 vcc, -1, v{r[0]}')
        put(int(b), f's_cbranch_vccnz {L("c" + fs)}', f'{L("g" + fs)}:')
    put(12, '#bar1')
    put(42, add(QA), add(QA + 1))
    put(43, add(QA + 4), add(QA + 5))
    put(44, cvt(X + 1, QA, QA + 4), cvt(X + 3, QA + 1, QA + 5))
    put(45, f'ds_write2_b32 v{vXw}, v{X+1}, v{X+3} offset0:0 offset1:4', '#mw')
    put(46, ldz(0, Zq[0]), add(KA)); put(47, add(KA + 1))
    put(P_['qb'], '#bar', '#qbar')
    put(49, add(KA + 4))
    put(50, ldz(1, Zq[1]), add(KA + 5))
    put(51, ldkx(4), cvt(X, KA, KA + 4))
    put(52, ldkx(5), cvt(X + 2, KA + 1, KA + 5))
    put(53, ldz(2, Zq[2]), ldkx(6), f'ds_write2_b32 v{vXw}, v{X}, v{X+2} offset0:144 offset1:148', '#t0')
    put(54, ldkx(7), '#mw', add(VA)); put(55, ldz(3, Zq[3]), add(VA + 1)); put(56, ldv(0), cvt(X + 1, VA))
    put(57, ldz(0, Zk[0], 1), add(VA + 4))
    put(58, '#bar', ldz(1, Zk[1], 1), add(VA + 5))
    put(59, ldz(2, Zk[2], 1), cvt(X + 3, VA + 4))
    put(60, ldz(3, Zk[3], 1))
    put(61, ldv(1))
    ONE, PmQ, P, LL = MB[0], vZero, VA, MB[2]
    O0, O1 = MB[1], VA + 4
    wb = [QA, SB[1]]
    put(62, f'v_cmp_u_f32 vcc, v{T[0]}, v{T[0]}', f'v_max3_f32 v{m_}, v{T[0]}, v{T[0]+1}, v{T[0]+2}')
    put(63, f'v_max3_f32 v{m_}, v{m_}, v{T[0]+3}, v{T[1]}', f'v_max3_f32 v{m_}, v{m_}, v{T[1]+1}, v{T[1]+2}')
    put(64, f's_cbranch_vccnz {L("fn")}', f'{L("gn")}:')
    if 'nokv' not in abl: put(65, f'buffer_store_dwordx4 {vr(X,4)}, v{vL16}, {WS}, s{sKv} offen offset:{w*1024} sc1')
    put(65, dma(0), dma(1), f'ds_read_b128 {vr(C4,4)}, v{vL16} offset:{L_TAB}', ldw(LDS_WO[0], wb[0], 0), fillr(ONE, 4, f's[{sOne}:{sOne+1}]'), f'v_max_f32 v{m_}, v{m_}, v{T[1]+3}')
    tok = {}
    def mf(n):
        if n < 54:
            key = P1SEQ[n]
            m, i, t = key
            wv = vr(lbuf[key], 8) if key in LDS else wfrag(key)
            return f'{SMF} {vr(acc[m]+4*t,4)}, {vr(FB[i],4)}, {wv}, v{vIdx}'
        if n < 62:
            k = n - 54
            return f'{MF32} {vr(T[k & 1],4)}, {vr(KB[k],4)}, {vr(Zq[k >> 1],4)}, {"0" if k < 2 else vr(T[k & 1],4)}'
        k = n - 62
        return f'{MF32} {vr(Tm,4)}, {vr(Zk[k],4)}, {vr(Zq[k],4)}, {"0" if k == 0 else vr(Tm,4)}'
    def ops(n): return Ins(mf(n)).src if n < 66 else set()
    def emit(n):
        pw = False
        for x in fill[n]:
            if x == '#got0': stamp('got0'); stamp('got0n', 41)
            elif x in ('#bar1', '#qbar', '#t0'): stamp(x[1:])
            elif x == '#mw': tok['mw'] = a.mark_l()
            elif x == '#wr': a.waitfor({f'#r{sPrd}'})
            elif x == '#bar': a.waitfor(tok['mw'] | ops(n + 1)); e('s_barrier')
            else:
                if x[:2] == 'v_' and not pw: a.waitfor(ops(n + 1) | Ins(x.split('\n')[0]).src); pw = True
                e(x)
    e(f'{L("go")}:')
    a.waitfor({f'v{FB[0]}'})
    e(f'{L("go2")}:')
    if 'tr' in abl and w == 3:
        a.raw('s_memrealtime s[76:77]'); a.raw('s_memtime s[78:79]')
    if opt(abl, 'ts'):
        lab = a.newlabel('ts')
        a.raw(f's_cmp_eq_u32 s{sStep}, {opt(abl, "ts")}'); a.raw(f's_cbranch_scc0 {lab}'); a.raw('s_memrealtime s[100:101]'); a.raw('s_memtime s[98:99]'); a.raw(f'{lab}:')
    emit(-1)
    for n in range(66): e(mf(n)); emit(n)
    stamp('sdone')
    e(f'''v_max3_f32 v{Tm+2}, v{m_}, v{Tm}, v{Tm+1}
    v_max3_f32 v{m_}, v{m_}, v{Tm}, v{Tm+1}
    s_add_u32 s{sKv}, s{sKv}, {32*4096}
    s_add_u32 s{sMs}, s{sMs}, {MSTR}
    v_permlane32_swap_b32 v{m_}, v{Tm+2}
    v_max_f32 v{Tm+3}, v{m_}, v{Tm+2}
    v_max_f32 v{m_}, v{m_}, v{Tm+2}
    s_add_u32 s{sMst}, s{sMs}, s{sMo}''')
    a.waitfor({f'v{VX}', f'v{VX+4}'})
    e(f'''v_permlane16_swap_b32 v{m_}, v{Tm+3}
    v_max_f32 v{m_}, v{m_}, v{Tm+3}''')
    T0 = T[0]
    def ex(r): e(f'v_exp_f32 v{r}, v{r}')
    e(f'v_mul_f32 v{Tm+2}, s{sC}, v{m_}')
    for r in (Tm, T0, T0 + 2, T0 + 4, T0 + 6):
        e(f'v_pk_fma_f32 {vr(r,2)}, {vr(r,2)}, s[{sC}:{sC+1}], {vr(Tm+2,2)} op_sel_hi:[1,0,0] neg_lo:[0,0,1] neg_hi:[0,0,1]')
    ex(Tm); ex(Tm + 1); ex(T0); e(cvt(PmQ + 1, Tm)); ex(T0 + 1); ex(T0 + 2)
    e(f'{MF16} {vr(O0,4)}, {vr(X,2)}, {vr(PmQ,2)}, 0')
    e(dma(2))
    e(cvt(P, T0)); ex(T0 + 3)
    e(f'{MF16} {vr(O1,4)}, {vr(X+2,2)}, {vr(PmQ,2)}, 0')
    e(dma(3)); tokd = a.mark_v()
    def prog(at):
        if w == DW and pgc and at == 'a':
            e(f's_cmp_ge_u32 s{sStep}, {opt(abl, "pl", 62)}\ns_cselect_b32 s{sT0}, s{sPg}, {OOB}\nv_add_u32 v{vT}, s{sStep}, 1\nbuffer_store_dword v{vT}, v{vMst}, {WS}, s{sT0} offen sc1')
        elif w == DW and opt(abl, 'pg', 'a') == at: e(f'v_add_u32 v{vT}, s{sStep}, 1\nbuffer_store_dword v{vT}, v{vMst}, {WS}, s{sPg} offen sc1')
    prog('a')
    ex(T0 + 4); e(cvt(P + 1, T0 + 2)); ex(T0 + 5)
    e(f'{MF16} {vr(LL,4)}, {vr(PmQ,2)}, {vr(ONE,2)}, 0')
    e(ldw(LDS_WO[0], wb[0], 1))
    ex(T0 + 6); ex(T0 + 7)
    e(cvt(P + 2, T0 + 4)); e(cvt(P + 3, T0 + 6))
    W = [VX, VX + 4, KA, KA + 4, Tm]
    zero(W[2], 4)
    e(f'{MF32} {vr(O0,4)}, {vr(VX,4)}, {vr(P,4)}, {vr(O0,4)}')
    zero(W[3], 4)
    e(f'{MF32} {vr(O1,4)}, {vr(VX+4,4)}, {vr(P,4)}, {vr(O1,4)}')
    zero(W[0], 4)
    e(f'{MF32} {vr(LL,4)}, {vr(P,4)}, {vr(ONE,4)}, {vr(LL,4)}')
    OF = [P, MB[0], MB[1], VA + 4]
    e(cvt(P, O0)); e(cvt(P + 1, O0 + 2)); zero(W[1], 4); e(cvt(P + 2, O1)); e(cvt(P + 3, O1 + 2))
    e(f'ds_write_b128 v{vZ}, {vr(P,4)} offset:{L_QK + w*1152}')
    toko = a.mark_l()
    e(f's_add_u32 s{sKx}, s{sKx}, {32*16384}')
    prog('b')
    stamp('pvdone')
    if 'tr' in abl and w == 3:
        for x in (f'v_mov_b32 v{vT}, s76', f'v_mov_b32 v{vT2}, s78', f's_lshl_b32 s80, s{sStep}, 8', f's_lshl_b32 s81, s{S_H}, 3', 's_add_u32 s80, s80, s81', f's_add_u32 s80, s80, {STAMP + 0x8000}'): a.raw(x)
        e(f'buffer_store_dword v{vT}, v{vZero}, {WS}, s80 offen\nbuffer_store_dword v{vT2}, v{vZero}, {WS}, s80 offen offset:4')
    IV = LL
    wbuf = {k: wb[(0, 1, 0, 1, 0)[n]] for n, k in enumerate(LDS_WO)}
    def wo(u, k):
        key = ('o', u, k)
        if u == 4: e(f'{MF32} {vr(W[4],4)}, {vr(OF[k],4)}, {wfrag(key)}, {"0" if k == 0 else vr(W[4],4)}')
        else: e(f'{SMF} {vr(W[u],4)}, {vr(OF[k],4)}, {vr(wbuf[key], 8) if key in LDS else wfrag(key)}, v{vIdx} abid:1')
    ack = {}
    RDR, SEL, D, R2 = {sPrd: SB[1], sPrD: VX}, VA, X, Tm + 2
    def rdl(s): return [f'buffer_load_dwordx4 {vr(RDR[s]+4*l,4)}, v{vL16}, {WS}, s{s} offen offset:{l*1024} sc1' for l in range(2)]
    nrd = {}
    def rd(s):
        nrd[s] = nrd.get(s, 0) + 1
        for x in rdl(s):
            if nrd[s] == 1: e(x)
            else: blind(x, f'#r{s}')
        if len(nrd) == 1 and nrd[s] == 1: stamp('rd', 41)
    def epi(u):
        r = W[u]
        x = [f'v_mul_f32 v{r+k}, v{r+k}, v{IV + (k & 1)}' for k in ((0, 2, 1, 3) if u < 4 else (0, 1))]
        x += [cvt(r, r, r + 2), cvt(r + 1, r + 1, r + 3)] if u < 4 else [cvt(r, r)]
        return x + [f'v_bfi_b32 v{r+k}, 1, s{sStep}, v{r+k}' for k in range(2 if u < 4 else 1)]
    def st(u):
        r = W[u]
        if u < 4: e(f'buffer_store_dwordx2 {vr(r,2)}, v{vP}, {WS}, s{sPW+u} offen{cs}')
        else: e(f'buffer_store_dword v{r}, v{vPD}, {WS}, s{sPW+4} offen{cs}')
        ack[u] = a.mark_v()
        if u in (0, 3): stamp(f'st{u}', 41)
    wo(4, 0)
    e(ldw(LDS_WO[1], wb[1], 0))
    wo(2, 0)
    e(ldw(LDS_WO[1], wb[1], 1)); e(f's_cmp_eq_u32 s{sStep}, 63')
    wo(0, 0)
    e(f's_cbranch_scc1 {fin}')
    a.wait_l(toko); e('s_barrier')
    wo(1, 0)
    for k in (1, 2, 3): e(ldz(k, OF[k]))
    wo(3, 0)
    e(ldw(LDS_WO[2], wb[0], 0)); e(ldw(LDS_WO[2], wb[0], 1))
    e(f'v_rcp_f32 v{IV}, v{IV}\nv_rcp_f32 v{IV+1}, v{IV+1}')
    wo(0, 1); e(ldw(LDS_WO[3], wb[1], 0))
    wo(0, 2); e(ldw(LDS_WO[3], wb[1], 1))
    wo(0, 3); e(f'ds_read_b128 {vr(SEL,4)}, v{vSel} offset:{L_SEL + (256 if w == DW else 0)}')
    wo(1, 1); e(f's_add_u32 s{sStep}, s{sStep}, 1\ns_add_u32 s{sT1}, s{sMs}, s{sMoD}')
    if w == DW: e(f's_and_b32 s{sPaD}, s{sStep}, s{sMkD}')
    wo(1, 2)
    fails = []
    ldfl = f's_load_dword s{sRdy}, s[{P_WSP}:{P_WSP+1}], s{sFlg} glc'
    def rsum(s, part='ab'):
        r = RDR[s]; par = sPaD if w == DW else sStep
        t = (vT, vT2, Tm, Tm + 1)
        if 'a' in part:
            for l in range(2):
                q = r + 4 * l
                for k in range(2): e(f'v_bitop3_b32 v{t[2*l+k]}, v{q+2*k}, v{q+2*k+1}, s{par} bitop3:0x7e')
                e(f'{MF32} {vr(D,4)}, {vr(SEL,4)}, {vr(q,4)}, {"0" if l == 0 else vr(D,4)}')
            e(f'v_or3_b32 v{vT}, v{vT}, v{vT2}, v{Tm}\nv_bitop3_b32 v{vT}, v{vT}, v{Tm+1}, 1 bitop3:0xa8\nv_cmp_ne_u32 vcc, 0, v{vT}')
        if 'b' in part:
            for k in range(2): e(f'v_add_f32_dpp v{D+k}, v{D+k}, v{D+k} row_ror:8 row_mask:0xf bank_mask:0xf')
    def rchk(nm, s):
        e(f's_cbranch_vccnz {L("f" + nm)}\n{L(nm)}:')
        assert ('f0' if s == sPrd else 'f3') not in done and 's4' in done
        fails.append((nm, s, [len(a.vq) - 1 - k for k, q in enumerate(a.vq) if f'#r{s}' in q][1::2]))
    def rfin():
        for k in range(2): e(f'v_add_f32_dpp v{R2+k}, v{D+k}, v{D+k} row_ror:4 row_mask:0xf bank_mask:0x1')
        e(cvt(vT, R2))
    done = []
    assert tail.count('bar') == 1
    for x in tail:
        done.append(x)
        if x == 'ra': rsum(sPrd); rchk('rp', sPrd)
        elif x == 'qa':
            if w == DW and 'sk' in abl:
                skq = list(a.vq); e(f's_cmp_eq_u32 s{sMkD}, 0\ns_cbranch_scc1 {L("sk")}')
            rsum(sPrD, 'a')
        elif x == 'qb': rsum(sPrD, 'b'); rchk('rq', sPrD)
        elif x in ('rb', 'qc'):
            rfin()
            if x == 'qc' and w == DW and 'sk' in abl:
                e(f'{L("sk")}:'); a.vq = [set() if q & {f'v{VX}', f'v{VX+4}'} else q for q in skq]
        elif x == 'up':
            upm()
            if w == 1: e(f's_add_u32 s{sMp}, s{sMp}, {MSTR}')
        elif x == 'neg': e(fillr(R2, 2, -1))
        elif x == 'zq': zero(QA, 8)
        elif x == 'zk': zero(KA, 8)
        elif x == 'zv': zero(VA, 8)
        elif x == 'rd': rd(sPrd)
        elif x == 'r2': rd(sPrD)
        elif x == 'wr': a.wait_v({f'v{RDR[sPrD]}'})
        elif x in ('mst', 'ms2'):
            e(f'buffer_store_dword v{vT}, v{vMst}, {WS}, s{sMst if x == "mst" else sT1} offen{cs}')
            if x == 'mst':
                assert done[-4:] == ['ra', 'bar', 'rb', 'mst']
                e(f'{L("yrp")}:')
            ack['m'] = a.mark_v(); stamp('mst' if x == 'mst' or w else 'zrdy', 41)
        elif x == 'bar':
            if w == DW: e(f's_add_u32 s{sT0}, s{sStep}, 1\n{L("fc")}:\ns_cmp_gt_u32 s{sRdy}, s{sT0}\ns_cbranch_scc0 {L("flg")}')
            a.wait_v(tokd); e('s_barrier')
            if w == DW: a.raw(ldfl)
        elif x[0] == 'f':
            e(ldf(int(x[1])))
            if x == 'f0': stamp('e0', 41)
        elif x[0] == 'w': wo(int(x[1]), int(x[2]))
        elif x[0] == 'l': e(ldw(LDS_WO[4], wb[0], int(x[1])))
        elif x[0] == 'p':
            y = epi(int(x[1]))
            e('\n'.join(y if len(x) == 2 else y[:2] if x[2] == 'a' else y[2:]))
        elif x[0] == 's': st(int(x[1]))
        elif x[0] == 'a': a.wait_v(ack[int(x[1:]) if x[1:] != 'm' else 'm'])
        elif x[0] == 'd':
            n = int(x[1:]) // 4
            while n > 0:
                k = min(n, 16); e(f's_nop {k-1}'); n -= k
        else: raise ValueError(x)
    a.endq = (list(a.vq), list(a.lq))
    e(f's_branch {L("go")}')
    sec[0] = 'rare'
    def clr(): a.vq = []; a.lq = []
    early = [int(x[1]) for x in tail if x[0] == 'f']
    clr()
    e(f'{L("in")}:\n{ldfl}\n{spin}\ns_waitcnt lgkmcnt(0)\ns_cmp_gt_u32 s{sRdy}, 1\ns_cbranch_scc0 {L("in")}')
    for n in range(4): e(dma(n))
    e(f's_add_u32 s{sKx}, s{sKx}, {32*16384}'); upm()
    e(f'{L("in2")}:')
    for f in early: e(ldf(f))
    zero(QA, 16); zero(VA, 8)
    e(f's_waitcnt vmcnt(0)\ns_barrier\ns_branch {L("go2")}')
    clr()
    e(f'{L("f0")}:'); e(ldf(0, ' sc1')); e(spin); cnt(0); e('s_nop 3')
    zero(QA, 8)
    oth = [f for f in range(1, 9) if lat[f] < 0]
    for f in oth: e(ldf(f, ' sc1'))
    e(f's_waitcnt vmcnt(0) lgkmcnt(0)\ns_branch {L("go2")}')
    for fs, c, b in chk:
        clr()
        e(f'{L("c" + fs)}:')
        for f in fs: e(ldf(int(f), ' sc1'))
        e(spin); cnt(1)
        for f in range(int(fs[-1]) + 1, 9):
            if lat[f] <= int(b): e(ldf(f, ' sc1'))
        r = [FB[int(f)] + 3 for f in fs] * 3
        e(f's_waitcnt vmcnt(0)\nv_max3_u32 v{vT}, v{r[0]}, v{r[1]}, v{r[2]}\nv_cmp_eq_u32 vcc, -1, v{vT}')
        e(f's_cbranch_vccnz {L("c" + fs)}\ns_branch {L("g" + fs)}')
    clr()
    e(f'{L("fn")}:')
    e(f's_cmp_eq_u32 s{sRedo}, s{sStep}\ns_cbranch_scc1 {L("gn")}\ns_mov_b32 s{sRedo}, s{sStep}'); cnt(2)
    e(f's_waitcnt vmcnt(0) lgkmcnt(0)\ns_nop 7\n{L("fl")}:')
    for f in range(9): e(ldf(f, ' sc1', 12 + 4 * f))
    e(spin)
    e(f'v_max_u32 v{vT}, v12, v13')
    for r in range(14, 48, 2): e(f'v_max3_u32 v{vT}, v{vT}, v{r}, v{r+1}')
    e(f'v_cmp_eq_u32 vcc, -1, v{vT}\ns_cbranch_vccnz {L("fl")}')
    e(f's_barrier\nbuffer_inv sc1\ns_waitcnt vmcnt(0)\ns_barrier\ns_branch {L("in2")}')
    for nm, s, pend in fails:
        a.auto = False
        more = rdl(s) + (rdl(sPrD) if s == sPrd else [])
        c = 3 if s == sPrD else 2
        if s == sPrd:
            e(f'{L("xrp")}:'); rfin()
            e(f'buffer_store_dword v{vT}, v{vMst}, {WS}, s{sMst} offen{cs}')
            e(f's_waitcnt vmcnt({opt(abl, "xw", 5)})\ns_barrier\ns_branch {L("yrp")}')
        ok = L('xrp' if s == sPrd else nm)
        e(f'{L("f" + nm)}:')
        for k, n in enumerate(pend):
            e('\n'.join(more)); cnt(c)
            e(f's_waitcnt vmcnt({n + len(more) * (k + 1)})'); rsum(s); e(f's_cbranch_vccz {ok}')
        e(f'{L("l" + nm)}:'); e('\n'.join(more)); e(spin); cnt(c)
        e(f's_waitcnt vmcnt({len(more) * (len(pend) + 1) - 2})'); rsum(s); e(f's_cbranch_vccz {ok}\ns_branch {L("l" + nm)}')
        a.auto = True
    if w == DW:
        clr(); e(f'{L("flg")}:\n{ldfl}\n{spin}\ns_waitcnt lgkmcnt(0)\ns_branch {L("fc")}')
```

```python
from asmlib import *
from layout import *
from rec6 import S_WS, S_RA, S_RB, S_W, S_H, WS, srd, P_X, P_WQ, P_WK, P_WV, P_WO, P_WG, P_WU, P_WD, P_OUT, P_DBG, MF32, MF16, opt
S_G = 3
RA = f's[{S_RA}:{S_RA+3}]'; RB = f's[{S_RB}:{S_RB+3}]'
MF3 = 'v_mfma_f32_32x32x16_bf16'
L16, LN, LJ, LG, T0, T1, T2, T3 = 1, 2, 3, 4, 5, 6, 7, 8
(t0, t1, t2, t3, sSpin, sK, sA, sB, sC, sD, sE, sF_, sG_, sH_) = range(46, 60)
sFB = 75
sRing = 74
FIN = 'K_end'
SPIN = f's_sub_u32 s{sSpin}, s{sSpin}, 1\ns_cbranch_scc1 {FIN}'

WST = [None]
OPT = []
def wst(a, role, k):
    if opt(OPT, 'tp' + role) == str(k):
        for x in ('s_lshl_b64 exec, 1, s78', 'v_mov_b32 v0, s76', 's_mov_b64 exec, -1', 's_mov_b32 s78, s66', 's_memrealtime s[76:77]'): a.raw(x)
    if WST[0] and WST[0][0] == role and k < 9:
        lab = a.newlabel('ws')
        for x in (f's_cmp_eq_u32 s66, {WST[0][1]}', f's_cbranch_scc0 {lab}', f's_mem{"real" if "wr" in OPT else ""}time s[{76+2*k}:{77+2*k}]', f'{lab}:'): a.raw(x)
def cvt(d, x, y): return f'v_cvt_pk_bf16_f32 v{d}, v{x}, v{y}'

def arrive(a, v=5, n=0):
    lab = a.newlabel('arr')
    if n is not None: a.e(f's_waitcnt vmcnt({n})\ns_barrier')
    vq = list(a.vq)
    a.e(f'''s_cmp_eq_u32 s{S_W}, 0
    s_cbranch_scc0 {lab}
    s_getreg_b32 s28, hwreg(HW_REG_XCC_ID, 0, 3)
    s_cmp_eq_u32 s{sFB}, 0
    s_cselect_b32 s28, s28, s2
    s_lshl_b32 s28, s28, 2
    s_lshl_b32 s28, 1, s28
    s_lshr_b32 s29, s2, 3
    s_lshl_b32 s29, s29, 2
    v_mov_b32 v{v}, s28
    s_lshl_b32 s28, s{sFB}, 7
    s_add_u32 s29, s29, s28
    v_mov_b32 v{v+1}, s29
    s_mov_b64 exec, 1
    global_atomic_add v{v+1}, v{v}, s[{P_DBG}:{P_DBG+1}] sc1
    s_mov_b64 exec, -1
    {lab}:''')
    a.vq = vq

def gb_ld(a, v):
    a.e(f'''v_mbcnt_lo_u32_b32 v{v}, -1, 0
    v_and_b32 v{v}, 31, v{v}
    v_lshlrev_b32 v{v}, 2, v{v}
    v_lshl_add_u32 v{v}, s{sFB}, 7, v{v}
    global_load_dword v{v+1}, v{v}, s[{P_DBG}:{P_DBG+1}] sc1''')
def gbar(a, v, spin, ta, force=None, lds=None, nap=8):
    lab = a.newlabel('gb')
    a.e(f's_mov_b32 s{spin}, 0x40000\ns_mov_b32 s{ta}, 0x11111111')
    if lds is None: a.e(f's_branch {lab}_c')
    else: a.e(f's_cmp_eq_u32 s{S_W}, 0\ns_cbranch_scc0 {lab}_w\ns_branch {lab}_l')
    vq = list(a.vq)
    a.e(f'{lab}:\ns_sleep {nap}\n{lab}_l:')
    gb_ld(a, v)
    a.e(f'''s_sub_u32 s{spin}, s{spin}, 1
    s_cbranch_scc1 {FIN}
    s_waitcnt vmcnt(0)
    {lab}_c:
    v_mul_lo_u32 v{v+2}, v{v+1}, s{ta}
    v_cmp_le_i32 vcc, 0, v{v+2}
    s_cbranch_vccnz {lab}
    v_cmp_ne_u32 vcc, {'0' if force else f's{ta}'}, v{v+1}
    s_cmp_lg_u64 vcc, 0
    s_cselect_b32 s{ta}, 1, 0''')
    if lds is not None:
        a.e(f'''v_mov_b32 v{v}, {lds}
        v_mov_b32 v{v+1}, s{ta}
        ds_write_b32 v{v}, v{v+1}
        s_waitcnt lgkmcnt(0)
        {lab}_w:
        s_barrier
        v_mov_b32 v{v}, {lds}
        ds_read_b32 v{v+1}, v{v}
        s_waitcnt lgkmcnt(0)
        v_readfirstlane_b32 s{ta}, v{v+1}''')
    a.e(f's_cmp_gt_u32 s{ta}, s{sFB}\ns_cbranch_scc1 K_again')
    a.vq = vq

def w_init(a):
    e = a.e
    e(f'''v_and_b32 v{LN}, 63, v0
    v_lshlrev_b32 v{L16}, 4, v{LN}
    v_and_b32 v{LJ}, 15, v{LN}
    v_lshrrev_b32 v{LG}, 4, v{LN}''')
    e(f'''v_mov_b32 v12, -1
    v_mov_b32 v13, -1
    v_mov_b32 v14, -1
    v_mov_b32 v15, -1
    v_lshlrev_b32 v{T3}, 4, v0
    v_mov_b32 v9, {OOB}
    v_cmp_eq_u32 vcc, 0, v0
    v_cndmask_b32 v9, v9, 0, vcc
    v_mov_b32 v10, 0''')

def ring_fill(a, PS, n):
    e = a.e
    lab = a.newlabel('rf')
    e(f'''s_cmp_eq_u32 s{S_G}, 2
    s_cselect_b32 s{t0}, 8, s{S_G}
    s_lshl_b32 s{t0}, s{t0}, 22
    s_lshl_b32 s{t1}, s{sFB}, 27
    s_add_u32 s{sRing}, s{t0}, s{t1}
    s_add_u32 s{sRing}, s{sRing}, {RING}
    s_mul_i32 s{t0}, s{S_H}, {PS}
    s_add_u32 s{t0}, s{t0}, s{sRing}
    s_cmp_eq_u32 s{sFB}, 0
    s_cbranch_scc0 {lab}_f''')
    for sc in ('', ' sc1'):
        vq = list(a.vq)
        for sl in range(2):
            for k in range(n):
                e(f's_add_u32 s{t1}, s{t0}, {sl*RSLOT + k*4096}\nbuffer_store_dwordx4 v[12:15], v{T3}, {WS}, s{t1} offen{sc}')
        if not sc:
            e(f's_branch {lab}\n{lab}_f:'); a.vq = vq
    e(f'{lab}:')

def touch(a, order='qkv'):
    e = a.e
    e(f'''s_sub_u32 s{t1}, s{S_G}, 4
    s_max_i32 s{t1}, s{t1}, 0
    s_lshl_b32 s{t2}, s{S_H}, 2
    s_add_u32 s{t1}, s{t1}, s{t2}
    s_lshl_b32 s{t1}, s{t1}, 12''')
    a.auto = False
    for m in order:
        srd(a, S_RB, {'q': P_WQ, 'k': P_WK, 'v': P_WV, 'o': P_WO}[m], 576 * 8192)
        for n in range(9): e(f's_add_u32 s{t2}, s{t1}, {n*128*4096}\nbuffer_load_dwordx4 v[24:27], v{T3}, {RB}, s{t2} offen')
    a.auto = True
    return 9 * len(order)

def ln1(a, tch):
    e = a.e
    X0 = 32
    F0 = 72
    srd(a, S_RA, P_X, 2048 * 1152)
    e(f'''s_mul_i32 s{t0}, s{S_H}, 3
    s_add_u32 s{t0}, s{t0}, s{S_G}
    s_sub_u32 s{t0}, s{t0}, 5
    s_mul_i32 s{t0}, s{t0}, 3
    s_add_u32 s{sK}, s{t0}, s{S_W}
    s_cmp_lt_u32 s{S_W}, 3
    s_cselect_b32 s{sK}, s{sK}, 256
    v_and_b32 v{T0}, 7, v{LN}
    v_lshrrev_b32 v{T1}, 3, v{LN}
    v_mul_u32_u24 v{T2}, 1152, v{T0}
    v_lshl_add_u32 v{T2}, v{T1}, 4, v{T2}
    s_mul_i32 s{t0}, s{sK}, {8*1152}''')
    for n in range(9): e(f'buffer_load_dwordx4 {vr(X0+4*n,4)}, v{T2}, {RA}, s{t0} offen offset:{n*128}')
    n = touch(a, tch)
    ring_fill(a, PS, 5)
    e(f'''s_cmp_lt_u32 s{sK}, 256
    s_cbranch_scc0 W_noln_b
    s_waitcnt vmcnt({10 + n})''')
    a.vq = []
    def red(r):
        e(f'''v_add_f32_dpp v{r}, v{r}, v{r} row_ror:8 row_mask:0xf bank_mask:0xf
        v_mov_b32 v17, v{r}
        v_permlane16_swap_b32 v{r}, v17
        v_add_f32 v{r}, v{r}, v17
        v_mov_b32 v17, v{r}
        v_permlane32_swap_b32 v{r}, v17
        v_add_f32 v{r}, v{r}, v17''')
    def unpack(src):
        for k in range(36):
            e(f'v_lshlrev_b32 v{F0+2*k}, 16, v{src+k}\nv_and_b32 v{F0+2*k+1}, 0xffff0000, v{src+k}')
    def rbf(r): e(f'v_cvt_pk_bf16_f32 v{r}, v{r}, v{r}\nv_lshlrev_b32 v{r}, 16, v{r}')
    unpack(X0)
    e(f'v_pk_add_f32 v[20:21], {vr(F0,2)}, {vr(F0+2,2)}')
    for k in range(2, 36): e(f'v_pk_add_f32 v[20:21], v[20:21], {vr(F0+2*k,2)}')
    e('v_add_f32 v16, v20, v21'); red(16)
    e(f'v_mul_f32 v16, {hex(f2u(-1/576))}, v16\nv_mov_b32 v18, 0\nv_mov_b32 v19, 0')
    for k in range(36):
        e(f'v_pk_add_f32 v[20:21], {vr(F0+2*k,2)}, v[16:17] op_sel_hi:[1,0]\nv_pk_fma_f32 v[18:19], v[20:21], v[20:21], v[18:19]')
    e('v_add_f32 v18, v18, v19'); red(18)
    e(f'v_mul_f32 v18, {hex(f2u(1/576))}, v18'); rbf(18)
    e(f'v_add_f32 v18, {hex(f2u(1e-5))}, v18'); rbf(18)
    e('v_sqrt_f32 v18, v18'); rbf(18)
    e('v_rcp_f32 v18, v18'); rbf(16)
    for k in range(36):
        e(f'v_pk_add_f32 v[20:21], {vr(F0+2*k,2)}, v[16:17] op_sel_hi:[1,0]\n' + cvt(X0+k, 20, 21))
    unpack(X0)
    for k in range(36):
        e(f'v_pk_mul_f32 v[20:21], {vr(F0+2*k,2)}, v[18:19] op_sel_hi:[1,0]\n' + cvt(X0+k, 20, 21))
    e(f'''v_lshlrev_b32 v{T2}, 4, v{T0}
    v_lshl_add_u32 v{T2}, v{T1}, 9, v{T2}
    s_lshr_b32 s{t0}, s{sK}, 2
    s_mul_i32 s{t0}, s{t0}, 36864
    s_and_b32 s{t1}, s{sK}, 1
    s_lshl_b32 s{t1}, s{t1}, 8
    s_add_u32 s{t0}, s{t0}, s{t1}
    s_and_b32 s{t1}, s{sK}, 2
    s_lshl_b32 s{t1}, s{t1}, 6
    s_add_u32 s{t0}, s{t0}, s{t1}
    s_add_u32 s{t0}, s{t0}, {XN}''')
    for n in range(9):
        e(f'buffer_store_dwordx4 {vr(X0+4*n,4)}, v{T2}, {WS}, s{t0} offen sc1\ns_add_u32 s{t0}, s{t0}, 4096')
    e('W_noln_b:')
    a.vq = []

import struct
def f2u(x): return struct.unpack('<I', struct.pack('<f', x))[0]

def qfrag(n): return ('a', 4 * n) if n < 64 else ('v', 224 + 4 * (n - 64))
def q_load(a):
    e = a.e
    e(f'''s_lshl_b32 s{sE}, s{S_H}, 6
    buffer_store_dword v10, v9, {WS}, s{sE} offen sc1
    s_cmp_ge_u32 s{S_W}, 2
    s_cselect_b32 s{S_RA}, s{P_WV}, s{P_WK}
    s_cselect_b32 s{S_RA+1}, s{P_WV+1}, s{P_WK+1}
    s_lshl_b32 s{t0}, s{S_H}, 1
    s_and_b32 s{t1}, s{S_W}, 1
    s_add_u32 s{sB}, s{t0}, s{t1}
    s_mov_b32 s{S_RA+2}, {576*8192}
    s_mov_b32 s{S_RA+3}, 0x20000
    v_lshrrev_b32 v{T0}, 3, v{LN}
    v_lshlrev_b32 v{T0}, 13, v{T0}
    v_and_b32 v{T1}, 7, v{LN}
    v_lshl_add_u32 v{T0}, v{T1}, 4, v{T0}
    s_lshl_b32 s{sA}, s{sB}, 7
    s_mul_i32 s{sD}, s{S_W}, {18*2048}''')
    e(f'''v_and_b32 v{T1}, 3, v{LJ}
    v_lshlrev_b32 v{T1}, 3, v{T1}
    v_and_b32 v{T2}, 1, v{LG}
    v_lshl_add_u32 v{T1}, v{T2}, 5, v{T1}
    v_lshrrev_b32 v{T2}, 1, v{LG}
    v_lshrrev_b32 v{T3}, 2, v{LJ}
    v_lshl_add_u32 v{T2}, v{T2}, 3, v{T3}
    v_lshl_add_u32 v{T1}, v{T2}, 7, v{T1}
    v_add_u32 v{T1}, s{sD}, v{T1}''')
    toks = {}
    def issue(n):
        for k in range(2):
            e(f's_add_u32 m0, s{sD}, {(n % 18)*2048 + k*1024}')
            e(f'buffer_load_dwordx4 v{T0}, {RA}, s{sA} offen lds')
            e(f's_add_u32 s{sA}, s{sA}, {8*8192}')
        toks[n] = a.mark_v()
    for n in range(18):
        issue(n)
        if n == 3: arrive(a, 16, 8)
    for n in range(36):
        a.wait_v(toks[n])
        for t in range(2):
            p, b = qfrag(2 * n + t)
            for u in range(2):
                e(f'ds_read_b64_tr_b16 {vr(b+2*u,2,p)}, v{T1} offset:{(n % 18)*2048 + t*64 + u*512}')
        if n + 18 < 36:
            e('s_waitcnt lgkmcnt(0)'); issue(n + 18)
    e('s_waitcnt lgkmcnt(0)')

def q_main(a):
    e = a.e
    XB = 32; NB = 8; PF = 4
    ACC = [64, 96]; OUT = 128
    vA, vS, vFl = T0, T1, 9
    e(f'''v_and_b32 v{vS}, 7, v{LN}
    v_lshrrev_b32 v{T2}, 4, v{LN}
    v_lshl_add_u32 v{vS}, v{T2}, 3, v{vS}
    v_lshlrev_b32 v{vS}, 4, v{vS}
    v_bfe_u32 v{T2}, v{LN}, 3, 1
    v_lshl_add_u32 v{vS}, v{T2}, 10, v{vS}''')
    OSTEP = 32 * 16384
    e(f'''s_mul_i32 s{t0}, s{S_W}, 9216
    s_add_u32 s{sA}, s{t0}, {XN}
    s_lshl_b32 s{t1}, s{sB}, 13
    s_lshr_b32 s{t2}, s{S_W}, 1
    s_lshl_b32 s{t2}, s{t2}, 11
    s_add_u32 s{t1}, s{t1}, s{t2}
    s_add_u32 s{sD}, s{t1}, {KVX - OSTEP}
    s_lshl_b32 s{sC}, s{S_H}, 2
    s_add_u32 s{sC}, s{sC}, s{S_W}
    s_lshl_b32 s{sC}, s{sC}, 10
    s_add_u32 s{sC}, s{sC}, {KV}''')
    def dma(n, m0base):
        return [f's_add_u32 m0, s{m0base}, {n*1024 - (n & 3)*1024}' if (n & 3) == 0 else None,
                f's_add_u32 s{t3}, s{sA}, {n*1024 - (n & 3)*1024}' if (n & 3) == 0 else None,
                f'buffer_load_dwordx4 v{L16}, {WS}, s{t3} offen offset:{(n & 3)*1024} sc1 lds']
    for b in range(2):
        e(f's_add_u32 s{t1}, s{t0}, {b*36864}')
        for n in range(9):
            for x in dma(n, t1):
                if x: e(x)
        e(f's_add_u32 s{sA}, s{sA}, 36864')
    e(f'''s_mov_b32 s{sK}, 0
    s_mov_b32 s{sH_}, 0
    v_mov_b32 v{vA}, v{L16}
    s_waitcnt vmcnt(9)
    s_barrier''')
    def rd(k): return f'ds_read_b128 {vr(XB + 4*(k % NB), 4)}, v{vA} offset:{(k % 36)*1024}'
    for k in range(PF): e(rd(k))
    e(f's_cmp_ge_u32 s{S_W}, 2\ns_cbranch_scc1 QV_loop')
    lq0 = list(a.lq)
    def epi(b, var):
        r = []
        for t in range(2):
            for c in range(2):
                q = ACC[b] + 16*t + 8*c
                r += [[cvt(OUT + 8*t + 4*c + k, *((q + k, q + 4 + k) if var == 'QK' else (q + 2*k, q + 2*k + 1))) for k in range(4)]]
                r += [[f'buffer_store_dwordx4 {vr(OUT + 8*t + 4*c, 4)}, v{vS}, {WS}, s{sD if t == 0 else t2} offen offset:{c*512} sc1']]
        return r
    for var in ('QK', 'QV'):
        a.lq = list(lq0); a.vq = []
        e(f'{var}_loop:')
        for b in range(2):
            fill = {k: [] for k in range(36)}
            fill[0] += [f's_add_u32 s{t2}, s{sD}, 4096', f's_add_u32 s{t1}, s{sH_}, {2*36864}', f's_cmp_ge_u32 s{t1}, {4*36864}',
                        f's_cselect_b32 s{t3}, {4*36864}, 0', f's_sub_u32 s{t1}, s{t1}, s{t3}', f's_add_u32 s{t1}, s{t1}, s{t0}']
            for n, x in enumerate(epi(1 - b, var)): fill[1 + n] += x
            fill[9] += [f'buffer_store_dwordx4 v[12:15], v{L16}, {WS}, s{sC} offen sc1', f's_add_u32 s{sC}, s{sC}, {32*4096}']
            for n in range(9): fill[10 + 2*n] += [x for x in dma(n, t1) if x]
            fill[28] += [f's_add_u32 s{sA}, s{sA}, 36864', f's_add_u32 s{sD}, s{sD}, {OSTEP}', f's_add_u32 s{sH_}, s{sH_}, 36864',
                         f's_cmp_ge_u32 s{sH_}, {4*36864}', f's_cselect_b32 s{sH_}, 0, s{sH_}', f'v_mov_b32 v10, s{sK}']
            fill[30] += ['s_waitcnt vmcnt(9)', 's_barrier', f'buffer_store_dword v10, v{vFl}, {WS}, s{sE} offen sc1', f's_add_u32 s{sK}, s{sK}, 1']
            for k in range(36):
                kk = 36 * b + k
                if k + PF == 36: e(f'v_add_u32 v{vA}, s{sH_}, v{L16}')
                e(rd(kk + PF))
                for t in range(2):
                    p, r = qfrag(2 * k + t)
                    W = vr(r, 4, p); X = vr(XB + 4 * (kk % NB), 4); D = vr(ACC[b] + 16 * t, 16)
                    e(f'{MF3} {D}, {W if var == "QK" else X}, {X if var == "QK" else W}, {"0" if k == 0 else D}')
                for x in fill[k]: e(x)
        e(f's_cmp_lt_u32 s{sK}, 64\ns_cbranch_scc1 {var}_loop')
        e(f's_add_u32 s{t2}, s{sD}, 4096')
        for x in epi(1, var):
            for y in x: e(y)
        if var == 'QK': e('s_branch Q_tail')
    e('Q_tail:')
    e(f'''v_mov_b32 v10, 128
    s_waitcnt vmcnt(0) lgkmcnt(0)
    s_barrier
    buffer_store_dword v10, v{vFl}, {WS}, s{sE} offen sc1''')
    a.vq = []

SEL, NEG = 24, 28
vPS, vP8, vRD, vRes, vXw, vZ, vTr, vMx = 10, 11, 12, 13, 14, 15, 16, 17
(sPW, sPR, sTask, sTW, sTR, sCnt) = range(61, 67)
import os
NA = 2; NF = 3
def red_setup(a, PS=PS):
    e = a.e
    e(f'''v_mov_b32 v{T0}, 0x3f80
    v_mov_b32 v{T1}, 0x3f800000
    v_and_b32 v{T2}, 1, v{LJ}
    v_cmp_eq_u32 vcc, 0, v{T2}
    v_cndmask_b32 v{T0}, v{T1}, v{T0}, vcc
    v_lshrrev_b32 v{T2}, 1, v{LJ}''')
    for q in range(4):
        e(f'v_cmp_eq_u32 vcc, {q}, v{T2}\nv_cndmask_b32 v{SEL+q}, 0, v{T0}, vcc')
    e(f'''v_lshrrev_b32 v{T0}, 1, v{LG}
    v_lshlrev_b32 v{vP8}, 4, v{LJ}
    v_lshl_add_u32 v{vP8}, v{T0}, 8, v{vP8}
    v_and_b32 v{T0}, 1, v{LG}
    v_lshl_add_u32 v{vP8}, v{T0}, 3, v{vP8}
    v_add_u32 v{vP8}, 4096, v{vP8}
    v_mul_u32_u24 v{vRD}, {PS}, v{LG}
    v_lshl_add_u32 v{vRD}, v{LJ}, 4, v{vRD}
    s_mul_i32 s{t1}, s{S_H}, {PS}
    s_add_u32 s{sPW}, s{sRing}, s{t1}
    s_mul_i32 s{t1}, s{S_W}, 4608
    s_add_u32 s{sPW}, s{sPW}, s{t1}
    s_lshl_b32 s{sTask}, s{S_W}, 5
    s_add_u32 s{sTask}, s{sTask}, s{S_H}
    s_lshl_b32 s{t1}, s{sTask}, 8
    s_add_u32 s{sPR}, s{sRing}, s{t1}
    s_mov_b32 s{sTW}, 0
    s_mov_b32 s{sCnt}, 0''')

def tagb(r): return f'v_bfi_b32 v{r}, 1, s{sTW}, v{r}'
def next_slot(a):
    a.e(f'''s_xor_b32 s{sPW}, s{sPW}, {RSLOT}
    s_mov_b32 s{sTR}, s{sTW}
    s_add_u32 s{sCnt}, s{sCnt}, 1
    s_lshr_b32 s{sTW}, s{sCnt}, 1''')
def proj_epi(u, W, sc, sPW=sPW):
    if u == 8:
        return [cvt(W + 32, W + 32, W + 33), cvt(W + 33, W + 34, W + 35), tagb(W + 32), tagb(W + 33), f'buffer_store_dwordx2 {vr(W+32,2)}, v{vP8}, {WS}, s{sPW} offen{sc}']
    if u & 1 == 0: return []
    r = W + 4 * (u - 1)
    return [cvt(r + k, r + 2*k, r + 2*k + 1) for k in range(4)] + [tagb(r + k) for k in range(4)] + [f'buffer_store_dwordx4 {vr(r,4)}, v{L16}, {WS}, s{sPW} offen offset:{(u >> 1)*1024}{sc}']

def red_ld(a, RD, PS=PS, off=0):
    for l in range(8):
        a.e(f's_add_u32 s{t0}, s{sPR}, {4*l*PS + off}\nbuffer_load_dwordx4 {vr(RD+4*l,4)}, v{vRD}, {WS}, s{t0} offen sc1')
def red_sum(a, RD, D, again):
    e = a.e
    for l in range(8):
        r = RD + 4 * l
        e(f'{MF32} {vr(D,4)}, {vr(SEL,4)}, {vr(r,4)}, {"0" if l == 0 else vr(D,4)}')
        for k in range(2): e(f'v_bitop3_b32 v{T2+k}, v{r+2*k}, v{r+2*k+1}, s{sTR} bitop3:0x7e')
        e(f'v_or_b32 v{vMx}, v{T2}, v{T3}' if l == 0 else f'v_or3_b32 v{vMx}, v{vMx}, v{T2}, v{T3}')
    e(f'v_and_b32 v{vMx}, 1, v{vMx}\nv_cmp_ne_u32 vcc, 0, v{vMx}\ns_cbranch_vccnz {again}')
RM = [16, 18, 20, 22, 24, 26, 32, 34]
def red_sum2(a, RD, D, again):
    e = a.e
    for l in range(8):
        r = RD + 4 * l
        e(f'{MF32} {vr(D,4)}, {vr(SEL,4)}, {vr(r,4)}, {"0" if l == 0 else vr(D,4)}')
        for k in range(2): e(f'v_bitop3_b32 v{T2+k}, v{r+2*k}, v{r+2*k+1}, s{sTR} bitop3:0x7e')
        if l > 1: e(f's_or_b64 s[36:37], s[{RM[l-1]}:{RM[l-1]+1}], s[{36 if l > 2 else RM[0]}:{37 if l > 2 else RM[0]+1}]')
        e(f'v_bitop3_b32 v{T2}, v{T2}, v{T3}, 1 bitop3:0xa8\nv_cmp_ne_u32 s[{RM[l]}:{RM[l]+1}], 0, v{T2}')
    e(f's_or_b64 s[36:37], s[36:37], s[{RM[7]}:{RM[7]+1}]\ns_cbranch_scc1 {again}')
def red_again(a, RD, PS, off, lab, back):
    a.e(f'{lab}:')
    for l in range(8):
        a.e(f'''s_cmp_lg_u64 s[{RM[l]}:{RM[l]+1}], 0
        s_cbranch_scc0 {lab}_{l}
        s_add_u32 s{t0}, s{sPR}, {4*l*PS + off}
        buffer_load_dwordx4 {vr(RD+4*l,4)}, v{vRD}, {WS}, s{t0} offen sc1
        {lab}_{l}:''')
    a.e(f'{SPIN}\ns_waitcnt vmcnt(0)\ns_branch {back}')
def red_fin(a, U, D, R):
    e = a.e
    e(cvt(D, D, D + 1)); e(cvt(D + 1, D + 2, D + 3))
    for k in range(2):
        e(f'''v_lshlrev_b32 v{U}, 16, v{D+k}
        v_and_b32 v{U+1}, 0xffff0000, v{D+k}
        v_lshlrev_b32 v{U+2}, 16, v{R+k}
        v_and_b32 v{U+3}, 0xffff0000, v{R+k}
        v_pk_add_f32 {vr(U,2)}, {vr(U,2)}, {vr(U+2,2)}''')
        e(cvt(D + k, U, U + 1))
    e(f'v_permlane16_swap_b32 v{D}, v{D+2}\nv_permlane16_swap_b32 v{D+1}, v{D+3}')
def tr_cols(a, rowexpr):
    a.e(rowexpr)
    a.e(f'''v_mul_u32_u24 v{T0}, 1152, v{T0}
    s_mul_i32 s{t0}, s{S_W}, 288
    v_add_u32 v{T0}, s{t0}, v{T0}
    v_and_b32 v{T1}, 3, v{LJ}
    v_lshl_add_u32 v{vTr}, v{T1}, 4, v{T0}
    v_lshl_add_u32 v{T3}, v{T1}, 3, v{T0}
    v_add_u32 v{T3}, 256, v{T3}''')

LA_Q, LA_O, LA_IM, LA_IK, LA_KV, LA_X = 0, 8192, 16384, 20480, 24576, 40960
def aq(n): return ('a', 144 + 4 * n) if n < 28 else ('v', 224 + 4 * (n - 28))
def a_load(a, st=None, order='oq', late=None):
    e = a.e
    ring_fill(a, PSA, 9)
    if late:
        arrive(a, 18); late()
    e('A_ld:')
    def arr(n, c):
        if n == 7 and c == order[0] and not late:
            e(f's_cmp_eq_u32 s{S_G}, 2\ns_cbranch_scc1 A_ld2')
            arrive(a, 18, 8)
            e('A_ld2:')
            if st: st()
    def lq():
        srd(a, S_RB, P_WQ, 576 * 8192)
        e(f'''v_lshlrev_b32 v{T0}, 2, v{LG}
        v_xor_b32 v{T0}, v{T0}, v{LJ}
        v_lshlrev_b32 v{T0}, 4, v{T0}
        v_lshl_add_u32 v{T0}, v{LG}, 13, v{T0}
        s_mul_i32 s{t1}, s{S_W}, 36864
        s_mul_i32 s{t0}, s{S_W}, {144*8192}
        s_lshl_b32 s{t2}, s{S_H}, 8
        s_add_u32 s{t0}, s{t0}, s{t2}''')
        for n in range(36):
            e(f's_add_u32 m0, s{t1}, {n*1024}\ns_add_u32 s{t2}, s{t0}, {n*4*8192}')
            e(f'buffer_load_dwordx4 v{T0}, {RB}, s{t2} offen lds')
            arr(n, 'q')
        e(f'''v_lshrrev_b32 v{T0}, 2, v{LJ}
        v_xor_b32 v{T1}, s{S_W}, v{T0}
        v_lshlrev_b32 v{T1}, 6, v{T1}
        v_lshl_add_u32 v{T1}, v{T0}, 8, v{T1}
        v_lshrrev_b32 v{T0}, 1, v{LG}
        v_lshl_add_u32 v{T1}, v{T0}, 11, v{T1}
        v_and_b32 v{T0}, 1, v{LG}
        v_lshl_add_u32 v{T1}, v{T0}, 5, v{T1}
        v_and_b32 v{T0}, 3, v{LJ}
        v_lshl_add_u32 v{T1}, v{T0}, 3, v{T1}
        s_waitcnt vmcnt(0)
        s_barrier''')
        for n in range(36):
            p, b = aq(n)
            for u in range(2): e(f'ds_read_b64_tr_b16 {vr(b + 2*u, 2, p)}, v{T1} offset:{(n % 12)*4096 + u*1024}')
            if n % 12 == 11: e(f'v_add_u32 v{T1}, {12*4096}, v{T1}')
    def lo():
        srd(a, S_RA, P_WO, 32 * 147456)
        e(f'''s_mul_i32 s{t0}, s{S_H}, 147456
        s_mul_i32 s{t1}, s{S_W}, 36864
        s_add_u32 s{t0}, s{t0}, s{t1}''')
        for n in range(36):
            if n & 3 == 0: e(f's_add_u32 m0, s{t1}, {n*1024}\ns_add_u32 s{t2}, s{t0}, {n*1024}')
            e(f'buffer_load_dwordx4 v{L16}, {RA}, s{t2} offen offset:{(n & 3)*1024} lds')
            arr(n, 'o')
        tr_cols(a, f'''v_lshrrev_b32 v{T0}, 1, v{LG}
        v_lshlrev_b32 v{T0}, 4, v{T0}
        v_and_b32 v{T1}, 1, v{LG}
        v_lshl_add_u32 v{T0}, v{T1}, 2, v{T0}
        v_lshrrev_b32 v{T1}, 2, v{LJ}
        v_add_u32 v{T0}, v{T0}, v{T1}''')
        e('s_waitcnt vmcnt(0)\ns_barrier')
        for kap in range(4):
            for u in range(9):
                for hh in range(2):
                    off = hh * 8 * 1152 + (0 if u == 8 else (u >> 1) * 64 + (u & 1) * 8)
                    e(f'ds_read_b64_tr_b16 {vr(16*u + 4*kap + 2*hh, 2, "a")}, v{T3 if u == 8 else vTr} offset:{off}')
            e(f'v_add_u32 v{vTr}, {32*1152}, v{vTr}\nv_add_u32 v{T3}, {32*1152}, v{T3}')
    for c in order:
        {'q': lq, 'o': lo}[c]()
        e('s_waitcnt lgkmcnt(0)')
        if c == order[0]: e('s_barrier')
    red_setup(a, PSA)

AKN, ABI, AQ, AK, AV, AS, AZ, AKV, AO, AOF, AW, AXB, ARD, AD, ARS = 28, 32, 40, 56, 88, 104, 116, 132, 56, 56, 140, 104, 148, 212, 220
vQw, vKw, vX, vPg, vHf, vOw = 14, 20, 21, 22, 23, 9
sSeg, sRdy, sProg, sFl, sPW2, sTwo, sE2 = range(67, 74)
sXd, sPnd, sStp, sStq = sK, 60, 30, 31
Z0 = 60
def a_dmx():
    r = []
    for n in range(9):
        x = f's_add_u32 m0, s{sC}, {n*1024}\n' + (f's_add_u32 s{t2}, s{t2}, 4096\n' if n else '') if n & 3 == 0 else ''
        r.append(x + f'buffer_load_dwordx4 v{L16}, {WS}, s{t2} offen offset:{(n & 3)*1024} sc1 lds')
    return r
def a_dma(a, tag):
    a.e(f'''{tag}_dm:
    s_cmp_gt_u32 s{sRdy}, s{sSeg}
    s_cbranch_scc0 {tag}_fl
    s_cmp_lt_u32 s{sSeg}, 64
    s_cselect_b32 s{t1}, s{sSeg}, 0x800
    s_lshl_b32 s{t0}, s{S_W}, 12
    s_add_u32 m0, s{t0}, {LA_KV}
    s_lshl_b32 s{t2}, s{t1}, 19
    s_add_u32 s{t2}, s{t2}, s{sA}
    s_lshl_b32 s{t1}, s{t1}, 17
    s_add_u32 s{sH_}, s{t1}, s{sD}''')
    return [f'buffer_load_dwordx4 v{L16}, {WS}, s{t2} offen offset:{n*1024} sc1 lds' for n in range(4)]
def a_flags(a, tag):
    a.vq = []; a.lq = []
    a.e(f'''{tag}_fl:
    buffer_load_dword v{vPg}, off, {WS}, s{sFl} sc1
    {SPIN}
    v_readfirstlane_b32 s{sRdy}, v{vPg}
    s_branch {tag}_dm''')

def a_init(a):
    e = a.e
    srd(a, S_RA, P_X, 2048 * 1152)
    e(f'''s_sub_u32 s{sSeg}, s{S_G}, 3
    s_cselect_b32 s{sSeg}, {opt(OPT, 'z0', Z0)}, s{sSeg}
    s_mov_b32 s{sStp}, 0
    s_mov_b32 s{sRdy}, 0
    s_mov_b32 s{sProg}, 0
    s_lshl_b32 s{sFl}, s{S_H}, 6
    s_mov_b32 s{sSpin}, 0x100000
    s_barrier
    s_lshl_b32 s{t0}, s{S_H}, 2
    s_add_u32 s{t0}, s{t0}, s{S_W}
    s_lshl_b32 s{sA}, s{t0}, 12
    s_add_u32 s{sA}, s{sA}, {KVX}
    s_mul_i32 s{sC}, s{S_W}, 9216
    s_add_u32 s{sB}, s{sC}, {XN}
    s_add_u32 s{sC}, s{sC}, {LA_X}
    s_lshl_b32 s{sD}, s{t0}, 10
    s_add_u32 s{sD}, s{sD}, {KV}''')
    e(f's_mul_i32 s{t2}, s{sSeg}, 36864\ns_add_u32 s{sB}, s{sB}, s{t2}\ns_mov_b32 s{t2}, s{sB}')
    e('\n'.join(a_dmx()))
    e(f's_mov_b32 s{sXd}, 36864\ns_mov_b32 s{sPnd}, 0')
    e('\n'.join(a_dma(a, 'AI')))
    e(f'''s_mul_i32 s{sE}, s{sSeg}, 36864
    s_lshl_b32 s{t1}, s{sTask}, 8
    s_add_u32 s{sF_}, s{sE}, s{t1}
    s_add_u32 s{sF_}, s{sF_}, {H}
    s_lshl_b32 s{t1}, s{sTask}, 4
    s_add_u32 s{sE}, s{sE}, s{t1}
    s_add_u32 s{sE2}, s{sE}, {18432 + 56*16}
    s_cmp_ge_u32 s{sTask}, 72
    s_cselect_b32 s{t1}, {18432 - 72*16}, 0
    s_add_u32 s{sE}, s{sE}, s{t1}
    s_cmp_lt_u32 s{sTask}, 16
    s_cselect_b32 s{sTwo}, 1, 0
    s_cselect_b32 s{sE2}, s{sE2}, {OOB}
    v_mul_u32_u24 v{vRes}, 1152, v{LJ}
    v_lshl_add_u32 v{vRes}, v{LG}, 3, v{vRes}
    v_mov_b32 v{T0}, {OOB}
    v_cmp_gt_u32 vcc, 2, v{LG}
    v_cndmask_b32 v{vRes}, v{T0}, v{vRes}, vcc
    v_cmp_eq_u32 vcc, 0, v{LG}
    v_cndmask_b32 v{vPS}, v{T0}, v{L16}, vcc
    s_lshl_b32 s{t0}, s{S_W}, 10
    v_add_u32 v{vTr}, s{t0}, v{L16}
    v_add_u32 v{vX}, {LA_X}, v{L16}
    s_lshl_b32 s{t0}, s{S_W}, 11
    v_add_u32 v{vOw}, s{t0}, v{L16}''')
    e(f'''v_and_b32 v{vQw}, 7, v{LN}
    v_lshl_add_u32 v{vQw}, v{LG}, 3, v{vQw}
    v_lshlrev_b32 v{vQw}, 4, v{vQw}
    v_bfe_u32 v{T2}, v{LN}, 3, 1
    v_lshl_add_u32 v{vQw}, v{T2}, 10, v{vQw}
    v_add_u32 v{vQw}, s{t0}, v{vQw}
    s_lshr_b32 s{t3}, s{S_W}, 1
    s_lshl_b32 s{t0}, s{t3}, 10
    v_add_u32 v{vHf}, s{t0}, v{L16}''')
    e(f'''v_lshrrev_b32 v{T1}, 2, v{LJ}
    v_mul_u32_u24 v{vKw}, 144, v{T1}
    v_lshl_add_u32 v{vKw}, v{LG}, 5, v{vKw}
    v_and_b32 v{T0}, 3, v{LJ}
    v_lshl_add_u32 v{vKw}, v{T0}, 2, v{vKw}
    s_mul_i32 s{t0}, s{S_W}, 576
    s_add_u32 s{t0}, s{t0}, {LA_IK}
    v_add_u32 v{vKw}, s{t0}, v{vKw}
    v_mul_u32_u24 v{vZ}, 144, v{LG}
    v_lshl_add_u32 v{vZ}, v{T1}, 5, v{vZ}
    v_and_b32 v{T0}, 1, v{LJ}
    v_lshl_add_u32 v{vZ}, v{T0}, 4, v{vZ}''')
    e(f'''s_lshl_b32 s{t1}, s{t3}, 4
    v_add_u32 v{T0}, s{t1}, v{LJ}
    v_lshlrev_b32 v{T1}, 2, v{LG}
    v_sub_u32 v{T0}, v{T0}, v{T1}
    v_mov_b32 v{T1}, {hex(f2u(-1e30))}
    v_mov_b32 v18, 0''')
    for T in range(2):
        for p in range(4):
            e(f'v_cmp_le_i32 vcc, {16*T + p}, v{T0}\nv_cndmask_b32 v{ABI + 4*T + p}, v{T1}, 0, vcc')
    e(f'''s_and_b32 s{t0}, s{S_W}, 1
    s_lshl_b32 s{t1}, s{t0}, 13
    v_add_u32 v{LN}, s{t1}, v{L16}
    s_lshl_b32 s{t1}, s{t0}, 11
    v_add_u32 v{LJ}, s{t1}, v{L16}
    s_mov_b32 s{sG_}, 0x3e0293ee
    s_waitcnt vmcnt(0)''')

def a_loop(a, tag, sc):
    b = Asm(); b.uid = 20000
    w_ = WST[0]; WST[0] = None
    a_body(b, tag, sc, [])
    WST[0] = w_
    a_body(a, tag, sc, b.endq)
def a_body(a, tag, sc, vq0):
    e = a.e
    sa = opt(OPT, 'sa', 4); z0 = int(opt(OPT, 'z0', Z0))
    a.lq = []; a.vq = []
    P = AZ; PM = 18
    vV, vVm = LN, LJ
    def rld(k):
        return [f's_add_u32 s{t0}, s{sPR}, {4*l*PSA + 32768*k}\nbuffer_load_dwordx4 {vr(ARD + 32*k + 4*l, 4)}, v{vRD}, {WS}, s{t0} offen sc1' for l in range(8)]
    rare = []
    def rsum(tg, k):
        if k: e(f's_cmp_eq_u32 s{sTwo}, 0\ns_cbranch_scc1 {tg}_e')
        e(f'{tg}_s{k}:')
        a.vq = []
        (red_sum2 if tg[-1] == 'b' else red_sum)(a, ARD + 32*k, AD + 4*k, f'{tg}_r{k}')
        red_fin(a, ARD + 32*k, AD + 4*k, ARS + 2*k)
        if k: e(f's_add_u32 s{t0}, s{sF_}, 32768')
        e(f'buffer_store_dwordx4 {vr(AD + 4*k, 4)}, v{vPS}, {WS}, s{t0 if k else sF_} offen sc1')
        if not k: wst(a, tag, 9)
        rare.append((tg, k))
        if k:
            e(f'{tg}_e:')
            for r in (sE, sE2, sF_): e(f's_add_u32 s{r}, s{r}, s{sStq}')
            e(f's_xor_b32 s{sPR}, s{sPR}, {RSLOT}')
        a.vq = []
    NB = 8; PF = 5
    def rd(k): return f'ds_read_b128 {vr(AXB + 4*(k % NB), 4)}, v{vX} offset:{k*1024}'
    e(f'{tag}_in:\nv_mov_b32 v{vPg}, 0\ns_barrier')
    for k in range(PF): e(rd(k))
    e(f'{tag}_loop:')
    a.vq = list(vq0)
    wst(a, tag, 0)
    kv = [f'ds_read_b128 {vr(AK + 4*n, 4)}, v{L16} offset:{LA_KV + (n >> 1)*4096 + (n & 1)*1024}' for n in range(8)]
    kv += [f'ds_read_b128 {vr(AV + 4*n, 4)}, v{vV} offset:{LA_KV + (n >> 1)*4096 + 2048 + (n & 1)*1024}' for n in range(4)]
    dx = a_dmx()
    for k in range(36):
        if k + PF < 36: e(rd(k + PF))
        p, r = aq(k)
        e(f'{MF3} {vr(AQ,16)}, {vr(r, 4, p)}, {vr(AXB + 4*(k % NB), 4)}, {"0" if k == 0 else vr(AQ,16)}')
        if k & 1 and kv: e(kv.pop(0))
        if k == 0: e(f's_mul_i32 s{sStq}, s{sStp}, 36864\ns_cmp_lt_u32 s{sSeg}, {z0 - 2}\ns_cselect_b32 s{sStp}, 2, 3\ns_mul_i32 s{t2}, s{sStp}, 36864\ns_add_u32 s{sB}, s{sB}, s{t2}')
        if k == 1: e(f's_add_u32 s{sC}, s{sC}, s{sXd}\ns_add_u32 s{t2}, s{sSeg}, s{sStp}\ns_cmp_lt_u32 s{t2}, 64\ns_cselect_b32 s{t2}, s{sB}, {OOB}')
        if k == 2: e(f'v_readfirstlane_b32 s{sProg}, v{vPg}')
        if k == 3: e(f'''s_cmp_gt_u32 s{sProg}, s{sSeg}
            s_cselect_b32 s{t0}, s{sH_}, {OOB}
            buffer_load_dwordx4 {vr(AKN,4)}, v{L16}, {WS}, s{t0} offen sc1''')
        if k >= 4 and k % 3 == 1 and dx: e(dx.pop(0))
        if k == 32: e(f'v_add_u32 v{vX}, s{sXd}, v{vX}\ns_sub_u32 s{sXd}, 0, s{sXd}')
    assert not dx
    wst(a, tag, 1)
    for c in range(2):
        q = AQ + 8 * c
        for k in range(4): e(cvt(q + k, q + k, q + 4 + k))
        e(f'ds_write_b128 v{vQw}, {vr(q,4)} offset:{LA_Q + c*512}')
    e('s_waitcnt lgkmcnt(0)\ns_barrier')
    wst(a, tag, 2)
    for kap in range(4): e(f'ds_read_b128 {vr(AQ + 4*kap, 4)}, v{vHf} offset:{LA_Q + kap*2048}')
    e(f's_cmp_gt_u32 s{sProg}, s{sSeg}\ns_cbranch_scc0 {tag}_wt')
    a.waitfor({f'v{AKN}'})
    e(f'''{tag}_chk:
    v_max3_u32 v{vMx}, v{AKN}, v{AKN+1}, v{AKN+2}
    v_max_u32 v{vMx}, v{vMx}, v{AKN+3}
    v_cmp_eq_u32 vcc, -1, v{vMx}
    s_cbranch_vccnz {tag}_pollk
    ds_write2_b32 v{vKw}, v{AKN}, v{AKN+2} offset0:0 offset1:4
    ds_write_b128 v{vTr}, {vr(AKN,4)} offset:{LA_IM}
    s_add_u32 s{sSeg}, s{sSeg}, s{sStp}''')
    tok = a.mark_l()
    wst(a, tag, 3)
    sc_ = [f'{MF32} {vr(AS + 4*T, 4)}, {vr(AK + 8*kap + 4*T, 4)}, {vr(AQ + 4*kap, 4)}, {vr((ABI if kap == 0 else AS) + 4*T, 4)}' for kap in range(4) for T in range(2)]
    for x in sc_[:3]: e(x)
    e(f's_cmp_lg_u32 s{sTwo}, 0\ns_cselect_b64 vcc, -1, 0\ns_cmp_eq_u32 s{sPnd}, 0')
    a.wait_l(tok); e('s_barrier')
    zr = [f'ds_read_b128 {vr(AZ + 4*kap, 4)}, v{vZ} offset:{LA_IK + kap*576}' for kap in range(4)]
    zr += [f'ds_read_b128 {vr(AKV + 4*kap, 4)}, v{vVm} offset:{LA_IM + kap*1024}' for kap in range(2)]
    e(zr.pop(0))
    for x in sc_[3:]: e(zr.pop(0)); e(x)
    e(f's_cbranch_scc0 {tag}_sp')
    lq = list(a.lq)
    Tm = AS + 8
    m_, t_ = T0, T1
    Y = []
    def y(x): Y.extend(x.split('\n'))
    mx = [f'v_max3_f32 v{m_}, v{AS}, v{AS+1}, v{AS+2}', f'v_max3_f32 v{m_}, v{m_}, v{AS+3}, v{AS+4}', f'v_max3_f32 v{m_}, v{m_}, v{AS+5}, v{AS+6}', f'v_max_f32 v{m_}, v{m_}, v{AS+7}']
    y('#')
    for kap in range(4):
        y(f'{MF32} {vr(Tm,4)}, {vr(AZ + 4*kap, 4)}, {vr(AQ + 4*kap, 4)}, {"0" if kap == 0 else vr(Tm,4)}')
        y('#' if kap in (0, 3) else '\n'.join(mx[2*kap-2:2*kap]))
    def xl(op):
        y(f'''v_mov_b32 v{t_}, v{m_}
        #
        v_permlane32_swap_b32 v{m_}, v{t_}
        {op} v{m_}, v{m_}, v{t_}
        v_mov_b32 v{t_}, v{m_}
        #
        v_permlane16_swap_b32 v{m_}, v{t_}
        {op} v{m_}, v{m_}, v{t_}''')
    y(f'v_max3_f32 v{m_}, v{m_}, v{Tm}, v{Tm+1}')
    xl('v_max_f32')
    y(f'v_mul_f32 v{T1}, s{sG_}, v{m_}\n#')
    for r in range(AS, AS + 10, 2): y(f'v_pk_fma_f32 {vr(r,2)}, {vr(r,2)}, s[{sG_}:{sG_+1}], {vr(T1,2)} op_sel_hi:[1,0,0] neg_lo:[0,0,1] neg_hi:[0,0,1]')
    for r in range(AS, AS + 10): y(f'v_exp_f32 v{r}, v{r}' + ('\n#' if (r - AS) % 4 == 1 else ''))
    for k in range(4): y(cvt(P + k, AS + 2*k, AS + 2*k + 1))
    y(cvt(PM + 1, Tm, Tm + 1))
    sm = [f'v_pk_add_f32 {vr(Tm+2,2)}, {vr(AS,2)}, {vr(AS+2,2)}'] + [f'v_pk_add_f32 {vr(Tm+2,2)}, {vr(Tm+2,2)}, {vr(r,2)}' for r in range(AS + 4, AS + 10, 2)]
    y(sm.pop(0))
    for n in range(4):
        y(f'{MF32} {vr(AO + 4*n, 4)}, {vr(AV + 4*n, 4)}, {vr(P,4)}, 0')
        y(sm.pop(0) if sm else f'v_add_f32 v{m_}, v{Tm+2}, v{Tm+3}')
    for n in range(4): y(f'{MF16} {vr(AO + 4*n, 4)}, {vr(AKV + 2*n, 2)}, {vr(PM,2)}, {vr(AO + 4*n, 4)}')
    xl('v_add_f32')
    y(f'v_rcp_f32 v{T1}, v{m_}')
    for h in range(2):
        for n in range(4):
            r = AO + 8*h + 2*n
            y(f'v_pk_mul_f32 {vr(r,2)}, {vr(r,2)}, {vr(T1,2)} op_sel_hi:[1,0]')
        for n in range(4): y(cvt(AO + 8*h + n, AO + 8*h + 2*n, AO + 8*h + 2*n + 1))
        y(f'ds_write_b128 v{vOw}, {vr(AO + 8*h, 4)} offset:{LA_O + h*1024}')
    def soft(rl):
        a.lq = list(lq); a.vq = []
        wst(a, tag, 4)
        for x in Y:
            if x.strip() != '#': e(x)
            elif rl: e(rl.pop(0))
        assert not rl
        wst(a, tag, 5)
    soft([])
    e(f'{tag}_jn:')
    a.vq = []
    dm = a_dma(a, tag)
    res = [f'buffer_load_dwordx2 {vr(ARS + 2*k, 2)}, v{vRes}, {RA}, s{(sE, sE2)[k]} offen' for k in range(2)]
    e(f's_add_u32 s{sPW2}, s{sPW}, 18432\ns_mov_b32 s{sPnd}, 1\ns_waitcnt lgkmcnt(0)\ns_barrier')
    wst(a, tag, 6)
    for n in range(8): e(f'ds_read_b128 {vr(AOF + 4*n, 4)}, v{L16} offset:{LA_O + n*1024}')
    e(dm.pop(0))
    pend = []
    nx = [rd(k) for k in range(PF)]
    for h in range(2):
        W = AW + 36 * h
        for grp in ((0, 1, 2), (3, 4, 5), (6, 7, 8)):
            if h == 1 and grp[0] == 3: e(f's_cmp_lt_u32 s{sSeg}, 64\ns_cselect_b32 s{t0}, 0, {OOB}\nbuffer_load_dword v{vPg}, off, {WS}, s{t0} offset:{PROG} sc1')
            for kap in range(4):
                for u in grp:
                    e(f'{MF32} {vr(W + 4*u, 4)}, {vr(16*u + 4*kap, 4, "a")}, {vr(AOF + 16*h + 4*kap, 4)}, {"0" if kap == 0 else vr(W + 4*u, 4)}')
                    if kap >= 1:
                        for x in pend[:2]: e(x)
                        pend = pend[2:]
                    if dm and u == 2:
                        e(dm.pop(0)); tokd = a.mark_v()
                    if res and u == 0: e(res.pop(0))
                    if (h, kap, u) == (1, 2, 6): a.wait_v(tokd); e('s_barrier')
                    elif (h, grp[0]) == (1, 6) and kap >= 2: e(nx.pop(0))
            for u in grp: pend += proj_epi(u, W, sc, (sPW, sPW2)[h])
    assert not nx
    for x in pend: e(x)
    wst(a, tag, 7)
    next_slot(a)
    e(f's_cmp_lt_u32 s{sSeg}, 64\ns_cbranch_scc1 {tag}_loop')
    a.endq = list(a.vq)
    a.lq = []; a.vq = []
    e(f'{tag}_wx:')
    e('\n'.join(rld(0)))
    e(f's_cmp_eq_u32 s{sTwo}, 0\ns_cbranch_scc1 {tag}_n2')
    e('\n'.join(rld(1)))
    e(f'''{tag}_n2:
    s_mov_b32 s{sPnd}, 0
    s_waitcnt vmcnt(0)
    v_readfirstlane_b32 s{sProg}, v{vPg}
    s_cmp_gt_u32 s{sProg}, s{sSeg}
    s_cselect_b32 s{t0}, s{sH_}, {OOB}
    buffer_load_dwordx4 {vr(AKN,4)}, v{L16}, {WS}, s{t0} offen sc1''')
    rsum(tag + 'b', 0)
    if WST[0] and WST[0][0] == tag: WST[0][1] += 1
    wst(a, tag, 8)
    if WST[0] and WST[0][0] == tag: WST[0][1] -= 1
    rsum(tag + 'b', 1)
    e(f'''s_cmp_lt_u32 s{sSeg}, 64
    s_cbranch_scc0 {FIN}
    s_cmp_gt_u32 s{sProg}, s{sSeg}
    s_cbranch_scc0 {tag}_pollk
    s_waitcnt vmcnt(2)
    s_cmp_eq_u32 s{sTwo}, 0
    s_cbranch_scc0 {tag}_chk
    s_waitcnt vmcnt(1)
    s_branch {tag}_chk
    {tag}_wt:
    s_cmp_eq_u32 s{sPnd}, 0
    s_cbranch_scc1 {tag}_pollk
    buffer_load_dword v{vPg}, off, {WS}, 0 offset:{PROG} sc1
    s_branch {tag}_wx
    {tag}_pollk:
    {SPIN}
    s_cmp_ge_u32 s{sSeg}, {opt(OPT, 'dp', 63)}
    s_cbranch_scc1 {tag}_pk
    s_cmp_gt_u32 s{sProg}, s{sSeg}
    s_cbranch_scc1 {tag}_pk
    buffer_load_dword v{vPg}, off, {WS}, 0 offset:{PROG} sc1
    s_waitcnt vmcnt(0)
    v_readfirstlane_b32 s{sProg}, v{vPg}
    s_cmp_gt_u32 s{sProg}, s{sSeg}
    s_cbranch_scc1 {tag}_pk
    s_cmp_ge_u32 s{sProg}, {opt(OPT, 'ns', 63)}
    s_cbranch_scc1 {tag}_pollk
    s_sleep {sa}
    s_branch {tag}_pollk
    {tag}_pk:
    buffer_load_dwordx4 {vr(AKN,4)}, v{L16}, {WS}, s{sH_} offen sc1
    s_waitcnt vmcnt(0)
    s_branch {tag}_chk''')
    e(f'{tag}_sp:')
    soft([f'{x}\ns_cbranch_vccz {tag}_q{n}\n{z}\n{tag}_q{n}:' for n, (x, z) in enumerate(zip(rld(0), rld(1)))])
    e('s_waitcnt vmcnt(0)')
    rsum(tag + 'a', 0)
    rsum(tag + 'a', 1)
    e(f's_branch {tag}_jn')
    for tg, k in rare:
        if tg[-1] == 'b':
            red_again(a, ARD + 32*k, PSA, 32768 * k, f'{tg}_r{k}', f'{tg}_s{k}'); continue
        e(f'{tg}_r{k}:')
        red_ld(a, ARD + 32*k, PSA, 32768 * k); e(SPIN)
        e(f's_waitcnt vmcnt(0)\ns_branch {tg}_s{k}')
    a_flags(a, tag)

def gfrag(q, k):
    n = 4 * k + q if q < 4 else 72 + k
    return vr(4 * n, 4, 'a') if n < 64 else vr(188 + 4 * (n - 64), 4)
def gparts(q, k):
    n = 4 * k + q if q < 4 else 72 + k
    return ('a', 4 * n) if n < 64 else ('v', 188 + 4 * (n - 64))
FD16, FDR, FCS = 170, 122, 102
LF_H = 0; LF_ACT = 18432; LF_SH = 22528; LF_W = 26624; LF_WSTR = 24576
LF_ST = 124928; LF_Z = LF_ST + 512; LF_X = 0x20000
FLT = [1, 2, 4, 5, 7, 8]
def f_load(a):
    e = a.e
    red_setup(a)
    srd(a, S_RA, P_WD, 4608 * 1152)
    tr_cols(a, f'v_lshrrev_b32 v{T0}, 2, v{LJ}\nv_lshl_add_u32 v{T0}, v{LG}, 2, v{T0}')
    e(f's_mul_i32 s{sA}, s{S_H}, {144*1152}')
    for rnd, (row0, nk) in enumerate(((0, 27), (96, 14))):
        e(f's_mul_i32 s{t1}, s{S_W}, {nk*1024}\ns_add_u32 s{t0}, s{sA}, s{t1}\ns_add_u32 s{t0}, s{t0}, {row0*1152}')
        for n in range(nk):
            if n & 3 == 0: e(f's_add_u32 m0, s{t1}, {n*1024}\ns_add_u32 s{t2}, s{t0}, {n*1024}')
            e(f'buffer_load_dwordx4 v{L16}, {RA}, s{t2} offen offset:{(n & 3)*1024} lds')
        e('s_waitcnt vmcnt(0)\ns_barrier')
        for kap in ((0, 1, 2), (3, 4))[rnd]:
            for u in range(9):
                col = 0 if u == 8 else (u >> 1) * 64 + (u & 1) * 8
                ad = T3 if u == 8 else vTr
                if kap == 4:
                    e(f'ds_read_b64_tr_b16 {vr(FD16 + 2*u, 2)}, v{ad} offset:{col}')
                else:
                    p, b = ('v', FDR + 16*(u // 3) + 4*kap) if u % 3 == 0 else ('a', 16*FLT.index(u) + 4*kap)
                    for hh in range(2):
                        e(f'ds_read_b64_tr_b16 {vr(b + 2*hh, 2, p)}, v{ad} offset:{col + hh*16*1152}')
            d = -64 * 1152 if kap == 2 else 32 * 1152
            e(f'v_add_u32 v{vTr}, {d}, v{vTr}\nv_add_u32 v{T3}, {d}, v{T3}')
        e('s_waitcnt lgkmcnt(0)\ns_barrier')
    e(f's_mul_i32 s{t0}, s{S_W}, {LF_WSTR}\ns_add_u32 s{t0}, s{t0}, {LF_W}\nv_add_u32 v{vXw}, s{t0}, v{L16}')
    for n in range(24): e(f'ds_write_b128 v{vXw}, {vr(4*n, 4, "a")} offset:{n*1024}')
    e('s_waitcnt lgkmcnt(0)')
    srd(a, S_RA, P_WG, 576 * 9216); srd(a, S_RB, P_WU, 576 * 9216)
    NS = 7
    e(f'''s_mul_i32 s{sB}, s{S_W}, 6144
    s_lshl_b32 s{sC}, s{S_W}, 13
    s_add_u32 s{sC}, s{sC}, {LF_W + 4*LF_WSTR}
    v_lshrrev_b32 v{T0}, 2, v{LN}
    v_mul_u32_u24 v{T0}, 9216, v{T0}
    v_and_b32 v{T1}, 3, v{LN}
    v_lshl_add_u32 v{T0}, v{T1}, 4, v{T0}
    v_lshrrev_b32 v{T2}, 1, v{LN}
    v_mul_u32_u24 v{T2}, 9216, v{T2}
    v_and_b32 v{T3}, 1, v{LN}
    v_lshl_add_u32 v{T2}, v{T3}, 4, v{T2}
    s_mul_i32 s{sD}, s{S_H}, 288
    s_lshl_b32 s{t0}, s{S_W}, 6
    s_add_u32 s{sA}, s{sD}, s{t0}
    s_and_b32 s{t0}, s{S_W}, 1
    s_mul_i32 s{t0}, s{t0}, {288*9216}
    s_add_u32 s{sD}, s{sD}, s{t0}
    s_add_u32 s{sD}, s{sD}, 256''')
    e(f'''v_lshrrev_b32 v{T3}, 2, v{LJ}
    v_lshl_add_u32 v{T3}, v{LG}, 3, v{T3}
    v_lshlrev_b32 v{T1}, 3, v{T1}
    v_lshl_add_u32 v32, v{T3}, 6, v{T1}
    v_lshl_add_u32 v33, v{T3}, 5, v{T1}
    v_add_u32 v34, s{sC}, v32
    v_add_u32 v35, s{sC}, v33
    v_add_u32 v32, s{sB}, v32
    v_add_u32 v33, s{sB}, v33''')
    blocks = [(m, k) for k in range(18) for m in range(2)] + [(2, k) for k in range(0, 9, 2)]
    toks = {}
    def slot(n):
        s = n % NS
        return (0, s * 2048) if s < 3 else (1, (s - 3) * 2048)
    def issue(n):
        m, k = blocks[n]; hi, off = slot(n)
        if m == 2 and k == 0:
            e(f'''s_cmp_ge_u32 s{S_W}, 2
            s_cselect_b32 s{S_RA}, s{P_WU}, s{P_WG}
            s_cselect_b32 s{S_RA+1}, s{P_WU+1}, s{P_WG+1}''')
        for hh in range(2):
            if m == 2 and k + hh > 8: continue
            e(f's_add_u32 m0, s{sC if hi else sB}, {off + hh*1024}')
            if m < 2:
                e(f's_add_u32 s{t0}, s{sA}, {(32*k + 16*hh)*9216}\nbuffer_load_dwordx4 v{T0}, {RB if m else RA}, s{t0} offen lds')
            else:
                e(f's_add_u32 s{t0}, s{sD}, {32*(k + hh)*9216}\nbuffer_load_dwordx4 v{T2}, {RA}, s{t0} offen lds')
        toks[n] = a.mark_v()
    for n in range(NS): issue(n)
    for n, (m, k) in enumerate(blocks):
        hi, off = slot(n)
        a.wait_v(toks[n])
        for t in range(2):
            if m == 2 and k + t > 8: continue
            p, b = gparts(2 * m + t, k) if m < 2 else gparts(4, k + t)
            for u in range(2):
                if m < 2: e(f'ds_read_b64_tr_b16 {vr(b + 2*u, 2, p)}, v{32 + 2*hi} offset:{off + t*32 + u*256}')
                else: e(f'ds_read_b64_tr_b16 {vr(b + 2*u, 2, p)}, v{33 + 2*hi} offset:{off + t*1024 + u*128}')
        e('s_waitcnt lgkmcnt(0)')
        if n + NS < len(blocks): issue(n + NS)
    for k in range(4): e(f'v_mov_b32 v{32+k}, 0x3f803f80')
    for k in range(18):
        for q in range(5):
            if q == 4 and k >= 9: continue
            e(f'{MF32} {vr(FCS + 4*q, 4)}, {gfrag(q, k)}, v[32:35], {"0" if k == 0 else vr(FCS + 4*q, 4)}')

sPend, sX5, sM0 = 67, 68, 69
def f_dma(a, tag):
    r = []
    lab = a.newlabel(tag)
    for n in range(5):
        x = [f's_add_u32 m0, s{sM0}, {n*4096}', f's_add_u32 s{t0}, s{sA}, {n*4096}', f'buffer_load_dwordx4 v{L16}, {WS}, s{t0} offen sc1 lds']
        r.append(x if n < 4 else [f's_cmp_lt_u32 s{S_W}, 2', f's_cbranch_scc0 {lab}'] + x + [f'{lab}:'])
    return [r[4]] + r[:4]

def f_init(a):
    e = a.e
    srd(a, S_RA, P_OUT, 2048 * 1152)
    e(f'''s_sub_u32 s{sK}, s{S_G}, {8 - NF}
    s_mul_i32 s{sE}, s{sK}, 18432
    s_lshl_b32 s{sM0}, s{S_W}, 10
    s_add_u32 s{sA}, s{sE}, s{sM0}
    s_add_u32 s{sA}, s{sA}, {H}
    s_lshl_b32 s{t1}, s{sTask}, 4
    s_add_u32 s{sE}, s{sE}, s{t1}
    v_mul_u32_u24 v{vPS}, 1152, v{LJ}
    v_mov_b32 v{T0}, {OOB}
    v_cmp_eq_u32 vcc, 0, v{LG}
    v_cndmask_b32 v{vPS}, v{T0}, v{vPS}, vcc
    v_lshlrev_b32 v{vRes}, 4, v{LJ}
    v_and_b32 v{T0}, 1, v{LG}
    v_lshl_add_u32 v{vRes}, v{T0}, 3, v{vRes}
    s_min_u32 s{t1}, s{sTask}, 71
    s_lshl_b32 s{t1}, s{t1}, 8
    v_add_u32 v{vRes}, s{t1}, v{vRes}
    v_mov_b32 v{vTr}, v{L16}
    v_add_u32 v19, s{sM0}, v{L16}
    v_mov_b32 v18, v19
    v_add_u32 v9, 16384, v19
    v_mov_b32 v{T0}, {LF_Z}
    s_cmp_lt_u32 s{S_W}, 2
    s_cselect_b32 s{sX5}, {LF_X}, 0
    s_cselect_b64 vcc, -1, 0
    v_cndmask_b32 v9, v{T0}, v9, vcc
    s_and_b32 s{t0}, s{S_W}, 1
    s_mul_i32 s{t0}, s{t0}, 9216
    v_add_u32 v20, s{t0}, v{L16}
    v_lshlrev_b32 v21, 4, v{LJ}
    v_lshrrev_b32 v{T1}, 2, v{LJ}
    v_lshl_add_u32 v{T1}, v{T1}, 8, v21
    v_and_b32 v{T2}, 3, v{LJ}
    v_lshl_add_u32 v{T1}, v{T2}, 2, v{T1}
    v_add_u32 v21, {LF_ST}, v21
    s_lshl_b32 s{t0}, s{S_W}, 2
    v_add_u32 v{vZ}, s{t0}, v21
    v_mov_b64 v[28:29], 0
    v_mov_b64 v[30:31], 0
    s_mov_b32 s{sB}, 0x3f803f80
    s_mov_b32 s{sC}, {hex(f2u(-1.4426950408889634))}
    s_mov_b32 s{sSpin}, 0x100000
    s_mov_b32 s{sPend}, 0
    s_barrier
    ds_write_b128 v{T0}, v[28:31]
    v_add_u32 v{T0}, {LF_ACT}, v{T1}''')
    for x in f_dma(a, 'fd'): e('\n'.join(x))
    e('s_waitcnt vmcnt(0) lgkmcnt(0)')

def f_loop(a, tag, sc):
    e = a.e
    a.lq = []; a.vq = []
    G = 32; XB = 52; W = 32; AF = 68; WB = 86; RD = 52; D = 28; RES = 22
    M, CR, R2 = 2, 3, 4
    vH, vHs, vC, vC5 = vTr, 20, 18, 9
    def rbf(r): return [f'v_cvt_pk_bf16_f32 v{r}, v{r}, v{r}', f'v_lshlrev_b32 v{r}, 16, v{r}']
    def fin():
        red_fin(a, RD, D, RES)
        e(f'''buffer_store_dwordx4 {vr(D,4)}, v{vPS}, {RA}, s{sE} offen
        s_add_u32 s{sE}, s{sE}, {NF*18432}
        s_xor_b32 s{sPR}, s{sPR}, {RSLOT}
        s_mov_b32 s{sPend}, 0''')
    e(f'{tag}_loop:')
    wst(a, tag, 0)
    OWN = list(range(WB, WB + 16)) + list(range(D, D + 4))
    for n in range(4): e(f'ds_read_b128 {vr(WB + 4*n, 4)}, v{vC} offset:{n*4096}')
    e(f'ds_read_b128 {vr(D, 4)}, v{vC5}')
    for k in range(4): e(f'v_mov_b32 v{G+k}, s{sB}')
    e(f'v_max_u32 v{vMx}, v{OWN[0]}, v{OWN[1]}')
    for k in range(2, 20, 2): e(f'v_max3_u32 v{vMx}, v{vMx}, v{OWN[k]}, v{OWN[k+1]}')
    e(f'''v_cmp_eq_u32 vcc, -1, v{vMx}
    s_cbranch_vccnz {tag}_wait
    s_barrier''')
    wst(a, tag, 1)
    def rd(k): return f'ds_read_b128 {vr(XB + 4*(k % 4), 4)}, v{vH} offset:{k*1024}'
    def rds(k): return f'ds_read_b128 {vr(AF + 4*(k % 4), 4)}, v{vHs} offset:{k*1024}'
    S = WB; SH = AF; DS = XB + 12
    pre = [rds(0), rd(0), rds(1), rds(2), rd(1), rds(3), rd(2), f'v_xor_b32 v{vC}, {LF_X}, v{vC}', f'v_xor_b32 v{vC5}, s{sX5}, v{vC5}']
    e(pre.pop(0))
    for n in range(5):
        P = vr(OWN[4*n], 4)
        for A_, D_ in ((vr(G, 4), vr(DS, 4)), (P, vr(WB, 4))):
            if pre: e(pre.pop(0))
            e(f'{MF32} {D_}, {A_}, {P}, {D_ if n else 0}')
    def one(x): return [y for z in x for y in (z, '')]
    st = [f's_add_u32 s{sA}, s{sA}, {NF*18432}\ns_cmp_lt_u32 s{sK}, {128 - NF}', f's_cselect_b32 s{sA}, s{sA}, {OOB}\ns_xor_b32 s{sM0}, s{sM0}, {LF_X}']
    st += one(['', f'ds_write_b32 v{vZ}, v{DS}', f'ds_write_b128 v19, {vr(WB,4)} offset:{LF_ACT}', '#m', rd(3), '', '', '#b'])
    st += one([f'ds_read_b128 {vr(S,4)}, v21'] + [f'ds_read2st64_b32 {vr(S+4+2*k,2)}, v{T0} offset0:{8*k} offset1:{8*k+4}' for k in range(2)] + [''] * 3)
    st += [f'v_add_f32 v{S+k}, v{S+k}, v{S+k+1}' for k in (0, 2, 4, 6)] + [f'v_add_f32 v{M+k}, v{S+4*k}, v{S+4*k+2}' for k in range(2)]
    st += [f'v_mul_f32 v{M}, {hex(f2u(-1/576))}, v{M}', f'v_mul_f32 v{CR}, {hex(f2u(1/576))}, v{CR}']
    st += one([f'v_fma_f32 v{CR}, -v{M}, v{M}, v{CR}'] + rbf(M) + [f'v_max_f32 v{CR}, 0, v{CR}'] + rbf(CR))
    assert len(st) <= 54, len(st)
    st += [''] * (54 - len(st))
    st += [f'v_fma_f32 v{G+16+q}, v{M}, v{FCS+16+q}, v{G+16+q}' for q in range(4)] + ['', '', f'ds_write_b128 v19, {vr(G+16,4)} offset:{LF_SH}', '#m']
    st += one([f'v_add_f32 v{CR}, {hex(f2u(1e-5))}, v{CR}'] + rbf(CR) + [f'v_sqrt_f32 v{CR}, v{CR}', '#b'])
    for k, x in enumerate(rbf(CR) + [f'v_rcp_f32 v{CR}, v{CR}', '']): st += [f'ds_read_b128 {vr(SH + 4*k, 4)}, v{L16} offset:{LF_SH + k*1024}', x]
    st += one([f'v_mul_f32 v{R2}, v{CR}, v{CR}', f'v_mul_f32 v{CR}, s{sC}, v{CR}', ''])
    g, tm, u_ = SH, SH + 4, SH + 8
    def mix(x):
        for z in x:
            if len(st) & 1 and ((len(st) // 2 - 29) % 4 == 0 or st[-1].startswith(TRANS) or z.startswith(TRANS)): st.append('')
            if z.startswith(TRANS) and (len(st) // 2 - 29) % 4 == 0 and len(st) < 2 * (29 + 40): st.extend(['', ''])
            st.append(z)
    mix([f'v_add_f32 v{g+k}, v{g+k}, v{g+4+k}' for k in range(4)] + [f'v_mul_f32 v{tm+k}, v{g+k}, v{CR}' for k in range(4)])
    mix([f'v_exp_f32 v{tm+k}, v{tm+k}' for k in range(4)] + [f'v_add_f32 v{u_+k}, v{u_+k}, v{u_+4+k}' for k in range(4)])
    mix([f'v_add_f32 v{tm+k}, 1.0, v{tm+k}' for k in range(4)] + [f'v_mul_f32 v{g+k}, v{g+k}, v{u_+k}' for k in range(4)])
    mix([f'v_rcp_f32 v{tm+k}, v{tm+k}' for k in range(4)] + [f'v_mul_f32 v{g+k}, v{g+k}, v{R2}' for k in range(4)])
    mix([f'v_mul_f32 v{g+k}, v{g+k}, v{tm+k}' for k in range(4)] + [cvt(AF + 16, g, g + 1), cvt(AF + 17, g + 2, g + 3)])
    tk = [None]
    def gap():
        for x in st[:2]:
            if x == '#m': tk[0] = a.mark_l()
            elif x == '#b': a.wait_l(tk[0]); e('s_barrier')
            else: e(x)
        del st[:2]
    for k in range(18):
        X = XB + 4 * (k % 4)
        for q in range(4):
            kk = 2 * k + q // 2
            if q & 1 == 0 and kk < 9:
                e(f'{MF32} {vr(G + 16, 4)}, {gfrag(4, kk)}, {vr(AF + 4*(kk % 4), 4)}, {"0" if kk == 0 else vr(G + 16, 4)}')
                gap()
            e(f'{MF32} {vr(G + 4*q, 4)}, {gfrag(q, k)}, {vr(X,4)}, {"0" if k == 0 else vr(G + 4*q, 4)}')
            if q == 0 and 3 < k + 3 < 18: e(rd(k + 3))
            if q & 1 and kk + 4 < 9: e(rds(kk + 4))
            gap()
    assert not st, len(st)
    wst(a, tag, 2)
    e(f's_cmp_eq_u32 s{sPend}, 0\ns_cbranch_scc1 {tag}_nl')
    red_ld(a, RD)
    vq = list(a.vq)
    e(f'{tag}_nl:')
    for k in range(0, 16, 2): e(f'v_pk_fma_f32 {vr(G+k,2)}, {vr(M,2)}, {vr(FCS+k,2)}, {vr(G+k,2)} op_sel_hi:[0,1,1]')
    U = G + 8
    for k in range(0, 8, 2): e(f'v_pk_mul_f32 {vr(S+k,2)}, {vr(G+k,2)}, {vr(M,2)} op_sel:[0,1] op_sel_hi:[1,1]')
    for k in range(8):
        e(f'v_exp_f32 v{S+k}, v{S+k}')
        if k & 1: e(f'v_pk_mul_f32 {vr(G+k-1,2)}, {vr(G+k-1,2)}, {vr(U+k-1,2)}')
    for k in range(0, 8, 2): e(f'v_pk_add_f32 {vr(S+k,2)}, {vr(S+k,2)}, 1.0 op_sel_hi:[1,0]')
    for k in range(8):
        e(f'v_rcp_f32 v{S+k}, v{S+k}')
        if k & 1: e(f'v_pk_mul_f32 {vr(G+k-1,2)}, {vr(G+k-1,2)}, {vr(R2,2)} op_sel_hi:[1,0]')
    for k in range(0, 8, 2): e(f'v_pk_mul_f32 {vr(G+k,2)}, {vr(G+k,2)}, {vr(S+k,2)}')
    for k in range(4): e(cvt(G + k, G + 2*k, G + 2*k + 1))
    e(f'ds_write_b128 v19, {vr(G,4)} offset:{LF_ACT}')
    ORD = [4 * FLT.index(u) + kap for g in range(3) for kap in range(4) for u in (3*g + 1, 3*g + 2)]
    def wrd(i): e(f'ds_read_b128 {vr(WB + 4*(i % 4), 4)}, v{vXw} offset:{ORD[i]*1024}')
    tok = a.mark_l()
    wst(a, tag, 3)
    for i in range(4): wrd(i)
    e(f's_cmp_eq_u32 s{sPend}, 0\ns_cbranch_scc1 {tag}_nr\n{tag}_rs:')
    red_sum(a, RD, D, f'{tag}_ra')
    fin()
    e(f'{tag}_nr:')
    wst(a, tag, 4)
    a.vq = []
    a.wait_l(tok)
    e('s_barrier')
    wst(a, tag, 5)
    for k in range(4): e(f'ds_read_b128 {vr(AF + 4*k, 4)}, v{L16} offset:{LF_ACT + k*1024}')
    e(f'ds_read_b64 {vr(RES,2)}, v{vRes}')
    dm = f_dma(a, tag + 'd')
    for u in range(9):
        e(f'{MF16} {vr(W + 4*u, 4)}, {vr(FD16 + 2*u, 2)}, {vr(AF + 16, 2)}, 0')
        if u in (1, 6): e('\n'.join(dm.pop(0)))
    pend = [f'v_xor_b32 v{r}, {LF_X}, v{r}' for r in (vH, vHs, vRes)]
    i = 0
    for grp in range(3):
        for kap in range(4):
            for u in range(3*grp, 3*grp + 3):
                wv = FDR + 16*grp + 4*kap if u % 3 == 0 else WB + 4*(i % 4)
                e(f'{MF32} {vr(W + 4*u, 4)}, {vr(wv, 4)}, {vr(AF + 4*kap, 4)}, {vr(W + 4*u, 4)}')
                if u % 3:
                    if i + 4 < 24: wrd(i + 4)
                    i += 1
                elif dm:
                    e('\n'.join(dm.pop(0)))
                    if not dm: tokd = a.mark_v()
                if kap >= 1:
                    n = 2 if u % 3 else 3
                    for x in pend[:n]: e(x)
                    pend = pend[n:]
        for u in range(3*grp, 3*grp + 3): pend += proj_epi(u, W, sc)
    for x in pend: e(x)
    wst(a, tag, 6)
    if WST[0] and WST[0][0] == tag: WST[0][1] += 1
    next_slot(a)
    e(f'''s_cmp_lt_u32 s{sTask}, 72
    s_cselect_b32 s{sPend}, 1, 0
    s_add_u32 s{sK}, s{sK}, {NF}
    s_cmp_lt_u32 s{sK}, 128
    s_cbranch_scc0 {tag}_wait''')
    a.wait_v(tokd)
    wst(a, tag, 7)
    e(f's_branch {tag}_loop')
    a.lq = []; a.vq = []
    e(f'{tag}_wait:\ns_cmp_eq_u32 s{sPend}, 0\ns_cbranch_scc1 {tag}_w2')
    red_ld(a, RD)
    e(f'{tag}_w1:')
    red_sum2(a, RD, D, f'{tag}_wa')
    fin()
    wst(a, tag, 8)
    e(f'{tag}_w2:\ns_cmp_lt_u32 s{sK}, 128\ns_cbranch_scc0 {FIN}')
    for x in f_dma(a, tag + 'w'): e('\n'.join(x))
    e(SPIN)
    e(f's_waitcnt vmcnt(0)\ns_branch {tag}_loop')
    a.vq = []
    e(f'{tag}_ra:')
    red_ld(a, RD); e(SPIN)
    e(f's_waitcnt vmcnt(0)\ns_branch {tag}_rs')
    red_again(a, RD, PS, 0, f'{tag}_wa', f'{tag}_w1')
```

```python
import sys
sys.path.insert(0, 'gen')
from asmlib import *
from layout import *
import rec6 as rec2
from rec6 import *
from work import *
NAME = 'sequential_preLN__memory_aug_recurrent_mem_tr__swiglu_ffn__prompt'

MAP = '31204567'
def tstamp(a, k, on):
    if on: a.e(f's_memrealtime s[{96+2*k}:{97+2*k}]\ns_waitcnt lgkmcnt(0)')

def gen(opt=()):
    a = Asm(); e = a.e
    st = 'st' in opt
    force = 1 if 'fb' in opt else None
    DEF = ['lf', 'mf', 'pc=38', 'pl=60']
    opt = list(opt) + DEF
    w_ = rec2.opt(opt, 'ws')
    OPT[:] = list(opt)
    WST[0] = [w_.split('.')[0], int(w_.split('.')[1])] if w_ else None
    e(f'''s_cmp_ge_u32 s2, 256
    s_cbranch_scc1 K_exit
    s_load_dwordx8 s[16:23], s[0:1], 0
    s_load_dwordx4 s[24:27], s[0:1], 32
    s_load_dwordx8 s[32:39], s[0:1], 64
    s_load_dwordx4 s[40:43], s[0:1], 96
    v_lshrrev_b32 v1, 6, v0
    v_readfirstlane_b32 s{S_W}, v1''')
    tab = rec2.opt(opt, 'map', MAP)
    e(f'''s_getreg_b32 s{S_G}, hwreg(HW_REG_XCC_ID, 0, 3)
    s_lshl_b32 s{S_G}, s{S_G}, 2
    s_lshr_b32 s{S_G}, 0x{tab[::-1]}, s{S_G}
    s_and_b32 s{S_G}, s{S_G}, 7
    s_lshr_b32 s{S_H}, s2, 3
    s_mov_b32 s{sFB}, 0''')
    e(f'''s_waitcnt lgkmcnt(0)
    s_mov_b32 s{S_WS}, s{P_WSP}
    s_mov_b32 s{S_WS+1}, s{P_WSP+1}
    s_mov_b32 s{S_WS+2}, {WS_BYTES}
    s_mov_b32 s{S_WS+3}, 0x20000''')
    if rec2.opt(opt, 'tpA'): e('s_mov_b32 s78, 63')
    if st:
        for k in range(3): tstamp(a, k, st)
        e('s_memrealtime s[94:95]\ns_waitcnt lgkmcnt(0)')
    e(f'''K_go:
    s_cmp_eq_u32 s{S_G}, 0
    s_cbranch_scc0 W_start''')
    stp = [int(x) for x in rec2.opt(opt, 'stp', '').split('.') if x]
    rec_setup(a, False)
    arrive(a, 24, None)
    rec_load(a, pre=lambda: gb_ld(a, 16), w0=int(rec2.opt(opt, 'w0', 0)), wn=int(rec2.opt(opt, 'wn', 5)), mod=' nt' if 'rnt' in opt else '', stp=stp)
    if not stp: tstamp(a, 0, st)
    gbar(a, 16, rec2.sSpin, rec2.sT0, force)
    rec_init(a, 0)
    if not stp: tstamp(a, 1, st)
    e(f's_cmp_eq_u32 s{sFB}, 0\ns_cbranch_scc0 RF_disp')
    rec_disp(a, 'R')
    for w in range(4): rec_loop(a, w, None, FIN, list(opt) + ['pf=36'], tag='R')
    e('RF_disp:')
    rec_disp(a, 'RF')
    for w in range(4): rec_loop(a, w, None, FIN, ['pf=36'], tag='RF', cs=' sc1')
    TOP = 163836
    def lane0(): e(f'''v_mbcnt_lo_u32_b32 v0, -1, 0
    v_mbcnt_hi_u32_b32 v0, -1, v0
    s_lshl_b32 s28, s{S_W}, 6
    v_add_u32 v0, s28, v0''')
    e(f'''K_again:
    s_waitcnt vmcnt(0)
    s_barrier
    s_mov_b32 s{sFB}, 1''')
    lane0()
    if 'perm' in opt: e(f's_lshr_b32 s{S_G}, s2, 5\ns_and_b32 s{S_H}, s2, 31')
    else: e(f's_and_b32 s{S_G}, s2, 7')
    e('s_branch K_go')
    e('W_start:')
    a.lq = []; a.vq = []
    w_init(a)
    e(f's_cmp_eq_u32 s{S_G}, 1\ns_cbranch_scc1 Q_start')
    e(f's_sub_u32 s{t0}, s{S_G}, 3\ns_cmp_lt_u32 s{t0}, {NA}\ns_cbranch_scc1 A_start')
    e(f's_cmp_eq_u32 s{S_G}, 2\ns_cbranch_scc0 F_start')
    tch = rec2.opt(opt, 'tch', '')
    touch(a, tch)
    e(f's_mul_i32 s{t0}, s{S_H}, {4*18432}\ns_add_u32 s{t0}, s{t0}, {H}')
    for n in range(18): e(f'buffer_store_dwordx4 v[12:15], v{T3}, {WS}, s{t0} offen sc1\ns_add_u32 s{t0}, s{t0}, 4096')
    e(f'buffer_store_dword v10, v9, {WS}, 0 offen offset:{PROG} sc1')
    if 'mf' in opt:
        e(f's_lshl_b32 s{t0}, s{S_H}, 15\ns_add_u32 s{t0}, s{t0}, {MRING + 3*MSTR}')
        for n in range(6): e(f's_add_u32 s{t1}, s{t0}, {(n // 3)*MSTR + (n % 3)*4096}\nbuffer_store_dwordx4 v[12:15], v{T3}, {WS}, s{t1} offen sc1')
    ring_fill(a, PSA, 9)
    e('s_waitcnt vmcnt(19)')
    rec_setup(a, True)
    arrive(a, 24)
    tstamp(a, 0, st)
    gbar(a, 12, sSpin, t0, force, TOP, 64)
    if int(rec2.opt(opt, 'z0', Z0)) > 63: e(f's_branch {FIN}')
    e(f'''s_mov_b32 s{sSpin}, 0x1000
    s_cmp_eq_u32 s{S_W}, 0
    s_cbranch_scc0 Z_go
    Z_w:
    s_sleep 127
    buffer_load_dword v12, off, {WS}, 0 offset:{PROG} sc1
    {SPIN}
    s_waitcnt vmcnt(0)
    v_readfirstlane_b32 s{t0}, v12
    s_cmp_lt_u32 s{t0}, {rec2.opt(opt, 'zl', 46)}
    s_cbranch_scc1 Z_w
    Z_go:
    s_barrier''')
    lane0()
    w_init(a)
    e('s_branch A_ld')
    e('Q_start:')
    a.lq = []; a.vq = []
    q_load(a)
    tstamp(a, 1, st)
    gbar(a, 16, sSpin, t0, force, TOP)
    tstamp(a, 2, st)
    q_main(a)
    e(f's_branch {FIN}')
    a_flags(a, 'AI')
    e('A_start:')
    a.lq = []; a.vq = []
    def flagw(tag, n):
        if n: e(f'''s_lshl_b32 s{t1}, s{S_H}, 6
        {tag}_w:
        s_sleep 16
        buffer_load_dword v32, off, {WS}, s{t1} sc1
        {SPIN}
        s_waitcnt vmcnt(0)
        v_readfirstlane_b32 s{t0}, v32
        s_cmp_le_u32 s{t0}, {n}
        s_cbranch_scc1 {tag}_w''')
    def late():
        gbar(a, 32, sSpin, t0, force, TOP, 16)
        flagw('A', rec2.opt(opt, 'aw'))
        tstamp(a, 0, st)
    a_load(a, lambda: tstamp(a, 0, st), rec2.opt(opt, 'ao', 'oq'), late if 'la' in opt else None)
    tstamp(a, 1, st)
    if 'la' not in opt: gbar(a, 32, sSpin, t0, force, TOP)
    a_init(a)
    tstamp(a, 2, st)
    e(f's_cmp_eq_u32 s{sFB}, 0\ns_cbranch_scc0 AF_in')
    a_loop(a, 'A', '')
    a_loop(a, 'AF', ' sc1')
    e('F_start:')
    a.lq = []; a.vq = []
    ln1(a, tch)
    arrive(a)
    tstamp(a, 0, st)
    if 'lf' in opt: gbar(a, 32, sSpin, t0, force, TOP, 16)
    flagw('F', rec2.opt(opt, 'fw'))
    tstamp(a, 1, st)
    f_load(a)
    if 'lf' not in opt: gbar(a, 32, sSpin, t0, force, TOP)
    f_init(a)
    tstamp(a, 2, st)
    e(f's_cmp_eq_u32 s{sFB}, 0\ns_cbranch_scc0 FF_loop')
    f_loop(a, 'F', '')
    f_loop(a, 'FF', ' sc1')
    e(f'{FIN}:')
    if w_:
        e(f'''s_waitcnt vmcnt(0) lgkmcnt(0)
        s_lshl_b32 s46, s2, 2
        s_add_u32 s46, s46, s{S_W}
        s_lshl_b32 s46, s46, 6
        s_add_u32 s46, s46, {STAMP - 0x10000}
        v_mov_b32 v12, 0''')
        for k in range(9): e(f'v_mov_b32 v13, s{76+2*k}\nbuffer_store_dword v13, v12, {WS}, s46 offen offset:{4*k}')
    if rec2.opt(opt, 'tpA'):
        e(f'''s_waitcnt vmcnt(0) lgkmcnt(0)
        s_lshl_b64 exec, 1, s78
        v_mov_b32 v0, s76
        s_mov_b64 exec, -1
        s_cmp_eq_u32 s{S_W}, 0
        s_cselect_b32 s46, {STAMP - 0x10000}, {OOB}
        s_lshl_b32 s47, s2, 8
        s_add_u32 s46, s46, s47
        v_mbcnt_lo_u32_b32 v12, -1, 0
        v_mbcnt_hi_u32_b32 v12, -1, v12
        v_lshlrev_b32 v12, 2, v12
        buffer_store_dword v0, v12, {WS}, s46 offen''')
    if st:
        e(f'''s_memrealtime s[92:93]
        s_waitcnt vmcnt(0) lgkmcnt(0)
        s_lshl_b32 s46, s2, 2
        s_add_u32 s46, s46, s{S_W}
        s_lshl_b32 s46, s46, 5
        s_add_u32 s46, s46, {STAMP}
        v_mov_b32 v12, 0''')
        if 'hw' in opt: e(f's_getreg_b32 s{sSpin}, hwreg(HW_REG_HW_ID)')
        for k, s in enumerate(['s94', 's96', 's98', 's100', 's92', f's{S_G}', f's{sSpin}', f's{rec2.sSpin}']):
            e(f'v_mov_b32 v13, {s}\nbuffer_store_dword v13, v12, {WS}, s46 offen offset:{4*k}')
    dg = rec2.opt(opt, 'dg')
    if dg:
        g, k = dg.split('.')
        if k == 'c':
            e('s_memtime s[48:49]\ns_waitcnt lgkmcnt(0)\ns_sub_u32 s48, s48, s98\ns_lshr_b32 s48, s48, 5\ns_add_u32 s48, s48, s94'); k = 48
        e(f'''s_cmp_eq_u32 s{S_G}, {g}
        s_cbranch_scc0 K_dg
        s_add_u32 s46, s{k}, 20000
        K_dl:
        s_memrealtime s[48:49]
        s_waitcnt lgkmcnt(0)
        s_sub_u32 s47, s48, s46
        s_cmp_lt_i32 s47, 0
        s_cbranch_scc1 K_dl
        K_dg:''')
    e('s_waitcnt vmcnt(0)')
    e('K_exit:')
    return a.finish()

def full(body):
    ref = open(f'cdna_kernels/{NAME}.s.ref').read()
    head = ref[:ref.index(f'{NAME}_kernel:\n') + len(NAME) + 9]
    tail = ref[ref.index('s_endpgm'):]
    head = head.replace('; @launch grid=(4608,1,1) block=(256,1,1) lds=0', '; @launch grid=(256,1,1) block=(256,1,1) lds=163840')
    tail = tail.replace('.amdhsa_next_free_vgpr 256', '.amdhsa_next_free_vgpr 512')
    return head + body + tail

if __name__ == '__main__':
    for v in sys.argv[1:]:
        if v == 'final': open(f'cdna_kernels/{NAME}.s', 'w').write(full(gen()))
        elif v[0] == '@': open(f'x_{v[1:].replace("=", "-")}.s', 'w').write(full(gen(v[1:].split('+'))))
        else: open(f'full_{v}.txt', 'w').write(gen(v.split('+')))
```

```python
from asmlib import *
from layout import *

S_WS = 4
S_RA = 8
S_RB = 12
P_X, P_MEM0, P_WQ, P_WK, P_WV, P_WO, P_WG, P_WU, P_WD, P_OUT, P_DBG, P_WSP = 16, 18, 20, 22, 24, 26, 32, 34, 36, 38, 40, 42
S_W = 44
S_H = 45
WS = f's[{S_WS}:{S_WS+3}]'

def srd(a, d, ptr, nbytes):
    a.e(f's_mov_b32 s{d}, s{ptr}\ns_mov_b32 s{d+1}, s{ptr+1}\ns_mov_b32 s{d+2}, {nbytes}\ns_mov_b32 s{d+3}, 0x20000')

L_BLK = 4352
L_QK = 18432
L_SEL = 23040
L_TAB = 23552
L_W0 = 24576
L_WSTR = 34816

vL16, vW, vZ, vXw, vSel, vP, vMst, vPD, vIdx, vT, vZero, vT2 = range(12)
C4 = 4
DW = 3
MB = [12, 16, 20]
QA, KA, VA, VX = 24, 32, 64, 56
SB = [40, 48]
SMF = 'v_smfmac_f32_16x16x64_bf16'
MF32 = 'v_mfma_f32_16x16x32_bf16'
MF16 = 'v_mfma_f32_16x16x16_bf16'

(sStep, sMs, sMo, sMoD, sPrd, sPrD, sKx, sKv, sSpin, sT0, sT1, sT2, sC, sFlg, sRdy) = range(46, 61)
sPg = 61
sOne = 62
sF = 64
sPW = 68
sStamp = 76
(sM1, sM2, sMkD, sPaD, sRedo, sPf, sMst, sMp, sTry) = range(16, 25)

P1SEQ = [(m, 0, t) for m in 'qkv' for t in range(2)]
P1SEQ += [(m, i, t) for i in range(1, 6) for m, t in (('q', 0), ('k', 0), ('q', 1), ('k', 1), ('v', 0), ('v', 1))]
P1SEQ += [('q', 6, 0), ('q', 7, 0), ('q', 6, 1), ('q', 7, 1), ('q', 8, 0), ('q', 8, 1)]
P1SEQ += [('k', i, t) for t in range(2) for i in (6, 7, 8)] + [('v', i, t) for i in (6, 7, 8) for t in range(2)]
P1_LDS_POS = [7, 9, 13, 15, 19, 21, 25, 27, 31, 33, 37, 39]
LDS_P1 = [P1SEQ[p] for p in P1_LDS_POS]
LDS_WO = [('o', 2, 0), ('o', 3, 0), ('o', 2, 1), ('o', 2, 3), ('o', 3, 3)]
STAGES = [(m, f) for m in 'qvk' for f in range(9) if (m, f, 0) not in LDS_P1] + [k[:2] for k in LDS_P1[::2]]

def alloc():
    slots = [('a', 8 * i) for i in range(32)] + [('v', 72 + 8 * i) for i in range(23)]
    reg = {}; lds = {}
    for m, i, t in LDS_P1: lds[(m, i, t)] = (STAGES.index((m, i)) - 1) % 8 * 4096 + t * 2048
    for n, k in enumerate(LDS_WO): lds[k] = (8192, 10240, 12288, 14336, 32768)[n]
    assert len(set(lds.values())) == 17
    assert len(lds) == 17
    k = 0
    for m in 'qkv':
        for i in range(9):
            for t in range(2):
                if (m, i, t) not in lds:
                    reg[(m, i, t)] = slots[k]; k += 1
    park = slots[k:]
    for u in range(4):
        for a in range(4):
            if ('o', u, a) not in lds:
                reg[('o', u, a)] = slots[k]; k += 1
    for a in range(4):
        p, b = slots[k + a // 2]
        reg[('o', 4, a)] = (p, b + 4 * (a & 1))
    k += 2
    assert k == 55
    return reg, lds, park
REG, LDS, PARK = alloc()

def frag_of(i, w):
    return i

def rec_setup(a, fill, ns=False):
    e = a.e
    e(f'''v_and_b32 v12, 63, v0
    v_and_b32 v13, 15, v12
    v_lshrrev_b32 v14, 4, v12
    v_lshlrev_b32 v{vL16}, 4, v12
    v_mov_b32 v{vZero}, 0
    s_mul_i32 s{sT0}, s{S_W}, {L_WSTR}
    s_add_u32 s{sT0}, s{sT0}, {L_W0}
    v_add_u32 v{vW}, s{sT0}, v{vL16}
    v_and_b32 v15, 1, v14
    v_lshrrev_b32 v16, 1, v14
    v_and_b32 v17, 3, v13
    v_lshrrev_b32 v18, 2, v13
    v_mul_u32_u24 v{vXw}, 144, v18
    v_lshl_add_u32 v{vXw}, v14, 5, v{vXw}
    v_lshl_add_u32 v{vXw}, v17, 2, v{vXw}
    s_mul_i32 s{sT0}, s{S_W}, 1152
    s_add_u32 s{sT0}, s{sT0}, {L_QK}
    v_add_u32 v{vXw}, s{sT0}, v{vXw}
    v_and_b32 v{vSel}, 0xf0, v{vL16}''')
    e(f'''v_mul_u32_u24 v{vZ}, 144, v14
    v_lshl_add_u32 v{vZ}, v18, 5, v{vZ}
    v_and_b32 v19, 1, v13
    v_lshl_add_u32 v{vZ}, v19, 4, v{vZ}''')
    e(f'''v_lshrrev_b32 v19, 3, v12
    v_mul_u32_u24 v{vP}, {TS}, v19
    v_and_b32 v19, 7, v12
    v_lshl_add_u32 v{vP}, v19, 3, v{vP}
    v_mul_u32_u24 v{vPD}, {TS}, v14
    v_lshl_add_u32 v{vPD}, v13, 2, v{vPD}
    v_mov_b32 v21, 0x88884444
    v_mov_b32 v22, 0xDDDDEEEE
    v_and_b32 v19, 2, v13
    v_cmp_eq_u32 vcc, 0, v19
    v_cndmask_b32 v{vIdx}, v22, v21, vcc''')
    e(f'''v_lshlrev_b32 v19, 4, v14
    v_lshl_add_u32 v19, v13, 2, v19
    v_mul_u32_u24 v20, 1152, v15
    v_lshl_add_u32 v20, v13, 3, v20
    v_lshl_add_u32 v20, v16, 2, v20
    v_mov_b32 v21, {OOB}
    v_cmp_gt_u32 vcc, 4, v13
    v_cndmask_b32 v28, v21, v19, vcc
    v_cndmask_b32 v20, v21, v20, vcc
    v_add_u32 v19, {2*MSTR - 16}, v19
    v_cmp_eq_u32 vcc, {9 if ns else 1}, v18
    v_cndmask_b32 v{vMst}, v28, v19, vcc''')
    e(f'''s_lshr_b32 s{sT0}, s{S_H}, 3
    s_lshl_b32 s{sT0}, s{sT0}, 1
    s_and_b32 s{sT1}, s{S_H}, 1
    s_add_u32 s{sT0}, s{sT0}, s{sT1}
    s_lshl_b32 s{sT1}, s{S_W}, 3
    s_add_u32 s{sT0}, s{sT0}, s{sT1}
    s_bfe_u32 s{sT1}, s{S_H}, 0x20001
    s_lshl_b32 s{sMo}, s{sT0}, 8
    s_lshl_b32 s{sT2}, s{sT1}, 6
    s_add_u32 s{sMo}, s{sMo}, s{sT2}
    s_mul_i32 s{sT1}, s{sT1}, 2304
    s_lshl_b32 s{sT0}, s{sT0}, 5
    s_add_u32 s{sF}, s{sT0}, s{sT1}''')
    e(f'''s_lshl_b32 s{sMoD}, s{S_H}, 6
    s_add_u32 s{sMoD}, s{sMoD}, 8192
    s_and_b32 s{sT1}, s{S_H}, 3
    s_mul_i32 s{sT1}, s{sT1}, 2304
    s_lshr_b32 s{sT0}, s{S_H}, 2
    s_lshl_b32 s{sT0}, s{sT0}, 5
    s_add_u32 s{sT0}, s{sT0}, s{sT1}
    s_add_u32 s{sF+1}, s{sT0}, 1024
    s_add_u32 s{sT0}, s{S_H}, 128
    s_mul_i32 s{sPrD}, s{sT0}, {TS}
    s_add_u32 s{sPrD}, s{sPrD}, {PRING}
    s_cmp_eq_u32 s{S_W}, {DW}
    s_cselect_b32 s{sT0}, 16, 0
    s_cmp_lt_u32 s{S_H}, s{sT0}
    s_cselect_b32 s{sMoD}, s{sMoD}, {OOB}
    s_cselect_b32 s{sPrD}, s{sPrD}, {OOB}''')
    e(f'''s_lshl_b32 s{sT0}, s{S_W}, 5
    s_add_u32 s{sT0}, s{sT0}, s{S_H}
    s_mul_i32 s{sPrd}, s{sT0}, {TS}
    s_add_u32 s{sPrd}, s{sPrd}, {PRING}
    s_lshl_b32 s{sT1}, s{S_H}, 6
    s_add_u32 s{sT1}, s{sT1}, {PRING}
    s_mul_i32 s{sT0}, s{S_W}, {8*TS}
    s_add_u32 s{sPW}, s{sT0}, s{sT1}
    s_add_u32 s{sPW+1}, s{sPW}, {32*TS}
    s_add_u32 s{sPW+2}, s{sPW}, {64*TS}
    s_add_u32 s{sPW+3}, s{sPW}, {96*TS}
    s_mul_i32 s{sT0}, s{S_W}, {4*TS}
    s_add_u32 s{sT0}, s{sT0}, s{sT1}
    s_add_u32 s{sPW+4}, s{sT0}, {128*TS}''')
    if not fill:
        e(f'''s_add_u32 s{sT0}, s{sPrd}, {32*TS}
        s_add_u32 s{sT1}, s{sMo}, 2048
        s_cmp_eq_u32 s{S_W}, {DW}
        s_cselect_b32 s{sPrD}, s{sPrD}, s{sT0}
        s_cselect_b32 s{sMoD}, s{sMoD}, s{sT1}''')
        return
    srd(a, S_RA, P_MEM0, 9216)
    e(f'''buffer_load_dword v22, v20, s[{S_RA}:{S_RA+3}], s{sF} offen
    buffer_load_dword v23, v20, s[{S_RA}:{S_RA+3}], s{sF+1} offen
    v_mov_b32 v24, 0
    v_mov_b32 v25, 0
    v_mov_b32 v26, 0
    v_mov_b32 v27, 0
    v_mov_b32 v29, -1''')
    for r in (sPrd, sPrD):
        for l in range(2): e(f'buffer_store_dwordx4 v[24:27], v{vL16}, {WS}, s{r} offen offset:{l*1024} sc1')
    for k in (1, 2):
        for r in (sMo, sMoD): e(f's_add_u32 s{sT0}, s{r}, {MRING + k*MSTR}\nbuffer_store_dword v29, v28, {WS}, s{sT0} offen sc1')
    for n, r in enumerate((sMo, sMoD)):
        e(f's_add_u32 s{sT0}, s{r}, {MRING}')
        e(f'buffer_store_dword v{22+n}, v28, {WS}, s{sT0} offen sc1')

def rec_load(a, mod='', pre=None, stp=None, w0=0, wn=5):
    e = a.e
    RA = f's[{S_RA}:{S_RA+3}]'; RB = f's[{S_RB}:{S_RB+3}]'
    NS = 8; L_D = 0
    e(f'''v_lshlrev_b32 v21, 2, v14
    v_xor_b32 v21, v21, v13
    v_lshlrev_b32 v21, 4, v21
    v_lshl_add_u32 v21, v14, 13, v21
    v_lshl_add_u32 v22, v15, 3, v18
    v_lshlrev_b32 v22, 8, v22
    v_xor_b32 v23, s{S_W}, v18
    v_lshl_add_u32 v22, v23, 6, v22
    v_lshrrev_b32 v23, 1, v17
    v_lshl_add_u32 v22, v23, 5, v22
    v_and_b32 v23, 1, v17
    v_lshl_add_u32 v22, v23, 3, v22
    v_mul_u32_u24 v23, {L_WSTR}, v16
    v_add_u32 v22, v22, v23
    v_add_u32 v22, {L_W0}, v22
    v_add_u32 v23, {2*L_WSTR}, v22
    s_lshl_b32 s{sC}, s{S_H}, 8
    s_lshl_b32 s{sT0}, s{S_W}, 17
    s_add_u32 s{sC}, s{sC}, s{sT0}
    s_mul_i32 s{sT2}, s{S_W}, {L_WSTR}
    s_add_u32 s{sT2}, s{sT2}, {L_W0}''')
    srd(a, S_RA, P_WO, 32 * 147456)
    e(f'''v_lshl_add_u32 v19, v15, 1, v16
    v_mul_u32_u24 v19, {4*1152}, v19
    v_lshl_add_u32 v19, v13, 2, v19
    v_add_u32 v20, {16*1152}, v19
    s_mul_i32 s{sT0}, s{S_H}, 147456
    s_lshl_b32 s{sT1}, s{S_W}, 6
    s_add_u32 s{sT0}, s{sT0}, s{sT1}''')
    for k in range(4):
        e(f'''s_xor_b32 s{sT1}, s{S_W}, {k}
        s_mul_i32 s{sT1}, s{sT1}, {32*1152}
        s_add_u32 s{sF+k}, s{sT0}, s{sT1}''')
    e(f'''v_lshrrev_b32 v65, 1, v12
    v_mul_u32_u24 v65, 1152, v65
    v_and_b32 v66, 1, v12
    v_lshl_add_u32 v65, v66, 4, v65
    s_lshl_b32 s{sT1}, s{S_W}, 5
    s_sub_u32 s{sT1}, 1024, s{sT1}
    v_add_u32 v65, s{sT1}, v65
    v_lshlrev_b32 v66, 4, v16
    v_lshl_add_u32 v66, v15, 2, v66
    v_add_u32 v66, v66, v18
    v_lshlrev_b32 v66, 5, v66
    v_lshl_add_u32 v66, v17, 3, v66
    s_lshl_b32 s{sT1}, s{S_W}, 12
    v_add_u32 v66, s{sT1}, v66''')
    tmp = {k: ('v', 24 + 8 * n) for n, k in enumerate(LDS_WO)}
    wol = []
    for u in range(4):
        for k in range(4):
            p, b = tmp.get(('o', u, k)) or REG[('o', u, k)]
            wol += [f'buffer_load_dword {p}{b+rho}, v{19 + (rho >> 2)}, {RA}, s{sF+k} offen offset:{(rho & 3)*1152 + u*256}' for rho in range(8)]
    assert 3*1152 + 2*256 < 4096
    toks = {}
    cur = [None]
    def issue(n):
        m, f = STAGES[n]
        if cur[0] != m: srd(a, S_RB, {'q': P_WQ, 'k': P_WK, 'v': P_WV}[m], 576 * 8192); cur[0] = m
        for k in range(4):
            e(f's_add_u32 m0, s{sT2}, {(n % NS)*4096 + k*1024}')
            e(f's_add_u32 s{sT0}, s{sC}, {(64*f + 4*k)*8192}')
            e(f'buffer_load_dwordx4 v21, {RB}, s{sT0} offen{mod} lds')
        toks[n] = a.mark_v()
        if n == len(STAGES) - 9:
            for k in range(4):
                e(f's_add_u32 m0, s{sT1}, {L_D + k*1024}')
                e(f'buffer_load_dwordx4 v65, {RA}, s{sF+k} offen lds')
        for k in range(wn if w0 <= n < len(STAGES) - 1 else 0):
            if wol:
                x = wol.pop(0)
                if len(wol) == 31: e('v_add_u32 v19, 768, v19\nv_add_u32 v20, 768, v20')
                if len(wol) < 32: x = re.sub(r'offset:(\d+)', lambda m_: f'offset:{int(m_.group(1)) - 768}', x)
                e(x)
    for n in range(NS - 1): issue(n)
    for n, (m, f) in enumerate(STAGES):
        a.wait_v(toks[n])
        e('s_waitcnt lgkmcnt(0)\ns_barrier')
        if stp and n in stp: a.raw(f's_memrealtime s[{96+2*stp.index(n)}:{97+2*stp.index(n)}]')
        if n + NS - 1 < len(STAGES): issue(n + NS - 1)
        for t in range(2):
            key = (m, f, t)
            for rho in (0, 2, 4, 6):
                p, b = ('v', (12, 64)[rho >> 2]) if key in LDS else REG[key]
                e(f'ds_read_b64_tr_b16 {vr(b+rho,2,p)}, v{22 + (rho >> 2)} offset:{(n % NS)*4096 + 4*((rho>>1)&1)*256 + 16*t}')
            if key in LDS:
                for hh in range(2): e(f'ds_write_b128 v{vW}, {vr((12, 68)[hh],4)} offset:{LDS[key] + hh*1024}')
                e('s_waitcnt lgkmcnt(0)')
        if n == len(STAGES) - 3 and pre: pre()
        if n == len(STAGES) - 7:
            for k in range(4):
                p, b = REG[('o', 4, k)]
                for u in range(2):
                    e(f'ds_read_b64_tr_b16 {vr(b+2*u,2,p)}, v66 offset:{L_D + k*1024 + u*256}')
    assert not wol
    e('s_waitcnt vmcnt(0)\ns_barrier')
    for key, (p, b) in tmp.items():
        for hh in range(2): e(f'ds_write_b128 v{vW}, {vr(b+4*hh,4)} offset:{LDS[key] + hh*1024}')
    e('s_waitcnt lgkmcnt(0)')

def wfrag(key):
    p, b = REG[key]
    return vr(b, 4 if key[:2] == ('o', 4) else 8, p)

def rec_init(a, rdy0=0):
    e = a.e
    e(f'''s_mov_b32 s{sStep}, 0
    s_mov_b32 s{sMs}, {MRING}
    s_lshl_b32 s{sT0}, s{S_H}, 14
    s_lshl_b32 s{sT1}, s{S_W}, 12
    s_add_u32 s{sKx}, s{sT0}, s{sT1}
    s_add_u32 s{sKx}, s{sKx}, {KVX - 256}
    s_mov_b32 s{sPf}, {256 + 32*16384}
    s_mov_b32 s{sRedo}, -1
    s_mov_b32 s{sTry}, -1
    s_cmp_lg_u32 s{sPrD}, {OOB}
    s_cselect_b32 s{sMkD}, 1, 0
    s_lshl_b32 s{sMp}, s{S_H}, 12
    s_add_u32 s{sMp}, s{sMp}, {MRING + 2*MSTR - 256 - 32*16384}
    s_cmp_lt_u32 s{S_H}, 2
    s_cselect_b32 s{sMp}, s{sMp}, {OOB}
    s_mul_i32 s{sT0}, s{S_W}, {L_BLK}
    s_mov_b32 m0, s{sT0}
    s_lshl_b32 s{sKv}, s{S_H}, 12
    s_lshl_b32 s{sFlg}, s{S_H}, 6
    s_mov_b32 s{sPg}, {PROG}
    s_cmp_eq_u32 s{S_H}, 31
    s_cselect_b32 s{sPg}, s{sPg}, {OOB}
    s_add_u32 s{sKv}, s{sKv}, {KV}
    s_mov_b32 s{sC}, 0x3e0293ee
    s_mov_b32 s{sOne}, 0x3f803f80
    s_mov_b32 s{sOne+1}, 0x3f803f80
    s_mov_b32 s{sSpin}, 0x40000''')
    def m32(f):
        m = sum(1 << j for j in range(16) if f(j)); return hex(m | m << 16)
    def sel(r, vm_, masks):
        e(f'v_mov_b32 v{vT}, 0x3f80\ns_mov_b32 vcc_lo, {vm_}\ns_mov_b32 vcc_hi, {vm_}')
        e(f'v_cndmask_b32 v{vT}, v{vT}, 1.0, vcc')
        for q in range(4):
            e(f's_mov_b32 vcc_lo, {masks[q]}\ns_mov_b32 vcc_hi, {masks[q]}\nv_cndmask_b32 v{r+q}, 0, v{vT}, vcc')
    sel(VA, m32(lambda j: j & 1), [m32(lambda j: j >> 2 == q) for q in range(4)])
    sel(VA + 4, m32(lambda j: (j >> 2) & 1), [m32(lambda j: 2 * (j >> 3) + (j & 1) == q) for q in range(4)])
    e(f'''ds_write_b128 v{vSel}, {vr(VA,4)} offset:{L_SEL}
    ds_write_b128 v{vSel}, {vr(VA+4,4)} offset:{L_SEL+256}
    ds_write_b128 v{vL16}, {vr(C4,4)} offset:{L_TAB}
    s_waitcnt lgkmcnt(0)''')
def rec_disp(a, tag):
    for w in range(3):
        a.e(f's_cmp_eq_u32 s{S_W}, {w}\ns_cbranch_scc1 {tag}{w}_in')
    a.e(f's_branch {tag}3_in')

WO = 'p0,s0,w13,w21,l0,w22,l1,p1,w23,%s,s1,w31,w32,p2,w33,%s,s2,w41,w42,p3a,w43,p3b,%s,s3,p4,%s,s4,'
TAIL = {0: WO % ('rd', 'rd', 'rd,r2', '') + 'neg,ra,bar,rb,mst,r2,zq,zk,up,d28,DA,f0,qa,qb,qc,ms2,f1,zv,d60,DB,f2,d40,f3',
        1: WO % ('', '', '', '') + 'neg,bar,r2,zq,zk,up,d60,DA,f0,d60,f1,qa,qb,qc,DC,f2,d20,f3,ms2,zv',
        2: WO % ('', '', '', '') + 'neg,bar,zq,zk,r2,up,d60,DA,f0,d60,f1,qa,qb,qc,DC,f2,d20,f3,ms2,zv',
        3: WO % ('', '', '', '') + 'neg,bar,zq,zk,up,d40,r2,d20,DA,f0,d60,f1,qa,qb,qc,DC,f2,d20,f3,ms2,zv'}
W0 = WO % ('rd', 'rd', 'rd,r2', '') + 'neg,ra,bar,rb,mst,'; W1 = WO % ('', '', '', '') + 'neg,bar,'
RD = {'a': (('rd', 'rd', 'rd,r2', ''), 'rd'), 'b': (('', 'rd', 'rd,r2', ''), 'rd,a0,rd'), 'c': (('', '', 'rd,r2', ''), 'rd,a0,rd,a1,rd,r2'),
      'd': (('rd', 'rd', 'rd,r2', ''), 'rd,a0,rd'), 'e': (('', 'rd', 'rd', ''), 'rd,r2,a0,rd'), 'f': (('', 'rd', 'rd,r2', ''), 'd40,rd,d60,d40,rd'),
      'g': (('', 'rd', 'rd', ''), 'd40,rd,r2,d60,rd'), 'h': (('', '', 'rd', ''), 'rd,r2,d60,rd,d60,rd,d60,rd,r2')}
RD.update(A=(('rd', 'rd', 'rd', ''), 'rd,r2', 'w13'), B=(('rd', 'rd', 'rd', ''), 'rd,r2', 'w21'), C=(('rd', 'rd', 'rd,r2', ''), 'rd', 'w13'), D=(('rd', 'rd', 'rd,r2', ''), 'rd', 's0'),
          E=(('', 'rd', 'rd', ''), 'rd,r2', 'l1'), F=(('rd', 'rd,r2', 'rd', ''), 'rd,r2', 'w13'), G=(('rd', 'rd', 'rd,r2', ''), '', 'w13'), H=(('rd', 'rd,r2', 'rd,r2', ''), '', 'w13'))
def w0(k):
    if k is None: return W0
    x = WO % RD[k][0] + 'neg,' + RD[k][1] + ',ra,bar,rb,mst,'
    return x.replace(RD[k][2] + ',', RD[k][2] + ',rd,') if k.isupper() else x
def three(x): return {1: W1 + 'r2,zq,zk,up,' + x, 2: W1 + 'zq,zk,r2,up,' + x, 3: W1 + 'zq,zk,up,r2,' + x}
TL0 = {'a': 'r2,zq,zk,up,f0,qa,qb,qc,ms2,f1,zv,f2,f3',
      'b': 'r2,up,qa,qb,qc,ms2,f0,f1,zq,zk,zv,d60,f2,d40,f3',
      'c': 'r2,up,zq,qa,f0,qb,qc,ms2,f1,zk,zv,d60,f2,d40,f3',
      'd': 'r2,up,zq,qa,f0,qb,qc,ms2,f1,zk,zv',
      'e': 'r2,zq,zk,up,f0,qa,qb,qc,ms2,f1,zv',
      'i': 'r2,up,qa,qb,qc,ms2,f0,f1,zq,zk,zv,f2,f3',
      'j': 'up,qa,qb,qc,ms2,f0,f1,zq,zk,zv,d60,f2,d40,f3',
      'k': 'r2,up,qa,qb,qc,ms2,f0,f1,zq,zk,zv,d28,f2,d20,f3',
      'l': 'r2,up,qa,b2,qb,qc,ms2,f0,f1,zq,zk,zv,d60,f2,d40,f3',
      'm': 'r2,up,qa,qb,qc,ms2,b2,f0,f1,zq,zk,zv,d60,f2,d40,f3',
      'n': 'r2,up,qa,b2,qb,qc,ms2,f0,f1,zq,zk,zv,am,f2,f3',
      'o': 'r2,up,qa,b2,qb,qc,ms2,f0,f1,zq,zk,zv,b2,f2,f3',
      'p': 'r2,up,qa,qb,b2,qc,ms2,f0,f1,zq,zk,zv,am,f2,f3',
      'q': 'r2,up,qa,qb,qc,ms2,b2,f0,f1,zq,zk,zv,am,f2,f3',
      'r': 'r2,up,qa,qb,qc,ms2,zq,zk,zv,b2,f0,f1,am,f2,f3',
      's': 'r2,up,qa,qb,qc,ms2,zq,zk,zv,d60,b2,f0,f1,am,f2,f3',
      't': 'r2,up,qa,qb,qc,ms2,zq,zk,zv,d60,d60,b2,f0,f1,am,f2,f3',
      'u': 'r2,up,qa,qb,qc,ms2,zq,zk,zv,b2,f0,f1,b2,f2,f3',
      'v': 'r2,up,qa,qb,qc,ms2,zq,zk,zv,b2,f0,f1,f2,f3',
      'w': 'r2,up,qa,b2,qb,qc,ms2,f0,zq,zk,zv,g0,f1,am,f2,f3',
      'x': 'r2,up,b2,qa,f0,qb,qc,ms2,zq,zk,zv,g0,f1,am,f2,f3',
      'y': 'r2,up,qa,b2,qb,qc,ms2,f0,f1,zq,zk,zv,am,g0,g1,f2,f3',
      'g': 'r2,zq,zk,up,d28,f0,qa,qb,qc,ms2,f1,g0,zv,d60,f2,d40,f3',
      'h': 'r2,zq,zk,up,f0,qa,qb,qc,ms2,g0,f1,zv,d60,f2,d40,f3',
      }
TL1 = {'a': 'f0,f1,qa,qb,qc,f2,f3,ms2,zv',
      'b': 'd28,f0,d60,f1,qa,qb,qc,f2,d20,f3,ms2,zv',
      'c': 'd60,f0,d60,f1,qa,qb,qc,ms2,zv',
      'd': 'f0,wr,f1,qa,qb,qc,ms2,zv',
      'i': 'd60,f0,d28,f1,qa,qb,qc,f2,f3,ms2,zv',
      'j': 'd60,f0,f1,qa,qb,qc,f2,f3,ms2,zv',
      'k': 'd40,f0,d60,f1,qa,qb,qc,f2,d20,f3,ms2,zv',
      'l': 'b2,f0,f1,qa,qb,qc,f2,f3,ms2,zv',
      'm': 'b2,f0,wr,f1,qa,qb,qc,f2,f3,ms2,zv',
      'o': 'b2,f0,f1,qa,qb,qc,b2,f2,f3,ms2,zv',
      'p': 'd100,f0,d28,f1,qa,qb,qc,f2,f3,ms2,zv',
      'r': 'wr,b2,f0,f1,qa,qb,qc,f2,f3,ms2,zv',
      's': 'qa,b2,f0,f1,qb,qc,ms2,f2,f3,zv',
      't': 'wr,b2,f0,qa,f1,qb,qc,ms2,f2,f3,zv',
      'u': 'qa,qb,qc,ms2,b2,f0,f1,f2,f3,zv',
      'w': 'b2,f0,wr,g0,f1,qa,qb,qc,f2,f3,ms2,zv',
      'x': 'b2,f0,qa,g0,f1,qb,qc,f2,f3,ms2,zv',
      'y': 'b2,f0,wr,f1,qa,qb,qc,g0,g1,f2,f3,ms2,zv',
      'z': 'b2,f0,qa,qb,qc,g0,f1,f2,f3,ms2,zv',
      'g': 'd60,f0,d60,f1,qa,g0,qb,qc,f2,d20,f3,ms2,zv',
      'h': 'd28,f0,qa,g0,f1,qb,qc,f2,d20,f3,ms2,zv',
      }
PAR = dict(l2=0, l3=2, l4=6, l5=7, l6=14, l7=18, l8=16, pf=24, qb=49, kv=65)
KD = '12.19.26.34'
CHK = '1.3.5,2.9.11,3.15.17,45.21.23,678.33.35'
def opt(abl, key, d=None):
    for x in abl:
        if x.startswith(key + '='): return x[len(key)+1:]
    return d

def rec_loop(a, w, stamps=None, fin='R_done', abl=(), tag='R', cs=''):
    b = Asm(); b.uid = 10000
    rec_body(b, w, None, fin, abl, tag, cs)
    a.vq = list(b.endq[0]); a.lq = list(b.endq[1])
    rec_body(a, w, stamps, fin, abl, tag, cs)

def rec_body(a, w, stamps, fin, abl, tag, cs):
    drops = [re.compile(x[2:].replace('~', ' ')) for x in abl if x.startswith('x=')]
    if 'nodma' in abl: drops.append(re.compile(r'p1:buffer_load_dwordx4.*lds'))
    sec = ['p1']
    def e(text):
        for line in text.split('\n'):
            line = line.strip()
            if 'free' in abl: line = re.sub(r'v_cmp_(eq_u32|ne_u32|u_f32) vcc', 'v_cmp_f_f32 vcc', line)
            if any(d.search(sec[0] + ':' + line) for d in drops): continue
            a.e(line)
    def stamp(name, at=40):
        if name in ('t0', 'sdone', 'pvdone', 'st0', 'st3'): sec[0] = name
        if stamps is None or name not in stamps: return
        k = stamps.index(name)
        lab = a.newlabel('st')
        at += int(opt(abl, 'at', 40)) - 40
        a.raw(f's_cmp_eq_u32 s{sStep}, {at}'); a.raw(f's_cbranch_scc0 {lab}')
        a.raw(f's_memtime s[{sStamp+2*k}:{sStamp+2*k+1}]'); a.raw(f'{lab}:')
    P_ = {k: int(opt(abl, k, v)) for k, v in PAR.items()}
    def cnt(k):
        if 'cnt' in abl: e(f's_add_u32 s{76+2*k}, s{76+2*k}, 1')
    FB = [MB[0], MB[1], MB[2], VX, VX + 4, MB[0], MB[1], MB[2], C4]
    def ldw(key, buf, hh): return f'ds_read_b128 {vr(buf+4*hh,4)}, v{vW} offset:{LDS[key] + hh*1024}'
    def ldkx(n): return f'ds_read_b128 {vr(KB[n],4)}, v{vL16} offset:{(w ^ (n >> 1))*L_BLK + 256 + (n & 1)*1024}'
    def ldv(n): return f'ds_read_b128 {vr(VX+4*n,4)}, v{vL16} offset:{w*L_BLK + 2304 + n*1024}'
    def ldz(k, r, kq=0): return f'ds_read_b128 {vr(r,4)}, v{vZ} offset:{L_QK + (w ^ k)*1152 + kq*576}'
    def fillr(r, n, val=0): return '\n'.join(f'v_mov_b64 {vr(r+k,2)}, {val}' for k in range(0, n, 2))
    def zero(r, n): e(fillr(r, n))
    lc = ' sc1' if 'lsc' in abl else cs
    def ldf(i, m=None, r=None):
        return f'buffer_load_dwordx4 {vr(FB[i] if r is None else r,4)}, v{vL16}, {WS}, s{(sMs, sM1, sM2)[i >> 2]} offen offset:{(i & 3)*1024}{lc if m is None else m}'
    def dma(n): return f'buffer_load_dwordx4 v{vL16}, {WS}, s{sKx} offen offset:{256 + n*1024} sc1 lds'
    def blind(line, name):
        a.auto = False; e(line); a.auto = True
        a.vq[-1] = {name}
    def add(r): return f'v_add_f32 v{r}, v{r}, v{r+2}'
    def cvt(d, r, r2=None): return f'v_cvt_pk_bf16_f32 v{d}, v{r}, v{r+1 if r2 is None else r2}'
    def upm(): e(f's_add_u32 s{sM1}, s{sMs}, 4096\ns_add_u32 s{sM2}, s{sMs}, 8192')
    spin = f's_sub_u32 s{sSpin}, s{sSpin}, 1\ns_cbranch_scc1 {fin}'
    lbuf = {k: SB[n % 2] for n, k in enumerate(LDS_P1)}
    L = lambda s: f'{tag}{w}_{s}'
    acc = {'q': QA, 'k': KA, 'v': VA}
    X = SB[0]; Tm = SB[0] + 4
    T = [KA, KA + 4]
    Zq = [QA, QA + 4, SB[1], SB[1] + 4]
    Zk = [VA, MB[0], MB[1], VA + 4]
    KB = [Tm, VX, VX + 4, MB[0], MB[1], MB[2], C4, Tm]
    m_ = vT
    fill = {n: [] for n in range(-1, 70)}
    def put(n, *x): fill[n] += list(x)
    put(-1, f'v_cmp_eq_u32 vcc, -1, v{FB[0]+3}', '#got0')
    put(1, f's_cbranch_vccnz {L("f0")}', '#g0')
    put(3, '#wr')
    for k, (n0, n1) in enumerate(((0, 2), (3, 4))): put(n0, ldw(LDS_P1[k], SB[k], 0)); put(n1, ldw(LDS_P1[k], SB[k], 1))
    for k in range(10):
        for hh in range(2): put(P1_LDS_POS[k] + hh, ldw(LDS_P1[k+2], SB[k % 2], hh))
    tl = opt(abl, 'tl', 'nm')
    tw = TAIL[w] if tl[w > 0] == '-' else three(TL1[tl[1]])[w] if w else w0(opt(abl, 'rd', 'e')) + TL0[tl[0]]
    tail = [x for x in tw.split(',') if x]
    tail = [f'd{opt(abl, x, 0)}' if x[0] == 'D' else x for x in tail]
    lat = {f: -9 if f'f{f}' in tail else int(opt(abl, f'l{f}', PAR.get(f'l{f}'))) for f in range(9)}
    for f in range(1, 9):
        if lat[f] >= 0: put(lat[f], ldf(f))
    pw = opt(abl, 'pw', '02'); mw = int(opt(abl, 'mw', 1))
    pfg = P_['pf']; mg = int(opt(abl, 'mg', 37))
    if w < 3: put(29, f'v_lshl_add_u32 v{vT2}, v{vL16}, 3, s{sPf}')
    for k in range(2):
        if w == int(pw[k]) and 'nopf' not in abl:
            if w != 2 * k: put(30, f's_add_u32 s{sT0}, s{sKx}, {(2*k - w)*4096}')
            put(pfg + (k if pw[0] == pw[1] else 0), f'buffer_load_dword v{vT2}, {WS}, s{sT0 if w != 2 * k else sKx} offen sc1 lds')
    if w == mw and 'nomp' not in abl: put(mg, f'buffer_load_dword v{vT2}, {WS}, s{sMp} offen sc1 lds')
    pgc = opt(abl, 'pc')
    if pgc and w == DW: put(int(pgc), f'v_mov_b32 v{vT}, s{sStep}', f'buffer_store_dword v{vT}, v{vZero}, {WS}, s{sPg} offen sc1')
    kd = [int(x) for x in opt(abl, 'kd', KD).split('.')]
    kb = opt(abl, 'kb', 'a')
    for n in range(4):
        if kd[n] < 65: put(kd[n], dma(n), f'#d{n}')
        else: put(kd[n], dma(n).replace(f's{sKx} ', f's{sT2} '), f'#d{n}')
    if kd[0] >= 65: put(48, f's_add_u32 s{sT2}, s{sKx}, {32*16384}')
    if kb == 'a': fill[36] = ['#kb', ldkx(3)] + fill[36]; put(39, ldkx(2)); put(40, ldkx(0)); put(41, ldkx(1))
    if kb == 'b': put(29, ldkx(1)); put(30, ldkx(2)); put(39, ldkx(3)); put(40, ldkx(0))
    if kb == 'd': fill[36] = ['#kc'] + fill[36]; kb = 'c'
    if kb == 'c': put(47, '#kw', ldkx(0)); put(48, ldkx(1))
    vg = [int(x) for x in opt(abl, 'vg', '60.61').split('.')]
    chk = [x.split('.') for x in (CHK.replace('45.21.23', '4.21.23,5.27.29') if 'c5' in abl else CHK).split(',')]
    for fs, c, b in chk:
        r = [FB[int(f)] + 3 for f in fs]
        if len(r) == 3: put(int(c) - 1, f'v_max_u32 v{vT}, v{r[0]}, v{r[2]}'); r[0] = vT
        put(int(c), f'v_cmp_u_f32 vcc, v{r[0]}, v{r[1]}' if len(r) > 1 else f'v_cmp_eq_u32 vcc, -1, v{r[0]}')
        put(int(b), f's_cbranch_vccnz {L("c" + fs)}', f'{L("g" + fs)}:')
    put(12, '#bar1')
    put(42, add(QA), add(QA + 1))
    put(43, add(QA + 4), add(QA + 5))
    put(44, cvt(X + 1, QA, QA + 4), cvt(X + 3, QA + 1, QA + 5))
    put(45, f'ds_write2_b32 v{vXw}, v{X+1}, v{X+3} offset0:0 offset1:4', '#mw')
    put(46, ldz(0, Zq[0]), add(KA)); put(47, add(KA + 1))
    put(P_['qb'], '#bar', '#qbar')
    if kb == 'c': put(49, ldkx(2)); put(50, ldkx(3))
    put(49, add(KA + 4))
    put(50, ldz(1, Zq[1]), add(KA + 5))
    put(51, ldkx(4), cvt(X, KA, KA + 4))
    put(52, ldkx(5), cvt(X + 2, KA + 1, KA + 5))
    put(53, ldz(2, Zq[2]), ldkx(6), f'ds_write2_b32 v{vXw}, v{X}, v{X+2} offset0:144 offset1:148', '#t0')
    put(54, ldkx(7), '#mw', add(VA)); put(55, ldz(3, Zq[3]), add(VA + 1)); put(vg[0], '#v2', ldv(0)); put(56, cvt(X + 1, VA))
    put(57, ldz(0, Zk[0], 1), add(VA + 4))
    put(58, '#bar', ldz(1, Zk[1], 1), add(VA + 5))
    put(59, ldz(2, Zk[2], 1), cvt(X + 3, VA + 4))
    put(60, ldz(3, Zk[3], 1))
    put(vg[1], '#v3', ldv(1))
    ONE, PmQ, P, LL = MB[0], vZero, VA, MB[2]
    O0, O1 = MB[1], VA + 4
    wb = [QA, SB[1]]
    put(62, f'v_cmp_u_f32 vcc, v{T[0]}, v{T[0]}', f'v_max3_f32 v{m_}, v{T[0]}, v{T[0]+1}, v{T[0]+2}')
    put(63, f'v_max3_f32 v{m_}, v{m_}, v{T[0]+3}, v{T[1]}', f'v_max3_f32 v{m_}, v{m_}, v{T[1]+1}, v{T[1]+2}')
    put(64, f's_cbranch_vccnz {L("fn")}', f'{L("gn")}:')
    if 'nokv' not in abl: put(65, f'buffer_store_dwordx4 {vr(X,4)}, v{vL16}, {WS}, s{sKv} offen offset:{w*1024} sc1')
    put(65, f'ds_read_b128 {vr(C4,4)}, v{vL16} offset:{L_TAB}', ldw(LDS_WO[0], wb[0], 0), fillr(ONE, 4, f's[{sOne}:{sOne+1}]'), f'v_max_f32 v{m_}, v{m_}, v{T[1]+3}')
    tok = {}
    def mf(n):
        if n < 54:
            key = P1SEQ[n]
            m, i, t = key
            wv = vr(lbuf[key], 8) if key in LDS else wfrag(key)
            return f'{SMF} {vr(acc[m]+4*t,4)}, {vr(FB[i],4)}, {wv}, v{vIdx}'
        if n < 62:
            k = n - 54
            return f'{MF32} {vr(T[k & 1],4)}, {vr(KB[k],4)}, {vr(Zq[k >> 1],4)}, {"0" if k < 2 else vr(T[k & 1],4)}'
        k = n - 62
        return f'{MF32} {vr(Tm,4)}, {vr(Zk[k],4)}, {vr(Zq[k],4)}, {"0" if k == 0 else vr(Tm,4)}'
    def ops(n): return Ins(mf(n)).src if n < 66 else set()
    def emit(n):
        pw = False
        for x in fill[n]:
            if x == '#got0': stamp('got0'); stamp('got0n', 41)
            elif x in ('#bar1', '#qbar', '#t0'): stamp(x[1:])
            elif x == '#g0': tok['g0'] = ([len(a.vq) - 1 - k for k, q in enumerate(a.vq) if '#g0' in q] + [0])[0]
            elif x[:2] == '#d': tok[x] = a.mark_v()
            elif x == '#kb':
                if kd[1] < 65: a.wait_v(tok['#d1'])
                a.waitfor(ops(n + 1)); e('s_barrier')
            elif x == '#kc': a.waitfor(ops(n + 1)); e('s_barrier')
            elif x == '#kw': a.wait_v(tok['#d1'])
            elif x[:2] == '#v': a.wait_v(tok['#d' + x[2]])
            elif x == '#mw': tok['mw'] = a.mark_l()
            elif x == '#wr': a.waitfor({f'#r{sPrd}'})
            elif x == '#bar': a.waitfor(tok['mw'] | ops(n + 1)); e('s_barrier')
            else:
                if x[:2] == 'v_' and not pw: a.waitfor(ops(n + 1) | Ins(x.split('\n')[0]).src); pw = True
                e(x)
    e(f'{L("go")}:')
    a.waitfor({f'v{FB[0]}'})
    stamp('go1', 41)
    e(f'{L("go2")}:')
    if 'tr' in abl and w == 3:
        a.raw('s_memrealtime s[76:77]'); a.raw('s_memtime s[78:79]')
    if opt(abl, 'ts'):
        lab = a.newlabel('ts')
        a.raw(f's_cmp_eq_u32 s{sStep}, {opt(abl, "ts")}'); a.raw(f's_cbranch_scc0 {lab}'); a.raw('s_memrealtime s[100:101]'); a.raw('s_memtime s[98:99]'); a.raw(f'{lab}:')
    emit(-1)
    for n in range(66): e(mf(n)); emit(n)
    stamp('sdone')
    e(f'''v_max3_f32 v{Tm+2}, v{m_}, v{Tm}, v{Tm+1}
    v_max3_f32 v{m_}, v{m_}, v{Tm}, v{Tm+1}
    s_add_u32 s{sKv}, s{sKv}, {32*4096}
    s_add_u32 s{sMs}, s{sMs}, {MSTR}
    v_permlane32_swap_b32 v{m_}, v{Tm+2}
    v_max_f32 v{Tm+3}, v{m_}, v{Tm+2}
    v_max_f32 v{m_}, v{m_}, v{Tm+2}
    s_add_u32 s{sMst}, s{sMs}, s{sMo}''')
    e(f'''v_permlane16_swap_b32 v{m_}, v{Tm+3}
    v_max_f32 v{m_}, v{m_}, v{Tm+3}''')
    T0 = T[0]
    def ex(r): e(f'v_exp_f32 v{r}, v{r}')
    e(f'v_mul_f32 v{Tm+2}, s{sC}, v{m_}')
    for r in (Tm, T0, T0 + 2, T0 + 4, T0 + 6):
        e(f'v_pk_fma_f32 {vr(r,2)}, {vr(r,2)}, s[{sC}:{sC+1}], {vr(Tm+2,2)} op_sel_hi:[1,0,0] neg_lo:[0,0,1] neg_hi:[0,0,1]')
    ex(Tm); ex(Tm + 1); ex(T0); e(cvt(PmQ + 1, Tm)); ex(T0 + 1); ex(T0 + 2)
    e(f'{MF16} {vr(O0,4)}, {vr(X,2)}, {vr(PmQ,2)}, 0')
    e(cvt(P, T0)); ex(T0 + 3)
    e(f'{MF16} {vr(O1,4)}, {vr(X+2,2)}, {vr(PmQ,2)}, 0')
    def prog(at):
        if w == DW and pgc and at == 'a':
            e(f's_cmp_ge_u32 s{sStep}, {opt(abl, "pl", 62)}\ns_cselect_b32 s{sT0}, s{sPg}, {OOB}\nv_add_u32 v{vT}, s{sStep}, 1\nbuffer_store_dword v{vT}, v{vMst}, {WS}, s{sT0} offen sc1')
        elif w == DW and opt(abl, 'pg', 'a') == at: e(f'v_add_u32 v{vT}, s{sStep}, 1\nbuffer_store_dword v{vT}, v{vMst}, {WS}, s{sPg} offen sc1')
    prog('a')
    ex(T0 + 4); e(cvt(P + 1, T0 + 2)); ex(T0 + 5)
    e(f'{MF16} {vr(LL,4)}, {vr(PmQ,2)}, {vr(ONE,2)}, 0')
    e(ldw(LDS_WO[0], wb[0], 1))
    ex(T0 + 6); ex(T0 + 7)
    e(cvt(P + 2, T0 + 4)); e(cvt(P + 3, T0 + 6))
    W = [VX, VX + 4, KA, KA + 4, Tm]
    zero(W[2], 4)
    e(f'{MF32} {vr(O0,4)}, {vr(VX,4)}, {vr(P,4)}, {vr(O0,4)}')
    zero(W[3], 4)
    e(f'{MF32} {vr(O1,4)}, {vr(VX+4,4)}, {vr(P,4)}, {vr(O1,4)}')
    zero(W[0], 4)
    e(f'{MF32} {vr(LL,4)}, {vr(P,4)}, {vr(ONE,4)}, {vr(LL,4)}')
    OF = [P, MB[0], MB[1], VA + 4]
    e(cvt(P, O0)); e(cvt(P + 1, O0 + 2)); zero(W[1], 4); e(cvt(P + 2, O1)); e(cvt(P + 3, O1 + 2))
    e(f'ds_write_b128 v{vZ}, {vr(P,4)} offset:{L_QK + w*1152}')
    toko = a.mark_l()
    e(f's_add_u32 s{sKx}, s{sKx}, {32*16384}')
    prog('b')
    stamp('pvdone')
    if 'tr' in abl and w == 3:
        for x in (f'v_mov_b32 v{vT}, s76', f'v_mov_b32 v{vT2}, s78', f's_lshl_b32 s80, s{sStep}, 8', f's_lshl_b32 s81, s{S_H}, 3', 's_add_u32 s80, s80, s81', f's_add_u32 s80, s80, {STAMP + 0x8000}'): a.raw(x)
        e(f'buffer_store_dword v{vT}, v{vZero}, {WS}, s80 offen\nbuffer_store_dword v{vT2}, v{vZero}, {WS}, s80 offen offset:4')
    IV = LL
    wbuf = {k: wb[(0, 1, 0, 1, 0)[n]] for n, k in enumerate(LDS_WO)}
    def wo(u, k):
        key = ('o', u, k)
        if u == 4: e(f'{MF32} {vr(W[4],4)}, {vr(OF[k],4)}, {wfrag(key)}, {"0" if k == 0 else vr(W[4],4)}')
        else: e(f'{SMF} {vr(W[u],4)}, {vr(OF[k],4)}, {vr(wbuf[key], 8) if key in LDS else wfrag(key)}, v{vIdx} abid:1')
    ack = {}
    RDR, SEL, D, R2 = {sPrd: (SB[1], SB[1] + 4), sPrD: (VX, VX + 4)}, VA, X, Tm + 2
    if w == 0 and opt(abl, 'rd', 'a').isupper(): RDR, D = {sPrd: (X, VX), sPrD: (SB[1], SB[1] + 4)}, QA
    def rdl(s): return [f'buffer_load_dwordx4 {vr(RDR[s][l],4)}, v{vL16}, {WS}, s{s} offen offset:{l*1024} sc1' for l in range(2)]
    nrd = {}
    def rd(s):
        nrd[s] = nrd.get(s, 0) + 1
        for x in rdl(s):
            if nrd[s] == 1: e(x)
            else: blind(x, f'#r{s}')
        if len(nrd) == 1 and nrd[s] == 1: stamp('rd', 41)
    def epi(u):
        r = W[u]
        x = [f'v_mul_f32 v{r+k}, v{r+k}, v{IV + (k & 1)}' for k in ((0, 2, 1, 3) if u < 4 else (0, 1))]
        x += [cvt(r, r, r + 2), cvt(r + 1, r + 1, r + 3)] if u < 4 else [cvt(r, r)]
        return x + [f'v_bfi_b32 v{r+k}, 1, s{sStep}, v{r+k}' for k in range(2 if u < 4 else 1)]
    def st(u):
        r = W[u]
        if u < 4: e(f'buffer_store_dwordx2 {vr(r,2)}, v{vP}, {WS}, s{sPW+u} offen{cs}')
        else: e(f'buffer_store_dword v{r}, v{vPD}, {WS}, s{sPW+4} offen{cs}')
        ack[u] = a.mark_v()
        if u in (0, 3): stamp(f'st{u}', 41)
    wo(4, 0)
    e(ldw(LDS_WO[1], wb[1], 0))
    wo(2, 0)
    e(ldw(LDS_WO[1], wb[1], 1)); e(f's_cmp_eq_u32 s{sStep}, 63')
    wo(0, 0)
    e(f's_cbranch_scc1 {fin}')
    a.wait_l(toko); e('s_barrier')
    wo(1, 0)
    for k in (1, 2, 3): e(ldz(k, OF[k]))
    wo(3, 0)
    e(ldw(LDS_WO[2], wb[0], 0)); e(ldw(LDS_WO[2], wb[0], 1))
    e(f'v_rcp_f32 v{IV}, v{IV}\nv_rcp_f32 v{IV+1}, v{IV+1}')
    wo(0, 1); e(ldw(LDS_WO[3], wb[1], 0))
    wo(0, 2); e(ldw(LDS_WO[3], wb[1], 1))
    wo(0, 3); e(f'ds_read_b128 {vr(SEL,4)}, v{vSel} offset:{L_SEL + (256 if w == DW else 0)}')
    wo(1, 1); e(f's_add_u32 s{sStep}, s{sStep}, 1\ns_add_u32 s{sT1}, s{sMs}, s{sMoD}')
    if w == DW: e(f's_and_b32 s{sPaD}, s{sStep}, s{sMkD}')
    wo(1, 2)
    fails = []
    ldfl = f's_load_dword s{sRdy}, s[{P_WSP}:{P_WSP+1}], s{sFlg} glc'
    def rsum(s, part='ab'):
        r = RDR[s]; par = sPaD if w == DW else sStep
        t = (vT, vT2, Tm, Tm + 1)
        if 'a' in part:
            for l in range(2):
                q = r[l]
                for k in range(2): e(f'v_bitop3_b32 v{t[2*l+k]}, v{q+2*k}, v{q+2*k+1}, s{par} bitop3:0x7e')
                e(f'{MF32} {vr(D,4)}, {vr(SEL,4)}, {vr(q,4)}, {"0" if l == 0 else vr(D,4)}')
            e(f'v_or3_b32 v{vT}, v{vT}, v{vT2}, v{Tm}\nv_bitop3_b32 v{vT}, v{vT}, v{Tm+1}, 1 bitop3:0xa8\nv_cmp_ne_u32 vcc, 0, v{vT}')
        if 'b' in part:
            for k in range(2): e(f'v_add_f32_dpp v{D+k}, v{D+k}, v{D+k} row_ror:8 row_mask:0xf bank_mask:0xf')
    def rchk(nm, s):
        e(f's_cbranch_vccnz {L("f" + nm)}\n{L(nm)}:')
        assert ('f0' if s == sPrd else 'f3') not in done and 's4' in done
        fails.append((nm, s, [len(a.vq) - 1 - k for k, q in enumerate(a.vq) if f'#r{s}' in q][1::2]))
    def rfin():
        for k in range(2): e(f'v_add_f32_dpp v{R2+k}, v{D+k}, v{D+k} row_ror:4 row_mask:0xf bank_mask:0x1')
        e(cvt(vT, R2))
    done = []
    assert tail.count('bar') == 1
    for x in tail:
        done.append(x)
        if x == 'ra': rsum(sPrd); rchk('rp', sPrd); stamp('ok', 41)
        elif x == 'qa':
            if w == DW and 'sk' in abl:
                skq = list(a.vq); e(f's_cmp_eq_u32 s{sMkD}, 0\ns_cbranch_scc1 {L("sk")}')
            rsum(sPrD, 'a')
        elif x == 'qb': rsum(sPrD, 'b'); rchk('rq', sPrD)
        elif x in ('rb', 'qc'):
            rfin()
            if x == 'qc' and w == DW and 'sk' in abl:
                e(f'{L("sk")}:'); a.vq = [set() if q & {f'v{VX}', f'v{VX+4}'} else q for q in skq]
        elif x == 'up':
            upm()
            if w == mw: e(f's_add_u32 s{sMp}, s{sMp}, {MSTR}')
        elif x == 'b2': e('s_barrier')
        elif x == 'neg':
            if 'ns' not in abl: e(fillr(R2, 2, -1))
        elif x == 'zq': zero(QA, 8)
        elif x == 'zk': zero(KA, 8)
        elif x == 'zv': zero(VA, 8)
        elif x == 'rd': rd(sPrd)
        elif x == 'r2': rd(sPrD)
        elif x == 'wr': a.wait_v({f'v{RDR[sPrD][0]}'})
        elif x in ('mst', 'ms2'):
            e(f'buffer_store_dword v{vT}, v{vMst}, {WS}, s{sMst if x == "mst" else sT1} offen{cs}')
            if x == 'mst':
                assert done[-4:] == ['ra', 'bar', 'rb', 'mst']
                e(f'{L("yrp")}:')
            ack['m'] = a.mark_v(); stamp('mst' if x == 'mst' or w else 'zrdy', 41)
        elif x == 'bar':
            if w == DW: e(f's_add_u32 s{sT0}, s{sStep}, 1\n{L("fc")}:\ns_cmp_gt_u32 s{sRdy}, s{sT0}\ns_cbranch_scc0 {L("flg")}')
            if kd[1] >= 65: a.wait_v(tok['#d1'])
            e('s_barrier'); stamp('bar', 41)
            if w == DW: a.raw(ldfl)
        elif x[0] == 'f':
            e(ldf(int(x[1])))
            if x == 'f0': stamp('e0', 41)
        elif x[0] == 'g': blind(ldf(int(x[1]), ' sc1'), '#' + x)
        elif x[0] == 'w': wo(int(x[1]), int(x[2]))
        elif x[0] == 'l': e(ldw(LDS_WO[4], wb[0], int(x[1])))
        elif x[0] == 'p':
            y = epi(int(x[1]))
            e('\n'.join(y if len(x) == 2 else y[:2] if x[2] == 'a' else y[2:]))
        elif x[0] == 's': st(int(x[1]))
        elif x[0] == 'a': a.wait_v(ack[int(x[1:]) if x[1:] != 'm' else 'm'])
        elif x[0] == 'd':
            n = int(x[1:]) // 4
            while n > 0:
                k = min(n, 16); e(f's_nop {k-1}'); n -= k
        else: raise ValueError(x)
    a.endq = (list(a.vq), list(a.lq))
    e(f's_branch {L("go")}')
    sec[0] = 'rare'
    def clr(): a.vq = []; a.lq = []
    early = [int(x[1]) for x in tail if x[0] == 'f']
    clr()
    e(f'{L("in")}:\n{ldfl}\n{spin}\ns_waitcnt lgkmcnt(0)\ns_cmp_gt_u32 s{sRdy}, 1\ns_cbranch_scc0 {L("in")}')
    for n in range(4): e(dma(n))
    upm()
    e(f'{L("in2")}:')
    for f in early: e(ldf(f))
    zero(QA, 16); zero(VA, 8)
    e(f's_waitcnt vmcnt(0)\ns_barrier\ns_branch {L("go2")}')
    clr()
    e(f'{L("f0")}:')
    if 'g0' in tail:
        assert tok['g0'] is not None
        a.auto = False
        e(f's_cmp_eq_u32 s{sTry}, s{sStep}\ns_cbranch_scc1 {L("f1")}\ns_mov_b32 s{sTry}, s{sStep}\ns_nop 3'); cnt(4)
        zero(QA, 8)
        e(f's_waitcnt vmcnt({tok["g0"]}) lgkmcnt(0)\ns_branch {L("go2")}\n{L("f1")}:')
        a.auto = True
    seq = [x for x in tail if x[0] in 'fg' or x in ('mst', 'ms2')]
    def again(first, b):
        q = seq + [x for g in range(b + 1) for x in [f'f{f}' for f in range(1, 9) if lat[f] == g] + ['x'] * kd.count(g)]
        q = q[min(q.index(f'f{f}') for f in first):]
        return 1 + max(q.index(f'f{f}') for f in first), [ldf(int(x[1]), ' sc1') if x[0] == 'f' else f'buffer_load_dword v{vZero}, {WS}, s{sMs} offen lds' for x in q]
    fast = 'slow' not in abl
    q = again('0', -1)[1]
    e(q[0]); e(spin); cnt(0); e('s_nop 3')
    zero(QA, 8)
    e('\n'.join(q[1:]))
    e(f's_waitcnt vmcnt({len(q) - 1 if fast else 0}) lgkmcnt(0)\ns_branch {L("go2")}')
    for fs, c, b in chk:
        clr()
        e(f'{L("c" + fs)}:')
        nq, q = again(fs, int(b))
        a.auto = False
        e('\n'.join(q[:nq]))
        e(spin); cnt(min(5, 1 + chk.index([fs, c, b])))
        e('\n'.join(q[nq:]))
        r = [FB[int(f)] + 3 for f in fs] * 3
        e(f's_waitcnt vmcnt({len(q) - nq if fast else 0})\nv_max3_u32 v{vT}, v{r[0]}, v{r[1]}, v{r[2]}\nv_cmp_eq_u32 vcc, -1, v{vT}')
        a.auto = True
        e(f's_cbranch_vccnz {L("c" + fs)}\ns_branch {L("g" + fs)}')
    clr()
    e(f'{L("fn")}:')
    e(f's_cmp_eq_u32 s{sRedo}, s{sStep}\ns_cbranch_scc1 {L("gn")}\ns_mov_b32 s{sRedo}, s{sStep}'); cnt(8)
    e(f's_waitcnt vmcnt(0) lgkmcnt(0)\ns_nop 7\n{L("fl")}:')
    for f in range(9): e(ldf(f, ' sc1', 12 + 4 * f))
    e(spin)
    e(f'v_max_u32 v{vT}, v12, v13')
    for r in range(14, 48, 2): e(f'v_max3_u32 v{vT}, v{vT}, v{r}, v{r+1}')
    e(f'v_cmp_eq_u32 vcc, -1, v{vT}\ns_cbranch_vccnz {L("fl")}')
    e(f's_barrier\nbuffer_inv sc1\ns_waitcnt vmcnt(0)\ns_barrier\ns_branch {L("in2")}')
    for nm, s, pend in fails:
        a.auto = False
        more = rdl(s) + (rdl(sPrD) if s == sPrd else [])
        c = 7 if s == sPrD else 6
        if s == sPrd:
            e(f'{L("xrp")}:'); stamp('ok', 41); rfin()
            e(f'buffer_store_dword v{vT}, v{vMst}, {WS}, s{sMst} offen{cs}')
            e(f's_waitcnt vmcnt({opt(abl, "xw", 5)})\ns_barrier\ns_branch {L("yrp")}')
        ok = L('xrp' if s == sPrd else nm)
        e(f'{L("f" + nm)}:')
        for k, n in enumerate(pend):
            e('\n'.join(more)); cnt(c)
            e(f's_waitcnt vmcnt({n + len(more) * (k + 1)})'); rsum(s); e(f's_cbranch_vccz {ok}')
        e(f'{L("l" + nm)}:'); e('\n'.join(more)); e(spin); cnt(c)
        e(f's_waitcnt vmcnt({len(more) * (len(pend) + 1) - 2})'); rsum(s); e(f's_cbranch_vccz {ok}\ns_branch {L("l" + nm)}')
        a.auto = True
    if w == DW:
        clr(); e(f'{L("flg")}:\n{ldfl}\n{spin}\ns_waitcnt lgkmcnt(0)\ns_branch {L("fc")}')
```

```python
from asmlib import *
from layout import *
from rec6 import S_WS, S_RA, S_RB, S_W, S_H, WS, srd, P_X, P_WQ, P_WK, P_WV, P_WO, P_WG, P_WU, P_WD, P_OUT, P_DBG, MF32, MF16, opt
S_G = 3
RA = f's[{S_RA}:{S_RA+3}]'; RB = f's[{S_RB}:{S_RB+3}]'
MF3 = 'v_mfma_f32_32x32x16_bf16'
L16, LN, LJ, LG, T0, T1, T2, T3 = 1, 2, 3, 4, 5, 6, 7, 8
(t0, t1, t2, t3, sSpin, sK, sA, sB, sC, sD, sE, sF_, sG_, sH_) = range(46, 60)
sFB = 75
sRing = 74
FIN = 'K_end'
SPIN = f's_sub_u32 s{sSpin}, s{sSpin}, 1\ns_cbranch_scc1 {FIN}'

WST = [None]
OPT = []
def wst(a, role, k):
    if opt(OPT, 'tp' + role) == str(k):
        for x in ('s_lshl_b64 exec, 1, s78', 'v_mov_b32 v0, s76', 's_mov_b64 exec, -1', 's_mov_b32 s78, s66', 's_memrealtime s[76:77]'): a.raw(x)
    if WST[0] and WST[0][0] == role and k < 9:
        lab = a.newlabel('ws')
        for x in (f's_cmp_eq_u32 s66, {WST[0][1]}', f's_cbranch_scc0 {lab}', f's_mem{"real" if "wr" in OPT else ""}time s[{76+2*k}:{77+2*k}]', f'{lab}:'): a.raw(x)
def cvt(d, x, y): return f'v_cvt_pk_bf16_f32 v{d}, v{x}, v{y}'

def arrive(a, v=5, n=0):
    lab = a.newlabel('arr')
    if n is not None: a.e(f's_waitcnt vmcnt({n})\ns_barrier')
    vq = list(a.vq)
    a.e(f'''s_cmp_eq_u32 s{S_W}, 0
    s_cbranch_scc0 {lab}
    s_getreg_b32 s28, hwreg(HW_REG_XCC_ID, 0, 3)
    s_cmp_eq_u32 s{sFB}, 0
    s_cselect_b32 s28, s28, s2
    s_lshl_b32 s28, s28, 2
    s_lshl_b32 s28, 1, s28
    s_lshr_b32 s29, s2, 3
    s_lshl_b32 s29, s29, 2
    v_mov_b32 v{v}, s28
    s_lshl_b32 s28, s{sFB}, 7
    s_add_u32 s29, s29, s28
    v_mov_b32 v{v+1}, s29
    s_mov_b64 exec, 1
    global_atomic_add v{v+1}, v{v}, s[{P_DBG}:{P_DBG+1}] sc1
    s_mov_b64 exec, -1
    {lab}:''')
    a.vq = vq

def gb_ld(a, v):
    a.e(f'''v_mbcnt_lo_u32_b32 v{v}, -1, 0
    v_and_b32 v{v}, 31, v{v}
    v_lshlrev_b32 v{v}, 2, v{v}
    v_lshl_add_u32 v{v}, s{sFB}, 7, v{v}
    global_load_dword v{v+1}, v{v}, s[{P_DBG}:{P_DBG+1}] sc1''')
def gbar(a, v, spin, ta, force=None, lds=None, nap=8):
    lab = a.newlabel('gb')
    a.e(f's_mov_b32 s{spin}, 0x40000\ns_mov_b32 s{ta}, 0x11111111')
    if lds is None: a.e(f's_branch {lab}_c')
    else: a.e(f's_cmp_eq_u32 s{S_W}, 0\ns_cbranch_scc0 {lab}_w\ns_branch {lab}_l')
    vq = list(a.vq)
    a.e(f'{lab}:\ns_sleep {nap}\n{lab}_l:')
    gb_ld(a, v)
    a.e(f'''s_sub_u32 s{spin}, s{spin}, 1
    s_cbranch_scc1 {FIN}
    s_waitcnt vmcnt(0)
    {lab}_c:
    v_mul_lo_u32 v{v+2}, v{v+1}, s{ta}
    v_cmp_le_i32 vcc, 0, v{v+2}
    s_cbranch_vccnz {lab}
    v_cmp_ne_u32 vcc, {'0' if force else f's{ta}'}, v{v+1}
    s_cmp_lg_u64 vcc, 0
    s_cselect_b32 s{ta}, 1, 0''')
    if lds is not None:
        a.e(f'''v_mov_b32 v{v}, {lds}
        v_mov_b32 v{v+1}, s{ta}
        ds_write_b32 v{v}, v{v+1}
        s_waitcnt lgkmcnt(0)
        {lab}_w:
        s_barrier
        v_mov_b32 v{v}, {lds}
        ds_read_b32 v{v+1}, v{v}
        s_waitcnt lgkmcnt(0)
        v_readfirstlane_b32 s{ta}, v{v+1}''')
    a.e(f's_cmp_gt_u32 s{ta}, s{sFB}\ns_cbranch_scc1 K_again')
    a.vq = vq

def w_init(a):
    e = a.e
    e(f'''v_and_b32 v{LN}, 63, v0
    v_lshlrev_b32 v{L16}, 4, v{LN}
    v_and_b32 v{LJ}, 15, v{LN}
    v_lshrrev_b32 v{LG}, 4, v{LN}''')
    e(f'''v_mov_b32 v12, -1
    v_mov_b32 v13, -1
    v_mov_b32 v14, -1
    v_mov_b32 v15, -1
    v_lshlrev_b32 v{T3}, 4, v0
    v_mov_b32 v9, {OOB}
    v_cmp_eq_u32 vcc, 0, v0
    v_cndmask_b32 v9, v9, 0, vcc
    v_mov_b32 v10, 0''')

def ring_fill(a, PS, n):
    e = a.e
    lab = a.newlabel('rf')
    e(f'''s_cmp_eq_u32 s{S_G}, 2
    s_cselect_b32 s{t0}, 8, s{S_G}
    s_lshl_b32 s{t0}, s{t0}, 22
    s_lshl_b32 s{t1}, s{sFB}, 27
    s_add_u32 s{sRing}, s{t0}, s{t1}
    s_add_u32 s{sRing}, s{sRing}, {RING}
    s_mul_i32 s{t0}, s{S_H}, {PS}
    s_add_u32 s{t0}, s{t0}, s{sRing}
    s_cmp_eq_u32 s{sFB}, 0
    s_cbranch_scc0 {lab}_f''')
    for sc in ('', ' sc1'):
        vq = list(a.vq)
        for sl in range(2):
            for k in range(n):
                e(f's_add_u32 s{t1}, s{t0}, {sl*RSLOT + k*4096}\nbuffer_store_dwordx4 v[12:15], v{T3}, {WS}, s{t1} offen{sc}')
        if not sc:
            e(f's_branch {lab}\n{lab}_f:'); a.vq = vq
    e(f'{lab}:')

def touch(a, order='qkv'):
    e = a.e
    e(f'''s_sub_u32 s{t1}, s{S_G}, 4
    s_max_i32 s{t1}, s{t1}, 0
    s_lshl_b32 s{t2}, s{S_H}, 2
    s_add_u32 s{t1}, s{t1}, s{t2}
    s_lshl_b32 s{t1}, s{t1}, 12''')
    a.auto = False
    for m in order:
        srd(a, S_RB, {'q': P_WQ, 'k': P_WK, 'v': P_WV, 'o': P_WO}[m], 576 * 8192)
        for n in range(9): e(f's_add_u32 s{t2}, s{t1}, {n*128*4096}\nbuffer_load_dwordx4 v[24:27], v{T3}, {RB}, s{t2} offen')
    a.auto = True
    return 9 * len(order)

def ln1(a, tch):
    e = a.e
    X0 = 32
    F0 = 72
    srd(a, S_RA, P_X, 2048 * 1152)
    e(f'''s_mul_i32 s{t0}, s{S_H}, 3
    s_add_u32 s{t0}, s{t0}, s{S_G}
    s_sub_u32 s{t0}, s{t0}, 5
    s_mul_i32 s{t0}, s{t0}, 3
    s_add_u32 s{sK}, s{t0}, s{S_W}
    s_cmp_lt_u32 s{S_W}, 3
    s_cselect_b32 s{sK}, s{sK}, 256
    v_and_b32 v{T0}, 7, v{LN}
    v_lshrrev_b32 v{T1}, 3, v{LN}
    v_mul_u32_u24 v{T2}, 1152, v{T0}
    v_lshl_add_u32 v{T2}, v{T1}, 4, v{T2}
    s_mul_i32 s{t0}, s{sK}, {8*1152}''')
    for n in range(9): e(f'buffer_load_dwordx4 {vr(X0+4*n,4)}, v{T2}, {RA}, s{t0} offen offset:{n*128}')
    n = touch(a, tch)
    ring_fill(a, PS, 5)
    e(f'''s_cmp_lt_u32 s{sK}, 256
    s_cbranch_scc0 W_noln_b
    s_waitcnt vmcnt({10 + n})''')
    a.vq = []
    def red(r):
        e(f'''v_add_f32_dpp v{r}, v{r}, v{r} row_ror:8 row_mask:0xf bank_mask:0xf
        v_mov_b32 v17, v{r}
        v_permlane16_swap_b32 v{r}, v17
        v_add_f32 v{r}, v{r}, v17
        v_mov_b32 v17, v{r}
        v_permlane32_swap_b32 v{r}, v17
        v_add_f32 v{r}, v{r}, v17''')
    def unpack(src):
        for k in range(36):
            e(f'v_lshlrev_b32 v{F0+2*k}, 16, v{src+k}\nv_and_b32 v{F0+2*k+1}, 0xffff0000, v{src+k}')
    def rbf(r): e(f'v_cvt_pk_bf16_f32 v{r}, v{r}, v{r}\nv_lshlrev_b32 v{r}, 16, v{r}')
    unpack(X0)
    e(f'v_pk_add_f32 v[20:21], {vr(F0,2)}, {vr(F0+2,2)}')
    for k in range(2, 36): e(f'v_pk_add_f32 v[20:21], v[20:21], {vr(F0+2*k,2)}')
    e('v_add_f32 v16, v20, v21'); red(16)
    e(f'v_mul_f32 v16, {hex(f2u(-1/576))}, v16\nv_mov_b32 v18, 0\nv_mov_b32 v19, 0')
    for k in range(36):
        e(f'v_pk_add_f32 v[20:21], {vr(F0+2*k,2)}, v[16:17] op_sel_hi:[1,0]\nv_pk_fma_f32 v[18:19], v[20:21], v[20:21], v[18:19]')
    e('v_add_f32 v18, v18, v19'); red(18)
    e(f'v_mul_f32 v18, {hex(f2u(1/576))}, v18'); rbf(18)
    e(f'v_add_f32 v18, {hex(f2u(1e-5))}, v18'); rbf(18)
    e('v_sqrt_f32 v18, v18'); rbf(18)
    e('v_rcp_f32 v18, v18'); rbf(16)
    for k in range(36):
        e(f'v_pk_add_f32 v[20:21], {vr(F0+2*k,2)}, v[16:17] op_sel_hi:[1,0]\n' + cvt(X0+k, 20, 21))
    unpack(X0)
    for k in range(36):
        e(f'v_pk_mul_f32 v[20:21], {vr(F0+2*k,2)}, v[18:19] op_sel_hi:[1,0]\n' + cvt(X0+k, 20, 21))
    e(f'''v_lshlrev_b32 v{T2}, 4, v{T0}
    v_lshl_add_u32 v{T2}, v{T1}, 9, v{T2}
    s_lshr_b32 s{t0}, s{sK}, 2
    s_mul_i32 s{t0}, s{t0}, 36864
    s_and_b32 s{t1}, s{sK}, 1
    s_lshl_b32 s{t1}, s{t1}, 8
    s_add_u32 s{t0}, s{t0}, s{t1}
    s_and_b32 s{t1}, s{sK}, 2
    s_lshl_b32 s{t1}, s{t1}, 6
    s_add_u32 s{t0}, s{t0}, s{t1}
    s_add_u32 s{t0}, s{t0}, {XN}''')
    for n in range(9):
        e(f'buffer_store_dwordx4 {vr(X0+4*n,4)}, v{T2}, {WS}, s{t0} offen sc1\ns_add_u32 s{t0}, s{t0}, 4096')
    e('W_noln_b:')
    a.vq = []

import struct
def f2u(x): return struct.unpack('<I', struct.pack('<f', x))[0]

def qfrag(n): return ('a', 4 * n) if n < 64 else ('v', 224 + 4 * (n - 64))
def q_load(a):
    e = a.e
    e(f'''s_lshl_b32 s{sE}, s{S_H}, 6
    buffer_store_dword v10, v9, {WS}, s{sE} offen sc1
    s_cmp_ge_u32 s{S_W}, 2
    s_cselect_b32 s{S_RA}, s{P_WV}, s{P_WK}
    s_cselect_b32 s{S_RA+1}, s{P_WV+1}, s{P_WK+1}
    s_lshl_b32 s{t0}, s{S_H}, 1
    s_and_b32 s{t1}, s{S_W}, 1
    s_add_u32 s{sB}, s{t0}, s{t1}
    s_mov_b32 s{S_RA+2}, {576*8192}
    s_mov_b32 s{S_RA+3}, 0x20000
    v_lshrrev_b32 v{T0}, 3, v{LN}
    v_lshlrev_b32 v{T0}, 13, v{T0}
    v_and_b32 v{T1}, 7, v{LN}
    v_lshl_add_u32 v{T0}, v{T1}, 4, v{T0}
    s_lshl_b32 s{sA}, s{sB}, 7
    s_mul_i32 s{sD}, s{S_W}, {18*2048}''')
    e(f'''v_and_b32 v{T1}, 3, v{LJ}
    v_lshlrev_b32 v{T1}, 3, v{T1}
    v_and_b32 v{T2}, 1, v{LG}
    v_lshl_add_u32 v{T1}, v{T2}, 5, v{T1}
    v_lshrrev_b32 v{T2}, 1, v{LG}
    v_lshrrev_b32 v{T3}, 2, v{LJ}
    v_lshl_add_u32 v{T2}, v{T2}, 3, v{T3}
    v_lshl_add_u32 v{T1}, v{T2}, 7, v{T1}
    v_add_u32 v{T1}, s{sD}, v{T1}''')
    toks = {}
    def issue(n):
        for k in range(2):
            e(f's_add_u32 m0, s{sD}, {(n % 18)*2048 + k*1024}')
            e(f'buffer_load_dwordx4 v{T0}, {RA}, s{sA} offen lds')
            e(f's_add_u32 s{sA}, s{sA}, {8*8192}')
        toks[n] = a.mark_v()
    for n in range(18):
        issue(n)
        if n == 3: arrive(a, 16, 8)
    for n in range(36):
        a.wait_v(toks[n])
        for t in range(2):
            p, b = qfrag(2 * n + t)
            for u in range(2):
                e(f'ds_read_b64_tr_b16 {vr(b+2*u,2,p)}, v{T1} offset:{(n % 18)*2048 + t*64 + u*512}')
        if n + 18 < 36:
            e('s_waitcnt lgkmcnt(0)'); issue(n + 18)
    e('s_waitcnt lgkmcnt(0)')

def q_main(a):
    e = a.e
    XB = 32; NB = 8; PF = 4
    ACC = [64, 96]; OUT = 128
    vA, vS, vFl = T0, T1, 9
    e(f'''v_and_b32 v{vS}, 7, v{LN}
    v_lshrrev_b32 v{T2}, 4, v{LN}
    v_lshl_add_u32 v{vS}, v{T2}, 3, v{vS}
    v_lshlrev_b32 v{vS}, 4, v{vS}
    v_bfe_u32 v{T2}, v{LN}, 3, 1
    v_lshl_add_u32 v{vS}, v{T2}, 10, v{vS}''')
    OSTEP = 32 * 16384
    e(f'''s_mul_i32 s{t0}, s{S_W}, 9216
    s_add_u32 s{sA}, s{t0}, {XN}
    s_lshl_b32 s{t1}, s{sB}, 13
    s_lshr_b32 s{t2}, s{S_W}, 1
    s_lshl_b32 s{t2}, s{t2}, 11
    s_add_u32 s{t1}, s{t1}, s{t2}
    s_add_u32 s{sD}, s{t1}, {KVX - OSTEP}
    s_lshl_b32 s{sC}, s{S_H}, 2
    s_add_u32 s{sC}, s{sC}, s{S_W}
    s_lshl_b32 s{sC}, s{sC}, 10
    s_add_u32 s{sC}, s{sC}, {KV}''')
    def dma(n, m0base):
        return [f's_add_u32 m0, s{m0base}, {n*1024 - (n & 3)*1024}' if (n & 3) == 0 else None,
                f's_add_u32 s{t3}, s{sA}, {n*1024 - (n & 3)*1024}' if (n & 3) == 0 else None,
                f'buffer_load_dwordx4 v{L16}, {WS}, s{t3} offen offset:{(n & 3)*1024} sc1 lds']
    for b in range(2):
        e(f's_add_u32 s{t1}, s{t0}, {b*36864}')
        for n in range(9):
            for x in dma(n, t1):
                if x: e(x)
        e(f's_add_u32 s{sA}, s{sA}, 36864')
    e(f'''s_mov_b32 s{sK}, 0
    s_mov_b32 s{sH_}, 0
    v_mov_b32 v{vA}, v{L16}
    s_waitcnt vmcnt(9)
    s_barrier''')
    def rd(k): return f'ds_read_b128 {vr(XB + 4*(k % NB), 4)}, v{vA} offset:{(k % 36)*1024}'
    for k in range(PF): e(rd(k))
    e(f's_cmp_ge_u32 s{S_W}, 2\ns_cbranch_scc1 QV_loop')
    lq0 = list(a.lq)
    def epi(b, var):
        r = []
        for t in range(2):
            for c in range(2):
                q = ACC[b] + 16*t + 8*c
                r += [[cvt(OUT + 8*t + 4*c + k, *((q + k, q + 4 + k) if var == 'QK' else (q + 2*k, q + 2*k + 1))) for k in range(4)]]
                r += [[f'buffer_store_dwordx4 {vr(OUT + 8*t + 4*c, 4)}, v{vS}, {WS}, s{sD if t == 0 else t2} offen offset:{c*512} sc1']]
        return r
    for var in ('QK', 'QV'):
        a.lq = list(lq0); a.vq = []
        e(f'{var}_loop:')
        for b in range(2):
            fill = {k: [] for k in range(36)}
            fill[0] += [f's_add_u32 s{t2}, s{sD}, 4096', f's_add_u32 s{t1}, s{sH_}, {2*36864}', f's_cmp_ge_u32 s{t1}, {4*36864}',
                        f's_cselect_b32 s{t3}, {4*36864}, 0', f's_sub_u32 s{t1}, s{t1}, s{t3}', f's_add_u32 s{t1}, s{t1}, s{t0}']
            for n, x in enumerate(epi(1 - b, var)): fill[1 + n] += x
            fill[9] += [f'buffer_store_dwordx4 v[12:15], v{L16}, {WS}, s{sC} offen sc1', f's_add_u32 s{sC}, s{sC}, {32*4096}']
            for n in range(9): fill[10 + 2*n] += [x for x in dma(n, t1) if x]
            fill[28] += [f's_add_u32 s{sA}, s{sA}, 36864', f's_add_u32 s{sD}, s{sD}, {OSTEP}', f's_add_u32 s{sH_}, s{sH_}, 36864',
                         f's_cmp_ge_u32 s{sH_}, {4*36864}', f's_cselect_b32 s{sH_}, 0, s{sH_}', f'v_mov_b32 v10, s{sK}']
            fill[30] += ['s_waitcnt vmcnt(9)', 's_barrier', f'buffer_store_dword v10, v{vFl}, {WS}, s{sE} offen sc1', f's_add_u32 s{sK}, s{sK}, 1']
            for k in range(36):
                kk = 36 * b + k
                if k + PF == 36: e(f'v_add_u32 v{vA}, s{sH_}, v{L16}')
                e(rd(kk + PF))
                for t in range(2):
                    p, r = qfrag(2 * k + t)
                    W = vr(r, 4, p); X = vr(XB + 4 * (kk % NB), 4); D = vr(ACC[b] + 16 * t, 16)
                    e(f'{MF3} {D}, {W if var == "QK" else X}, {X if var == "QK" else W}, {"0" if k == 0 else D}')
                for x in fill[k]: e(x)
        e(f's_cmp_lt_u32 s{sK}, 64\ns_cbranch_scc1 {var}_loop')
        e(f's_add_u32 s{t2}, s{sD}, 4096')
        for x in epi(1, var):
            for y in x: e(y)
        if var == 'QK': e('s_branch Q_tail')
    e('Q_tail:')
    e(f'''v_mov_b32 v10, 128
    s_waitcnt vmcnt(0) lgkmcnt(0)
    s_barrier
    buffer_store_dword v10, v{vFl}, {WS}, s{sE} offen sc1''')
    a.vq = []

SEL, NEG = 24, 28
vPS, vP8, vRD, vRes, vXw, vZ, vTr, vMx = 10, 11, 12, 13, 14, 15, 16, 17
(sPW, sPR, sTask, sTW, sTR, sCnt) = range(61, 67)
import os
NA = 2; NF = 3
def red_setup(a, PS=PS):
    e = a.e
    e(f'''v_mov_b32 v{T0}, 0x3f80
    v_mov_b32 v{T1}, 0x3f800000
    v_and_b32 v{T2}, 1, v{LJ}
    v_cmp_eq_u32 vcc, 0, v{T2}
    v_cndmask_b32 v{T0}, v{T1}, v{T0}, vcc
    v_lshrrev_b32 v{T2}, 1, v{LJ}''')
    for q in range(4):
        e(f'v_cmp_eq_u32 vcc, {q}, v{T2}\nv_cndmask_b32 v{SEL+q}, 0, v{T0}, vcc')
    e(f'''v_lshrrev_b32 v{T0}, 1, v{LG}
    v_lshlrev_b32 v{vP8}, 4, v{LJ}
    v_lshl_add_u32 v{vP8}, v{T0}, 8, v{vP8}
    v_and_b32 v{T0}, 1, v{LG}
    v_lshl_add_u32 v{vP8}, v{T0}, 3, v{vP8}
    v_add_u32 v{vP8}, 4096, v{vP8}
    v_mul_u32_u24 v{vRD}, {PS}, v{LG}
    v_lshl_add_u32 v{vRD}, v{LJ}, 4, v{vRD}
    s_mul_i32 s{t1}, s{S_H}, {PS}
    s_add_u32 s{sPW}, s{sRing}, s{t1}
    s_mul_i32 s{t1}, s{S_W}, 4608
    s_add_u32 s{sPW}, s{sPW}, s{t1}
    s_lshl_b32 s{sTask}, s{S_W}, 5
    s_add_u32 s{sTask}, s{sTask}, s{S_H}
    s_lshl_b32 s{t1}, s{sTask}, 8
    s_add_u32 s{sPR}, s{sRing}, s{t1}
    s_mov_b32 s{sTW}, 0
    s_mov_b32 s{sCnt}, 0''')

def tagb(r): return f'v_bfi_b32 v{r}, 1, s{sTW}, v{r}'
def next_slot(a):
    a.e(f'''s_xor_b32 s{sPW}, s{sPW}, {RSLOT}
    s_mov_b32 s{sTR}, s{sTW}
    s_add_u32 s{sCnt}, s{sCnt}, 1
    s_lshr_b32 s{sTW}, s{sCnt}, 1''')
def proj_epi(u, W, sc, sPW=sPW):
    if u == 8:
        return [cvt(W + 32, W + 32, W + 33), cvt(W + 33, W + 34, W + 35), tagb(W + 32), tagb(W + 33), f'buffer_store_dwordx2 {vr(W+32,2)}, v{vP8}, {WS}, s{sPW} offen{sc}']
    if u & 1 == 0: return []
    r = W + 4 * (u - 1)
    return [cvt(r + k, r + 2*k, r + 2*k + 1) for k in range(4)] + [tagb(r + k) for k in range(4)] + [f'buffer_store_dwordx4 {vr(r,4)}, v{L16}, {WS}, s{sPW} offen offset:{(u >> 1)*1024}{sc}']

def red_ld(a, RD, PS=PS, off=0):
    for l in range(8):
        a.e(f's_add_u32 s{t0}, s{sPR}, {4*l*PS + off}\nbuffer_load_dwordx4 {vr(RD+4*l,4)}, v{vRD}, {WS}, s{t0} offen sc1')
def red_sum(a, RD, D, again):
    e = a.e
    for l in range(8):
        r = RD + 4 * l
        e(f'{MF32} {vr(D,4)}, {vr(SEL,4)}, {vr(r,4)}, {"0" if l == 0 else vr(D,4)}')
        for k in range(2): e(f'v_bitop3_b32 v{T2+k}, v{r+2*k}, v{r+2*k+1}, s{sTR} bitop3:0x7e')
        e(f'v_or_b32 v{vMx}, v{T2}, v{T3}' if l == 0 else f'v_or3_b32 v{vMx}, v{vMx}, v{T2}, v{T3}')
    e(f'v_and_b32 v{vMx}, 1, v{vMx}\nv_cmp_ne_u32 vcc, 0, v{vMx}\ns_cbranch_vccnz {again}')
RM = [16, 18, 20, 22, 24, 26, 32, 34]
def red_sum2(a, RD, D, again):
    e = a.e
    for l in range(8):
        r = RD + 4 * l
        e(f'{MF32} {vr(D,4)}, {vr(SEL,4)}, {vr(r,4)}, {"0" if l == 0 else vr(D,4)}')
        for k in range(2): e(f'v_bitop3_b32 v{T2+k}, v{r+2*k}, v{r+2*k+1}, s{sTR} bitop3:0x7e')
        if l > 1: e(f's_or_b64 s[36:37], s[{RM[l-1]}:{RM[l-1]+1}], s[{36 if l > 2 else RM[0]}:{37 if l > 2 else RM[0]+1}]')
        e(f'v_bitop3_b32 v{T2}, v{T2}, v{T3}, 1 bitop3:0xa8\nv_cmp_ne_u32 s[{RM[l]}:{RM[l]+1}], 0, v{T2}')
    e(f's_or_b64 s[36:37], s[36:37], s[{RM[7]}:{RM[7]+1}]\ns_cbranch_scc1 {again}')
def red_again(a, RD, PS, off, lab, back):
    a.e(f'{lab}:')
    for l in range(8):
        a.e(f'''s_cmp_lg_u64 s[{RM[l]}:{RM[l]+1}], 0
        s_cbranch_scc0 {lab}_{l}
        s_add_u32 s{t0}, s{sPR}, {4*l*PS + off}
        buffer_load_dwordx4 {vr(RD+4*l,4)}, v{vRD}, {WS}, s{t0} offen sc1
        {lab}_{l}:''')
    a.e(f'{SPIN}\ns_waitcnt vmcnt(0)\ns_branch {back}')
def red_fin(a, U, D, R):
    e = a.e
    e(cvt(D, D, D + 1)); e(cvt(D + 1, D + 2, D + 3))
    for k in range(2):
        e(f'''v_lshlrev_b32 v{U}, 16, v{D+k}
        v_and_b32 v{U+1}, 0xffff0000, v{D+k}
        v_lshlrev_b32 v{U+2}, 16, v{R+k}
        v_and_b32 v{U+3}, 0xffff0000, v{R+k}
        v_pk_add_f32 {vr(U,2)}, {vr(U,2)}, {vr(U+2,2)}''')
        e(cvt(D + k, U, U + 1))
    e(f'v_permlane16_swap_b32 v{D}, v{D+2}\nv_permlane16_swap_b32 v{D+1}, v{D+3}')
def tr_cols(a, rowexpr):
    a.e(rowexpr)
    a.e(f'''v_mul_u32_u24 v{T0}, 1152, v{T0}
    s_mul_i32 s{t0}, s{S_W}, 288
    v_add_u32 v{T0}, s{t0}, v{T0}
    v_and_b32 v{T1}, 3, v{LJ}
    v_lshl_add_u32 v{vTr}, v{T1}, 4, v{T0}
    v_lshl_add_u32 v{T3}, v{T1}, 3, v{T0}
    v_add_u32 v{T3}, 256, v{T3}''')

LA_Q, LA_O, LA_IM, LA_IK, LA_KV, LA_X = 0, 8192, 16384, 20480, 24576, 40960
def aq(n): return ('a', 144 + 4 * n) if n < 28 else ('v', 224 + 4 * (n - 28))
def a_load(a, st=None, order='oq', late=None):
    e = a.e
    ring_fill(a, PSA, 9)
    if late:
        arrive(a, 18); late()
    e('A_ld:')
    def arr(n, c):
        if n == 7 and c == order[0] and not late:
            e(f's_cmp_eq_u32 s{S_G}, 2\ns_cbranch_scc1 A_ld2')
            arrive(a, 18, 8)
            e('A_ld2:')
            if st: st()
    def lq():
        srd(a, S_RB, P_WQ, 576 * 8192)
        e(f'''v_lshlrev_b32 v{T0}, 2, v{LG}
        v_xor_b32 v{T0}, v{T0}, v{LJ}
        v_lshlrev_b32 v{T0}, 4, v{T0}
        v_lshl_add_u32 v{T0}, v{LG}, 13, v{T0}
        s_mul_i32 s{t1}, s{S_W}, 36864
        s_mul_i32 s{t0}, s{S_W}, {144*8192}
        s_lshl_b32 s{t2}, s{S_H}, 8
        s_add_u32 s{t0}, s{t0}, s{t2}''')
        for n in range(36):
            e(f's_add_u32 m0, s{t1}, {n*1024}\ns_add_u32 s{t2}, s{t0}, {n*4*8192}')
            e(f'buffer_load_dwordx4 v{T0}, {RB}, s{t2} offen lds')
            arr(n, 'q')
        e(f'''v_lshrrev_b32 v{T0}, 2, v{LJ}
        v_xor_b32 v{T1}, s{S_W}, v{T0}
        v_lshlrev_b32 v{T1}, 6, v{T1}
        v_lshl_add_u32 v{T1}, v{T0}, 8, v{T1}
        v_lshrrev_b32 v{T0}, 1, v{LG}
        v_lshl_add_u32 v{T1}, v{T0}, 11, v{T1}
        v_and_b32 v{T0}, 1, v{LG}
        v_lshl_add_u32 v{T1}, v{T0}, 5, v{T1}
        v_and_b32 v{T0}, 3, v{LJ}
        v_lshl_add_u32 v{T1}, v{T0}, 3, v{T1}
        s_waitcnt vmcnt(0)
        s_barrier''')
        for n in range(36):
            p, b = aq(n)
            for u in range(2): e(f'ds_read_b64_tr_b16 {vr(b + 2*u, 2, p)}, v{T1} offset:{(n % 12)*4096 + u*1024}')
            if n % 12 == 11: e(f'v_add_u32 v{T1}, {12*4096}, v{T1}')
    def lo():
        srd(a, S_RA, P_WO, 32 * 147456)
        e(f'''s_mul_i32 s{t0}, s{S_H}, 147456
        s_mul_i32 s{t1}, s{S_W}, 36864
        s_add_u32 s{t0}, s{t0}, s{t1}''')
        for n in range(36):
            if n & 3 == 0: e(f's_add_u32 m0, s{t1}, {n*1024}\ns_add_u32 s{t2}, s{t0}, {n*1024}')
            e(f'buffer_load_dwordx4 v{L16}, {RA}, s{t2} offen offset:{(n & 3)*1024} lds')
            arr(n, 'o')
        tr_cols(a, f'''v_lshrrev_b32 v{T0}, 1, v{LG}
        v_lshlrev_b32 v{T0}, 4, v{T0}
        v_and_b32 v{T1}, 1, v{LG}
        v_lshl_add_u32 v{T0}, v{T1}, 2, v{T0}
        v_lshrrev_b32 v{T1}, 2, v{LJ}
        v_add_u32 v{T0}, v{T0}, v{T1}''')
        e('s_waitcnt vmcnt(0)\ns_barrier')
        for kap in range(4):
            for u in range(9):
                for hh in range(2):
                    off = hh * 8 * 1152 + (0 if u == 8 else (u >> 1) * 64 + (u & 1) * 8)
                    e(f'ds_read_b64_tr_b16 {vr(16*u + 4*kap + 2*hh, 2, "a")}, v{T3 if u == 8 else vTr} offset:{off}')
            e(f'v_add_u32 v{vTr}, {32*1152}, v{vTr}\nv_add_u32 v{T3}, {32*1152}, v{T3}')
    for c in order:
        {'q': lq, 'o': lo}[c]()
        e('s_waitcnt lgkmcnt(0)')
        if c == order[0]: e('s_barrier')
    red_setup(a, PSA)

AKN, ABI, AQ, AK, AV, AS, AZ, AKV, AO, AOF, AW, AXB, ARD, AD, ARS = 28, 32, 40, 56, 88, 104, 116, 132, 56, 56, 140, 104, 148, 212, 220
vQw, vKw, vX, vPg, vHf, vOw = 14, 20, 21, 22, 23, 9
sSeg, sRdy, sProg, sFl, sPW2, sTwo, sE2 = range(67, 74)
sXd, sPnd, sStp, sStq = sK, 60, 30, 31
Z0 = 60
def a_dmx():
    r = []
    for n in range(9):
        x = f's_add_u32 m0, s{sC}, {n*1024}\n' + (f's_add_u32 s{t2}, s{t2}, 4096\n' if n else '') if n & 3 == 0 else ''
        r.append(x + f'buffer_load_dwordx4 v{L16}, {WS}, s{t2} offen offset:{(n & 3)*1024} sc1 lds')
    return r
def a_dma(a, tag):
    a.e(f'''{tag}_dm:
    s_cmp_gt_u32 s{sRdy}, s{sSeg}
    s_cbranch_scc0 {tag}_fl
    s_cmp_lt_u32 s{sSeg}, 64
    s_cselect_b32 s{t1}, s{sSeg}, 0x800
    s_lshl_b32 s{t0}, s{S_W}, 12
    s_add_u32 m0, s{t0}, {LA_KV}
    s_lshl_b32 s{t2}, s{t1}, 19
    s_add_u32 s{t2}, s{t2}, s{sA}
    s_lshl_b32 s{t1}, s{t1}, 17
    s_add_u32 s{sH_}, s{t1}, s{sD}''')
    return [f'buffer_load_dwordx4 v{L16}, {WS}, s{t2} offen offset:{n*1024} sc1 lds' for n in range(4)]
def a_flags(a, tag):
    a.vq = []; a.lq = []
    a.e(f'''{tag}_fl:
    buffer_load_dword v{vPg}, off, {WS}, s{sFl} sc1
    {SPIN}
    v_readfirstlane_b32 s{sRdy}, v{vPg}
    s_branch {tag}_dm''')

def a_init(a):
    e = a.e
    srd(a, S_RA, P_X, 2048 * 1152)
    e(f'''s_sub_u32 s{sSeg}, s{S_G}, 3
    s_cselect_b32 s{sSeg}, {opt(OPT, 'z0', Z0)}, s{sSeg}
    s_mov_b32 s{sStp}, 0
    s_mov_b32 s{sRdy}, 0
    s_mov_b32 s{sProg}, 0
    s_lshl_b32 s{sFl}, s{S_H}, 6
    s_mov_b32 s{sSpin}, 0x100000
    s_barrier
    s_lshl_b32 s{t0}, s{S_H}, 2
    s_add_u32 s{t0}, s{t0}, s{S_W}
    s_lshl_b32 s{sA}, s{t0}, 12
    s_add_u32 s{sA}, s{sA}, {KVX}
    s_mul_i32 s{sC}, s{S_W}, 9216
    s_add_u32 s{sB}, s{sC}, {XN}
    s_add_u32 s{sC}, s{sC}, {LA_X}
    s_lshl_b32 s{sD}, s{t0}, 10
    s_add_u32 s{sD}, s{sD}, {KV}''')
    e(f's_mul_i32 s{t2}, s{sSeg}, 36864\ns_add_u32 s{sB}, s{sB}, s{t2}\ns_mov_b32 s{t2}, s{sB}')
    e('\n'.join(a_dmx()))
    e(f's_mov_b32 s{sXd}, 36864\ns_mov_b32 s{sPnd}, 0')
    e('\n'.join(a_dma(a, 'AI')))
    e(f'''s_mul_i32 s{sE}, s{sSeg}, 36864
    s_lshl_b32 s{t1}, s{sTask}, 8
    s_add_u32 s{sF_}, s{sE}, s{t1}
    s_add_u32 s{sF_}, s{sF_}, {H}
    s_lshl_b32 s{t1}, s{sTask}, 4
    s_add_u32 s{sE}, s{sE}, s{t1}
    s_add_u32 s{sE2}, s{sE}, {18432 + 56*16}
    s_cmp_ge_u32 s{sTask}, 72
    s_cselect_b32 s{t1}, {18432 - 72*16}, 0
    s_add_u32 s{sE}, s{sE}, s{t1}
    s_cmp_lt_u32 s{sTask}, 16
    s_cselect_b32 s{sTwo}, 1, 0
    s_cselect_b32 s{sE2}, s{sE2}, {OOB}
    v_mul_u32_u24 v{vRes}, 1152, v{LJ}
    v_lshl_add_u32 v{vRes}, v{LG}, 3, v{vRes}
    v_mov_b32 v{T0}, {OOB}
    v_cmp_gt_u32 vcc, 2, v{LG}
    v_cndmask_b32 v{vRes}, v{T0}, v{vRes}, vcc
    v_cmp_eq_u32 vcc, 0, v{LG}
    v_cndmask_b32 v{vPS}, v{T0}, v{L16}, vcc
    s_lshl_b32 s{t0}, s{S_W}, 10
    v_add_u32 v{vTr}, s{t0}, v{L16}
    v_add_u32 v{vX}, {LA_X}, v{L16}
    s_lshl_b32 s{t0}, s{S_W}, 11
    v_add_u32 v{vOw}, s{t0}, v{L16}''')
    e(f'''v_and_b32 v{vQw}, 7, v{LN}
    v_lshl_add_u32 v{vQw}, v{LG}, 3, v{vQw}
    v_lshlrev_b32 v{vQw}, 4, v{vQw}
    v_bfe_u32 v{T2}, v{LN}, 3, 1
    v_lshl_add_u32 v{vQw}, v{T2}, 10, v{vQw}
    v_add_u32 v{vQw}, s{t0}, v{vQw}
    s_lshr_b32 s{t3}, s{S_W}, 1
    s_lshl_b32 s{t0}, s{t3}, 10
    v_add_u32 v{vHf}, s{t0}, v{L16}''')
    e(f'''v_lshrrev_b32 v{T1}, 2, v{LJ}
    v_mul_u32_u24 v{vKw}, 144, v{T1}
    v_lshl_add_u32 v{vKw}, v{LG}, 5, v{vKw}
    v_and_b32 v{T0}, 3, v{LJ}
    v_lshl_add_u32 v{vKw}, v{T0}, 2, v{vKw}
    s_mul_i32 s{t0}, s{S_W}, 576
    s_add_u32 s{t0}, s{t0}, {LA_IK}
    v_add_u32 v{vKw}, s{t0}, v{vKw}
    v_mul_u32_u24 v{vZ}, 144, v{LG}
    v_lshl_add_u32 v{vZ}, v{T1}, 5, v{vZ}
    v_and_b32 v{T0}, 1, v{LJ}
    v_lshl_add_u32 v{vZ}, v{T0}, 4, v{vZ}''')
    e(f'''s_lshl_b32 s{t1}, s{t3}, 4
    v_add_u32 v{T0}, s{t1}, v{LJ}
    v_lshlrev_b32 v{T1}, 2, v{LG}
    v_sub_u32 v{T0}, v{T0}, v{T1}
    v_mov_b32 v{T1}, {hex(f2u(-1e30))}
    v_mov_b32 v18, 0''')
    for T in range(2):
        for p in range(4):
            e(f'v_cmp_le_i32 vcc, {16*T + p}, v{T0}\nv_cndmask_b32 v{ABI + 4*T + p}, v{T1}, 0, vcc')
    e(f'''s_and_b32 s{t0}, s{S_W}, 1
    s_lshl_b32 s{t1}, s{t0}, 13
    v_add_u32 v{LN}, s{t1}, v{L16}
    s_lshl_b32 s{t1}, s{t0}, 11
    v_add_u32 v{LJ}, s{t1}, v{L16}
    s_mov_b32 s{sG_}, 0x3e0293ee
    s_waitcnt vmcnt(0)''')

def a_loop(a, tag, sc):
    b = Asm(); b.uid = 20000
    w_ = WST[0]; WST[0] = None
    a_body(b, tag, sc, [])
    WST[0] = w_
    a_body(a, tag, sc, b.endq)
def a_body(a, tag, sc, vq0):
    e = a.e
    sa = opt(OPT, 'sa', 4); z0 = int(opt(OPT, 'z0', Z0))
    a.lq = []; a.vq = []
    P = AZ; PM = 18
    vV, vVm = LN, LJ
    def rld(k):
        return [f's_add_u32 s{t0}, s{sPR}, {4*l*PSA + 32768*k}\nbuffer_load_dwordx4 {vr(ARD + 32*k + 4*l, 4)}, v{vRD}, {WS}, s{t0} offen sc1' for l in range(8)]
    rare = []
    def rsum(tg, k):
        if k: e(f's_cmp_eq_u32 s{sTwo}, 0\ns_cbranch_scc1 {tg}_e')
        e(f'{tg}_s{k}:')
        a.vq = []
        (red_sum2 if tg[-1] == 'b' else red_sum)(a, ARD + 32*k, AD + 4*k, f'{tg}_r{k}')
        red_fin(a, ARD + 32*k, AD + 4*k, ARS + 2*k)
        if k: e(f's_add_u32 s{t0}, s{sF_}, 32768')
        e(f'buffer_store_dwordx4 {vr(AD + 4*k, 4)}, v{vPS}, {WS}, s{t0 if k else sF_} offen sc1')
        if not k: wst(a, tag, 9)
        rare.append((tg, k))
        if k:
            e(f'{tg}_e:')
            for r in (sE, sE2, sF_): e(f's_add_u32 s{r}, s{r}, s{sStq}')
            e(f's_xor_b32 s{sPR}, s{sPR}, {RSLOT}')
        a.vq = []
    NB = 8; PF = 5
    def rd(k): return f'ds_read_b128 {vr(AXB + 4*(k % NB), 4)}, v{vX} offset:{k*1024}'
    e(f'{tag}_in:\nv_mov_b32 v{vPg}, 0\ns_barrier')
    for k in range(PF): e(rd(k))
    e(f'{tag}_loop:')
    a.vq = list(vq0)
    wst(a, tag, 0)
    kv = [f'ds_read_b128 {vr(AK + 4*n, 4)}, v{L16} offset:{LA_KV + (n >> 1)*4096 + (n & 1)*1024}' for n in range(8)]
    kv += [f'ds_read_b128 {vr(AV + 4*n, 4)}, v{vV} offset:{LA_KV + (n >> 1)*4096 + 2048 + (n & 1)*1024}' for n in range(4)]
    dx = a_dmx()
    for k in range(36):
        if k + PF < 36: e(rd(k + PF))
        p, r = aq(k)
        e(f'{MF3} {vr(AQ,16)}, {vr(r, 4, p)}, {vr(AXB + 4*(k % NB), 4)}, {"0" if k == 0 else vr(AQ,16)}')
        if k & 1 and kv: e(kv.pop(0))
        if k == 0: e(f's_mul_i32 s{sStq}, s{sStp}, 36864\ns_cmp_lt_u32 s{sSeg}, {z0 - 2}\ns_cselect_b32 s{sStp}, 2, 3\ns_mul_i32 s{t2}, s{sStp}, 36864\ns_add_u32 s{sB}, s{sB}, s{t2}')
        if k == 1: e(f's_add_u32 s{sC}, s{sC}, s{sXd}\ns_add_u32 s{t2}, s{sSeg}, s{sStp}\ns_cmp_lt_u32 s{t2}, 64\ns_cselect_b32 s{t2}, s{sB}, {OOB}')
        if k == 2: e(f'v_readfirstlane_b32 s{sProg}, v{vPg}')
        if k == 3: e(f'''s_cmp_gt_u32 s{sProg}, s{sSeg}
            s_cselect_b32 s{t0}, s{sH_}, {OOB}
            buffer_load_dwordx4 {vr(AKN,4)}, v{L16}, {WS}, s{t0} offen sc1''')
        if k >= 4 and k % 3 == 1 and dx: e(dx.pop(0))
        if k == 32: e(f'v_add_u32 v{vX}, s{sXd}, v{vX}\ns_sub_u32 s{sXd}, 0, s{sXd}')
    assert not dx
    wst(a, tag, 1)
    for c in range(2):
        q = AQ + 8 * c
        for k in range(4): e(cvt(q + k, q + k, q + 4 + k))
        e(f'ds_write_b128 v{vQw}, {vr(q,4)} offset:{LA_Q + c*512}')
    e('s_waitcnt lgkmcnt(0)\ns_barrier')
    wst(a, tag, 2)
    for kap in range(4): e(f'ds_read_b128 {vr(AQ + 4*kap, 4)}, v{vHf} offset:{LA_Q + kap*2048}')
    e(f's_cmp_gt_u32 s{sProg}, s{sSeg}\ns_cbranch_scc0 {tag}_wt')
    a.waitfor({f'v{AKN}'})
    e(f'''{tag}_chk:
    v_max3_u32 v{vMx}, v{AKN}, v{AKN+1}, v{AKN+2}
    v_max_u32 v{vMx}, v{vMx}, v{AKN+3}
    v_cmp_eq_u32 vcc, -1, v{vMx}
    s_cbranch_vccnz {tag}_pollk
    ds_write2_b32 v{vKw}, v{AKN}, v{AKN+2} offset0:0 offset1:4
    ds_write_b128 v{vTr}, {vr(AKN,4)} offset:{LA_IM}
    s_add_u32 s{sSeg}, s{sSeg}, s{sStp}''')
    tok = a.mark_l()
    wst(a, tag, 3)
    sc_ = [f'{MF32} {vr(AS + 4*T, 4)}, {vr(AK + 8*kap + 4*T, 4)}, {vr(AQ + 4*kap, 4)}, {vr((ABI if kap == 0 else AS) + 4*T, 4)}' for kap in range(4) for T in range(2)]
    for x in sc_[:3]: e(x)
    e(f's_cmp_lg_u32 s{sTwo}, 0\ns_cselect_b64 vcc, -1, 0\ns_cmp_eq_u32 s{sPnd}, 0')
    a.wait_l(tok); e('s_barrier')
    zr = [f'ds_read_b128 {vr(AZ + 4*kap, 4)}, v{vZ} offset:{LA_IK + kap*576}' for kap in range(4)]
    zr += [f'ds_read_b128 {vr(AKV + 4*kap, 4)}, v{vVm} offset:{LA_IM + kap*1024}' for kap in range(2)]
    e(zr.pop(0))
    for x in sc_[3:]: e(zr.pop(0)); e(x)
    e(f's_cbranch_scc0 {tag}_sp')
    lq = list(a.lq)
    Tm = AS + 8
    m_, t_ = T0, T1
    Y = []
    def y(x): Y.extend(x.split('\n'))
    mx = [f'v_max3_f32 v{m_}, v{AS}, v{AS+1}, v{AS+2}', f'v_max3_f32 v{m_}, v{m_}, v{AS+3}, v{AS+4}', f'v_max3_f32 v{m_}, v{m_}, v{AS+5}, v{AS+6}', f'v_max_f32 v{m_}, v{m_}, v{AS+7}']
    y('#')
    for kap in range(4):
        y(f'{MF32} {vr(Tm,4)}, {vr(AZ + 4*kap, 4)}, {vr(AQ + 4*kap, 4)}, {"0" if kap == 0 else vr(Tm,4)}')
        y('#' if kap in (0, 3) else '\n'.join(mx[2*kap-2:2*kap]))
    def xl(op):
        y(f'''v_mov_b32 v{t_}, v{m_}
        #
        v_permlane32_swap_b32 v{m_}, v{t_}
        {op} v{m_}, v{m_}, v{t_}
        v_mov_b32 v{t_}, v{m_}
        #
        v_permlane16_swap_b32 v{m_}, v{t_}
        {op} v{m_}, v{m_}, v{t_}''')
    y(f'v_max3_f32 v{m_}, v{m_}, v{Tm}, v{Tm+1}')
    xl('v_max_f32')
    y(f'v_mul_f32 v{T1}, s{sG_}, v{m_}\n#')
    for r in range(AS, AS + 10, 2): y(f'v_pk_fma_f32 {vr(r,2)}, {vr(r,2)}, s[{sG_}:{sG_+1}], {vr(T1,2)} op_sel_hi:[1,0,0] neg_lo:[0,0,1] neg_hi:[0,0,1]')
    for r in range(AS, AS + 10): y(f'v_exp_f32 v{r}, v{r}' + ('\n#' if (r - AS) % 4 == 1 else ''))
    for k in range(4): y(cvt(P + k, AS + 2*k, AS + 2*k + 1))
    y(cvt(PM + 1, Tm, Tm + 1))
    sm = [f'v_pk_add_f32 {vr(Tm+2,2)}, {vr(AS,2)}, {vr(AS+2,2)}'] + [f'v_pk_add_f32 {vr(Tm+2,2)}, {vr(Tm+2,2)}, {vr(r,2)}' for r in range(AS + 4, AS + 10, 2)]
    y(sm.pop(0))
    for n in range(4):
        y(f'{MF32} {vr(AO + 4*n, 4)}, {vr(AV + 4*n, 4)}, {vr(P,4)}, 0')
        y(sm.pop(0) if sm else f'v_add_f32 v{m_}, v{Tm+2}, v{Tm+3}')
    for n in range(4): y(f'{MF16} {vr(AO + 4*n, 4)}, {vr(AKV + 2*n, 2)}, {vr(PM,2)}, {vr(AO + 4*n, 4)}')
    xl('v_add_f32')
    y(f'v_rcp_f32 v{T1}, v{m_}')
    for h in range(2):
        for n in range(4):
            r = AO + 8*h + 2*n
            y(f'v_pk_mul_f32 {vr(r,2)}, {vr(r,2)}, {vr(T1,2)} op_sel_hi:[1,0]')
        for n in range(4): y(cvt(AO + 8*h + n, AO + 8*h + 2*n, AO + 8*h + 2*n + 1))
        y(f'ds_write_b128 v{vOw}, {vr(AO + 8*h, 4)} offset:{LA_O + h*1024}')
    def soft(rl):
        a.lq = list(lq); a.vq = []
        wst(a, tag, 4)
        for x in Y:
            if x.strip() != '#': e(x)
            elif rl: e(rl.pop(0))
        assert not rl
        wst(a, tag, 5)
    soft([])
    e(f'{tag}_jn:')
    a.vq = []
    dm = a_dma(a, tag)
    res = [f'buffer_load_dwordx2 {vr(ARS + 2*k, 2)}, v{vRes}, {RA}, s{(sE, sE2)[k]} offen' for k in range(2)]
    e(f's_add_u32 s{sPW2}, s{sPW}, 18432\ns_mov_b32 s{sPnd}, 1\ns_waitcnt lgkmcnt(0)\ns_barrier')
    wst(a, tag, 6)
    for n in range(8): e(f'ds_read_b128 {vr(AOF + 4*n, 4)}, v{L16} offset:{LA_O + n*1024}')
    e(dm.pop(0))
    pend = []
    nx = [rd(k) for k in range(PF)]
    for h in range(2):
        W = AW + 36 * h
        for grp in ((0, 1, 2), (3, 4, 5), (6, 7, 8)):
            if h == 1 and grp[0] == 3: e(f's_cmp_lt_u32 s{sSeg}, 64\ns_cselect_b32 s{t0}, 0, {OOB}\nbuffer_load_dword v{vPg}, off, {WS}, s{t0} offset:{PROG} sc1')
            for kap in range(4):
                for u in grp:
                    e(f'{MF32} {vr(W + 4*u, 4)}, {vr(16*u + 4*kap, 4, "a")}, {vr(AOF + 16*h + 4*kap, 4)}, {"0" if kap == 0 else vr(W + 4*u, 4)}')
                    if kap >= 1:
                        for x in pend[:2]: e(x)
                        pend = pend[2:]
                    if dm and u == 2:
                        e(dm.pop(0)); tokd = a.mark_v()
                    if res and u == 0: e(res.pop(0))
                    if (h, kap, u) == (1, 2, 6): a.wait_v(tokd); e('s_barrier')
                    elif (h, grp[0]) == (1, 6) and kap >= 2: e(nx.pop(0))
            for u in grp: pend += proj_epi(u, W, sc, (sPW, sPW2)[h])
    assert not nx
    for x in pend: e(x)
    wst(a, tag, 7)
    next_slot(a)
    e(f's_cmp_lt_u32 s{sSeg}, 64\ns_cbranch_scc1 {tag}_loop')
    a.endq = list(a.vq)
    a.lq = []; a.vq = []
    e(f'{tag}_wx:')
    e('\n'.join(rld(0)))
    e(f's_cmp_eq_u32 s{sTwo}, 0\ns_cbranch_scc1 {tag}_n2')
    e('\n'.join(rld(1)))
    e(f'''{tag}_n2:
    s_mov_b32 s{sPnd}, 0
    s_waitcnt vmcnt(0)
    v_readfirstlane_b32 s{sProg}, v{vPg}
    s_cmp_gt_u32 s{sProg}, s{sSeg}
    s_cselect_b32 s{t0}, s{sH_}, {OOB}
    buffer_load_dwordx4 {vr(AKN,4)}, v{L16}, {WS}, s{t0} offen sc1''')
    rsum(tag + 'b', 0)
    if WST[0] and WST[0][0] == tag: WST[0][1] += 1
    wst(a, tag, 8)
    if WST[0] and WST[0][0] == tag: WST[0][1] -= 1
    rsum(tag + 'b', 1)
    e(f'''s_cmp_lt_u32 s{sSeg}, 64
    s_cbranch_scc0 {FIN}
    s_cmp_gt_u32 s{sProg}, s{sSeg}
    s_cbranch_scc0 {tag}_pollk
    s_waitcnt vmcnt(2)
    s_cmp_eq_u32 s{sTwo}, 0
    s_cbranch_scc0 {tag}_chk
    s_waitcnt vmcnt(1)
    s_branch {tag}_chk
    {tag}_wt:
    s_cmp_eq_u32 s{sPnd}, 0
    s_cbranch_scc1 {tag}_pollk
    buffer_load_dword v{vPg}, off, {WS}, 0 offset:{PROG} sc1
    s_branch {tag}_wx
    {tag}_pollk:
    {SPIN}
    s_cmp_ge_u32 s{sSeg}, {opt(OPT, 'dp', 63)}
    s_cbranch_scc1 {tag}_pk
    s_cmp_gt_u32 s{sProg}, s{sSeg}
    s_cbranch_scc1 {tag}_pk
    buffer_load_dword v{vPg}, off, {WS}, 0 offset:{PROG} sc1
    s_waitcnt vmcnt(0)
    v_readfirstlane_b32 s{sProg}, v{vPg}
    s_cmp_gt_u32 s{sProg}, s{sSeg}
    s_cbranch_scc1 {tag}_pk
    s_cmp_ge_u32 s{sProg}, {opt(OPT, 'ns', 63)}
    s_cbranch_scc1 {tag}_pollk
    s_sleep {sa}
    s_branch {tag}_pollk
    {tag}_pk:
    buffer_load_dwordx4 {vr(AKN,4)}, v{L16}, {WS}, s{sH_} offen sc1
    s_waitcnt vmcnt(0)
    s_branch {tag}_chk''')
    e(f'{tag}_sp:')
    soft([f'{x}\ns_cbranch_vccz {tag}_q{n}\n{z}\n{tag}_q{n}:' for n, (x, z) in enumerate(zip(rld(0), rld(1)))])
    e('s_waitcnt vmcnt(0)')
    rsum(tag + 'a', 0)
    rsum(tag + 'a', 1)
    e(f's_branch {tag}_jn')
    for tg, k in rare:
        if tg[-1] == 'b':
            red_again(a, ARD + 32*k, PSA, 32768 * k, f'{tg}_r{k}', f'{tg}_s{k}'); continue
        e(f'{tg}_r{k}:')
        red_ld(a, ARD + 32*k, PSA, 32768 * k); e(SPIN)
        e(f's_waitcnt vmcnt(0)\ns_branch {tg}_s{k}')
    a_flags(a, tag)

def gfrag(q, k):
    n = 4 * k + q if q < 4 else 72 + k
    return vr(4 * n, 4, 'a') if n < 64 else vr(188 + 4 * (n - 64), 4)
def gparts(q, k):
    n = 4 * k + q if q < 4 else 72 + k
    return ('a', 4 * n) if n < 64 else ('v', 188 + 4 * (n - 64))
FD16, FDR, FCS = 170, 122, 102
LF_H = 0; LF_ACT = 18432; LF_SH = 22528; LF_W = 26624; LF_WSTR = 24576
LF_ST = 124928; LF_Z = LF_ST + 512; LF_X = 0x20000
FLT = [1, 2, 4, 5, 7, 8]
def f_load(a):
    e = a.e
    red_setup(a)
    srd(a, S_RA, P_WD, 4608 * 1152)
    tr_cols(a, f'v_lshrrev_b32 v{T0}, 2, v{LJ}\nv_lshl_add_u32 v{T0}, v{LG}, 2, v{T0}')
    e(f's_mul_i32 s{sA}, s{S_H}, {144*1152}')
    for rnd, (row0, nk) in enumerate(((0, 27), (96, 14))):
        e(f's_mul_i32 s{t1}, s{S_W}, {nk*1024}\ns_add_u32 s{t0}, s{sA}, s{t1}\ns_add_u32 s{t0}, s{t0}, {row0*1152}')
        for n in range(nk):
            if n & 3 == 0: e(f's_add_u32 m0, s{t1}, {n*1024}\ns_add_u32 s{t2}, s{t0}, {n*1024}')
            e(f'buffer_load_dwordx4 v{L16}, {RA}, s{t2} offen offset:{(n & 3)*1024} lds')
        e('s_waitcnt vmcnt(0)\ns_barrier')
        for kap in ((0, 1, 2), (3, 4))[rnd]:
            for u in range(9):
                col = 0 if u == 8 else (u >> 1) * 64 + (u & 1) * 8
                ad = T3 if u == 8 else vTr
                if kap == 4:
                    e(f'ds_read_b64_tr_b16 {vr(FD16 + 2*u, 2)}, v{ad} offset:{col}')
                else:
                    p, b = ('v', FDR + 16*(u // 3) + 4*kap) if u % 3 == 0 else ('a', 16*FLT.index(u) + 4*kap)
                    for hh in range(2):
                        e(f'ds_read_b64_tr_b16 {vr(b + 2*hh, 2, p)}, v{ad} offset:{col + hh*16*1152}')
            d = -64 * 1152 if kap == 2 else 32 * 1152
            e(f'v_add_u32 v{vTr}, {d}, v{vTr}\nv_add_u32 v{T3}, {d}, v{T3}')
        e('s_waitcnt lgkmcnt(0)\ns_barrier')
    e(f's_mul_i32 s{t0}, s{S_W}, {LF_WSTR}\ns_add_u32 s{t0}, s{t0}, {LF_W}\nv_add_u32 v{vXw}, s{t0}, v{L16}')
    for n in range(24): e(f'ds_write_b128 v{vXw}, {vr(4*n, 4, "a")} offset:{n*1024}')
    e('s_waitcnt lgkmcnt(0)')
    srd(a, S_RA, P_WG, 576 * 9216); srd(a, S_RB, P_WU, 576 * 9216)
    NS = 7
    e(f'''s_mul_i32 s{sB}, s{S_W}, 6144
    s_lshl_b32 s{sC}, s{S_W}, 13
    s_add_u32 s{sC}, s{sC}, {LF_W + 4*LF_WSTR}
    v_lshrrev_b32 v{T0}, 2, v{LN}
    v_mul_u32_u24 v{T0}, 9216, v{T0}
    v_and_b32 v{T1}, 3, v{LN}
    v_lshl_add_u32 v{T0}, v{T1}, 4, v{T0}
    v_lshrrev_b32 v{T2}, 1, v{LN}
    v_mul_u32_u24 v{T2}, 9216, v{T2}
    v_and_b32 v{T3}, 1, v{LN}
    v_lshl_add_u32 v{T2}, v{T3}, 4, v{T2}
    s_mul_i32 s{sD}, s{S_H}, 288
    s_lshl_b32 s{t0}, s{S_W}, 6
    s_add_u32 s{sA}, s{sD}, s{t0}
    s_and_b32 s{t0}, s{S_W}, 1
    s_mul_i32 s{t0}, s{t0}, {288*9216}
    s_add_u32 s{sD}, s{sD}, s{t0}
    s_add_u32 s{sD}, s{sD}, 256''')
    e(f'''v_lshrrev_b32 v{T3}, 2, v{LJ}
    v_lshl_add_u32 v{T3}, v{LG}, 3, v{T3}
    v_lshlrev_b32 v{T1}, 3, v{T1}
    v_lshl_add_u32 v32, v{T3}, 6, v{T1}
    v_lshl_add_u32 v33, v{T3}, 5, v{T1}
    v_add_u32 v34, s{sC}, v32
    v_add_u32 v35, s{sC}, v33
    v_add_u32 v32, s{sB}, v32
    v_add_u32 v33, s{sB}, v33''')
    blocks = [(m, k) for k in range(18) for m in range(2)] + [(2, k) for k in range(0, 9, 2)]
    toks = {}
    def slot(n):
        s = n % NS
        return (0, s * 2048) if s < 3 else (1, (s - 3) * 2048)
    def issue(n):
        m, k = blocks[n]; hi, off = slot(n)
        if m == 2 and k == 0:
            e(f'''s_cmp_ge_u32 s{S_W}, 2
            s_cselect_b32 s{S_RA}, s{P_WU}, s{P_WG}
            s_cselect_b32 s{S_RA+1}, s{P_WU+1}, s{P_WG+1}''')
        for hh in range(2):
            if m == 2 and k + hh > 8: continue
            e(f's_add_u32 m0, s{sC if hi else sB}, {off + hh*1024}')
            if m < 2:
                e(f's_add_u32 s{t0}, s{sA}, {(32*k + 16*hh)*9216}\nbuffer_load_dwordx4 v{T0}, {RB if m else RA}, s{t0} offen lds')
            else:
                e(f's_add_u32 s{t0}, s{sD}, {32*(k + hh)*9216}\nbuffer_load_dwordx4 v{T2}, {RA}, s{t0} offen lds')
        toks[n] = a.mark_v()
    for n in range(NS): issue(n)
    for n, (m, k) in enumerate(blocks):
        hi, off = slot(n)
        a.wait_v(toks[n])
        for t in range(2):
            if m == 2 and k + t > 8: continue
            p, b = gparts(2 * m + t, k) if m < 2 else gparts(4, k + t)
            for u in range(2):
                if m < 2: e(f'ds_read_b64_tr_b16 {vr(b + 2*u, 2, p)}, v{32 + 2*hi} offset:{off + t*32 + u*256}')
                else: e(f'ds_read_b64_tr_b16 {vr(b + 2*u, 2, p)}, v{33 + 2*hi} offset:{off + t*1024 + u*128}')
        e('s_waitcnt lgkmcnt(0)')
        if n + NS < len(blocks): issue(n + NS)
    for k in range(4): e(f'v_mov_b32 v{32+k}, 0x3f803f80')
    for k in range(18):
        for q in range(5):
            if q == 4 and k >= 9: continue
            e(f'{MF32} {vr(FCS + 4*q, 4)}, {gfrag(q, k)}, v[32:35], {"0" if k == 0 else vr(FCS + 4*q, 4)}')

sPend, sX5, sM0, sWb = 67, 68, 69, 70
def f_dma(a, tag):
    r = []
    lab = a.newlabel(tag)
    for n in range(5):
        x = [f's_add_u32 m0, s{sM0}, {n*4096}', f's_add_u32 s{t0}, s{sA}, {n*4096}', f'buffer_load_dwordx4 v{L16}, {WS}, s{t0} offen sc1 lds']
        r.append(x if n < 4 else [f's_cmp_lt_u32 s{S_W}, 2', f's_cbranch_scc0 {lab}'] + x + [f'{lab}:'])
    return [r[4]] + r[:4]

def f_init(a):
    e = a.e
    srd(a, S_RA, P_OUT, 2048 * 1152)
    e(f'''s_sub_u32 s{sK}, s{S_G}, {8 - NF}
    s_mul_i32 s{sE}, s{sK}, 18432
    s_lshl_b32 s{sM0}, s{S_W}, 10
    s_add_u32 s{sA}, s{sE}, s{sM0}
    s_add_u32 s{sA}, s{sA}, {H}
    s_lshl_b32 s{t1}, s{sTask}, 4
    s_add_u32 s{sE}, s{sE}, s{t1}
    v_mul_u32_u24 v{vPS}, 1152, v{LJ}
    v_mov_b32 v{T0}, {OOB}
    v_cmp_eq_u32 vcc, 0, v{LG}
    v_cndmask_b32 v{vPS}, v{T0}, v{vPS}, vcc
    v_lshlrev_b32 v{vRes}, 4, v{LJ}
    v_and_b32 v{T0}, 1, v{LG}
    v_lshl_add_u32 v{vRes}, v{T0}, 3, v{vRes}
    s_min_u32 s{t1}, s{sTask}, 71
    s_lshl_b32 s{t1}, s{t1}, 8
    v_add_u32 v{vRes}, s{t1}, v{vRes}
    v_mov_b32 v{vTr}, v{L16}
    v_add_u32 v19, s{sM0}, v{L16}
    v_mov_b32 v18, v19
    v_add_u32 v9, 16384, v19
    v_mov_b32 v{T0}, {LF_Z}
    s_cmp_lt_u32 s{S_W}, 2
    s_cselect_b32 s{sX5}, {LF_X}, 0
    s_cselect_b64 vcc, -1, 0
    v_cndmask_b32 v9, v{T0}, v9, vcc
    s_and_b32 s{t0}, s{S_W}, 1
    s_mul_i32 s{t0}, s{t0}, 9216
    v_add_u32 v20, s{t0}, v{L16}
    v_lshlrev_b32 v21, 4, v{LJ}
    v_lshrrev_b32 v{T1}, 2, v{LJ}
    v_lshl_add_u32 v{T1}, v{T1}, 8, v21
    v_and_b32 v{T2}, 3, v{LJ}
    v_lshl_add_u32 v{T1}, v{T2}, 2, v{T1}
    v_add_u32 v21, {LF_ST}, v21
    s_lshl_b32 s{t0}, s{S_W}, 2
    v_add_u32 v{vZ}, s{t0}, v21
    v_mov_b64 v[28:29], 0
    v_mov_b64 v[30:31], 0
    s_mov_b32 s{sB}, 0x3f803f80
    s_mov_b32 s{sC}, {hex(f2u(-1.4426950408889634))}
    s_mov_b32 s{sSpin}, 0x100000
    s_mov_b32 s{sPend}, 0
    s_cmp_eq_u32 s{sTask}, 127
    s_cselect_b32 s{sWb}, {opt(OPT, 'wf', 0)}, -1
    s_barrier
    ds_write_b128 v{T0}, v[28:31]
    v_add_u32 v{T0}, {LF_ACT}, v{T1}''')
    for x in f_dma(a, 'fd'): e('\n'.join(x))
    e('s_waitcnt vmcnt(0) lgkmcnt(0)')

def f_loop(a, tag, sc):
    e = a.e
    a.lq = []; a.vq = []
    G = 32; XB = 52; W = 32; AF = 68; WB = 86; RD = 52; D = 28; RES = 22
    M, CR, R2 = 2, 3, 4
    vH, vHs, vC, vC5 = vTr, 20, 18, 9
    def rbf(r): return [f'v_cvt_pk_bf16_f32 v{r}, v{r}, v{r}', f'v_lshlrev_b32 v{r}, 16, v{r}']
    def fin():
        red_fin(a, RD, D, RES)
        e(f'''buffer_store_dwordx4 {vr(D,4)}, v{vPS}, {RA}, s{sE} offen{' sc1' if 'os' in OPT else ''}
        s_add_u32 s{sE}, s{sE}, {NF*18432}
        s_xor_b32 s{sPR}, s{sPR}, {RSLOT}
        s_mov_b32 s{sPend}, 0''')
    e(f'{tag}_loop:')
    wst(a, tag, 0)
    OWN = list(range(WB, WB + 16)) + list(range(D, D + 4))
    for n in range(4): e(f'ds_read_b128 {vr(WB + 4*n, 4)}, v{vC} offset:{n*4096}')
    e(f'ds_read_b128 {vr(D, 4)}, v{vC5}')
    for k in range(4): e(f'v_mov_b32 v{G+k}, s{sB}')
    e(f'v_max_u32 v{vMx}, v{OWN[0]}, v{OWN[1]}')
    for k in range(2, 20, 2): e(f'v_max3_u32 v{vMx}, v{vMx}, v{OWN[k]}, v{OWN[k+1]}')
    e(f'''v_cmp_eq_u32 vcc, -1, v{vMx}
    s_cbranch_vccnz {tag}_wait
    s_barrier''')
    wst(a, tag, 1)
    if opt(OPT, 'wf'):
        e(f's_cmp_eq_u32 s{sCnt}, s{sWb}\ns_cbranch_scc0 {tag}_nw')
        a.raw('buffer_wbl2 sc1')
        e(f'{tag}_nw:')
    def rd(k): return f'ds_read_b128 {vr(XB + 4*(k % 4), 4)}, v{vH} offset:{k*1024}'
    def rds(k): return f'ds_read_b128 {vr(AF + 4*(k % 4), 4)}, v{vHs} offset:{k*1024}'
    S = WB; SH = AF; DS = XB + 12
    pre = [rds(0), rd(0), rds(1), rds(2), rd(1), rds(3), rd(2), f'v_xor_b32 v{vC}, {LF_X}, v{vC}', f'v_xor_b32 v{vC5}, s{sX5}, v{vC5}']
    e(pre.pop(0))
    for n in range(5):
        P = vr(OWN[4*n], 4)
        for A_, D_ in ((vr(G, 4), vr(DS, 4)), (P, vr(WB, 4))):
            if pre: e(pre.pop(0))
            e(f'{MF32} {D_}, {A_}, {P}, {D_ if n else 0}')
    def one(x): return [y for z in x for y in (z, '')]
    st = [f's_add_u32 s{sA}, s{sA}, {NF*18432}\ns_cmp_lt_u32 s{sK}, {128 - NF}', f's_cselect_b32 s{sA}, s{sA}, {OOB}\ns_xor_b32 s{sM0}, s{sM0}, {LF_X}']
    st += one(['', f'ds_write_b32 v{vZ}, v{DS}', f'ds_write_b128 v19, {vr(WB,4)} offset:{LF_ACT}', '#m', rd(3), '', '', '#b'])
    st += one([f'ds_read_b128 {vr(S,4)}, v21'] + [f'ds_read2st64_b32 {vr(S+4+2*k,2)}, v{T0} offset0:{8*k} offset1:{8*k+4}' for k in range(2)] + [''] * 3)
    st += [f'v_add_f32 v{S+k}, v{S+k}, v{S+k+1}' for k in (0, 2, 4, 6)] + [f'v_add_f32 v{M+k}, v{S+4*k}, v{S+4*k+2}' for k in range(2)]
    st += [f'v_mul_f32 v{M}, {hex(f2u(-1/576))}, v{M}', f'v_mul_f32 v{CR}, {hex(f2u(1/576))}, v{CR}']
    st += one([f'v_fma_f32 v{CR}, -v{M}, v{M}, v{CR}'] + rbf(M) + [f'v_max_f32 v{CR}, 0, v{CR}'] + rbf(CR))
    assert len(st) <= 54, len(st)
    st += [''] * (54 - len(st))
    st += [f'v_fma_f32 v{G+16+q}, v{M}, v{FCS+16+q}, v{G+16+q}' for q in range(4)] + ['', '', f'ds_write_b128 v19, {vr(G+16,4)} offset:{LF_SH}', '#m']
    st += one([f'v_add_f32 v{CR}, {hex(f2u(1e-5))}, v{CR}'] + rbf(CR) + [f'v_sqrt_f32 v{CR}, v{CR}', '#b'])
    for k, x in enumerate(rbf(CR) + [f'v_rcp_f32 v{CR}, v{CR}', '']): st += [f'ds_read_b128 {vr(SH + 4*k, 4)}, v{L16} offset:{LF_SH + k*1024}', x]
    st += one([f'v_mul_f32 v{R2}, v{CR}, v{CR}', f'v_mul_f32 v{CR}, s{sC}, v{CR}', ''])
    g, tm, u_ = SH, SH + 4, SH + 8
    def mix(x):
        for z in x:
            if len(st) & 1 and ((len(st) // 2 - 29) % 4 == 0 or st[-1].startswith(TRANS) or z.startswith(TRANS)): st.append('')
            if z.startswith(TRANS) and (len(st) // 2 - 29) % 4 == 0 and len(st) < 2 * (29 + 40): st.extend(['', ''])
            st.append(z)
    mix([f'v_add_f32 v{g+k}, v{g+k}, v{g+4+k}' for k in range(4)] + [f'v_mul_f32 v{tm+k}, v{g+k}, v{CR}' for k in range(4)])
    mix([f'v_exp_f32 v{tm+k}, v{tm+k}' for k in range(4)] + [f'v_add_f32 v{u_+k}, v{u_+k}, v{u_+4+k}' for k in range(4)])
    mix([f'v_add_f32 v{tm+k}, 1.0, v{tm+k}' for k in range(4)] + [f'v_mul_f32 v{g+k}, v{g+k}, v{u_+k}' for k in range(4)])
    mix([f'v_rcp_f32 v{tm+k}, v{tm+k}' for k in range(4)] + [f'v_mul_f32 v{g+k}, v{g+k}, v{R2}' for k in range(4)])
    mix([f'v_mul_f32 v{g+k}, v{g+k}, v{tm+k}' for k in range(4)] + [cvt(AF + 16, g, g + 1), cvt(AF + 17, g + 2, g + 3)])
    tk = [None]
    def gap():
        for x in st[:2]:
            if x == '#m': tk[0] = a.mark_l()
            elif x == '#b': a.wait_l(tk[0]); e('s_barrier')
            else: e(x)
        del st[:2]
    for k in range(18):
        X = XB + 4 * (k % 4)
        for q in range(4):
            kk = 2 * k + q // 2
            if q & 1 == 0 and kk < 9:
                e(f'{MF32} {vr(G + 16, 4)}, {gfrag(4, kk)}, {vr(AF + 4*(kk % 4), 4)}, {"0" if kk == 0 else vr(G + 16, 4)}')
                gap()
            e(f'{MF32} {vr(G + 4*q, 4)}, {gfrag(q, k)}, {vr(X,4)}, {"0" if k == 0 else vr(G + 4*q, 4)}')
            if q == 0 and 3 < k + 3 < 18: e(rd(k + 3))
            if q & 1 and kk + 4 < 9: e(rds(kk + 4))
            gap()
    assert not st, len(st)
    wst(a, tag, 2)
    e(f's_cmp_eq_u32 s{sPend}, 0\ns_cbranch_scc1 {tag}_nl')
    red_ld(a, RD)
    vq = list(a.vq)
    e(f'{tag}_nl:')
    for k in range(0, 16, 2): e(f'v_pk_fma_f32 {vr(G+k,2)}, {vr(M,2)}, {vr(FCS+k,2)}, {vr(G+k,2)} op_sel_hi:[0,1,1]')
    U = G + 8
    for k in range(0, 8, 2): e(f'v_pk_mul_f32 {vr(S+k,2)}, {vr(G+k,2)}, {vr(M,2)} op_sel:[0,1] op_sel_hi:[1,1]')
    for k in range(8):
        e(f'v_exp_f32 v{S+k}, v{S+k}')
        if k & 1: e(f'v_pk_mul_f32 {vr(G+k-1,2)}, {vr(G+k-1,2)}, {vr(U+k-1,2)}')
    for k in range(0, 8, 2): e(f'v_pk_add_f32 {vr(S+k,2)}, {vr(S+k,2)}, 1.0 op_sel_hi:[1,0]')
    for k in range(8):
        e(f'v_rcp_f32 v{S+k}, v{S+k}')
        if k & 1: e(f'v_pk_mul_f32 {vr(G+k-1,2)}, {vr(G+k-1,2)}, {vr(R2,2)} op_sel_hi:[1,0]')
    for k in range(0, 8, 2): e(f'v_pk_mul_f32 {vr(G+k,2)}, {vr(G+k,2)}, {vr(S+k,2)}')
    for k in range(4): e(cvt(G + k, G + 2*k, G + 2*k + 1))
    e(f'ds_write_b128 v19, {vr(G,4)} offset:{LF_ACT}')
    ORD = [4 * FLT.index(u) + kap for g in range(3) for kap in range(4) for u in (3*g + 1, 3*g + 2)]
    def wrd(i): e(f'ds_read_b128 {vr(WB + 4*(i % 4), 4)}, v{vXw} offset:{ORD[i]*1024}')
    tok = a.mark_l()
    wst(a, tag, 3)
    for i in range(4): wrd(i)
    e(f's_cmp_eq_u32 s{sPend}, 0\ns_cbranch_scc1 {tag}_nr\n{tag}_rs:')
    red_sum(a, RD, D, f'{tag}_ra')
    fin()
    e(f'{tag}_nr:')
    wst(a, tag, 4)
    a.vq = []
    a.wait_l(tok)
    e('s_barrier')
    wst(a, tag, 5)
    for k in range(4): e(f'ds_read_b128 {vr(AF + 4*k, 4)}, v{L16} offset:{LF_ACT + k*1024}')
    e(f'ds_read_b64 {vr(RES,2)}, v{vRes}')
    dm = f_dma(a, tag + 'd')
    for u in range(9):
        e(f'{MF16} {vr(W + 4*u, 4)}, {vr(FD16 + 2*u, 2)}, {vr(AF + 16, 2)}, 0')
        if u in (1, 6): e('\n'.join(dm.pop(0)))
    pend = [f'v_xor_b32 v{r}, {LF_X}, v{r}' for r in (vH, vHs, vRes)]
    i = 0
    for grp in range(3):
        for kap in range(4):
            for u in range(3*grp, 3*grp + 3):
                wv = FDR + 16*grp + 4*kap if u % 3 == 0 else WB + 4*(i % 4)
                e(f'{MF32} {vr(W + 4*u, 4)}, {vr(wv, 4)}, {vr(AF + 4*kap, 4)}, {vr(W + 4*u, 4)}')
                if u % 3:
                    if i + 4 < 24: wrd(i + 4)
                    i += 1
                elif dm:
                    e('\n'.join(dm.pop(0)))
                    if not dm: tokd = a.mark_v()
                if kap >= 1:
                    n = 2 if u % 3 else 3
                    for x in pend[:n]: e(x)
                    pend = pend[n:]
        for u in range(3*grp, 3*grp + 3): pend += proj_epi(u, W, sc)
    for x in pend: e(x)
    wst(a, tag, 6)
    if WST[0] and WST[0][0] == tag: WST[0][1] += 1
    next_slot(a)
    e(f'''s_cmp_lt_u32 s{sTask}, 72
    s_cselect_b32 s{sPend}, 1, 0
    s_add_u32 s{sK}, s{sK}, {NF}
    s_cmp_lt_u32 s{sK}, 128
    s_cbranch_scc0 {tag}_wait''')
    a.wait_v(tokd)
    wst(a, tag, 7)
    e(f's_branch {tag}_loop')
    a.lq = []; a.vq = []
    e(f'{tag}_wait:\ns_cmp_eq_u32 s{sPend}, 0\ns_cbranch_scc1 {tag}_w2')
    red_ld(a, RD)
    if 'wo' not in OPT:
        for x in f_dma(a, tag + 'v'): e('\n'.join(x))
        e(f's_waitcnt vmcnt(4)'); a.vq = []
    e(f'{tag}_w1:')
    red_sum2(a, RD, D, f'{tag}_wa')
    fin()
    wst(a, tag, 8)
    if 'wo' not in OPT: e(f's_cmp_lt_u32 s{sK}, 128\ns_cbranch_scc0 {FIN}\ns_waitcnt vmcnt(1)\ns_branch {tag}_loop')
    e(f'{tag}_w2:\ns_cmp_lt_u32 s{sK}, 128\ns_cbranch_scc0 {FIN}')
    for x in f_dma(a, tag + 'w'): e('\n'.join(x))
    e(SPIN)
    e(f's_waitcnt vmcnt(0)\ns_branch {tag}_loop')
    a.vq = []
    e(f'{tag}_ra:')
    red_ld(a, RD); e(SPIN)
    e(f's_waitcnt vmcnt(0)\ns_branch {tag}_rs')
    red_again(a, RD, PS, 0, f'{tag}_wa', f'{tag}_w1')
```

```python
import sys
sys.path.insert(0, 'gen')
from asmlib import *
from layout import *
import rec6 as rec2
from rec6 import *
from work import *
NAME = 'sequential_preLN__memory_aug_recurrent_mem_tr__swiglu_ffn__prompt'

MAP = '31204567'
def tstamp(a, k, on):
    if on: a.e(f's_memrealtime s[{96+2*k}:{97+2*k}]\ns_waitcnt lgkmcnt(0)')

def gen(opt=()):
    a = Asm(); e = a.e
    st = 'st' in opt
    force = 1 if 'fb' in opt else None
    DEF = ['lf', 'mf', 'pc=38', 'pl=54']
    opt = list(opt) + DEF
    w_ = rec2.opt(opt, 'ws')
    rs = rec2.opt(opt, 'rs'); rs = rs.split('.') if rs else None
    OPT[:] = list(opt)
    WST[0] = [w_.split('.')[0], int(w_.split('.')[1])] if w_ else None
    e(f'''s_cmp_ge_u32 s2, 256
    s_cbranch_scc1 K_exit
    s_load_dwordx8 s[16:23], s[0:1], 0
    s_load_dwordx4 s[24:27], s[0:1], 32
    s_load_dwordx8 s[32:39], s[0:1], 64
    s_load_dwordx4 s[40:43], s[0:1], 96
    v_lshrrev_b32 v1, 6, v0
    v_readfirstlane_b32 s{S_W}, v1''')
    tab = rec2.opt(opt, 'map', MAP)
    e(f'''s_getreg_b32 s{S_G}, hwreg(HW_REG_XCC_ID, 0, 3)
    s_lshl_b32 s{S_G}, s{S_G}, 2
    s_lshr_b32 s{S_G}, 0x{tab[::-1]}, s{S_G}
    s_and_b32 s{S_G}, s{S_G}, 7
    s_lshr_b32 s{S_H}, s2, 3
    s_mov_b32 s{sFB}, 0''')
    e(f'''s_waitcnt lgkmcnt(0)
    s_mov_b32 s{S_WS}, s{P_WSP}
    s_mov_b32 s{S_WS+1}, s{P_WSP+1}
    s_mov_b32 s{S_WS+2}, {WS_BYTES}
    s_mov_b32 s{S_WS+3}, 0x20000''')
    if rec2.opt(opt, 'tpA'): e('s_mov_b32 s78, 63')
    if st:
        for k in range(3): tstamp(a, k, st)
        e('s_memrealtime s[94:95]\ns_waitcnt lgkmcnt(0)')
    e(f'''K_go:
    s_cmp_eq_u32 s{S_G}, 0
    s_cbranch_scc0 W_start''')
    stp = [int(x) for x in rec2.opt(opt, 'stp', '').split('.') if x]
    rec_setup(a, False, 'ns' in opt)
    arrive(a, 24, None)
    rec_load(a, pre=lambda: gb_ld(a, 16), w0=int(rec2.opt(opt, 'w0', 0)), wn=int(rec2.opt(opt, 'wn', 5)), mod=' nt' if 'rnt' in opt else '', stp=stp)
    if not stp: tstamp(a, 0, st)
    gbar(a, 16, rec2.sSpin, rec2.sT0, force)
    rec_init(a, 0)
    if 'cnt' in opt:
        for k in range(9): e(f's_mov_b32 s{76+2*k}, 0')
    if not stp: tstamp(a, 1, st)
    e(f's_cmp_eq_u32 s{sFB}, 0\ns_cbranch_scc0 RF_disp')
    rec_disp(a, 'R')
    for w in range(4): rec_loop(a, w, rs, FIN, list(opt) + ['pf=37'], tag='R')
    e('RF_disp:')
    rec_disp(a, 'RF')
    for w in range(4): rec_loop(a, w, None, FIN, ['pf=37'], tag='RF', cs=' sc1')
    TOP = 163836
    def lane0(): e(f'''v_mbcnt_lo_u32_b32 v0, -1, 0
    v_mbcnt_hi_u32_b32 v0, -1, v0
    s_lshl_b32 s28, s{S_W}, 6
    v_add_u32 v0, s28, v0''')
    e(f'''K_again:
    s_waitcnt vmcnt(0)
    s_barrier
    s_mov_b32 s{sFB}, 1''')
    lane0()
    if 'perm' in opt: e(f's_lshr_b32 s{S_G}, s2, 5\ns_and_b32 s{S_H}, s2, 31')
    else: e(f's_and_b32 s{S_G}, s2, 7')
    e('s_branch K_go')
    e('W_start:')
    a.lq = []; a.vq = []
    w_init(a)
    e(f's_cmp_eq_u32 s{S_G}, 1\ns_cbranch_scc1 Q_start')
    e(f's_sub_u32 s{t0}, s{S_G}, 3\ns_cmp_lt_u32 s{t0}, {NA}\ns_cbranch_scc1 A_start')
    e(f's_cmp_eq_u32 s{S_G}, 2\ns_cbranch_scc0 F_start')
    tch = rec2.opt(opt, 'tch', '')
    touch(a, tch)
    e(f's_mul_i32 s{t0}, s{S_H}, {4*18432}\ns_add_u32 s{t0}, s{t0}, {H}')
    for n in range(18): e(f'buffer_store_dwordx4 v[12:15], v{T3}, {WS}, s{t0} offen sc1\ns_add_u32 s{t0}, s{t0}, 4096')
    e(f'buffer_store_dword v10, v9, {WS}, 0 offen offset:{PROG} sc1')
    if 'mf' in opt:
        e(f's_lshl_b32 s{t0}, s{S_H}, 15\ns_add_u32 s{t0}, s{t0}, {MRING + 3*MSTR}')
        for n in range(6): e(f's_add_u32 s{t1}, s{t0}, {(n // 3)*MSTR + (n % 3)*4096}\nbuffer_store_dwordx4 v[12:15], v{T3}, {WS}, s{t1} offen sc1')
    ring_fill(a, PSA, 9)
    e('s_waitcnt vmcnt(19)')
    rec_setup(a, True)
    arrive(a, 24)
    tstamp(a, 0, st)
    gbar(a, 12, sSpin, t0, force, TOP, 64)
    if int(rec2.opt(opt, 'z0', Z0)) > 63: e(f's_branch {FIN}')
    e(f'''s_mov_b32 s{sSpin}, 0x1000
    s_cmp_eq_u32 s{S_W}, 0
    s_cbranch_scc0 Z_go
    Z_w:
    s_sleep 127
    buffer_load_dword v12, off, {WS}, 0 offset:{PROG} sc1
    {SPIN}
    s_waitcnt vmcnt(0)
    v_readfirstlane_b32 s{t0}, v12
    s_cmp_lt_u32 s{t0}, {rec2.opt(opt, 'zl', 46)}
    s_cbranch_scc1 Z_w
    Z_go:
    s_barrier''')
    lane0()
    w_init(a)
    e('s_branch A_ld')
    e('Q_start:')
    a.lq = []; a.vq = []
    q_load(a)
    tstamp(a, 1, st)
    gbar(a, 16, sSpin, t0, force, TOP)
    tstamp(a, 2, st)
    q_main(a)
    e(f's_branch {FIN}')
    a_flags(a, 'AI')
    e('A_start:')
    a.lq = []; a.vq = []
    def flagw(tag, n):
        if n: e(f'''s_lshl_b32 s{t1}, s{S_H}, 6
        {tag}_w:
        s_sleep 16
        buffer_load_dword v32, off, {WS}, s{t1} sc1
        {SPIN}
        s_waitcnt vmcnt(0)
        v_readfirstlane_b32 s{t0}, v32
        s_cmp_le_u32 s{t0}, {n}
        s_cbranch_scc1 {tag}_w''')
    def late():
        gbar(a, 32, sSpin, t0, force, TOP, 16)
        flagw('A', rec2.opt(opt, 'aw'))
        tstamp(a, 0, st)
    a_load(a, lambda: tstamp(a, 0, st), rec2.opt(opt, 'ao', 'oq'), late if 'la' in opt else None)
    tstamp(a, 1, st)
    if 'la' not in opt: gbar(a, 32, sSpin, t0, force, TOP)
    a_init(a)
    tstamp(a, 2, st)
    e(f's_cmp_eq_u32 s{sFB}, 0\ns_cbranch_scc0 AF_in')
    a_loop(a, 'A', '')
    a_loop(a, 'AF', ' sc1')
    e('F_start:')
    a.lq = []; a.vq = []
    ln1(a, tch)
    arrive(a)
    tstamp(a, 0, st)
    if 'lf' in opt: gbar(a, 32, sSpin, t0, force, TOP, 16)
    flagw('F', rec2.opt(opt, 'fw'))
    tstamp(a, 1, st)
    f_load(a)
    if 'lf' not in opt: gbar(a, 32, sSpin, t0, force, TOP)
    f_init(a)
    tstamp(a, 2, st)
    e(f's_cmp_eq_u32 s{sFB}, 0\ns_cbranch_scc0 FF_loop')
    f_loop(a, 'F', '')
    f_loop(a, 'FF', ' sc1')
    e(f'{FIN}:')
    if rec2.opt(opt, 'wb'):
        e(f's_lshr_b32 s46, {rec2.opt(opt, "wb")}, s{S_G}\ns_and_b32 s46, s46, 1\ns_cselect_b32 s46, s{S_H}, 1\ns_add_u32 s46, s46, s{S_W}\ns_cmp_eq_u32 s46, 0\ns_cbranch_scc0 K_nw\ns_waitcnt vmcnt(0)')
        a.raw('buffer_wbl2 sc1')
        e('K_nw:')
    if w_ or rs or 'cnt' in opt:
        e(f'''s_waitcnt vmcnt(0) lgkmcnt(0)
        s_lshl_b32 s46, s2, 2
        s_add_u32 s46, s46, s{S_W}
        s_lshl_b32 s46, s46, 6
        s_add_u32 s46, s46, {STAMP - 0x10000}
        v_mov_b32 v12, 0''')
        for k in range(9): e(f'v_mov_b32 v13, s{76+2*k}\nbuffer_store_dword v13, v12, {WS}, s46 offen offset:{4*k}')
    if rec2.opt(opt, 'tpA'):
        e(f'''s_waitcnt vmcnt(0) lgkmcnt(0)
        s_lshl_b64 exec, 1, s78
        v_mov_b32 v0, s76
        s_mov_b64 exec, -1
        s_cmp_eq_u32 s{S_W}, 0
        s_cselect_b32 s46, {STAMP - 0x10000}, {OOB}
        s_lshl_b32 s47, s2, 8
        s_add_u32 s46, s46, s47
        v_mbcnt_lo_u32_b32 v12, -1, 0
        v_mbcnt_hi_u32_b32 v12, -1, v12
        v_lshlrev_b32 v12, 2, v12
        buffer_store_dword v0, v12, {WS}, s46 offen''')
    if st:
        e(f'''s_memrealtime s[92:93]
        s_waitcnt vmcnt(0) lgkmcnt(0)
        s_lshl_b32 s46, s2, 2
        s_add_u32 s46, s46, s{S_W}
        s_lshl_b32 s46, s46, 5
        s_add_u32 s46, s46, {STAMP}
        v_mov_b32 v12, 0''')
        if 'hw' in opt: e(f's_getreg_b32 s{sSpin}, hwreg(HW_REG_HW_ID)')
        for k, s in enumerate(['s94', 's96', 's98', 's100', 's92', f's{S_G}', f's{sSpin}', f's{rec2.sSpin}']):
            e(f'v_mov_b32 v13, {s}\nbuffer_store_dword v13, v12, {WS}, s46 offen offset:{4*k}')
    dg = rec2.opt(opt, 'dg')
    if dg:
        g, k = dg.split('.')
        if k == 'c':
            e('s_memtime s[48:49]\ns_waitcnt lgkmcnt(0)\ns_sub_u32 s48, s48, s98\ns_lshr_b32 s48, s48, 5\ns_add_u32 s48, s48, s94'); k = 48
        e(f'''s_cmp_eq_u32 s{S_G}, {g}
        s_cbranch_scc0 K_dg
        s_add_u32 s46, s{k}, 20000
        K_dl:
        s_memrealtime s[48:49]
        s_waitcnt lgkmcnt(0)
        s_sub_u32 s47, s48, s46
        s_cmp_lt_i32 s47, 0
        s_cbranch_scc1 K_dl
        K_dg:''')
    e('s_waitcnt vmcnt(0)')
    e('K_exit:')
    return a.finish()

def full(body):
    ref = open(f'cdna_kernels/{NAME}.s.ref').read()
    head = ref[:ref.index(f'{NAME}_kernel:\n') + len(NAME) + 9]
    tail = ref[ref.index('s_endpgm'):]
    head = head.replace('; @launch grid=(4608,1,1) block=(256,1,1) lds=0', '; @launch grid=(256,1,1) block=(256,1,1) lds=163840')
    tail = tail.replace('.amdhsa_next_free_vgpr 256', '.amdhsa_next_free_vgpr 512')
    return head + body + tail

if __name__ == '__main__':
    for v in sys.argv[1:]:
        if v == 'final': open(f'cdna_kernels/{NAME}.s', 'w').write(full(gen()))
        elif v[0] == '@': open(f'x_{v[1:].replace("=", "-")}.s', 'w').write(full(gen(v[1:].split('+'))))
        else: open(f'full_{v}.txt', 'w').write(gen(v.split('+')))
```

```python
from asmlib import *
from layout import *

S_WS = 4
S_RA = 8
S_RB = 12
P_X, P_MEM0, P_WQ, P_WK, P_WV, P_WO, P_WG, P_WU, P_WD, P_OUT, P_DBG, P_WSP = 16, 18, 20, 22, 24, 26, 32, 34, 36, 38, 40, 42
S_W = 44
S_H = 45
WS = f's[{S_WS}:{S_WS+3}]'

def srd(a, d, ptr, nbytes):
    a.e(f's_mov_b32 s{d}, s{ptr}\ns_mov_b32 s{d+1}, s{ptr+1}\ns_mov_b32 s{d+2}, {nbytes}\ns_mov_b32 s{d+3}, 0x20000')

L_BLK = 4352
L_QK = 18432
L_SEL = 23040
L_TAB = 23552
L_W0 = 24576
L_WSTR = 34816

vL16, vW, vZ, vXw, vSel, vP, vMst, vPD, vIdx, vT, vZero, vT2 = range(12)
C4 = 4
DW = 3
MB = [12, 16, 20]
QA, KA, VA, VX = 24, 32, 64, 56
SB = [40, 48]
SMF = 'v_smfmac_f32_16x16x64_bf16'
MF32 = 'v_mfma_f32_16x16x32_bf16'
MF16 = 'v_mfma_f32_16x16x16_bf16'

(sStep, sMs, sMo, sMoD, sPrd, sPrD, sKx, sKv, sSpin, sT0, sT1, sT2, sC, sFlg, sRdy) = range(46, 61)
sPg = 61
sOne = 62
sF = 64
sPW = 68
sStamp = 76
(sM1, sM2, sMkD, sPaD, sRedo, sPf, sMst, sMp, sTry) = range(16, 25)

P1SEQ = [(m, 0, t) for m in 'qkv' for t in range(2)]
P1SEQ += [(m, i, t) for i in range(1, 6) for m, t in (('q', 0), ('k', 0), ('q', 1), ('k', 1), ('v', 0), ('v', 1))]
P1SEQ += [('q', 6, 0), ('q', 7, 0), ('q', 6, 1), ('q', 7, 1), ('q', 8, 0), ('q', 8, 1)]
P1SEQ += [('k', i, t) for t in range(2) for i in (6, 7, 8)] + [('v', i, t) for i in (6, 7, 8) for t in range(2)]
P1_LDS_POS = [7, 9, 13, 15, 19, 21, 25, 27, 31, 33, 37, 39]
LDS_P1 = [P1SEQ[p] for p in P1_LDS_POS]
LDS_WO = [('o', 2, 0), ('o', 3, 0), ('o', 2, 1), ('o', 2, 3), ('o', 3, 3)]
STAGES = [(m, f) for m in 'qvk' for f in range(9) if (m, f, 0) not in LDS_P1] + [k[:2] for k in LDS_P1[::2]]

def alloc():
    slots = [('a', 8 * i) for i in range(32)] + [('v', 72 + 8 * i) for i in range(23)]
    reg = {}; lds = {}
    for m, i, t in LDS_P1: lds[(m, i, t)] = (STAGES.index((m, i)) - 1) % 8 * 4096 + t * 2048
    for n, k in enumerate(LDS_WO): lds[k] = (8192, 10240, 12288, 14336, 32768)[n]
    assert len(set(lds.values())) == 17
    assert len(lds) == 17
    k = 0
    for m in 'qkv':
        for i in range(9):
            for t in range(2):
                if (m, i, t) not in lds:
                    reg[(m, i, t)] = slots[k]; k += 1
    park = slots[k:]
    for u in range(4):
        for a in range(4):
            if ('o', u, a) not in lds:
                reg[('o', u, a)] = slots[k]; k += 1
    for a in range(4):
        p, b = slots[k + a // 2]
        reg[('o', 4, a)] = (p, b + 4 * (a & 1))
    k += 2
    assert k == 55
    return reg, lds, park
REG, LDS, PARK = alloc()

def frag_of(i, w):
    return i

def rec_setup(a, fill, ns=False):
    e = a.e
    e(f'''v_and_b32 v12, 63, v0
    v_and_b32 v13, 15, v12
    v_lshrrev_b32 v14, 4, v12
    v_lshlrev_b32 v{vL16}, 4, v12
    v_mov_b32 v{vZero}, 0
    s_mul_i32 s{sT0}, s{S_W}, {L_WSTR}
    s_add_u32 s{sT0}, s{sT0}, {L_W0}
    v_add_u32 v{vW}, s{sT0}, v{vL16}
    v_and_b32 v15, 1, v14
    v_lshrrev_b32 v16, 1, v14
    v_and_b32 v17, 3, v13
    v_lshrrev_b32 v18, 2, v13
    v_mul_u32_u24 v{vXw}, 144, v18
    v_lshl_add_u32 v{vXw}, v14, 5, v{vXw}
    v_lshl_add_u32 v{vXw}, v17, 2, v{vXw}
    s_mul_i32 s{sT0}, s{S_W}, 1152
    s_add_u32 s{sT0}, s{sT0}, {L_QK}
    v_add_u32 v{vXw}, s{sT0}, v{vXw}
    v_and_b32 v{vSel}, 0xf0, v{vL16}''')
    e(f'''v_mul_u32_u24 v{vZ}, 144, v14
    v_lshl_add_u32 v{vZ}, v18, 5, v{vZ}
    v_and_b32 v19, 1, v13
    v_lshl_add_u32 v{vZ}, v19, 4, v{vZ}''')
    e(f'''v_lshrrev_b32 v19, 3, v12
    v_mul_u32_u24 v{vP}, {TS}, v19
    v_and_b32 v19, 7, v12
    v_lshl_add_u32 v{vP}, v19, 3, v{vP}
    v_mul_u32_u24 v{vPD}, {TS}, v14
    v_lshl_add_u32 v{vPD}, v13, 2, v{vPD}
    v_mov_b32 v21, 0x88884444
    v_mov_b32 v22, 0xDDDDEEEE
    v_and_b32 v19, 2, v13
    v_cmp_eq_u32 vcc, 0, v19
    v_cndmask_b32 v{vIdx}, v22, v21, vcc''')
    e(f'''v_lshlrev_b32 v19, 4, v14
    v_lshl_add_u32 v19, v13, 2, v19
    v_mul_u32_u24 v20, 1152, v15
    v_lshl_add_u32 v20, v13, 3, v20
    v_lshl_add_u32 v20, v16, 2, v20
    v_mov_b32 v21, {OOB}
    v_cmp_gt_u32 vcc, 4, v13
    v_cndmask_b32 v28, v21, v19, vcc
    v_cndmask_b32 v20, v21, v20, vcc
    v_add_u32 v19, {2*MSTR - 16}, v19
    v_cmp_eq_u32 vcc, {9 if ns else 1}, v18
    v_cndmask_b32 v{vMst}, v28, v19, vcc''')
    e(f'''s_lshr_b32 s{sT0}, s{S_H}, 3
    s_lshl_b32 s{sT0}, s{sT0}, 1
    s_and_b32 s{sT1}, s{S_H}, 1
    s_add_u32 s{sT0}, s{sT0}, s{sT1}
    s_lshl_b32 s{sT1}, s{S_W}, 3
    s_add_u32 s{sT0}, s{sT0}, s{sT1}
    s_bfe_u32 s{sT1}, s{S_H}, 0x20001
    s_lshl_b32 s{sMo}, s{sT0}, 8
    s_lshl_b32 s{sT2}, s{sT1}, 6
    s_add_u32 s{sMo}, s{sMo}, s{sT2}
    s_mul_i32 s{sT1}, s{sT1}, 2304
    s_lshl_b32 s{sT0}, s{sT0}, 5
    s_add_u32 s{sF}, s{sT0}, s{sT1}''')
    e(f'''s_lshl_b32 s{sMoD}, s{S_H}, 6
    s_add_u32 s{sMoD}, s{sMoD}, 8192
    s_and_b32 s{sT1}, s{S_H}, 3
    s_mul_i32 s{sT1}, s{sT1}, 2304
    s_lshr_b32 s{sT0}, s{S_H}, 2
    s_lshl_b32 s{sT0}, s{sT0}, 5
    s_add_u32 s{sT0}, s{sT0}, s{sT1}
    s_add_u32 s{sF+1}, s{sT0}, 1024
    s_add_u32 s{sT0}, s{S_H}, 128
    s_mul_i32 s{sPrD}, s{sT0}, {TS}
    s_add_u32 s{sPrD}, s{sPrD}, {PRING}
    s_cmp_eq_u32 s{S_W}, {DW}
    s_cselect_b32 s{sT0}, 16, 0
    s_cmp_lt_u32 s{S_H}, s{sT0}
    s_cselect_b32 s{sMoD}, s{sMoD}, {OOB}
    s_cselect_b32 s{sPrD}, s{sPrD}, {OOB}''')
    e(f'''s_lshl_b32 s{sT0}, s{S_W}, 5
    s_add_u32 s{sT0}, s{sT0}, s{S_H}
    s_mul_i32 s{sPrd}, s{sT0}, {TS}
    s_add_u32 s{sPrd}, s{sPrd}, {PRING}
    s_lshl_b32 s{sT1}, s{S_H}, 6
    s_add_u32 s{sT1}, s{sT1}, {PRING}
    s_mul_i32 s{sT0}, s{S_W}, {8*TS}
    s_add_u32 s{sPW}, s{sT0}, s{sT1}
    s_add_u32 s{sPW+1}, s{sPW}, {32*TS}
    s_add_u32 s{sPW+2}, s{sPW}, {64*TS}
    s_add_u32 s{sPW+3}, s{sPW}, {96*TS}
    s_mul_i32 s{sT0}, s{S_W}, {4*TS}
    s_add_u32 s{sT0}, s{sT0}, s{sT1}
    s_add_u32 s{sPW+4}, s{sT0}, {128*TS}''')
    if not fill:
        e(f'''s_add_u32 s{sT0}, s{sPrd}, {32*TS}
        s_add_u32 s{sT1}, s{sMo}, 2048
        s_cmp_eq_u32 s{S_W}, {DW}
        s_cselect_b32 s{sPrD}, s{sPrD}, s{sT0}
        s_cselect_b32 s{sMoD}, s{sMoD}, s{sT1}''')
        return
    srd(a, S_RA, P_MEM0, 9216)
    e(f'''buffer_load_dword v22, v20, s[{S_RA}:{S_RA+3}], s{sF} offen
    buffer_load_dword v23, v20, s[{S_RA}:{S_RA+3}], s{sF+1} offen
    v_mov_b32 v24, 0
    v_mov_b32 v25, 0
    v_mov_b32 v26, 0
    v_mov_b32 v27, 0
    v_mov_b32 v29, -1''')
    for r in (sPrd, sPrD):
        for l in range(2): e(f'buffer_store_dwordx4 v[24:27], v{vL16}, {WS}, s{r} offen offset:{l*1024} sc1')
    for k in (1, 2):
        for r in (sMo, sMoD): e(f's_add_u32 s{sT0}, s{r}, {MRING + k*MSTR}\nbuffer_store_dword v29, v28, {WS}, s{sT0} offen sc1')
    for n, r in enumerate((sMo, sMoD)):
        e(f's_add_u32 s{sT0}, s{r}, {MRING}')
        e(f'buffer_store_dword v{22+n}, v28, {WS}, s{sT0} offen sc1')

def rec_early(a, n, tries):
    e = a.e
    if n == tries[0]:
        e(f'''v_bfe_u32 v18, v{vL16}, 4, 1
        v_xor_b32 v18, s{S_H}, v18
        v_lshlrev_b32 v18, 2, v18
        global_load_dword v{vT}, v18, s[{P_DBG}:{P_DBG+1}] sc1''')
    if n == tries[1]:
        e(f'''v_lshlrev_b32 v18, 4, v18
        v_add_u32 v{vT}, s75, v{vT}
        buffer_load_dword v{vT2}, v18, {WS}, 0 offen sc1''')
    if n == 0:
        e(f'''v_cmp_eq_u32 vcc, 0x11111111, v{vT}
        v_cndmask_b32 v{vT2}, 0, v{vT2}, vcc
        v_readlane_b32 s{sRdy}, v{vT2}, 0
        v_readlane_b32 s{sF}, v{vT2}, 1''')

def rec_load(a, mod='', pre=None, stp=None, w0=0, wn=5, tries=(), hp=()):
    e = a.e
    RA = f's[{S_RA}:{S_RA+3}]'; RB = f's[{S_RB}:{S_RB+3}]'
    NS = 8; L_D = 0
    e(f'''v_lshlrev_b32 v21, 2, v14
    v_xor_b32 v21, v21, v13
    v_lshlrev_b32 v21, 4, v21
    v_lshl_add_u32 v21, v14, 13, v21
    v_lshl_add_u32 v22, v15, 3, v18
    v_lshlrev_b32 v22, 8, v22
    v_xor_b32 v23, s{S_W}, v18
    v_lshl_add_u32 v22, v23, 6, v22
    v_lshrrev_b32 v23, 1, v17
    v_lshl_add_u32 v22, v23, 5, v22
    v_and_b32 v23, 1, v17
    v_lshl_add_u32 v22, v23, 3, v22
    v_mul_u32_u24 v23, {L_WSTR}, v16
    v_add_u32 v22, v22, v23
    v_add_u32 v22, {L_W0}, v22
    v_add_u32 v23, {2*L_WSTR}, v22
    s_lshl_b32 s{sC}, s{S_H}, 8
    s_lshl_b32 s{sT0}, s{S_W}, 17
    s_add_u32 s{sC}, s{sC}, s{sT0}
    s_mul_i32 s{sT2}, s{S_W}, {L_WSTR}
    s_add_u32 s{sT2}, s{sT2}, {L_W0}''')
    srd(a, S_RA, P_WO, 32 * 147456)
    e(f'''v_lshl_add_u32 v19, v15, 1, v16
    v_mul_u32_u24 v19, {4*1152}, v19
    v_lshl_add_u32 v19, v13, 2, v19
    v_add_u32 v20, {16*1152}, v19
    s_mul_i32 s{sT0}, s{S_H}, 147456
    s_lshl_b32 s{sT1}, s{S_W}, 6
    s_add_u32 s{sT0}, s{sT0}, s{sT1}''')
    for k in range(4):
        e(f'''s_xor_b32 s{sT1}, s{S_W}, {k}
        s_mul_i32 s{sT1}, s{sT1}, {32*1152}
        s_add_u32 s{sF+k}, s{sT0}, s{sT1}''')
    e(f'''v_lshrrev_b32 v65, 1, v12
    v_mul_u32_u24 v65, 1152, v65
    v_and_b32 v66, 1, v12
    v_lshl_add_u32 v65, v66, 4, v65
    s_lshl_b32 s{sT1}, s{S_W}, 5
    s_sub_u32 s{sT1}, 1024, s{sT1}
    v_add_u32 v65, s{sT1}, v65
    v_lshlrev_b32 v66, 4, v16
    v_lshl_add_u32 v66, v15, 2, v66
    v_add_u32 v66, v66, v18
    v_lshlrev_b32 v66, 5, v66
    v_lshl_add_u32 v66, v17, 3, v66
    s_lshl_b32 s{sT1}, s{S_W}, 12
    v_add_u32 v66, s{sT1}, v66''')
    tmp = {k: ('v', 24 + 8 * n) for n, k in enumerate(LDS_WO)}
    wol = []
    for u in range(4):
        for k in range(4):
            p, b = tmp.get(('o', u, k)) or REG[('o', u, k)]
            wol += [f'buffer_load_dword {p}{b+rho}, v{19 + (rho >> 2)}, {RA}, s{sF+k} offen offset:{(rho & 3)*1152 + u*256}' for rho in range(8)]
    assert 3*1152 + 2*256 < 4096
    toks = {}
    cur = [None]
    def issue(n):
        m, f = STAGES[n]
        if cur[0] != m: srd(a, S_RB, {'q': P_WQ, 'k': P_WK, 'v': P_WV}[m], 576 * 8192); cur[0] = m
        for k in range(4):
            e(f's_add_u32 m0, s{sT2}, {(n % NS)*4096 + k*1024}')
            e(f's_add_u32 s{sT0}, s{sC}, {(64*f + 4*k)*8192}')
            e(f'buffer_load_dwordx4 v21, {RB}, s{sT0} offen{mod} lds')
        toks[n] = a.mark_v()
        if n in hp:
            d = hp.index(n) + 1
            e(f'''s_add_u32 s{sT0}, s{S_W}, {4*d - 2}
            s_cmp_ge_u32 s{sT0}, 12
            s_cselect_b32 s{sKv}, 4, 0
            s_add_u32 s{sT0}, s{sT0}, s{sKv}
            s_lshl_b32 s{sT0}, s{sT0}, 18
            s_xor_b32 s{sKv}, s{S_H}, {d}
            s_lshl_b32 s{sKv}, s{sKv}, 8
            s_add_u32 s{sT0}, s{sT0}, s{sKv}
            v_lshrrev_b32 v16, 5, v{vL16}
            v_lshlrev_b32 v16, 13, v16
            v_and_b32 v17, 16, v{vL16}
            v_lshl_add_u32 v16, v17, 3, v16
            v_add_u32 v16, s{sT0}, v16''')
            a.auto = False; e(f'global_load_dword v67, v16, s[{P_WK}:{P_WK+1}]'); a.auto = True
        if n == len(STAGES) - 9:
            for k in range(4):
                e(f's_add_u32 m0, s{sT1}, {L_D + k*1024}')
                e(f'buffer_load_dwordx4 v65, {RA}, s{sF+k} offen lds')
        for k in range(wn if w0 <= n < len(STAGES) - 1 else 0):
            if wol:
                x = wol.pop(0)
                if len(wol) == 31: e('v_add_u32 v19, 768, v19\nv_add_u32 v20, 768, v20')
                if len(wol) < 32: x = re.sub(r'offset:(\d+)', lambda m_: f'offset:{int(m_.group(1)) - 768}', x)
                e(x)
    for n in range(NS - 1): issue(n)
    for n, (m, f) in enumerate(STAGES):
        a.wait_v(toks[n])
        e('s_waitcnt lgkmcnt(0)\ns_barrier')
        if stp and n in stp: a.raw(f's_memrealtime s[{96+2*stp.index(n)}:{97+2*stp.index(n)}]')
        if n + NS - 1 < len(STAGES): issue(n + NS - 1)
        for t in range(2):
            key = (m, f, t)
            for rho in (0, 2, 4, 6):
                p, b = ('v', (12, 64)[rho >> 2]) if key in LDS else REG[key]
                e(f'ds_read_b64_tr_b16 {vr(b+rho,2,p)}, v{22 + (rho >> 2)} offset:{(n % NS)*4096 + 4*((rho>>1)&1)*256 + 16*t}')
            if key in LDS:
                for hh in range(2): e(f'ds_write_b128 v{vW}, {vr((12, 68)[hh],4)} offset:{LDS[key] + hh*1024}')
                e('s_waitcnt lgkmcnt(0)')
        if n == len(STAGES) - 3 and pre: pre()
        if tries: rec_early(a, len(STAGES) - n, tries)
        if n == len(STAGES) - 7:
            for k in range(4):
                p, b = REG[('o', 4, k)]
                for u in range(2):
                    e(f'ds_read_b64_tr_b16 {vr(b+2*u,2,p)}, v66 offset:{L_D + k*1024 + u*256}')
    assert not wol
    e('s_waitcnt vmcnt(0)\ns_barrier')
    rec_early(a, 0, tries)
    for key, (p, b) in tmp.items():
        for hh in range(2): e(f'ds_write_b128 v{vW}, {vr(b+4*hh,4)} offset:{LDS[key] + hh*1024}')
    e('s_waitcnt lgkmcnt(0)')

def wfrag(key):
    p, b = REG[key]
    return vr(b, 4 if key[:2] == ('o', 4) else 8, p)

def rec_init(a, rdy0=0):
    e = a.e
    e(f'''s_mov_b32 s{sStep}, 0
    s_mov_b32 s{sMs}, {MRING}
    s_lshl_b32 s{sT0}, s{S_H}, 14
    s_lshl_b32 s{sT1}, s{S_W}, 12
    s_add_u32 s{sKx}, s{sT0}, s{sT1}
    s_add_u32 s{sKx}, s{sKx}, {KVX - 256}
    s_mov_b32 s{sPf}, {256 + 32*16384}
    s_mov_b32 s{sRedo}, -1
    s_mov_b32 s{sTry}, -1
    s_cmp_lg_u32 s{sPrD}, {OOB}
    s_cselect_b32 s{sMkD}, 1, 0
    s_lshl_b32 s{sMp}, s{S_H}, 12
    s_add_u32 s{sMp}, s{sMp}, {MRING + 2*MSTR - 256 - 32*16384}
    s_cmp_lt_u32 s{S_H}, 2
    s_cselect_b32 s{sMp}, s{sMp}, {OOB}
    s_mul_i32 s{sT0}, s{S_W}, {L_BLK}
    s_mov_b32 m0, s{sT0}
    s_lshl_b32 s{sKv}, s{S_H}, 12
    s_lshl_b32 s{sFlg}, s{S_H}, 6
    s_mov_b32 s{sPg}, {PROG}
    s_cmp_eq_u32 s{S_H}, 31
    s_cselect_b32 s{sPg}, s{sPg}, {OOB}
    s_add_u32 s{sKv}, s{sKv}, {KV}
    s_mov_b32 s{sC}, 0x3e0293ee
    s_mov_b32 s{sOne}, 0x3f803f80
    s_mov_b32 s{sOne+1}, 0x3f803f80
    s_mov_b32 s{sSpin}, 0x40000''')
    def m32(f):
        m = sum(1 << j for j in range(16) if f(j)); return hex(m | m << 16)
    def sel(r, vm_, masks):
        e(f'v_mov_b32 v{vT}, 0x3f80\ns_mov_b32 vcc_lo, {vm_}\ns_mov_b32 vcc_hi, {vm_}')
        e(f'v_cndmask_b32 v{vT}, v{vT}, 1.0, vcc')
        for q in range(4):
            e(f's_mov_b32 vcc_lo, {masks[q]}\ns_mov_b32 vcc_hi, {masks[q]}\nv_cndmask_b32 v{r+q}, 0, v{vT}, vcc')
    sel(VA, m32(lambda j: j & 1), [m32(lambda j: j >> 2 == q) for q in range(4)])
    sel(VA + 4, m32(lambda j: (j >> 2) & 1), [m32(lambda j: 2 * (j >> 3) + (j & 1) == q) for q in range(4)])
    e(f'''ds_write_b128 v{vSel}, {vr(VA,4)} offset:{L_SEL}
    ds_write_b128 v{vSel}, {vr(VA+4,4)} offset:{L_SEL+256}
    ds_write_b128 v{vL16}, {vr(C4,4)} offset:{L_TAB}
    s_waitcnt lgkmcnt(0)''')
def rec_disp(a, tag):
    for w in range(3):
        a.e(f's_cmp_eq_u32 s{S_W}, {w}\ns_cbranch_scc1 {tag}{w}_in')
    a.e(f's_branch {tag}3_in')

WO = 'p0,s0,w13,w21,l0,w22,l1,p1,w23,%s,s1,w31,w32,p2,w33,%s,s2,w41,w42,p3a,w43,p3b,%s,s3,p4,%s,s4,'
TAIL = {0: WO % ('rd', 'rd', 'rd,r2', '') + 'neg,ra,bar,rb,mst,r2,zq,zk,up,d28,DA,f0,qa,qb,qc,ms2,f1,zv,d60,DB,f2,d40,f3',
        1: WO % ('', '', '', '') + 'neg,bar,r2,zq,zk,up,d60,DA,f0,d60,f1,qa,qb,qc,DC,f2,d20,f3,ms2,zv',
        2: WO % ('', '', '', '') + 'neg,bar,zq,zk,r2,up,d60,DA,f0,d60,f1,qa,qb,qc,DC,f2,d20,f3,ms2,zv',
        3: WO % ('', '', '', '') + 'neg,bar,zq,zk,up,d40,r2,d20,DA,f0,d60,f1,qa,qb,qc,DC,f2,d20,f3,ms2,zv'}
W0 = WO % ('rd', 'rd', 'rd,r2', '') + 'neg,ra,bar,rb,mst,'; W1 = WO % ('', '', '', '') + 'neg,bar,'
RD = {'a': (('rd', 'rd', 'rd,r2', ''), 'rd'), 'b': (('', 'rd', 'rd,r2', ''), 'rd,a0,rd'), 'c': (('', '', 'rd,r2', ''), 'rd,a0,rd,a1,rd,r2'),
      'd': (('rd', 'rd', 'rd,r2', ''), 'rd,a0,rd'), 'e': (('', 'rd', 'rd', ''), 'rd,r2,a0,rd'), 'f': (('', 'rd', 'rd,r2', ''), 'd40,rd,d60,d40,rd'),
      'g': (('', 'rd', 'rd', ''), 'd40,rd,r2,d60,rd'), 'h': (('', '', 'rd', ''), 'rd,r2,d60,rd,d60,rd,d60,rd,r2')}
RD.update(A=(('rd', 'rd', 'rd', ''), 'rd,r2', 'w13'), B=(('rd', 'rd', 'rd', ''), 'rd,r2', 'w21'), C=(('rd', 'rd', 'rd,r2', ''), 'rd', 'w13'), D=(('rd', 'rd', 'rd,r2', ''), 'rd', 's0'),
          E=(('', 'rd', 'rd', ''), 'rd,r2', 'l1'), F=(('rd', 'rd,r2', 'rd', ''), 'rd,r2', 'w13'), G=(('rd', 'rd', 'rd,r2', ''), '', 'w13'), H=(('rd', 'rd,r2', 'rd,r2', ''), '', 'w13'))
def w0(k):
    if k is None: return W0
    x = WO % RD[k][0] + 'neg,' + RD[k][1] + ',ra,bar,rb,mst,'
    return x.replace(RD[k][2] + ',', RD[k][2] + ',rd,') if k.isupper() else x
E1 = {'a': ('a2,r2', '', ''), 'b': ('a2,r2', 'a3,r2', ''), 'c': ('a2,r2', 'a3,r2', 'a4,r2'), 'd': ('a1,r2', 'a2,r2', ''), 'e': ('a3,r2', 'a4,r2', ''), 'f': ('a4,r2', 'a4,r2', 'a4,r2'), '-': ('', '', '')}
def three(x, e1='-', k=1):
    y = {1: 'r2,zq,zk,up,', 2: 'zq,zk,r2,up,', 3: 'zq,zk,up,r2,'}
    return {w: W1.replace('neg,', 'neg,' + E1[e1][w-1] + ',') + (y[w] if k or not E1[e1][w-1] else 'zq,zk,up,') + x for w in y}
TL0 = {'a': 'r2,zq,zk,up,f0,qa,qb,qc,ms2,f1,zv,f2,f3',
      'b': 'r2,up,qa,qb,qc,ms2,f0,f1,zq,zk,zv,d60,f2,d40,f3',
      'c': 'r2,up,zq,qa,f0,qb,qc,ms2,f1,zk,zv,d60,f2,d40,f3',
      'd': 'r2,up,zq,qa,f0,qb,qc,ms2,f1,zk,zv',
      'e': 'r2,zq,zk,up,f0,qa,qb,qc,ms2,f1,zv',
      'i': 'r2,up,qa,qb,qc,ms2,f0,f1,zq,zk,zv,f2,f3',
      'j': 'up,qa,qb,qc,ms2,f0,f1,zq,zk,zv,d60,f2,d40,f3',
      'k': 'r2,up,qa,qb,qc,ms2,f0,f1,zq,zk,zv,d28,f2,d20,f3',
      'l': 'r2,up,qa,b2,qb,qc,ms2,f0,f1,zq,zk,zv,d60,f2,d40,f3',
      'm': 'r2,up,qa,qb,qc,ms2,b2,f0,f1,zq,zk,zv,d60,f2,d40,f3',
      'n': 'r2,up,qa,b2,qb,qc,ms2,f0,f1,zq,zk,zv,am,f2,f3',
      'o': 'r2,up,qa,b2,qb,qc,ms2,f0,f1,zq,zk,zv,b2,f2,f3',
      'p': 'r2,up,qa,qb,b2,qc,ms2,f0,f1,zq,zk,zv,am,f2,f3',
      'q': 'r2,up,qa,qb,qc,ms2,b2,f0,f1,zq,zk,zv,am,f2,f3',
      'r': 'r2,up,qa,qb,qc,ms2,zq,zk,zv,b2,f0,f1,am,f2,f3',
      's': 'r2,up,qa,qb,qc,ms2,zq,zk,zv,d60,b2,f0,f1,am,f2,f3',
      't': 'r2,up,qa,qb,qc,ms2,zq,zk,zv,d60,d60,b2,f0,f1,am,f2,f3',
      'u': 'r2,up,qa,qb,qc,ms2,zq,zk,zv,b2,f0,f1,b2,f2,f3',
      'v': 'r2,up,qa,qb,qc,ms2,zq,zk,zv,b2,f0,f1,f2,f3',
      'w': 'r2,up,qa,b2,qb,qc,ms2,f0,zq,zk,zv,g0,f1,am,f2,f3',
      'x': 'r2,up,b2,qa,f0,qb,qc,ms2,zq,zk,zv,g0,f1,am,f2,f3',
      'y': 'r2,up,qa,b2,qb,qc,ms2,f0,f1,zq,zk,zv,am,g0,g1,f2,f3',
      'g': 'r2,zq,zk,up,d28,f0,qa,qb,qc,ms2,f1,g0,zv,d60,f2,d40,f3',
      'h': 'r2,zq,zk,up,f0,qa,qb,qc,ms2,g0,f1,zv,d60,f2,d40,f3',
      }
TL1 = {'a': 'f0,f1,qa,qb,qc,f2,f3,ms2,zv',
      'b': 'd28,f0,d60,f1,qa,qb,qc,f2,d20,f3,ms2,zv',
      'c': 'd60,f0,d60,f1,qa,qb,qc,ms2,zv',
      'd': 'f0,wr,f1,qa,qb,qc,ms2,zv',
      'i': 'd60,f0,d28,f1,qa,qb,qc,f2,f3,ms2,zv',
      'j': 'd60,f0,f1,qa,qb,qc,f2,f3,ms2,zv',
      'k': 'd40,f0,d60,f1,qa,qb,qc,f2,d20,f3,ms2,zv',
      'l': 'b2,f0,f1,qa,qb,qc,f2,f3,ms2,zv',
      'm': 'b2,f0,wr,f1,qa,qb,qc,f2,f3,ms2,zv',
      'o': 'b2,f0,f1,qa,qb,qc,b2,f2,f3,ms2,zv',
      'p': 'd100,f0,d28,f1,qa,qb,qc,f2,f3,ms2,zv',
      'r': 'wr,b2,f0,f1,qa,qb,qc,f2,f3,ms2,zv',
      's': 'qa,b2,f0,f1,qb,qc,ms2,f2,f3,zv',
      't': 'wr,b2,f0,qa,f1,qb,qc,ms2,f2,f3,zv',
      'u': 'qa,qb,qc,ms2,b2,f0,f1,f2,f3,zv',
      'v': 'qa,qb,qc,ms2,b2,f0,am,f1,f2,f3,zv',
      'q': 'b2,f0,qa,qb,qc,ms2,f1,zv,f2,f3',
      'n': 'qa,b2,f0,qb,qc,ms2,f1,zv,am,f2,f3',
      'w': 'b2,f0,wr,g0,f1,qa,qb,qc,f2,f3,ms2,zv',
      'x': 'b2,f0,qa,g0,f1,qb,qc,f2,f3,ms2,zv',
      'y': 'b2,f0,wr,f1,qa,qb,qc,g0,g1,f2,f3,ms2,zv',
      'z': 'b2,f0,qa,qb,qc,g0,f1,f2,f3,ms2,zv',
      'g': 'd60,f0,d60,f1,qa,g0,qb,qc,f2,d20,f3,ms2,zv',
      'h': 'd28,f0,qa,g0,f1,qb,qc,f2,d20,f3,ms2,zv',
      }
PAR = dict(l2=0, l3=2, l4=6, l5=7, l6=14, l7=18, l8=16, pf=24, qb=49, kv=65)
KD = '12.19.26.34'
CHK = '1.3.5,2.9.11,3.15.17,45.21.23,678.33.35'
def opt(abl, key, d=None):
    for x in abl:
        if x.startswith(key + '='): return x[len(key)+1:]
    return d

def rec_loop(a, w, stamps=None, fin='R_done', abl=(), tag='R', cs=''):
    b = Asm(); b.uid = 10000
    rec_body(b, w, None, fin, abl, tag, cs)
    a.vq = list(b.endq[0]); a.lq = list(b.endq[1])
    rec_body(a, w, stamps, fin, abl, tag, cs)

def rec_body(a, w, stamps, fin, abl, tag, cs):
    drops = [re.compile(x[2:].replace('~', ' ')) for x in abl if x.startswith('x=')]
    if 'nodma' in abl: drops.append(re.compile(r'p1:buffer_load_dwordx4.*lds'))
    sec = ['p1']
    def e(text):
        for line in text.split('\n'):
            line = line.strip()
            if 'free' in abl: line = re.sub(r'v_cmp_(eq_u32|ne_u32|u_f32) vcc', 'v_cmp_f_f32 vcc', line)
            if any(d.search(sec[0] + ':' + line) for d in drops): continue
            a.e(line)
    def stamp(name, at=40):
        if name in ('t0', 'sdone', 'pvdone', 'st0', 'st3'): sec[0] = name
        if stamps is None or name not in stamps: return
        k = stamps.index(name)
        lab = a.newlabel('st')
        at += int(opt(abl, 'at', 40)) - 40
        a.raw(f's_cmp_eq_u32 s{sStep}, {at}'); a.raw(f's_cbranch_scc0 {lab}')
        a.raw(f's_memtime s[{sStamp+2*k}:{sStamp+2*k+1}]'); a.raw(f'{lab}:')
    P_ = {k: int(opt(abl, k, v)) for k, v in PAR.items()}
    def cnt(k):
        if 'cnt' in abl: e(f's_add_u32 s{76+2*k}, s{76+2*k}, 1')
    FB = [MB[0], MB[1], MB[2], VX, VX + 4, MB[0], MB[1], MB[2], C4]
    def ldw(key, buf, hh): return f'ds_read_b128 {vr(buf+4*hh,4)}, v{vW} offset:{LDS[key] + hh*1024}'
    def ldkx(n): return f'ds_read_b128 {vr(KB[n],4)}, v{vL16} offset:{(w ^ (n >> 1))*L_BLK + 256 + (n & 1)*1024}'
    def ldv(n): return f'ds_read_b128 {vr(VX+4*n,4)}, v{vL16} offset:{w*L_BLK + 2304 + n*1024}'
    def ldz(k, r, kq=0): return f'ds_read_b128 {vr(r,4)}, v{vZ} offset:{L_QK + (w ^ k)*1152 + kq*576}'
    def fillr(r, n, val=0): return '\n'.join(f'v_mov_b64 {vr(r+k,2)}, {val}' for k in range(0, n, 2))
    def zero(r, n): e(fillr(r, n))
    lc = ' sc1' if 'lsc' in abl else cs
    km = {'0': '', '1': ' sc1', 'n': ' nt', 's': ' sc0'}; km, pm = km[opt(abl, 'km', '11')[0]], km[opt(abl, 'km', '11')[1]]
    def ldf(i, m=None, r=None):
        return f'buffer_load_dwordx4 {vr(FB[i] if r is None else r,4)}, v{vL16}, {WS}, s{(sMs, sM1, sM2)[i >> 2]} offen offset:{(i & 3)*1024}{lc if m is None else m}'
    def dma(n): return f'buffer_load_dwordx4 v{vL16}, {WS}, s{sKx} offen offset:{256 + n*1024}{km} lds'
    def blind(line, name):
        a.auto = False; e(line); a.auto = True
        a.vq[-1] = {name}
    def add(r): return f'v_add_f32 v{r}, v{r}, v{r+2}'
    def cvt(d, r, r2=None): return f'v_cvt_pk_bf16_f32 v{d}, v{r}, v{r+1 if r2 is None else r2}'
    def upm(): e(f's_add_u32 s{sM1}, s{sMs}, 4096\ns_add_u32 s{sM2}, s{sMs}, 8192')
    spin = f's_sub_u32 s{sSpin}, s{sSpin}, 1\ns_cbranch_scc1 {fin}'
    lbuf = {k: SB[n % 2] for n, k in enumerate(LDS_P1)}
    L = lambda s: f'{tag}{w}_{s}'
    acc = {'q': QA, 'k': KA, 'v': VA}
    X = SB[0]; Tm = SB[0] + 4
    T = [KA, KA + 4]
    Zq = [QA, QA + 4, SB[1], SB[1] + 4]
    Zk = [VA, MB[0], MB[1], VA + 4]
    KB = [Tm, VX, VX + 4, MB[0], MB[1], MB[2], C4, Tm]
    m_ = vT
    fill = {n: [] for n in range(-1, 70)}
    def put(n, *x): fill[n] += list(x)
    put(-1, f'v_cmp_eq_u32 vcc, -1, v{FB[0]+3}', '#got0')
    put(1, f's_cbranch_vccnz {L("f0")}', '#g0')
    put(3, '#wr')
    for k, (n0, n1) in enumerate(((0, 2), (3, 4))): put(n0, ldw(LDS_P1[k], SB[k], 0)); put(n1, ldw(LDS_P1[k], SB[k], 1))
    for k in range(10):
        for hh in range(2): put(P1_LDS_POS[k] + hh, ldw(LDS_P1[k+2], SB[k % 2], hh))
    tl = opt(abl, 'tl', 'nm')
    tw = TAIL[w] if tl[w > 0] == '-' else three(TL1[tl[1]], opt(abl, 'e1', '-'), 'e0' not in abl)[w] if w else w0(opt(abl, 'rd', 'e')) + TL0[tl[0]]
    tail = [x for x in tw.split(',') if x]
    tail = [f'd{opt(abl, x, 0)}' if x[0] == 'D' else x for x in tail]
    lat = {f: -9 if f'f{f}' in tail else int(opt(abl, f'l{f}', PAR.get(f'l{f}'))) for f in range(9)}
    for f in range(1, 9):
        if lat[f] >= 0: put(lat[f], ldf(f))
    pw = opt(abl, 'pw', '02'); mw = int(opt(abl, 'mw', 1))
    pfg = P_['pf']; mg = int(opt(abl, 'mg', 37))
    if w < 3: put(29, f'v_lshl_add_u32 v{vT2}, v{vL16}, 3, s{sPf}')
    for k in range(2):
        if w == int(pw[k]) and 'nopf' not in abl:
            if w != 2 * k: put(30, f's_add_u32 s{sT0}, s{sKx}, {(2*k - w)*4096}')
            put(pfg + (k if pw[0] == pw[1] else 0), f'buffer_load_dword v{vT2}, {WS}, s{sT0 if w != 2 * k else sKx} offen{pm} lds')
    if w == mw and 'nomp' not in abl: put(mg, f'buffer_load_dword v{vT2}, {WS}, s{sMp} offen sc1 lds')
    pgc = opt(abl, 'pc')
    if pgc and w == DW: put(int(pgc), f'v_mov_b32 v{vT}, s{sStep}', f'buffer_store_dword v{vT}, v{vZero}, {WS}, s{sPg} offen sc1')
    kd = [int(x) for x in opt(abl, 'kd', KD).split('.')]
    kb = opt(abl, 'kb', 'a')
    for n in range(4):
        if kd[n] < 65: put(kd[n], dma(n), f'#d{n}')
        else: put(kd[n], dma(n).replace(f's{sKx} ', f's{sT2} '), f'#d{n}')
    if kd[0] >= 65: put(48, f's_add_u32 s{sT2}, s{sKx}, {32*16384}')
    if kb == 'a': fill[36] = ['#kb', ldkx(3)] + fill[36]; put(39, ldkx(2)); put(40, ldkx(0)); put(41, ldkx(1))
    if kb == 'b': put(29, ldkx(1)); put(30, ldkx(2)); put(39, ldkx(3)); put(40, ldkx(0))
    if kb == 'd': fill[36] = ['#kc'] + fill[36]; kb = 'c'
    if kb == 'c': put(47, '#kw', ldkx(0)); put(48, ldkx(1))
    vg = [int(x) for x in opt(abl, 'vg', '60.61').split('.')]
    chk = [x.split('.') for x in (CHK.replace('45.21.23', '4.21.23,5.27.29') if 'c5' in abl else CHK).split(',')]
    for fs, c, b in chk:
        r = [FB[int(f)] + 3 for f in fs]
        if len(r) == 3: put(int(c) - 1, f'v_max_u32 v{vT}, v{r[0]}, v{r[2]}'); r[0] = vT
        put(int(c), f'v_cmp_u_f32 vcc, v{r[0]}, v{r[1]}' if len(r) > 1 else f'v_cmp_eq_u32 vcc, -1, v{r[0]}')
        put(int(b), f's_cbranch_vccnz {L("c" + fs)}', f'{L("g" + fs)}:')
    put(12, '#bar1')
    put(42, add(QA), add(QA + 1))
    put(43, add(QA + 4), add(QA + 5))
    put(44, cvt(X + 1, QA, QA + 4), cvt(X + 3, QA + 1, QA + 5))
    put(45, f'ds_write2_b32 v{vXw}, v{X+1}, v{X+3} offset0:0 offset1:4', '#mw')
    put(46, ldz(0, Zq[0]), add(KA)); put(47, add(KA + 1))
    put(P_['qb'], '#bar', '#qbar')
    if kb == 'c': put(49, ldkx(2)); put(50, ldkx(3))
    put(49, add(KA + 4))
    put(50, ldz(1, Zq[1]), add(KA + 5))
    put(51, ldkx(4), cvt(X, KA, KA + 4))
    put(52, ldkx(5), cvt(X + 2, KA + 1, KA + 5))
    put(53, ldz(2, Zq[2]), ldkx(6), f'ds_write2_b32 v{vXw}, v{X}, v{X+2} offset0:144 offset1:148', '#t0')
    put(54, ldkx(7), '#mw', add(VA)); put(55, ldz(3, Zq[3]), add(VA + 1)); put(vg[0], '#v2', ldv(0)); put(56, cvt(X + 1, VA))
    put(57, ldz(0, Zk[0], 1), add(VA + 4))
    put(58, '#bar', ldz(1, Zk[1], 1), add(VA + 5))
    put(59, ldz(2, Zk[2], 1), cvt(X + 3, VA + 4))
    put(60, ldz(3, Zk[3], 1))
    put(vg[1], '#v3', ldv(1))
    ONE, PmQ, P, LL = MB[0], vZero, VA, MB[2]
    O0, O1 = MB[1], VA + 4
    wb = [QA, SB[1]]
    put(62, f'v_cmp_u_f32 vcc, v{T[0]}, v{T[0]}', f'v_max3_f32 v{m_}, v{T[0]}, v{T[0]+1}, v{T[0]+2}')
    put(63, f'v_max3_f32 v{m_}, v{m_}, v{T[0]+3}, v{T[1]}', f'v_max3_f32 v{m_}, v{m_}, v{T[1]+1}, v{T[1]+2}')
    put(64, f's_cbranch_vccnz {L("fn")}', f'{L("gn")}:')
    if 'nokv' not in abl: put(65, f'buffer_store_dwordx4 {vr(X,4)}, v{vL16}, {WS}, s{sKv} offen offset:{w*1024} sc1')
    put(65, f'ds_read_b128 {vr(C4,4)}, v{vL16} offset:{L_TAB}', ldw(LDS_WO[0], wb[0], 0), fillr(ONE, 4, f's[{sOne}:{sOne+1}]'), f'v_max_f32 v{m_}, v{m_}, v{T[1]+3}')
    tok = {}
    def mf(n):
        if n < 54:
            key = P1SEQ[n]
            m, i, t = key
            wv = vr(lbuf[key], 8) if key in LDS else wfrag(key)
            return f'{SMF} {vr(acc[m]+4*t,4)}, {vr(FB[i],4)}, {wv}, v{vIdx}'
        if n < 62:
            k = n - 54
            return f'{MF32} {vr(T[k & 1],4)}, {vr(KB[k],4)}, {vr(Zq[k >> 1],4)}, {"0" if k < 2 else vr(T[k & 1],4)}'
        k = n - 62
        return f'{MF32} {vr(Tm,4)}, {vr(Zk[k],4)}, {vr(Zq[k],4)}, {"0" if k == 0 else vr(Tm,4)}'
    def ops(n): return Ins(mf(n)).src if n < 66 else set()
    def emit(n):
        pw = False
        for x in fill[n]:
            if x == '#got0': stamp('got0'); stamp('got0n', 41)
            elif x in ('#bar1', '#qbar', '#t0'): stamp(x[1:])
            elif x == '#g0': tok['g0'] = ([len(a.vq) - 1 - k for k, q in enumerate(a.vq) if '#g0' in q] + [0])[0]
            elif x[:2] == '#d': tok[x] = a.mark_v()
            elif x == '#kb':
                if kd[1] < 65: a.wait_v(tok['#d1'])
                a.waitfor(ops(n + 1)); e('s_barrier')
            elif x == '#kc': a.waitfor(ops(n + 1)); e('s_barrier')
            elif x == '#kw': a.wait_v(tok['#d1'])
            elif x[:2] == '#v': a.wait_v(tok['#d' + x[2]])
            elif x == '#mw': tok['mw'] = a.mark_l()
            elif x == '#wr': a.waitfor({f'#r{sPrd}'})
            elif x == '#bar': a.waitfor(tok['mw'] | ops(n + 1)); e('s_barrier')
            else:
                if x[:2] == 'v_' and not pw: a.waitfor(ops(n + 1) | Ins(x.split('\n')[0]).src); pw = True
                e(x)
    e(f'{L("go")}:')
    a.waitfor({f'v{FB[0]}'})
    stamp('go1', 41)
    e(f'{L("go2")}:')
    if 'tr' in abl and w == 3:
        a.raw('s_memrealtime s[76:77]'); a.raw('s_memtime s[78:79]')
    if opt(abl, 'ts'):
        lab = a.newlabel('ts')
        a.raw(f's_cmp_eq_u32 s{sStep}, {opt(abl, "ts")}'); a.raw(f's_cbranch_scc0 {lab}'); a.raw('s_memrealtime s[100:101]'); a.raw('s_memtime s[98:99]'); a.raw(f'{lab}:')
    emit(-1)
    for n in range(66): e(mf(n)); emit(n)
    stamp('sdone')
    e(f'''v_max3_f32 v{Tm+2}, v{m_}, v{Tm}, v{Tm+1}
    v_max3_f32 v{m_}, v{m_}, v{Tm}, v{Tm+1}
    s_add_u32 s{sKv}, s{sKv}, {32*4096}
    s_add_u32 s{sMs}, s{sMs}, {MSTR}
    v_permlane32_swap_b32 v{m_}, v{Tm+2}
    v_max_f32 v{Tm+3}, v{m_}, v{Tm+2}
    v_max_f32 v{m_}, v{m_}, v{Tm+2}
    s_add_u32 s{sMst}, s{sMs}, s{sMo}''')
    e(f'''v_permlane16_swap_b32 v{m_}, v{Tm+3}
    v_max_f32 v{m_}, v{m_}, v{Tm+3}''')
    T0 = T[0]
    def ex(r): e(f'v_exp_f32 v{r}, v{r}')
    e(f'v_mul_f32 v{Tm+2}, s{sC}, v{m_}')
    for r in (Tm, T0, T0 + 2, T0 + 4, T0 + 6):
        e(f'v_pk_fma_f32 {vr(r,2)}, {vr(r,2)}, s[{sC}:{sC+1}], {vr(Tm+2,2)} op_sel_hi:[1,0,0] neg_lo:[0,0,1] neg_hi:[0,0,1]')
    ex(Tm); ex(Tm + 1); ex(T0); e(cvt(PmQ + 1, Tm)); ex(T0 + 1); ex(T0 + 2)
    e(f'{MF16} {vr(O0,4)}, {vr(X,2)}, {vr(PmQ,2)}, 0')
    e(cvt(P, T0)); ex(T0 + 3)
    e(f'{MF16} {vr(O1,4)}, {vr(X+2,2)}, {vr(PmQ,2)}, 0')
    def prog(at):
        if w == DW and pgc and at == 'a':
            e(f's_cmp_ge_u32 s{sStep}, {opt(abl, "pl", 62)}\ns_cselect_b32 s{sT0}, s{sPg}, {OOB}\nv_add_u32 v{vT}, s{sStep}, 1\nbuffer_store_dword v{vT}, v{vMst}, {WS}, s{sT0} offen sc1')
        elif w == DW and opt(abl, 'pg', 'a') == at: e(f'v_add_u32 v{vT}, s{sStep}, 1\nbuffer_store_dword v{vT}, v{vMst}, {WS}, s{sPg} offen sc1')
    prog('a')
    ex(T0 + 4); e(cvt(P + 1, T0 + 2)); ex(T0 + 5)
    e(f'{MF16} {vr(LL,4)}, {vr(PmQ,2)}, {vr(ONE,2)}, 0')
    e(ldw(LDS_WO[0], wb[0], 1))
    ex(T0 + 6); ex(T0 + 7)
    e(cvt(P + 2, T0 + 4)); e(cvt(P + 3, T0 + 6))
    W = [VX, VX + 4, KA, KA + 4, Tm]
    zero(W[2], 4)
    e(f'{MF32} {vr(O0,4)}, {vr(VX,4)}, {vr(P,4)}, {vr(O0,4)}')
    zero(W[3], 4)
    e(f'{MF32} {vr(O1,4)}, {vr(VX+4,4)}, {vr(P,4)}, {vr(O1,4)}')
    zero(W[0], 4)
    e(f'{MF32} {vr(LL,4)}, {vr(P,4)}, {vr(ONE,4)}, {vr(LL,4)}')
    OF = [P, MB[0], MB[1], VA + 4]
    e(cvt(P, O0)); e(cvt(P + 1, O0 + 2)); zero(W[1], 4); e(cvt(P + 2, O1)); e(cvt(P + 3, O1 + 2))
    e(f'ds_write_b128 v{vZ}, {vr(P,4)} offset:{L_QK + w*1152}')
    toko = a.mark_l()
    e(f's_add_u32 s{sKx}, s{sKx}, {32*16384}')
    prog('b')
    stamp('pvdone')
    if 'tr' in abl and w == 3:
        for x in (f'v_mov_b32 v{vT}, s76', f'v_mov_b32 v{vT2}, s78', f's_lshl_b32 s80, s{sStep}, 8', f's_lshl_b32 s81, s{S_H}, 3', 's_add_u32 s80, s80, s81', f's_add_u32 s80, s80, {STAMP + 0x8000}'): a.raw(x)
        e(f'buffer_store_dword v{vT}, v{vZero}, {WS}, s80 offen\nbuffer_store_dword v{vT2}, v{vZero}, {WS}, s80 offen offset:4')
    IV = LL
    wbuf = {k: wb[(0, 1, 0, 1, 0)[n]] for n, k in enumerate(LDS_WO)}
    def wo(u, k):
        key = ('o', u, k)
        if u == 4: e(f'{MF32} {vr(W[4],4)}, {vr(OF[k],4)}, {wfrag(key)}, {"0" if k == 0 else vr(W[4],4)}')
        else: e(f'{SMF} {vr(W[u],4)}, {vr(OF[k],4)}, {vr(wbuf[key], 8) if key in LDS else wfrag(key)}, v{vIdx} abid:1')
    ack = {}
    RDR, SEL, D, R2 = {sPrd: (SB[1], SB[1] + 4), sPrD: (VX, VX + 4)}, VA, X, Tm + 2
    if w == 0 and opt(abl, 'rd', 'a').isupper(): RDR, D = {sPrd: (X, VX), sPrD: (SB[1], SB[1] + 4)}, QA
    def rdl(s): return [f'buffer_load_dwordx4 {vr(RDR[s][l],4)}, v{vL16}, {WS}, s{s} offen offset:{l*1024} sc1' for l in range(2)]
    nrd = {}
    def rd(s):
        nrd[s] = nrd.get(s, 0) + 1
        for x in rdl(s):
            if nrd[s] == 1: e(x)
            else: blind(x, f'#r{s}')
        if len(nrd) == 1 and nrd[s] == 1: stamp('rd', 41)
    def epi(u):
        r = W[u]
        x = [f'v_mul_f32 v{r+k}, v{r+k}, v{IV + (k & 1)}' for k in ((0, 2, 1, 3) if u < 4 else (0, 1))]
        x += [cvt(r, r, r + 2), cvt(r + 1, r + 1, r + 3)] if u < 4 else [cvt(r, r)]
        return x + [f'v_bfi_b32 v{r+k}, 1, s{sStep}, v{r+k}' for k in range(2 if u < 4 else 1)]
    def st(u):
        r = W[u]
        if u < 4: e(f'buffer_store_dwordx2 {vr(r,2)}, v{vP}, {WS}, s{sPW+u} offen{cs}')
        else: e(f'buffer_store_dword v{r}, v{vPD}, {WS}, s{sPW+4} offen{cs}')
        ack[u] = a.mark_v()
        if u in (0, 3): stamp(f'st{u}', 41)
    wo(4, 0)
    e(ldw(LDS_WO[1], wb[1], 0))
    wo(2, 0)
    e(ldw(LDS_WO[1], wb[1], 1)); e(f's_cmp_eq_u32 s{sStep}, 63')
    wo(0, 0)
    e(f's_cbranch_scc1 {fin}')
    a.wait_l(toko); e('s_barrier')
    wo(1, 0)
    for k in (1, 2, 3): e(ldz(k, OF[k]))
    wo(3, 0)
    e(ldw(LDS_WO[2], wb[0], 0)); e(ldw(LDS_WO[2], wb[0], 1))
    e(f'v_rcp_f32 v{IV}, v{IV}\nv_rcp_f32 v{IV+1}, v{IV+1}')
    wo(0, 1); e(ldw(LDS_WO[3], wb[1], 0))
    wo(0, 2); e(ldw(LDS_WO[3], wb[1], 1))
    wo(0, 3); e(f'ds_read_b128 {vr(SEL,4)}, v{vSel} offset:{L_SEL + (256 if w == DW else 0)}')
    wo(1, 1); e(f's_add_u32 s{sStep}, s{sStep}, 1\ns_add_u32 s{sT1}, s{sMs}, s{sMoD}')
    if w == DW: e(f's_and_b32 s{sPaD}, s{sStep}, s{sMkD}')
    wo(1, 2)
    fails = []
    ldfl = f's_load_dword s{sRdy}, s[{P_WSP}:{P_WSP+1}], s{sFlg} glc'
    def rsum(s, part='ab'):
        r = RDR[s]; par = sPaD if w == DW else sStep
        t = (vT, vT2, Tm, Tm + 1)
        if 'a' in part:
            for l in range(2):
                q = r[l]
                for k in range(2): e(f'v_bitop3_b32 v{t[2*l+k]}, v{q+2*k}, v{q+2*k+1}, s{par} bitop3:0x7e')
                e(f'{MF32} {vr(D,4)}, {vr(SEL,4)}, {vr(q,4)}, {"0" if l == 0 else vr(D,4)}')
            e(f'v_or3_b32 v{vT}, v{vT}, v{vT2}, v{Tm}\nv_bitop3_b32 v{vT}, v{vT}, v{Tm+1}, 1 bitop3:0xa8\nv_cmp_ne_u32 vcc, 0, v{vT}')
        if 'b' in part:
            for k in range(2): e(f'v_add_f32_dpp v{D+k}, v{D+k}, v{D+k} row_ror:8 row_mask:0xf bank_mask:0xf')
    def rchk(nm, s):
        e(f's_cbranch_vccnz {L("f" + nm)}\n{L(nm)}:')
        assert ('f0' if s == sPrd else 'f3') not in done and 's4' in done
        fails.append((nm, s, [len(a.vq) - 1 - k for k, q in enumerate(a.vq) if f'#r{s}' in q][1::2]))
    def rfin():
        for k in range(2): e(f'v_add_f32_dpp v{R2+k}, v{D+k}, v{D+k} row_ror:4 row_mask:0xf bank_mask:0x1')
        e(cvt(vT, R2))
    done = []
    assert tail.count('bar') == 1
    for x in tail:
        done.append(x)
        if x == 'ra': rsum(sPrd); rchk('rp', sPrd); stamp('ok', 41)
        elif x == 'qa':
            if w == DW and 'sk' in abl:
                skq = list(a.vq); e(f's_cmp_eq_u32 s{sMkD}, 0\ns_cbranch_scc1 {L("sk")}')
            rsum(sPrD, 'a')
        elif x == 'qb': rsum(sPrD, 'b'); rchk('rq', sPrD)
        elif x in ('rb', 'qc'):
            rfin()
            if x == 'qc' and w == DW and 'sk' in abl:
                e(f'{L("sk")}:'); a.vq = [set() if q & {f'v{VX}', f'v{VX+4}'} else q for q in skq]
        elif x == 'up':
            upm()
            if w == mw: e(f's_add_u32 s{sMp}, s{sMp}, {MSTR}')
        elif x == 'b2': e('s_barrier')
        elif x == 'neg':
            if 'ns' not in abl: e(fillr(R2, 2, -1))
        elif x == 'zq': zero(QA, 8)
        elif x == 'zk': zero(KA, 8)
        elif x == 'zv': zero(VA, 8)
        elif x == 'rd': rd(sPrd)
        elif x == 'r2': rd(sPrD)
        elif x == 'wr': a.wait_v({f'v{RDR[sPrD][0]}'})
        elif x in ('mst', 'ms2'):
            e(f'buffer_store_dword v{vT}, v{vMst}, {WS}, s{sMst if x == "mst" else sT1} offen{cs}')
            if x == 'mst':
                assert done[-4:] == ['ra', 'bar', 'rb', 'mst']
                e(f'{L("yrp")}:')
            ack['m'] = a.mark_v(); stamp('mst' if x == 'mst' or w else 'zrdy', 41)
        elif x == 'bar':
            if w == DW: e(f's_add_u32 s{sT0}, s{sStep}, 1\n{L("fc")}:\ns_cmp_gt_u32 s{sRdy}, s{sT0}\ns_cbranch_scc0 {L("flg")}')
            if kd[1] >= 65: a.wait_v(tok['#d1'])
            e('s_barrier'); stamp('bar', 41)
            if w == DW: a.raw(ldfl)
        elif x[0] == 'f':
            e(ldf(int(x[1])))
            if x == 'f0': stamp('e0', 41)
        elif x[0] == 'g': blind(ldf(int(x[1]), ' sc1'), '#' + x)
        elif x[0] == 'w': wo(int(x[1]), int(x[2]))
        elif x[0] == 'l': e(ldw(LDS_WO[4], wb[0], int(x[1])))
        elif x[0] == 'p':
            y = epi(int(x[1]))
            e('\n'.join(y if len(x) == 2 else y[:2] if x[2] == 'a' else y[2:]))
        elif x[0] == 's': st(int(x[1]))
        elif x[0] == 'a': a.wait_v(ack[int(x[1:]) if x[1:] != 'm' else 'm'])
        elif x[0] == 'd':
            n = int(x[1:]) // 4
            while n > 0:
                k = min(n, 16); e(f's_nop {k-1}'); n -= k
        else: raise ValueError(x)
    a.endq = (list(a.vq), list(a.lq))
    e(f's_branch {L("go")}')
    sec[0] = 'rare'
    def clr(): a.vq = []; a.lq = []
    early = [int(x[1]) for x in tail if x[0] == 'f']
    clr()
    e(f'{L("in")}:\ns_cmp_gt_u32 s{sRdy}, 1\ns_cselect_b32 s{sT0}, s{sF}, 0\ns_cmp_gt_u32 s{sT0}, 0\ns_cbranch_scc1 {L("in1")}')
    e(f's_xor_b32 s{sT0}, s{sFlg}, 64')
    e(f'{L("in0")}:\n{ldfl}\ns_load_dword s{sF}, s[{P_WSP}:{P_WSP+1}], s{sT0} glc\n{spin}\ns_waitcnt lgkmcnt(0)\ns_cmp_gt_u32 s{sRdy}, 1\ns_cbranch_scc0 {L("in0")}')
    e(f'{L("in1")}:')
    upm()
    if 'np' not in abl:
        for f in early: e(ldf(f))
        e(f'v_lshlrev_b32 v{vT2}, 3, v{vL16}\ns_bitcmp1_b32 s{S_H}, 0\ns_cselect_b32 s{sT1}, -1, 1\ns_mul_i32 s{sT1}, s{sT1}, {TS}')
        pfl = lambda x: e(f'buffer_load_dword v{vT2}, {WS}, s{x} offen sc1 lds')
        if not w & 1: e(f's_add_u32 s{sT0}, s{sKx}, 256'); pfl(sT0)
        if w & 1:
            e(f's_add_u32 s{sT0}, s{sKx}, {256 - 4096}\ns_xor_b32 s{sT0}, s{sT0}, 16384\ns_cmp_gt_u32 s{sF}, 0\ns_cselect_b32 s{sT0}, s{sT0}, {OOB}')
            pfl(sT0)
        elif w == 0: e(f's_add_u32 s{sT0}, s{sPrd}, s{sT1}')
        else: e(f's_bfe_u32 s{sT0}, s{S_H}, 0x20002\ns_mul_i32 s{sT0}, s{sT0}, 2304\ns_and_b32 s{sT2}, s{S_H}, 16\ns_lshl_b32 s{sT2}, s{sT2}, 10\ns_add_u32 s{sT0}, s{sT0}, s{sT2}\ns_add_u32 s{sT0}, s{sT0}, s{sMs}')
        e(f's_add_u32 s{sT1}, s{sPrD}, s{sT1}\ns_mov_b64 exec, 0x3ffff')
        if not w & 1: pfl(sT0)
        pfl(sT1)
        e('s_mov_b64 exec, -1')
        zero(QA, 16); zero(VA, 8)
        e(f's_waitcnt vmcnt({3 - (w & 1)})\ns_barrier\ns_branch {L("go2")}')
        clr()
    else:
        for n in range(4): e(dma(n))
    e(f'{L("in2")}:')
    for f in early: e(ldf(f))
    zero(QA, 16); zero(VA, 8)
    e(f's_waitcnt vmcnt(0)\ns_barrier\ns_branch {L("go2")}')
    clr()
    e(f'{L("f0")}:')
    if 'g0' in tail:
        assert tok['g0'] is not None
        a.auto = False
        e(f's_cmp_eq_u32 s{sTry}, s{sStep}\ns_cbranch_scc1 {L("f1")}\ns_mov_b32 s{sTry}, s{sStep}\ns_nop 3'); cnt(4)
        zero(QA, 8)
        e(f's_waitcnt vmcnt({tok["g0"]}) lgkmcnt(0)\ns_branch {L("go2")}\n{L("f1")}:')
        a.auto = True
    seq = [x for x in tail if x[0] in 'fg' or x in ('mst', 'ms2')]
    def again(first, b):
        q = seq + [x for g in range(b + 1) for x in [f'f{f}' for f in range(1, 9) if lat[f] == g] + ['x'] * kd.count(g)]
        q = q[min(q.index(f'f{f}') for f in first):]
        return 1 + max(q.index(f'f{f}') for f in first), [ldf(int(x[1]), ' sc1') if x[0] == 'f' else f'buffer_load_dword v{vZero}, {WS}, s{sMs} offen lds' for x in q]
    fast = 'slow' not in abl
    q = again('0', -1)[1]
    e(q[0]); e(spin); cnt(0); e('s_nop 3')
    zero(QA, 8)
    e('\n'.join(q[1:]))
    e(f's_waitcnt vmcnt({len(q) - 1 if fast else 0}) lgkmcnt(0)\ns_branch {L("go2")}')
    for fs, c, b in chk:
        clr()
        e(f'{L("c" + fs)}:')
        nq, q = again(fs, int(b))
        a.auto = False
        e('\n'.join(q[:nq]))
        e(spin); cnt(min(5, 1 + chk.index([fs, c, b])))
        e('\n'.join(q[nq:]))
        r = [FB[int(f)] + 3 for f in fs] * 3
        e(f's_waitcnt vmcnt({len(q) - nq if fast else 0})\nv_max3_u32 v{vT}, v{r[0]}, v{r[1]}, v{r[2]}\nv_cmp_eq_u32 vcc, -1, v{vT}')
        a.auto = True
        e(f's_cbranch_vccnz {L("c" + fs)}\ns_branch {L("g" + fs)}')
    clr()
    e(f'{L("fn")}:')
    e(f's_cmp_eq_u32 s{sRedo}, s{sStep}\ns_cbranch_scc1 {L("gn")}\ns_mov_b32 s{sRedo}, s{sStep}'); cnt(8)
    e(f's_waitcnt vmcnt(0) lgkmcnt(0)\ns_nop 7\n{L("fl")}:')
    for f in range(9): e(ldf(f, ' sc1', 12 + 4 * f))
    e(spin)
    e(f'v_max_u32 v{vT}, v12, v13')
    for r in range(14, 48, 2): e(f'v_max3_u32 v{vT}, v{vT}, v{r}, v{r+1}')
    e(f'v_cmp_eq_u32 vcc, -1, v{vT}\ns_cbranch_vccnz {L("fl")}')
    e(f's_barrier\nbuffer_inv sc1\ns_waitcnt vmcnt(0)\ns_barrier\ns_branch {L("in2")}')
    for nm, s, pend in fails:
        a.auto = False
        more = rdl(s) + (rdl(sPrD) if s == sPrd else [])
        c = 7 if s == sPrD else 6
        if s == sPrd:
            e(f'{L("xrp")}:'); stamp('ok', 41); rfin()
            e(f'buffer_store_dword v{vT}, v{vMst}, {WS}, s{sMst} offen{cs}')
            e(f's_waitcnt vmcnt({opt(abl, "xw", 5)})\ns_barrier\ns_branch {L("yrp")}')
        ok = L('xrp' if s == sPrd else nm)
        e(f'{L("f" + nm)}:')
        for k, n in enumerate(pend):
            e('\n'.join(more)); cnt(c)
            e(f's_waitcnt vmcnt({n + len(more) * (k + 1)})'); rsum(s); e(f's_cbranch_vccz {ok}')
        e(f'{L("l" + nm)}:'); e('\n'.join(more)); e(spin); cnt(c)
        e(f's_waitcnt vmcnt({len(more) * (len(pend) + 1) - 2})'); rsum(s); e(f's_cbranch_vccz {ok}\ns_branch {L("l" + nm)}')
        a.auto = True
    if w == DW:
        clr(); e(f'{L("flg")}:\n{ldfl}\n{spin}\ns_waitcnt lgkmcnt(0)\ns_branch {L("fc")}')
```

```python
from asmlib import *
from layout import *
from rec6 import S_WS, S_RA, S_RB, S_W, S_H, WS, srd, P_X, P_WQ, P_WK, P_WV, P_WO, P_WG, P_WU, P_WD, P_OUT, P_DBG, MF32, MF16, opt
S_G = 3
RA = f's[{S_RA}:{S_RA+3}]'; RB = f's[{S_RB}:{S_RB+3}]'
MF3 = 'v_mfma_f32_32x32x16_bf16'
L16, LN, LJ, LG, T0, T1, T2, T3 = 1, 2, 3, 4, 5, 6, 7, 8
(t0, t1, t2, t3, sSpin, sK, sA, sB, sC, sD, sE, sF_, sG_, sH_) = range(46, 60)
sFB = 75
sRing = 74
FIN = 'K_end'
SPIN = f's_sub_u32 s{sSpin}, s{sSpin}, 1\ns_cbranch_scc1 {FIN}'

WST = [None]
OPT = []
def wst(a, role, k):
    if opt(OPT, 'tp' + role) == str(k):
        for x in ('s_lshl_b64 exec, 1, s78', 'v_mov_b32 v0, s76', 's_mov_b64 exec, -1', 's_mov_b32 s78, s66', 's_memrealtime s[76:77]'): a.raw(x)
    if WST[0] and WST[0][0] == role and k < 9:
        lab = a.newlabel('ws')
        for x in (f's_cmp_eq_u32 s66, {WST[0][1]}', f's_cbranch_scc0 {lab}', f's_mem{"real" if "wr" in OPT else ""}time s[{76+2*k}:{77+2*k}]', f'{lab}:'): a.raw(x)
def cvt(d, x, y): return f'v_cvt_pk_bf16_f32 v{d}, v{x}, v{y}'

def arrive(a, v=5, n=0):
    lab = a.newlabel('arr')
    if n is not None: a.e(f's_waitcnt vmcnt({n})\ns_barrier')
    vq = list(a.vq)
    a.e(f'''s_cmp_eq_u32 s{S_W}, 0
    s_cbranch_scc0 {lab}
    s_getreg_b32 s28, hwreg(HW_REG_XCC_ID, 0, 3)
    s_cmp_eq_u32 s{sFB}, 0
    s_cselect_b32 s28, s28, s2
    s_lshl_b32 s28, s28, 2
    s_lshl_b32 s28, 1, s28
    s_lshr_b32 s29, s2, 3
    s_lshl_b32 s29, s29, 2
    v_mov_b32 v{v}, s28
    s_lshl_b32 s28, s{sFB}, 7
    s_add_u32 s29, s29, s28
    v_mov_b32 v{v+1}, s29
    s_mov_b64 exec, 1
    global_atomic_add v{v+1}, v{v}, s[{P_DBG}:{P_DBG+1}] sc1
    s_mov_b64 exec, -1
    {lab}:''')
    a.vq = vq

def gb_ld(a, v):
    a.e(f'''v_mbcnt_lo_u32_b32 v{v}, -1, 0
    v_and_b32 v{v}, 31, v{v}
    v_lshlrev_b32 v{v}, 2, v{v}
    v_lshl_add_u32 v{v}, s{sFB}, 7, v{v}
    global_load_dword v{v+1}, v{v}, s[{P_DBG}:{P_DBG+1}] sc1''')
def gbar(a, v, spin, ta, force=None, lds=None, nap=8):
    lab = a.newlabel('gb')
    a.e(f's_mov_b32 s{spin}, 0x40000\ns_mov_b32 s{ta}, 0x11111111')
    if lds is None: a.e(f's_branch {lab}_c')
    else: a.e(f's_cmp_eq_u32 s{S_W}, 0\ns_cbranch_scc0 {lab}_w\ns_branch {lab}_l')
    vq = list(a.vq)
    a.e(f'{lab}:\ns_sleep {nap}\n{lab}_l:')
    gb_ld(a, v)
    a.e(f'''s_sub_u32 s{spin}, s{spin}, 1
    s_cbranch_scc1 {FIN}
    s_waitcnt vmcnt(0)
    {lab}_c:
    v_mul_lo_u32 v{v+2}, v{v+1}, s{ta}
    v_cmp_le_i32 vcc, 0, v{v+2}
    s_cbranch_vccnz {lab}
    v_cmp_ne_u32 vcc, {'0' if force else f's{ta}'}, v{v+1}
    s_cmp_lg_u64 vcc, 0
    s_cselect_b32 s{ta}, 1, 0''')
    if lds is not None:
        a.e(f'''v_mov_b32 v{v}, {lds}
        v_mov_b32 v{v+1}, s{ta}
        ds_write_b32 v{v}, v{v+1}
        s_waitcnt lgkmcnt(0)
        {lab}_w:
        s_barrier
        v_mov_b32 v{v}, {lds}
        ds_read_b32 v{v+1}, v{v}
        s_waitcnt lgkmcnt(0)
        v_readfirstlane_b32 s{ta}, v{v+1}''')
    a.e(f's_cmp_gt_u32 s{ta}, s{sFB}\ns_cbranch_scc1 K_again')
    a.vq = vq

def w_init(a):
    e = a.e
    e(f'''v_and_b32 v{LN}, 63, v0
    v_lshlrev_b32 v{L16}, 4, v{LN}
    v_and_b32 v{LJ}, 15, v{LN}
    v_lshrrev_b32 v{LG}, 4, v{LN}''')
    e(f'''v_mov_b32 v12, -1
    v_mov_b32 v13, -1
    v_mov_b32 v14, -1
    v_mov_b32 v15, -1
    v_lshlrev_b32 v{T3}, 4, v0
    v_mov_b32 v9, {OOB}
    v_cmp_eq_u32 vcc, 0, v0
    v_cndmask_b32 v9, v9, 0, vcc
    v_mov_b32 v10, 0''')

def ring_fill(a, PS, n, g=None, far=False):
    e = a.e
    lab = a.newlabel('rf')
    e(f'''s_lshl_b32 s{t0}, {g or f's{S_G}'}, 22
    s_lshl_b32 s{t1}, s{sFB}, 27
    s_add_u32 s{sRing}, s{t0}, s{t1}
    s_add_u32 s{sRing}, s{sRing}, {RING}''')
    if not n: return
    e(f's_mul_i32 s{t0}, s{S_H}, {PS}\ns_add_u32 s{t0}, s{t0}, s{sRing}')
    if not far: e(f's_cmp_eq_u32 s{sFB}, 0\ns_cbranch_scc0 {lab}_f')
    for sc in ('', ' sc1')[far:]:
        vq = list(a.vq)
        for sl in range(2):
            for k in range(n):
                e(f's_add_u32 s{t1}, s{t0}, {sl*RSLOT + k*4096}\nbuffer_store_dwordx4 v[12:15], v{T3}, {WS}, s{t1} offen{sc}')
        if not sc:
            e(f's_branch {lab}\n{lab}_f:'); a.vq = vq
    e(f'{lab}:')

def touch(a, order='qkv'):
    e = a.e
    e(f'''s_sub_u32 s{t1}, s{S_G}, 4
    s_max_i32 s{t1}, s{t1}, 0
    s_lshl_b32 s{t2}, s{S_H}, 2
    s_add_u32 s{t1}, s{t1}, s{t2}
    s_lshl_b32 s{t1}, s{t1}, 12''')
    a.auto = False
    for m in order:
        srd(a, S_RB, {'q': P_WQ, 'k': P_WK, 'v': P_WV, 'o': P_WO}[m], 576 * 8192)
        for n in range(9): e(f's_add_u32 s{t2}, s{t1}, {n*128*4096}\nbuffer_load_dwordx4 v[24:27], v{T3}, {RB}, s{t2} offen')
    a.auto = True
    return 9 * len(order)

def ln1(a, tch):
    e = a.e
    X0 = 32
    F0 = 72
    srd(a, S_RA, P_X, 2048 * 1152)
    e(f'''s_mul_i32 s{t0}, s{S_H}, 3
    s_add_u32 s{t0}, s{t0}, s{S_G}
    s_sub_u32 s{t0}, s{t0}, 5
    s_mul_i32 s{t0}, s{t0}, 3
    s_add_u32 s{sK}, s{t0}, s{S_W}
    s_cmp_lt_u32 s{S_W}, 3
    s_cselect_b32 s{sK}, s{sK}, 256
    v_and_b32 v{T0}, 7, v{LN}
    v_lshrrev_b32 v{T1}, 3, v{LN}
    v_mul_u32_u24 v{T2}, 1152, v{T0}
    v_lshl_add_u32 v{T2}, v{T1}, 4, v{T2}
    s_mul_i32 s{t0}, s{sK}, {8*1152}''')
    for n in range(9): e(f'buffer_load_dwordx4 {vr(X0+4*n,4)}, v{T2}, {RA}, s{t0} offen offset:{n*128}')
    n = touch(a, tch)
    ring_fill(a, PS, 5)
    e(f'''s_cmp_lt_u32 s{sK}, 256
    s_cbranch_scc0 W_noln_b
    s_waitcnt vmcnt({10 + n})''')
    a.vq = []
    def red(r):
        e(f'''v_add_f32_dpp v{r}, v{r}, v{r} row_ror:8 row_mask:0xf bank_mask:0xf
        v_mov_b32 v17, v{r}
        v_permlane16_swap_b32 v{r}, v17
        v_add_f32 v{r}, v{r}, v17
        v_mov_b32 v17, v{r}
        v_permlane32_swap_b32 v{r}, v17
        v_add_f32 v{r}, v{r}, v17''')
    def unpack(src):
        for k in range(36):
            e(f'v_lshlrev_b32 v{F0+2*k}, 16, v{src+k}\nv_and_b32 v{F0+2*k+1}, 0xffff0000, v{src+k}')
    def rbf(r): e(f'v_cvt_pk_bf16_f32 v{r}, v{r}, v{r}\nv_lshlrev_b32 v{r}, 16, v{r}')
    unpack(X0)
    e(f'v_pk_add_f32 v[20:21], {vr(F0,2)}, {vr(F0+2,2)}')
    for k in range(2, 36): e(f'v_pk_add_f32 v[20:21], v[20:21], {vr(F0+2*k,2)}')
    e('v_add_f32 v16, v20, v21'); red(16)
    e(f'v_mul_f32 v16, {hex(f2u(-1/576))}, v16\nv_mov_b32 v18, 0\nv_mov_b32 v19, 0')
    for k in range(36):
        e(f'v_pk_add_f32 v[20:21], {vr(F0+2*k,2)}, v[16:17] op_sel_hi:[1,0]\nv_pk_fma_f32 v[18:19], v[20:21], v[20:21], v[18:19]')
    e('v_add_f32 v18, v18, v19'); red(18)
    e(f'v_mul_f32 v18, {hex(f2u(1/576))}, v18'); rbf(18)
    e(f'v_add_f32 v18, {hex(f2u(1e-5))}, v18'); rbf(18)
    e('v_sqrt_f32 v18, v18'); rbf(18)
    e('v_rcp_f32 v18, v18'); rbf(16)
    for k in range(36):
        e(f'v_pk_add_f32 v[20:21], {vr(F0+2*k,2)}, v[16:17] op_sel_hi:[1,0]\n' + cvt(X0+k, 20, 21))
    unpack(X0)
    for k in range(36):
        e(f'v_pk_mul_f32 v[20:21], {vr(F0+2*k,2)}, v[18:19] op_sel_hi:[1,0]\n' + cvt(X0+k, 20, 21))
    e(f'''v_lshlrev_b32 v{T2}, 4, v{T0}
    v_lshl_add_u32 v{T2}, v{T1}, 9, v{T2}
    s_lshr_b32 s{t0}, s{sK}, 2
    s_mul_i32 s{t0}, s{t0}, 36864
    s_and_b32 s{t1}, s{sK}, 1
    s_lshl_b32 s{t1}, s{t1}, 8
    s_add_u32 s{t0}, s{t0}, s{t1}
    s_and_b32 s{t1}, s{sK}, 2
    s_lshl_b32 s{t1}, s{t1}, 6
    s_add_u32 s{t0}, s{t0}, s{t1}
    s_add_u32 s{t0}, s{t0}, {XN}''')
    for n in range(9):
        e(f'buffer_store_dwordx4 {vr(X0+4*n,4)}, v{T2}, {WS}, s{t0} offen sc1\ns_add_u32 s{t0}, s{t0}, 4096')
    e('W_noln_b:')
    a.vq = []

import struct
def f2u(x): return struct.unpack('<I', struct.pack('<f', x))[0]

def qfrag(n): return ('a', 4 * n) if n < 64 else ('v', 224 + 4 * (n - 64))
def q_load(a):
    e = a.e
    e(f'''s_lshl_b32 s{sE}, s{S_H}, 6
    buffer_store_dword v10, v9, {WS}, s{sE} offen sc1
    s_cmp_ge_u32 s{S_W}, 2
    s_cselect_b32 s{S_RA}, s{P_WV}, s{P_WK}
    s_cselect_b32 s{S_RA+1}, s{P_WV+1}, s{P_WK+1}
    s_lshl_b32 s{t0}, s{S_H}, 1
    s_and_b32 s{t1}, s{S_W}, 1
    s_add_u32 s{sB}, s{t0}, s{t1}
    s_mov_b32 s{S_RA+2}, {576*8192}
    s_mov_b32 s{S_RA+3}, 0x20000
    v_lshrrev_b32 v{T0}, 3, v{LN}
    v_lshlrev_b32 v{T0}, 13, v{T0}
    v_and_b32 v{T1}, 7, v{LN}
    v_lshl_add_u32 v{T0}, v{T1}, 4, v{T0}
    s_lshl_b32 s{sA}, s{sB}, 7
    s_mul_i32 s{sD}, s{S_W}, {18*2048}''')
    e(f'''v_and_b32 v{T1}, 3, v{LJ}
    v_lshlrev_b32 v{T1}, 3, v{T1}
    v_and_b32 v{T2}, 1, v{LG}
    v_lshl_add_u32 v{T1}, v{T2}, 5, v{T1}
    v_lshrrev_b32 v{T2}, 1, v{LG}
    v_lshrrev_b32 v{T3}, 2, v{LJ}
    v_lshl_add_u32 v{T2}, v{T2}, 3, v{T3}
    v_lshl_add_u32 v{T1}, v{T2}, 7, v{T1}
    v_add_u32 v{T1}, s{sD}, v{T1}''')
    toks = {}
    def issue(n):
        for k in range(2):
            e(f's_add_u32 m0, s{sD}, {(n % 18)*2048 + k*1024}')
            e(f'buffer_load_dwordx4 v{T0}, {RA}, s{sA} offen lds')
            e(f's_add_u32 s{sA}, s{sA}, {8*8192}')
        toks[n] = a.mark_v()
    for n in range(18):
        issue(n)
        if n == 3: arrive(a, 16, 8)
    for n in range(36):
        a.wait_v(toks[n])
        for t in range(2):
            p, b = qfrag(2 * n + t)
            for u in range(2):
                e(f'ds_read_b64_tr_b16 {vr(b+2*u,2,p)}, v{T1} offset:{(n % 18)*2048 + t*64 + u*512}')
        if n + 18 < 36:
            e('s_waitcnt lgkmcnt(0)'); issue(n + 18)
    e('s_waitcnt lgkmcnt(0)')

def q_main(a):
    e = a.e
    XB = 32; NB = 8; PF = 4
    ACC = [64, 96]; OUT = 128
    vA, vS, vFl = T0, T1, 9
    e(f'''v_and_b32 v{vS}, 7, v{LN}
    v_lshrrev_b32 v{T2}, 4, v{LN}
    v_lshl_add_u32 v{vS}, v{T2}, 3, v{vS}
    v_lshlrev_b32 v{vS}, 4, v{vS}
    v_bfe_u32 v{T2}, v{LN}, 3, 1
    v_lshl_add_u32 v{vS}, v{T2}, 10, v{vS}''')
    OSTEP = 32 * 16384
    e(f'''s_mul_i32 s{t0}, s{S_W}, 9216
    s_add_u32 s{sA}, s{t0}, {XN}
    s_lshl_b32 s{t1}, s{sB}, 13
    s_lshr_b32 s{t2}, s{S_W}, 1
    s_lshl_b32 s{t2}, s{t2}, 11
    s_add_u32 s{t1}, s{t1}, s{t2}
    s_add_u32 s{sD}, s{t1}, {KVX - OSTEP}
    s_lshl_b32 s{sC}, s{S_H}, 2
    s_add_u32 s{sC}, s{sC}, s{S_W}
    s_lshl_b32 s{sC}, s{sC}, 10
    s_add_u32 s{sC}, s{sC}, {KV}''')
    def dma(n, m0base):
        return [f's_add_u32 m0, s{m0base}, {n*1024 - (n & 3)*1024}' if (n & 3) == 0 else None,
                f's_add_u32 s{t3}, s{sA}, {n*1024 - (n & 3)*1024}' if (n & 3) == 0 else None,
                f'buffer_load_dwordx4 v{L16}, {WS}, s{t3} offen offset:{(n & 3)*1024} sc1 lds']
    for b in range(2):
        e(f's_add_u32 s{t1}, s{t0}, {b*36864}')
        for n in range(9):
            for x in dma(n, t1):
                if x: e(x)
        e(f's_add_u32 s{sA}, s{sA}, 36864')
    e(f'''s_mov_b32 s{sK}, 0
    s_mov_b32 s{sH_}, 0
    v_mov_b32 v{vA}, v{L16}
    s_waitcnt vmcnt(9)
    s_barrier''')
    def rd(k): return f'ds_read_b128 {vr(XB + 4*(k % NB), 4)}, v{vA} offset:{(k % 36)*1024}'
    for k in range(PF): e(rd(k))
    e(f's_cmp_ge_u32 s{S_W}, 2\ns_cbranch_scc1 QV_loop')
    lq0 = list(a.lq)
    def epi(b, var):
        r = []
        for t in range(2):
            for c in range(2):
                q = ACC[b] + 16*t + 8*c
                r += [[cvt(OUT + 8*t + 4*c + k, *((q + k, q + 4 + k) if var == 'QK' else (q + 2*k, q + 2*k + 1))) for k in range(4)]]
                r += [[f'buffer_store_dwordx4 {vr(OUT + 8*t + 4*c, 4)}, v{vS}, {WS}, s{sD if t == 0 else t2} offen offset:{c*512} sc1']]
        return r
    for var in ('QK', 'QV'):
        a.lq = list(lq0); a.vq = []
        e(f'{var}_loop:')
        for b in range(2):
            fill = {k: [] for k in range(36)}
            fill[0] += [f's_add_u32 s{t2}, s{sD}, 4096', f's_add_u32 s{t1}, s{sH_}, {2*36864}', f's_cmp_ge_u32 s{t1}, {4*36864}',
                        f's_cselect_b32 s{t3}, {4*36864}, 0', f's_sub_u32 s{t1}, s{t1}, s{t3}', f's_add_u32 s{t1}, s{t1}, s{t0}']
            for n, x in enumerate(epi(1 - b, var)): fill[1 + n] += x
            fill[9] += [f'buffer_store_dwordx4 v[12:15], v{L16}, {WS}, s{sC} offen sc1', f's_add_u32 s{sC}, s{sC}, {32*4096}']
            for n in range(9): fill[10 + 2*n] += [x for x in dma(n, t1) if x]
            fill[28] += [f's_add_u32 s{sA}, s{sA}, 36864', f's_add_u32 s{sD}, s{sD}, {OSTEP}', f's_add_u32 s{sH_}, s{sH_}, 36864',
                         f's_cmp_ge_u32 s{sH_}, {4*36864}', f's_cselect_b32 s{sH_}, 0, s{sH_}', f'v_mov_b32 v10, s{sK}']
            fill[30] += ['s_waitcnt vmcnt(9)', 's_barrier', f'buffer_store_dword v10, v{vFl}, {WS}, s{sE} offen sc1', f's_add_u32 s{sK}, s{sK}, 1']
            for k in range(36):
                kk = 36 * b + k
                if k + PF == 36: e(f'v_add_u32 v{vA}, s{sH_}, v{L16}')
                e(rd(kk + PF))
                for t in range(2):
                    p, r = qfrag(2 * k + t)
                    W = vr(r, 4, p); X = vr(XB + 4 * (kk % NB), 4); D = vr(ACC[b] + 16 * t, 16)
                    e(f'{MF3} {D}, {W if var == "QK" else X}, {X if var == "QK" else W}, {"0" if k == 0 else D}')
                for x in fill[k]: e(x)
        e(f's_cmp_lt_u32 s{sK}, 64\ns_cbranch_scc1 {var}_loop')
        e(f's_add_u32 s{t2}, s{sD}, 4096')
        for x in epi(1, var):
            for y in x: e(y)
        if var == 'QK': e('s_branch Q_tail')
    e('Q_tail:')
    e(f'''v_mov_b32 v10, 128
    s_waitcnt vmcnt(0) lgkmcnt(0)
    s_barrier
    buffer_store_dword v10, v{vFl}, {WS}, s{sE} offen sc1''')
    a.vq = []

SEL, NEG = 24, 28
vPS, vP8, vRD, vRes, vXw, vZ, vTr, vMx = 10, 11, 12, 13, 14, 15, 16, 17
(sPW, sPR, sTask, sTW, sTR, sCnt) = range(61, 67)
import os
NA = 2; NF = 3
def red_setup(a, PS=PS):
    e = a.e
    e(f'''v_mov_b32 v{T0}, 0x3f80
    v_mov_b32 v{T1}, 0x3f800000
    v_and_b32 v{T2}, 1, v{LJ}
    v_cmp_eq_u32 vcc, 0, v{T2}
    v_cndmask_b32 v{T0}, v{T1}, v{T0}, vcc
    v_lshrrev_b32 v{T2}, 1, v{LJ}''')
    for q in range(4):
        e(f'v_cmp_eq_u32 vcc, {q}, v{T2}\nv_cndmask_b32 v{SEL+q}, 0, v{T0}, vcc')
    e(f'''v_lshrrev_b32 v{T0}, 1, v{LG}
    v_lshlrev_b32 v{vP8}, 4, v{LJ}
    v_lshl_add_u32 v{vP8}, v{T0}, 8, v{vP8}
    v_and_b32 v{T0}, 1, v{LG}
    v_lshl_add_u32 v{vP8}, v{T0}, 3, v{vP8}
    v_add_u32 v{vP8}, 4096, v{vP8}
    v_mul_u32_u24 v{vRD}, {PS}, v{LG}
    v_lshl_add_u32 v{vRD}, v{LJ}, 4, v{vRD}
    s_mul_i32 s{t1}, s{S_H}, {PS}
    s_add_u32 s{sPW}, s{sRing}, s{t1}
    s_mul_i32 s{t1}, s{S_W}, 4608
    s_add_u32 s{sPW}, s{sPW}, s{t1}
    s_lshl_b32 s{sTask}, s{S_W}, 5
    s_add_u32 s{sTask}, s{sTask}, s{S_H}
    s_lshl_b32 s{t1}, s{sTask}, 8
    s_add_u32 s{sPR}, s{sRing}, s{t1}
    s_mov_b32 s{sTW}, 0
    s_mov_b32 s{sCnt}, 0''')

def tagb(r): return f'v_bfi_b32 v{r}, 1, s{sTW}, v{r}'
def next_slot(a):
    a.e(f'''s_xor_b32 s{sPW}, s{sPW}, {RSLOT}
    s_mov_b32 s{sTR}, s{sTW}
    s_add_u32 s{sCnt}, s{sCnt}, 1
    s_lshr_b32 s{sTW}, s{sCnt}, 1''')
def proj_epi(u, W, sc, sPW=sPW):
    if u == 8:
        return [cvt(W + 32, W + 32, W + 33), cvt(W + 33, W + 34, W + 35), tagb(W + 32), tagb(W + 33), f'buffer_store_dwordx2 {vr(W+32,2)}, v{vP8}, {WS}, s{sPW} offen{sc}']
    if u & 1 == 0: return []
    r = W + 4 * (u - 1)
    return [cvt(r + k, r + 2*k, r + 2*k + 1) for k in range(4)] + [tagb(r + k) for k in range(4)] + [f'buffer_store_dwordx4 {vr(r,4)}, v{L16}, {WS}, s{sPW} offen offset:{(u >> 1)*1024}{sc}']

def red_ld(a, RD, PS=PS, off=0):
    for l in range(8):
        a.e(f's_add_u32 s{t0}, s{sPR}, {4*l*PS + off}\nbuffer_load_dwordx4 {vr(RD+4*l,4)}, v{vRD}, {WS}, s{t0} offen sc1')
def red_sum(a, RD, D, again):
    e = a.e
    for l in range(8):
        r = RD + 4 * l
        e(f'{MF32} {vr(D,4)}, {vr(SEL,4)}, {vr(r,4)}, {"0" if l == 0 else vr(D,4)}')
        for k in range(2): e(f'v_bitop3_b32 v{T2+k}, v{r+2*k}, v{r+2*k+1}, s{sTR} bitop3:0x7e')
        e(f'v_or_b32 v{vMx}, v{T2}, v{T3}' if l == 0 else f'v_or3_b32 v{vMx}, v{vMx}, v{T2}, v{T3}')
    e(f'v_and_b32 v{vMx}, 1, v{vMx}\nv_cmp_ne_u32 vcc, 0, v{vMx}\ns_cbranch_vccnz {again}')
RM = [16, 18, 20, 22, 24, 26, 32, 34]
def red_sum2(a, RD, D, again):
    e = a.e
    for l in range(8):
        r = RD + 4 * l
        e(f'{MF32} {vr(D,4)}, {vr(SEL,4)}, {vr(r,4)}, {"0" if l == 0 else vr(D,4)}')
        for k in range(2): e(f'v_bitop3_b32 v{T2+k}, v{r+2*k}, v{r+2*k+1}, s{sTR} bitop3:0x7e')
        if l > 1: e(f's_or_b64 s[36:37], s[{RM[l-1]}:{RM[l-1]+1}], s[{36 if l > 2 else RM[0]}:{37 if l > 2 else RM[0]+1}]')
        e(f'v_bitop3_b32 v{T2}, v{T2}, v{T3}, 1 bitop3:0xa8\nv_cmp_ne_u32 s[{RM[l]}:{RM[l]+1}], 0, v{T2}')
    e(f's_or_b64 s[36:37], s[36:37], s[{RM[7]}:{RM[7]+1}]\ns_cbranch_scc1 {again}')
def red_again(a, RD, PS, off, lab, back):
    a.e(f'{lab}:')
    for l in range(8):
        a.e(f'''s_cmp_lg_u64 s[{RM[l]}:{RM[l]+1}], 0
        s_cbranch_scc0 {lab}_{l}
        s_add_u32 s{t0}, s{sPR}, {4*l*PS + off}
        buffer_load_dwordx4 {vr(RD+4*l,4)}, v{vRD}, {WS}, s{t0} offen sc1
        {lab}_{l}:''')
    a.e(f'{SPIN}\ns_waitcnt vmcnt(0)\ns_branch {back}')
def red_fin(a, U, D, R):
    e = a.e
    e(cvt(D, D, D + 1)); e(cvt(D + 1, D + 2, D + 3))
    for k in range(2):
        e(f'''v_lshlrev_b32 v{U}, 16, v{D+k}
        v_and_b32 v{U+1}, 0xffff0000, v{D+k}
        v_lshlrev_b32 v{U+2}, 16, v{R+k}
        v_and_b32 v{U+3}, 0xffff0000, v{R+k}
        v_pk_add_f32 {vr(U,2)}, {vr(U,2)}, {vr(U+2,2)}''')
        e(cvt(D + k, U, U + 1))
    e(f'v_permlane16_swap_b32 v{D}, v{D+2}\nv_permlane16_swap_b32 v{D+1}, v{D+3}')
def tr_cols(a, rowexpr):
    a.e(rowexpr)
    a.e(f'''v_mul_u32_u24 v{T0}, 1152, v{T0}
    s_mul_i32 s{t0}, s{S_W}, 288
    v_add_u32 v{T0}, s{t0}, v{T0}
    v_and_b32 v{T1}, 3, v{LJ}
    v_lshl_add_u32 v{vTr}, v{T1}, 4, v{T0}
    v_lshl_add_u32 v{T3}, v{T1}, 3, v{T0}
    v_add_u32 v{T3}, 256, v{T3}''')

LA_Q, LA_O, LA_IM, LA_IK, LA_KV, LA_X = 0, 8192, 16384, 20480, 24576, 40960
def aq(n): return ('a', 144 + 4 * n) if n < 28 else ('v', 224 + 4 * (n - 28))
def a_load(a, st=None, order='oq', late=None):
    e = a.e
    ring_fill(a, PSA, 9)
    if late:
        arrive(a, 18); late()
    e('A_ld:')
    def arr(n, c):
        if n == 7 and c == order[0] and not late:
            e(f's_cmp_eq_u32 s{S_G}, 2\ns_cbranch_scc1 A_ld2')
            arrive(a, 18, 8)
            e('A_ld2:')
            if st: st()
    def lq():
        srd(a, S_RB, P_WQ, 576 * 8192)
        e(f'''v_lshlrev_b32 v{T0}, 2, v{LG}
        v_xor_b32 v{T0}, v{T0}, v{LJ}
        v_lshlrev_b32 v{T0}, 4, v{T0}
        v_lshl_add_u32 v{T0}, v{LG}, 13, v{T0}
        s_mul_i32 s{t1}, s{S_W}, 36864
        s_mul_i32 s{t0}, s{S_W}, {144*8192}
        s_lshl_b32 s{t2}, s{S_H}, 8
        s_add_u32 s{t0}, s{t0}, s{t2}''')
        for n in range(36):
            e(f's_add_u32 m0, s{t1}, {n*1024}\ns_add_u32 s{t2}, s{t0}, {n*4*8192}')
            e(f'buffer_load_dwordx4 v{T0}, {RB}, s{t2} offen lds')
            arr(n, 'q')
        e(f'''v_lshrrev_b32 v{T0}, 2, v{LJ}
        v_xor_b32 v{T1}, s{S_W}, v{T0}
        v_lshlrev_b32 v{T1}, 6, v{T1}
        v_lshl_add_u32 v{T1}, v{T0}, 8, v{T1}
        v_lshrrev_b32 v{T0}, 1, v{LG}
        v_lshl_add_u32 v{T1}, v{T0}, 11, v{T1}
        v_and_b32 v{T0}, 1, v{LG}
        v_lshl_add_u32 v{T1}, v{T0}, 5, v{T1}
        v_and_b32 v{T0}, 3, v{LJ}
        v_lshl_add_u32 v{T1}, v{T0}, 3, v{T1}
        s_waitcnt vmcnt(0)
        s_barrier''')
        for n in range(36):
            p, b = aq(n)
            for u in range(2): e(f'ds_read_b64_tr_b16 {vr(b + 2*u, 2, p)}, v{T1} offset:{(n % 12)*4096 + u*1024}')
            if n % 12 == 11: e(f'v_add_u32 v{T1}, {12*4096}, v{T1}')
    def lo():
        srd(a, S_RA, P_WO, 32 * 147456)
        e(f'''s_mul_i32 s{t0}, s{S_H}, 147456
        s_mul_i32 s{t1}, s{S_W}, 36864
        s_add_u32 s{t0}, s{t0}, s{t1}''')
        for n in range(36):
            if n & 3 == 0: e(f's_add_u32 m0, s{t1}, {n*1024}\ns_add_u32 s{t2}, s{t0}, {n*1024}')
            e(f'buffer_load_dwordx4 v{L16}, {RA}, s{t2} offen offset:{(n & 3)*1024} lds')
            arr(n, 'o')
        tr_cols(a, f'''v_lshrrev_b32 v{T0}, 1, v{LG}
        v_lshlrev_b32 v{T0}, 4, v{T0}
        v_and_b32 v{T1}, 1, v{LG}
        v_lshl_add_u32 v{T0}, v{T1}, 2, v{T0}
        v_lshrrev_b32 v{T1}, 2, v{LJ}
        v_add_u32 v{T0}, v{T0}, v{T1}''')
        e('s_waitcnt vmcnt(0)\ns_barrier')
        for kap in range(4):
            for u in range(9):
                for hh in range(2):
                    off = hh * 8 * 1152 + (0 if u == 8 else (u >> 1) * 64 + (u & 1) * 8)
                    e(f'ds_read_b64_tr_b16 {vr(16*u + 4*kap + 2*hh, 2, "a")}, v{T3 if u == 8 else vTr} offset:{off}')
            e(f'v_add_u32 v{vTr}, {32*1152}, v{vTr}\nv_add_u32 v{T3}, {32*1152}, v{T3}')
    for c in order:
        {'q': lq, 'o': lo}[c]()
        e('s_waitcnt lgkmcnt(0)')
        if c == order[0]: e('s_barrier')
    red_setup(a, PSA)

AKN, ABI, AQ, AK, AV, AS, AZ, AKV, AO, AOF, AW, AXB, ARD, AD, ARS = 28, 32, 40, 56, 88, 104, 116, 132, 56, 56, 140, 104, 148, 212, 220
vQw, vKw, vX, vPg, vHf, vOw = 14, 20, 21, 22, 23, 9
sSeg, sRdy, sProg, sFl, sPW2, sTwo, sE2 = range(67, 74)
sXd, sPnd, sStp, sStq = sK, 60, 30, 31
Z0 = 54
def a_dmx():
    r = []
    for n in range(9):
        x = f's_add_u32 m0, s{sC}, {n*1024}\n' + (f's_add_u32 s{t2}, s{t2}, 4096\n' if n else '') if n & 3 == 0 else ''
        r.append(x + f'buffer_load_dwordx4 v{L16}, {WS}, s{t2} offen offset:{(n & 3)*1024} sc1 lds')
    return r
def a_dma(a, tag):
    a.e(f'''{tag}_dm:
    s_cmp_gt_u32 s{sRdy}, s{sSeg}
    s_cbranch_scc0 {tag}_fl
    s_cmp_lt_u32 s{sSeg}, 64
    s_cselect_b32 s{t1}, s{sSeg}, 0x800
    s_lshl_b32 s{t0}, s{S_W}, 12
    s_add_u32 m0, s{t0}, {LA_KV}
    s_lshl_b32 s{t2}, s{t1}, 19
    s_add_u32 s{t2}, s{t2}, s{sA}
    s_lshl_b32 s{t1}, s{t1}, 17
    s_add_u32 s{sH_}, s{t1}, s{sD}''')
    return [f'buffer_load_dwordx4 v{L16}, {WS}, s{t2} offen offset:{n*1024} sc1 lds' for n in range(4)]
def a_flags(a, tag):
    a.vq = []; a.lq = []
    a.e(f'''{tag}_fl:
    buffer_load_dword v{vPg}, off, {WS}, s{sFl} sc1
    {SPIN}
    v_readfirstlane_b32 s{sRdy}, v{vPg}
    s_branch {tag}_dm''')

def a_init(a):
    e = a.e
    srd(a, S_RA, P_X, 2048 * 1152)
    e(f'''s_sub_u32 s{sSeg}, s{S_G}, 3
    s_cselect_b32 s{sSeg}, {opt(OPT, 'z0', Z0)}, s{sSeg}
    s_mov_b32 s{sStp}, 0
    s_mov_b32 s{sRdy}, 0
    s_mov_b32 s{sProg}, 0
    s_lshl_b32 s{sFl}, s{S_H}, 6
    s_mov_b32 s{sSpin}, 0x100000
    s_barrier
    s_lshl_b32 s{t0}, s{S_H}, 2
    s_add_u32 s{t0}, s{t0}, s{S_W}
    s_lshl_b32 s{sA}, s{t0}, 12
    s_add_u32 s{sA}, s{sA}, {KVX}
    s_mul_i32 s{sC}, s{S_W}, 9216
    s_add_u32 s{sB}, s{sC}, {XN}
    s_add_u32 s{sC}, s{sC}, {LA_X}
    s_lshl_b32 s{sD}, s{t0}, 10
    s_add_u32 s{sD}, s{sD}, {KV}''')
    e(f's_mul_i32 s{t2}, s{sSeg}, 36864\ns_add_u32 s{sB}, s{sB}, s{t2}\ns_mov_b32 s{t2}, s{sB}')
    e('\n'.join(a_dmx()))
    e(f's_mov_b32 s{sXd}, 36864\ns_mov_b32 s{sPnd}, 0')
    e('\n'.join(a_dma(a, 'AI')))
    e(f'''s_mul_i32 s{sE}, s{sSeg}, 36864
    s_lshl_b32 s{t1}, s{sTask}, 8
    s_add_u32 s{sF_}, s{sE}, s{t1}
    s_add_u32 s{sF_}, s{sF_}, {H}
    s_lshl_b32 s{t1}, s{sTask}, 4
    s_add_u32 s{sE}, s{sE}, s{t1}
    s_add_u32 s{sE2}, s{sE}, {18432 + 56*16}
    s_cmp_ge_u32 s{sTask}, 72
    s_cselect_b32 s{t1}, {18432 - 72*16}, 0
    s_add_u32 s{sE}, s{sE}, s{t1}
    s_cmp_lt_u32 s{sTask}, 16
    s_cselect_b32 s{sTwo}, 1, 0
    s_cselect_b32 s{sE2}, s{sE2}, {OOB}
    v_mul_u32_u24 v{vRes}, 1152, v{LJ}
    v_lshl_add_u32 v{vRes}, v{LG}, 3, v{vRes}
    v_mov_b32 v{T0}, {OOB}
    v_cmp_gt_u32 vcc, 2, v{LG}
    v_cndmask_b32 v{vRes}, v{T0}, v{vRes}, vcc
    v_cmp_eq_u32 vcc, 0, v{LG}
    v_cndmask_b32 v{vPS}, v{T0}, v{L16}, vcc
    s_lshl_b32 s{t0}, s{S_W}, 10
    v_add_u32 v{vTr}, s{t0}, v{L16}
    v_add_u32 v{vX}, {LA_X}, v{L16}
    s_lshl_b32 s{t0}, s{S_W}, 11
    v_add_u32 v{vOw}, s{t0}, v{L16}''')
    e(f'''v_and_b32 v{vQw}, 7, v{LN}
    v_lshl_add_u32 v{vQw}, v{LG}, 3, v{vQw}
    v_lshlrev_b32 v{vQw}, 4, v{vQw}
    v_bfe_u32 v{T2}, v{LN}, 3, 1
    v_lshl_add_u32 v{vQw}, v{T2}, 10, v{vQw}
    v_add_u32 v{vQw}, s{t0}, v{vQw}
    s_lshr_b32 s{t3}, s{S_W}, 1
    s_lshl_b32 s{t0}, s{t3}, 10
    v_add_u32 v{vHf}, s{t0}, v{L16}''')
    e(f'''v_lshrrev_b32 v{T1}, 2, v{LJ}
    v_mul_u32_u24 v{vKw}, 144, v{T1}
    v_lshl_add_u32 v{vKw}, v{LG}, 5, v{vKw}
    v_and_b32 v{T0}, 3, v{LJ}
    v_lshl_add_u32 v{vKw}, v{T0}, 2, v{vKw}
    s_mul_i32 s{t0}, s{S_W}, 576
    s_add_u32 s{t0}, s{t0}, {LA_IK}
    v_add_u32 v{vKw}, s{t0}, v{vKw}
    v_mul_u32_u24 v{vZ}, 144, v{LG}
    v_lshl_add_u32 v{vZ}, v{T1}, 5, v{vZ}
    v_and_b32 v{T0}, 1, v{LJ}
    v_lshl_add_u32 v{vZ}, v{T0}, 4, v{vZ}''')
    e(f'''s_lshl_b32 s{t1}, s{t3}, 4
    v_add_u32 v{T0}, s{t1}, v{LJ}
    v_lshlrev_b32 v{T1}, 2, v{LG}
    v_sub_u32 v{T0}, v{T0}, v{T1}
    v_mov_b32 v{T1}, {hex(f2u(-1e30))}
    v_mov_b32 v18, 0''')
    for T in range(2):
        for p in range(4):
            e(f'v_cmp_le_i32 vcc, {16*T + p}, v{T0}\nv_cndmask_b32 v{ABI + 4*T + p}, v{T1}, 0, vcc')
    e(f'''s_and_b32 s{t0}, s{S_W}, 1
    s_lshl_b32 s{t1}, s{t0}, 13
    v_add_u32 v{LN}, s{t1}, v{L16}
    s_lshl_b32 s{t1}, s{t0}, 11
    v_add_u32 v{LJ}, s{t1}, v{L16}
    s_mov_b32 s{sG_}, 0x3e0293ee
    s_waitcnt vmcnt(0)''')

def a_loop(a, tag, sc):
    b = Asm(); b.uid = 20000
    w_ = WST[0]; WST[0] = None
    a_body(b, tag, sc, [])
    WST[0] = w_
    a_body(a, tag, sc, b.endq)
def a_body(a, tag, sc, vq0):
    e = a.e
    sa = opt(OPT, 'sa', 4); z0 = int(opt(OPT, 'z0', Z0)); hf = 'nh' not in OPT
    assert z0 % 3 == 0 and z0 <= 60
    a.lq = []; a.vq = []
    P = AZ; PM = 18
    vV, vVm = LN, LJ
    def rld(k):
        return [f's_add_u32 s{t0}, s{sPR}, {4*l*PSA + 32768*k}\nbuffer_load_dwordx4 {vr(ARD + 32*k + 4*l, 4)}, v{vRD}, {WS}, s{t0} offen sc1' for l in range(8)]
    rare = []
    def rsum(tg, k):
        if k: e(f's_cmp_eq_u32 s{sTwo}, 0\ns_cbranch_scc1 {tg}_e')
        e(f'{tg}_s{k}:')
        a.vq = []
        (red_sum2 if tg[-1] == 'b' else red_sum)(a, ARD + 32*k, AD + 4*k, f'{tg}_r{k}')
        red_fin(a, ARD + 32*k, AD + 4*k, ARS + 2*k)
        if k: e(f's_add_u32 s{t0}, s{sF_}, 32768')
        e(f'buffer_store_dwordx4 {vr(AD + 4*k, 4)}, v{vPS}, {WS}, s{t0 if k else sF_} offen sc1')
        if not k: wst(a, tag, 9)
        rare.append((tg, k))
        if k:
            e(f'{tg}_e:')
            for r in (sE, sE2, sF_): e(f's_add_u32 s{r}, s{r}, s{sStq}')
            e(f's_xor_b32 s{sPR}, s{sPR}, {RSLOT}')
        a.vq = []
    NB = 8; PF = 5
    def rd(k): return f'ds_read_b128 {vr(AXB + 4*(k % NB), 4)}, v{vX} offset:{k*1024}'
    e(f'{tag}_in:\nv_mov_b32 v{vPg}, 0\ns_barrier')
    for k in range(PF): e(rd(k))
    e(f'{tag}_loop:')
    a.vq = list(vq0)
    wst(a, tag, 0)
    kv = [f'ds_read_b128 {vr(AK + 4*n, 4)}, v{L16} offset:{LA_KV + (n >> 1)*4096 + (n & 1)*1024}' for n in range(8)]
    kv += [f'ds_read_b128 {vr(AV + 4*n, 4)}, v{vV} offset:{LA_KV + (n >> 1)*4096 + 2048 + (n & 1)*1024}' for n in range(4)]
    dx = a_dmx()
    for k in range(36):
        if k + PF < 36: e(rd(k + PF))
        p, r = aq(k)
        e(f'{MF3} {vr(AQ,16)}, {vr(r, 4, p)}, {vr(AXB + 4*(k % NB), 4)}, {"0" if k == 0 else vr(AQ,16)}')
        if k & 1 and kv: e(kv.pop(0))
        if k == 0: e(f's_mul_i32 s{sStq}, s{sStp}, 36864\ns_cmp_lt_u32 s{sSeg}, {z0 - 2}\ns_cselect_b32 s{sStp}, 2, 3\n' + (f's_cmp_eq_u32 s{sSeg}, 61\ns_cselect_b32 s{sStp}, 2, s{sStp}\n' if hf else '') + f's_mul_i32 s{t2}, s{sStp}, 36864\ns_add_u32 s{sB}, s{sB}, s{t2}')
        if k == 1: e(f's_add_u32 s{sC}, s{sC}, s{sXd}\ns_add_u32 s{t2}, s{sSeg}, s{sStp}\ns_cmp_lt_u32 s{t2}, 64\ns_cselect_b32 s{t2}, s{sB}, {OOB}')
        if k == 2: e(f'v_readfirstlane_b32 s{sProg}, v{vPg}')
        if k == 3: e(f'''s_cmp_gt_u32 s{sProg}, s{sSeg}
            s_cselect_b32 s{t0}, s{sH_}, {OOB}
            buffer_load_dwordx4 {vr(AKN,4)}, v{L16}, {WS}, s{t0} offen sc1''')
        if k >= 4 and k % 3 == 1 and dx: e(dx.pop(0))
        if k == 32: e(f'v_add_u32 v{vX}, s{sXd}, v{vX}\ns_sub_u32 s{sXd}, 0, s{sXd}')
    assert not dx
    wst(a, tag, 1)
    for c in range(2):
        q = AQ + 8 * c
        for k in range(4): e(cvt(q + k, q + k, q + 4 + k))
        e(f'ds_write_b128 v{vQw}, {vr(q,4)} offset:{LA_Q + c*512}')
    e('s_waitcnt lgkmcnt(0)\ns_barrier')
    wst(a, tag, 2)
    for kap in range(4): e(f'ds_read_b128 {vr(AQ + 4*kap, 4)}, v{vHf} offset:{LA_Q + kap*2048}')
    e(f's_cmp_gt_u32 s{sProg}, s{sSeg}\ns_cbranch_scc0 {tag}_wt')
    a.waitfor({f'v{AKN}'})
    e(f'''{tag}_chk:
    v_max3_u32 v{vMx}, v{AKN}, v{AKN+1}, v{AKN+2}
    v_max_u32 v{vMx}, v{vMx}, v{AKN+3}
    v_cmp_eq_u32 vcc, -1, v{vMx}
    s_cbranch_vccnz {tag}_pollk
    ds_write2_b32 v{vKw}, v{AKN}, v{AKN+2} offset0:0 offset1:4
    ds_write_b128 v{vTr}, {vr(AKN,4)} offset:{LA_IM}
    s_add_u32 s{sSeg}, s{sSeg}, s{sStp}''')
    tok = a.mark_l()
    wst(a, tag, 3)
    sc_ = [f'{MF32} {vr(AS + 4*T, 4)}, {vr(AK + 8*kap + 4*T, 4)}, {vr(AQ + 4*kap, 4)}, {vr((ABI if kap == 0 else AS) + 4*T, 4)}' for kap in range(4) for T in range(2)]
    for x in sc_[:3]: e(x)
    e(f's_cmp_lg_u32 s{sTwo}, 0\ns_cselect_b64 vcc, -1, 0\ns_cmp_eq_u32 s{sPnd}, 0')
    a.wait_l(tok); e('s_barrier')
    zr = [f'ds_read_b128 {vr(AZ + 4*kap, 4)}, v{vZ} offset:{LA_IK + kap*576}' for kap in range(4)]
    zr += [f'ds_read_b128 {vr(AKV + 4*kap, 4)}, v{vVm} offset:{LA_IM + kap*1024}' for kap in range(2)]
    e(zr.pop(0))
    for x in sc_[3:]: e(zr.pop(0)); e(x)
    e(f's_cbranch_scc0 {tag}_sp')
    lq = list(a.lq)
    Tm = AS + 8
    m_, t_ = T0, T1
    Y = []
    def y(x): Y.extend(x.split('\n'))
    mx = [f'v_max3_f32 v{m_}, v{AS}, v{AS+1}, v{AS+2}', f'v_max3_f32 v{m_}, v{m_}, v{AS+3}, v{AS+4}', f'v_max3_f32 v{m_}, v{m_}, v{AS+5}, v{AS+6}', f'v_max_f32 v{m_}, v{m_}, v{AS+7}']
    y('#')
    for kap in range(4):
        y(f'{MF32} {vr(Tm,4)}, {vr(AZ + 4*kap, 4)}, {vr(AQ + 4*kap, 4)}, {"0" if kap == 0 else vr(Tm,4)}')
        y('#' if kap in (0, 3) else '\n'.join(mx[2*kap-2:2*kap]))
    def xl(op):
        y(f'''v_mov_b32 v{t_}, v{m_}
        #
        v_permlane32_swap_b32 v{m_}, v{t_}
        {op} v{m_}, v{m_}, v{t_}
        v_mov_b32 v{t_}, v{m_}
        #
        v_permlane16_swap_b32 v{m_}, v{t_}
        {op} v{m_}, v{m_}, v{t_}''')
    y(f'v_max3_f32 v{m_}, v{m_}, v{Tm}, v{Tm+1}')
    xl('v_max_f32')
    y(f'v_mul_f32 v{T1}, s{sG_}, v{m_}\n#')
    for r in range(AS, AS + 10, 2): y(f'v_pk_fma_f32 {vr(r,2)}, {vr(r,2)}, s[{sG_}:{sG_+1}], {vr(T1,2)} op_sel_hi:[1,0,0] neg_lo:[0,0,1] neg_hi:[0,0,1]')
    for r in range(AS, AS + 10): y(f'v_exp_f32 v{r}, v{r}' + ('\n#' if (r - AS) % 4 == 1 else ''))
    for k in range(4): y(cvt(P + k, AS + 2*k, AS + 2*k + 1))
    y(cvt(PM + 1, Tm, Tm + 1))
    sm = [f'v_pk_add_f32 {vr(Tm+2,2)}, {vr(AS,2)}, {vr(AS+2,2)}'] + [f'v_pk_add_f32 {vr(Tm+2,2)}, {vr(Tm+2,2)}, {vr(r,2)}' for r in range(AS + 4, AS + 10, 2)]
    y(sm.pop(0))
    for n in range(4):
        y(f'{MF32} {vr(AO + 4*n, 4)}, {vr(AV + 4*n, 4)}, {vr(P,4)}, 0')
        y(sm.pop(0) if sm else f'v_add_f32 v{m_}, v{Tm+2}, v{Tm+3}')
    for n in range(4): y(f'{MF16} {vr(AO + 4*n, 4)}, {vr(AKV + 2*n, 2)}, {vr(PM,2)}, {vr(AO + 4*n, 4)}')
    xl('v_add_f32')
    y(f'v_rcp_f32 v{T1}, v{m_}')
    for h in range(2):
        for n in range(4):
            r = AO + 8*h + 2*n
            y(f'v_pk_mul_f32 {vr(r,2)}, {vr(r,2)}, {vr(T1,2)} op_sel_hi:[1,0]')
        for n in range(4): y(cvt(AO + 8*h + n, AO + 8*h + 2*n, AO + 8*h + 2*n + 1))
        y(f'ds_write_b128 v{vOw}, {vr(AO + 8*h, 4)} offset:{LA_O + h*1024}')
    def soft(rl):
        a.lq = list(lq); a.vq = []
        wst(a, tag, 4)
        for x in Y:
            if x.strip() != '#': e(x)
            elif rl: e(rl.pop(0))
        assert not rl
        wst(a, tag, 5)
    soft([])
    e(f'{tag}_jn:')
    a.vq = []
    dm = a_dma(a, tag)
    res = [f'buffer_load_dwordx2 {vr(ARS + 2*k, 2)}, v{vRes}, {RA}, s{(sE, sE2)[k]} offen' for k in range(2)]
    if hf: e(f'''s_cmp_eq_u32 s{sSeg}, 66
    s_cselect_b32 s{t0}, s{S_G}, 2
    s_cmp_lg_u32 s{t0}, 2
    s_cselect_b32 s{t0}, 4096, 0
    v_add_u32 v{T0}, s{t0}, v{L16}
    s_cselect_b32 s{t0}, 18432, 0
    s_add_u32 s{sE}, s{sE}, s{t0}
    s_add_u32 s{sF_}, s{sF_}, s{t0}''')
    e(f's_add_u32 s{sPW2}, s{sPW}, 18432\ns_mov_b32 s{sPnd}, 1\ns_waitcnt lgkmcnt(0)\ns_barrier')
    wst(a, tag, 6)
    for n in range(8): e(f'ds_read_b128 {vr(AOF + 4*n, 4)}, v{T0 if hf else L16} offset:{LA_O + n*1024}')
    e(dm.pop(0))
    pend = []
    nx = [rd(k) for k in range(PF)]
    for h in range(2):
        W = AW + 36 * h
        for grp in ((0, 1, 2), (3, 4, 5), (6, 7, 8)):
            if h == 1 and grp[0] == 3: e(f's_cmp_lt_u32 s{sSeg}, 64\ns_cselect_b32 s{t0}, 0, {OOB}\nbuffer_load_dword v{vPg}, off, {WS}, s{t0} offset:{PROG} sc1')
            for kap in range(4):
                for u in grp:
                    e(f'{MF32} {vr(W + 4*u, 4)}, {vr(16*u + 4*kap, 4, "a")}, {vr(AOF + 16*h + 4*kap, 4)}, {"0" if kap == 0 else vr(W + 4*u, 4)}')
                    if kap >= 1:
                        for x in pend[:2]: e(x)
                        pend = pend[2:]
                    if dm and u == 2:
                        e(dm.pop(0)); tokd = a.mark_v()
                    if res and u == 0: e(res.pop(0))
                    if (h, kap, u) == (1, 2, 6): a.wait_v(tokd); e('s_barrier')
                    elif (h, grp[0]) == (1, 6) and kap >= 2: e(nx.pop(0))
            for u in grp: pend += proj_epi(u, W, sc, (sPW, sPW2)[h])
            if (h, grp[0]) == (0, 6) and hf: pend[-1] += f'\ns_cmp_eq_u32 s{sSeg}, 66\ns_cbranch_scc1 {tag}_hf'
    assert not nx
    for x in pend: e(x)
    e(f'{tag}_hf:')
    wst(a, tag, 7)
    next_slot(a)
    er = opt(OPT, 'er', z0 + 1)
    e(f's_cmp_lt_u32 s{sSeg}, {er}\ns_cbranch_scc1 {tag}_loop\ns_mul_i32 s{sStq}, s{sStp}, 36864')
    a.endq = list(a.vq)
    if hf: e(f's_cmp_eq_u32 s{sSeg}, 66\ns_cselect_b32 s{sTwo}, 0, s{sTwo}\ns_cselect_b32 s{t0}, s{sTask}, 0\ns_cmp_ge_u32 s{t0}, 72\ns_cbranch_scc1 {FIN}')
    a.lq = []; a.vq = []
    e(f'{tag}_wx:')
    e('\n'.join(rld(0)))
    e(f's_cmp_eq_u32 s{sTwo}, 0\ns_cbranch_scc1 {tag}_n2')
    e('\n'.join(rld(1)))
    akn = f'''v_readfirstlane_b32 s{sProg}, v{vPg}
    s_cmp_gt_u32 s{sProg}, s{sSeg}
    s_cselect_b32 s{t0}, s{sH_}, {OOB}
    buffer_load_dwordx4 {vr(AKN,4)}, v{L16}, {WS}, s{t0} offen sc1'''
    e(f'{tag}_n2:\ns_mov_b32 s{sPnd}, 0')
    if 'wq' in OPT: e(f'buffer_load_dword v{vPg}, off, {WS}, 0 offset:{PROG} sc1\ns_waitcnt vmcnt(1)')
    else: e('s_waitcnt vmcnt(0)\n' + akn)
    rsum(tag + 'b', 0)
    if WST[0] and WST[0][0] == tag: WST[0][1] += 1
    wst(a, tag, 8)
    if WST[0] and WST[0][0] == tag: WST[0][1] -= 1
    rsum(tag + 'b', 1)
    e(f'''s_cmp_lt_u32 s{sSeg}, 64
    s_cbranch_scc0 {FIN}
    s_cmp_lt_u32 s{sSeg}, {er}
    s_cbranch_scc0 {tag}_loop''')
    if 'wq' in OPT: e(f'''s_waitcnt vmcnt(2)
    s_cmp_eq_u32 s{sTwo}, 0
    s_cbranch_scc0 {tag}_n3
    s_waitcnt vmcnt(1)
    {tag}_n3:
    v_readfirstlane_b32 s{sProg}, v{vPg}
    {tag}_wt:
    s_cmp_eq_u32 s{sPnd}, 0
    s_cbranch_scc0 {tag}_wx''')
    else: e(f'''s_cmp_gt_u32 s{sProg}, s{sSeg}
    s_cbranch_scc0 {tag}_pollk
    s_waitcnt vmcnt(2)
    s_cmp_eq_u32 s{sTwo}, 0
    s_cbranch_scc0 {tag}_chk
    s_waitcnt vmcnt(1)
    s_branch {tag}_chk
    {tag}_wt:
    s_cmp_eq_u32 s{sPnd}, 0
    s_cbranch_scc1 {tag}_pollk
    buffer_load_dword v{vPg}, off, {WS}, 0 offset:{PROG} sc1
    s_branch {tag}_wx''')
    e(f'''{tag}_pollk:
    {SPIN}
    s_cmp_ge_u32 s{sSeg}, {opt(OPT, 'dp', 61)}
    s_cbranch_scc1 {tag}_pk
    s_cmp_gt_u32 s{sProg}, s{sSeg}
    s_cbranch_scc1 {tag}_pk
    buffer_load_dword v{vPg}, off, {WS}, 0 offset:{PROG} sc1
    s_waitcnt vmcnt(0)
    v_readfirstlane_b32 s{sProg}, v{vPg}
    s_cmp_gt_u32 s{sProg}, s{sSeg}
    s_cbranch_scc1 {tag}_pk
    s_cmp_ge_u32 s{sProg}, {opt(OPT, 'ns', 63)}
    s_cbranch_scc1 {tag}_pollk
    s_sleep {sa}
    s_branch {tag}_pollk
    {tag}_pk:
    buffer_load_dwordx4 {vr(AKN,4)}, v{L16}, {WS}, s{sH_} offen sc1
    s_waitcnt vmcnt(0)
    s_branch {tag}_chk''')
    e(f'{tag}_sp:')
    soft([f'{x}\ns_cbranch_vccz {tag}_q{n}\n{z}\n{tag}_q{n}:' for n, (x, z) in enumerate(zip(rld(0), rld(1)))])
    e('s_waitcnt vmcnt(0)')
    rsum(tag + 'a', 0)
    rsum(tag + 'a', 1)
    e(f's_branch {tag}_jn')
    for tg, k in rare:
        if tg[-1] == 'b':
            red_again(a, ARD + 32*k, PSA, 32768 * k, f'{tg}_r{k}', f'{tg}_s{k}'); continue
        e(f'{tg}_r{k}:')
        red_ld(a, ARD + 32*k, PSA, 32768 * k); e(SPIN)
        e(f's_waitcnt vmcnt(0)\ns_branch {tg}_s{k}')
    a_flags(a, tag)

def gfrag(q, k):
    n = 4 * k + q if q < 4 else 72 + k
    return vr(4 * n, 4, 'a') if n < 64 else vr(188 + 4 * (n - 64), 4)
def gparts(q, k):
    n = 4 * k + q if q < 4 else 72 + k
    return ('a', 4 * n) if n < 64 else ('v', 188 + 4 * (n - 64))
FD16, FDR, FCS = 170, 122, 102
LF_H = 0; LF_ACT = 18432; LF_SH = 22528; LF_W = 26624; LF_WSTR = 24576
LF_ST = 124928; LF_Z = LF_ST + 512; LF_X = 0x20000
FLT = [1, 2, 4, 5, 7, 8]
def f_load(a):
    e = a.e
    red_setup(a)
    srd(a, S_RA, P_WD, 4608 * 1152)
    tr_cols(a, f'v_lshrrev_b32 v{T0}, 2, v{LJ}\nv_lshl_add_u32 v{T0}, v{LG}, 2, v{T0}')
    e(f's_mul_i32 s{sA}, s{S_H}, {144*1152}')
    for rnd, (row0, nk) in enumerate(((0, 27), (96, 14))):
        e(f's_mul_i32 s{t1}, s{S_W}, {nk*1024}\ns_add_u32 s{t0}, s{sA}, s{t1}\ns_add_u32 s{t0}, s{t0}, {row0*1152}')
        for n in range(nk):
            if n & 3 == 0: e(f's_add_u32 m0, s{t1}, {n*1024}\ns_add_u32 s{t2}, s{t0}, {n*1024}')
            e(f'buffer_load_dwordx4 v{L16}, {RA}, s{t2} offen offset:{(n & 3)*1024} lds')
        e('s_waitcnt vmcnt(0)\ns_barrier')
        for kap in ((0, 1, 2), (3, 4))[rnd]:
            for u in range(9):
                col = 0 if u == 8 else (u >> 1) * 64 + (u & 1) * 8
                ad = T3 if u == 8 else vTr
                if kap == 4:
                    e(f'ds_read_b64_tr_b16 {vr(FD16 + 2*u, 2)}, v{ad} offset:{col}')
                else:
                    p, b = ('v', FDR + 16*(u // 3) + 4*kap) if u % 3 == 0 else ('a', 16*FLT.index(u) + 4*kap)
                    for hh in range(2):
                        e(f'ds_read_b64_tr_b16 {vr(b + 2*hh, 2, p)}, v{ad} offset:{col + hh*16*1152}')
            d = -64 * 1152 if kap == 2 else 32 * 1152
            e(f'v_add_u32 v{vTr}, {d}, v{vTr}\nv_add_u32 v{T3}, {d}, v{T3}')
        e('s_waitcnt lgkmcnt(0)\ns_barrier')
    e(f's_mul_i32 s{t0}, s{S_W}, {LF_WSTR}\ns_add_u32 s{t0}, s{t0}, {LF_W}\nv_add_u32 v{vXw}, s{t0}, v{L16}')
    for n in range(24): e(f'ds_write_b128 v{vXw}, {vr(4*n, 4, "a")} offset:{n*1024}')
    e('s_waitcnt lgkmcnt(0)')
    srd(a, S_RA, P_WG, 576 * 9216); srd(a, S_RB, P_WU, 576 * 9216)
    NS = 7
    e(f'''s_mul_i32 s{sB}, s{S_W}, 6144
    s_lshl_b32 s{sC}, s{S_W}, 13
    s_add_u32 s{sC}, s{sC}, {LF_W + 4*LF_WSTR}
    v_lshrrev_b32 v{T0}, 2, v{LN}
    v_mul_u32_u24 v{T0}, 9216, v{T0}
    v_and_b32 v{T1}, 3, v{LN}
    v_lshl_add_u32 v{T0}, v{T1}, 4, v{T0}
    v_lshrrev_b32 v{T2}, 1, v{LN}
    v_mul_u32_u24 v{T2}, 9216, v{T2}
    v_and_b32 v{T3}, 1, v{LN}
    v_lshl_add_u32 v{T2}, v{T3}, 4, v{T2}
    s_mul_i32 s{sD}, s{S_H}, 288
    s_lshl_b32 s{t0}, s{S_W}, 6
    s_add_u32 s{sA}, s{sD}, s{t0}
    s_and_b32 s{t0}, s{S_W}, 1
    s_mul_i32 s{t0}, s{t0}, {288*9216}
    s_add_u32 s{sD}, s{sD}, s{t0}
    s_add_u32 s{sD}, s{sD}, 256''')
    e(f'''v_lshrrev_b32 v{T3}, 2, v{LJ}
    v_lshl_add_u32 v{T3}, v{LG}, 3, v{T3}
    v_lshlrev_b32 v{T1}, 3, v{T1}
    v_lshl_add_u32 v32, v{T3}, 6, v{T1}
    v_lshl_add_u32 v33, v{T3}, 5, v{T1}
    v_add_u32 v34, s{sC}, v32
    v_add_u32 v35, s{sC}, v33
    v_add_u32 v32, s{sB}, v32
    v_add_u32 v33, s{sB}, v33''')
    blocks = [(m, k) for k in range(18) for m in range(2)] + [(2, k) for k in range(0, 9, 2)]
    toks = {}
    def slot(n):
        s = n % NS
        return (0, s * 2048) if s < 3 else (1, (s - 3) * 2048)
    def issue(n):
        m, k = blocks[n]; hi, off = slot(n)
        if m == 2 and k == 0:
            e(f'''s_cmp_ge_u32 s{S_W}, 2
            s_cselect_b32 s{S_RA}, s{P_WU}, s{P_WG}
            s_cselect_b32 s{S_RA+1}, s{P_WU+1}, s{P_WG+1}''')
        for hh in range(2):
            if m == 2 and k + hh > 8: continue
            e(f's_add_u32 m0, s{sC if hi else sB}, {off + hh*1024}')
            if m < 2:
                e(f's_add_u32 s{t0}, s{sA}, {(32*k + 16*hh)*9216}\nbuffer_load_dwordx4 v{T0}, {RB if m else RA}, s{t0} offen lds')
            else:
                e(f's_add_u32 s{t0}, s{sD}, {32*(k + hh)*9216}\nbuffer_load_dwordx4 v{T2}, {RA}, s{t0} offen lds')
        toks[n] = a.mark_v()
    for n in range(NS): issue(n)
    for n, (m, k) in enumerate(blocks):
        hi, off = slot(n)
        a.wait_v(toks[n])
        for t in range(2):
            if m == 2 and k + t > 8: continue
            p, b = gparts(2 * m + t, k) if m < 2 else gparts(4, k + t)
            for u in range(2):
                if m < 2: e(f'ds_read_b64_tr_b16 {vr(b + 2*u, 2, p)}, v{32 + 2*hi} offset:{off + t*32 + u*256}')
                else: e(f'ds_read_b64_tr_b16 {vr(b + 2*u, 2, p)}, v{33 + 2*hi} offset:{off + t*1024 + u*128}')
        e('s_waitcnt lgkmcnt(0)')
        if n + NS < len(blocks): issue(n + NS)
    for k in range(4): e(f'v_mov_b32 v{32+k}, 0x3f803f80')
    for k in range(18):
        for q in range(5):
            if q == 4 and k >= 9: continue
            e(f'{MF32} {vr(FCS + 4*q, 4)}, {gfrag(q, k)}, v[32:35], {"0" if k == 0 else vr(FCS + 4*q, 4)}')

sPend, sX5, sM0, sWb, sFt, sFq = range(67, 73)
F4 = 199
def f_dma(a, tag):
    r = []
    lab = a.newlabel(tag)
    for n in range(5):
        x = [f's_add_u32 m0, s{sM0}, {n*4096}', f's_add_u32 s{t0}, s{sA}, {n*4096}', f'buffer_load_dwordx4 v{L16}, {WS}, s{t0} offen sc1 lds']
        r.append(x if n < 4 else [f's_cmp_lt_u32 s{S_W}, 2', f's_cbranch_scc0 {lab}'] + x + [f'{lab}:'])
    return [r[4]] + r[:4]

def f_init(a):
    e = a.e
    srd(a, S_RA, P_OUT, 2048 * 1152)
    e(f'''s_sub_u32 s{sK}, s{S_G}, {8 - NF}
    s_cselect_b32 s{sK}, {opt(OPT, 'f4', F4)}, s{sK}
    s_mul_i32 s{sE}, s{sK}, 18432
    s_lshl_b32 s{sM0}, s{S_W}, 10
    s_add_u32 s{sA}, s{sE}, s{sM0}
    s_add_u32 s{sA}, s{sA}, {H}
    s_lshl_b32 s{t1}, s{sTask}, 4
    s_add_u32 s{sE}, s{sE}, s{t1}
    v_mul_u32_u24 v{vPS}, 1152, v{LJ}
    v_mov_b32 v{T0}, {OOB}
    v_cmp_eq_u32 vcc, 0, v{LG}
    v_cndmask_b32 v{vPS}, v{T0}, v{vPS}, vcc
    v_lshlrev_b32 v{vRes}, 4, v{LJ}
    v_and_b32 v{T0}, 1, v{LG}
    v_lshl_add_u32 v{vRes}, v{T0}, 3, v{vRes}
    s_min_u32 s{t1}, s{sTask}, 71
    s_lshl_b32 s{t1}, s{t1}, 8
    v_add_u32 v{vRes}, s{t1}, v{vRes}
    v_mov_b32 v{vTr}, v{L16}
    v_add_u32 v19, s{sM0}, v{L16}
    v_mov_b32 v18, v19
    v_add_u32 v9, 16384, v19
    v_mov_b32 v{T0}, {LF_Z}
    s_cmp_lt_u32 s{S_W}, 2
    s_cselect_b32 s{sX5}, {LF_X}, 0
    s_cselect_b64 vcc, -1, 0
    v_cndmask_b32 v9, v{T0}, v9, vcc
    s_and_b32 s{t0}, s{S_W}, 1
    s_mul_i32 s{t0}, s{t0}, 9216
    v_add_u32 v20, s{t0}, v{L16}
    v_lshlrev_b32 v21, 4, v{LJ}
    v_lshrrev_b32 v{T1}, 2, v{LJ}
    v_lshl_add_u32 v{T1}, v{T1}, 8, v21
    v_and_b32 v{T2}, 3, v{LJ}
    v_lshl_add_u32 v{T1}, v{T2}, 2, v{T1}
    v_add_u32 v21, {LF_ST}, v21
    s_lshl_b32 s{t0}, s{S_W}, 2
    v_add_u32 v{vZ}, s{t0}, v21
    v_mov_b64 v[28:29], 0
    v_mov_b64 v[30:31], 0
    s_mov_b32 s{sB}, 0x3f803f80
    s_mov_b32 s{sC}, {hex(f2u(-1.4426950408889634))}
    s_mov_b32 s{sSpin}, 0x100000
    s_mov_b32 s{sPend}, 0
    s_cmp_eq_u32 s{sTask}, 127
    s_cselect_b32 s{sWb}, {opt(OPT, 'wf', 0)}, -1
    s_barrier
    ds_write_b128 v{T0}, v[28:31]
    v_add_u32 v{T0}, {LF_ACT}, v{T1}''')
    for x in f_dma(a, 'fd'): e('\n'.join(x))
    e('s_waitcnt vmcnt(0) lgkmcnt(0)')

def f_loop(a, tag, sc):
    e = a.e
    a.lq = []; a.vq = []
    G = 32; XB = 52; W = 32; AF = 68; WB = 86; RD = 52; D = 28; RES = 22
    M, CR, R2 = 2, 3, 4
    vH, vHs, vC, vC5 = vTr, 20, 18, 9
    def rbf(r): return [f'v_cvt_pk_bf16_f32 v{r}, v{r}, v{r}', f'v_lshlrev_b32 v{r}, 16, v{r}']
    def fin():
        red_fin(a, RD, D, RES)
        e(f'''buffer_store_dwordx4 {vr(D,4)}, v{vPS}, {RA}, s{sE} offen{' sc1' if 'os' in OPT else ''}
        s_add_u32 s{sE}, s{sE}, s{sFq}
        s_xor_b32 s{sPR}, s{sPR}, {RSLOT}
        s_mov_b32 s{sPend}, 0''')
    e(f'{tag}_loop:')
    wst(a, tag, 0)
    OWN = list(range(WB, WB + 16)) + list(range(D, D + 4))
    for n in range(4): e(f'ds_read_b128 {vr(WB + 4*n, 4)}, v{vC} offset:{n*4096}')
    e(f'ds_read_b128 {vr(D, 4)}, v{vC5}')
    for k in range(4): e(f'v_mov_b32 v{G+k}, s{sB}')
    e(f'v_max_u32 v{vMx}, v{OWN[0]}, v{OWN[1]}')
    for k in range(2, 20, 2): e(f'v_max3_u32 v{vMx}, v{vMx}, v{OWN[k]}, v{OWN[k+1]}')
    e(f'''v_cmp_eq_u32 vcc, -1, v{vMx}
    s_cbranch_vccnz {tag}_wait
    s_barrier''')
    wst(a, tag, 1)
    if opt(OPT, 'wf'):
        e(f's_cmp_eq_u32 s{sCnt}, s{sWb}\ns_cbranch_scc0 {tag}_nw')
        a.raw('buffer_wbl2 sc1')
        e(f'{tag}_nw:')
    def rd(k): return f'ds_read_b128 {vr(XB + 4*(k % 4), 4)}, v{vH} offset:{k*1024}'
    def rds(k): return f'ds_read_b128 {vr(AF + 4*(k % 4), 4)}, v{vHs} offset:{k*1024}'
    S = WB; SH = AF; DS = XB + 12
    pre = [rds(0), rd(0), rds(1), rds(2), rd(1), rds(3), rd(2), f'v_xor_b32 v{vC}, {LF_X}, v{vC}', f'v_xor_b32 v{vC5}, s{sX5}, v{vC5}']
    e(pre.pop(0))
    for n in range(5):
        P = vr(OWN[4*n], 4)
        for A_, D_ in ((vr(G, 4), vr(DS, 4)), (P, vr(WB, 4))):
            if pre: e(pre.pop(0))
            e(f'{MF32} {D_}, {A_}, {P}, {D_ if n else 0}')
    def one(x): return [y for z in x for y in (z, '')]
    st = [f's_cmp_lt_u32 s{sK}, {int(opt(OPT, "f4", F4)) - NF}\ns_cselect_b32 s{sFt}, {NF}, {NF + 1}', f's_add_u32 s{sK}, s{sK}, s{sFt}\ns_mul_i32 s{sFt}, s{sFt}, 18432']
    st += [f's_add_u32 s{sA}, s{sA}, s{sFt}\ns_cmp_lt_u32 s{sK}, 128', f's_cselect_b32 s{sA}, s{sA}, {OOB}\ns_xor_b32 s{sM0}, s{sM0}, {LF_X}']
    st += one([f'ds_write_b32 v{vZ}, v{DS}', f'ds_write_b128 v19, {vr(WB,4)} offset:{LF_ACT}', '#m', rd(3), '', '', '#b'])
    st += one([f'ds_read_b128 {vr(S,4)}, v21'] + [f'ds_read2st64_b32 {vr(S+4+2*k,2)}, v{T0} offset0:{8*k} offset1:{8*k+4}' for k in range(2)] + [''] * 3)
    st += [f'v_add_f32 v{S+k}, v{S+k}, v{S+k+1}' for k in (0, 2, 4, 6)] + [f'v_add_f32 v{M+k}, v{S+4*k}, v{S+4*k+2}' for k in range(2)]
    st += [f'v_mul_f32 v{M}, {hex(f2u(-1/576))}, v{M}', f'v_mul_f32 v{CR}, {hex(f2u(1/576))}, v{CR}']
    st += one([f'v_fma_f32 v{CR}, -v{M}, v{M}, v{CR}'] + rbf(M) + [f'v_max_f32 v{CR}, 0, v{CR}'] + rbf(CR))
    assert len(st) <= 54, len(st)
    st += [''] * (54 - len(st))
    st += [f'v_fma_f32 v{G+16+q}, v{M}, v{FCS+16+q}, v{G+16+q}' for q in range(4)] + ['', '', f'ds_write_b128 v19, {vr(G+16,4)} offset:{LF_SH}', '#m']
    st += one([f'v_add_f32 v{CR}, {hex(f2u(1e-5))}, v{CR}'] + rbf(CR) + [f'v_sqrt_f32 v{CR}, v{CR}', '#b'])
    for k, x in enumerate(rbf(CR) + [f'v_rcp_f32 v{CR}, v{CR}', '']): st += [f'ds_read_b128 {vr(SH + 4*k, 4)}, v{L16} offset:{LF_SH + k*1024}', x]
    st += one([f'v_mul_f32 v{R2}, v{CR}, v{CR}', f'v_mul_f32 v{CR}, s{sC}, v{CR}', ''])
    g, tm, u_ = SH, SH + 4, SH + 8
    def mix(x):
        for z in x:
            if len(st) & 1 and ((len(st) // 2 - 29) % 4 == 0 or st[-1].startswith(TRANS) or z.startswith(TRANS)): st.append('')
            if z.startswith(TRANS) and (len(st) // 2 - 29) % 4 == 0 and len(st) < 2 * (29 + 40): st.extend(['', ''])
            st.append(z)
    mix([f'v_add_f32 v{g+k}, v{g+k}, v{g+4+k}' for k in range(4)] + [f'v_mul_f32 v{tm+k}, v{g+k}, v{CR}' for k in range(4)])
    mix([f'v_exp_f32 v{tm+k}, v{tm+k}' for k in range(4)] + [f'v_add_f32 v{u_+k}, v{u_+k}, v{u_+4+k}' for k in range(4)])
    mix([f'v_add_f32 v{tm+k}, 1.0, v{tm+k}' for k in range(4)] + [f'v_mul_f32 v{g+k}, v{g+k}, v{u_+k}' for k in range(4)])
    mix([f'v_rcp_f32 v{tm+k}, v{tm+k}' for k in range(4)] + [f'v_mul_f32 v{g+k}, v{g+k}, v{R2}' for k in range(4)])
    mix([f'v_mul_f32 v{g+k}, v{g+k}, v{tm+k}' for k in range(4)] + [cvt(AF + 16, g, g + 1), cvt(AF + 17, g + 2, g + 3)])
    tk = [None]
    def gap():
        for x in st[:2]:
            if x == '#m': tk[0] = a.mark_l()
            elif x == '#b': a.wait_l(tk[0]); e('s_barrier')
            else: e(x)
        del st[:2]
    for k in range(18):
        X = XB + 4 * (k % 4)
        for q in range(4):
            kk = 2 * k + q // 2
            if q & 1 == 0 and kk < 9:
                e(f'{MF32} {vr(G + 16, 4)}, {gfrag(4, kk)}, {vr(AF + 4*(kk % 4), 4)}, {"0" if kk == 0 else vr(G + 16, 4)}')
                gap()
            e(f'{MF32} {vr(G + 4*q, 4)}, {gfrag(q, k)}, {vr(X,4)}, {"0" if k == 0 else vr(G + 4*q, 4)}')
            if q == 0 and 3 < k + 3 < 18: e(rd(k + 3))
            if q & 1 and kk + 4 < 9: e(rds(kk + 4))
            gap()
    assert not st, len(st)
    wst(a, tag, 2)
    e(f's_cmp_eq_u32 s{sPend}, 0\ns_cbranch_scc1 {tag}_nl')
    red_ld(a, RD)
    vq = list(a.vq)
    e(f'{tag}_nl:')
    for k in range(0, 16, 2): e(f'v_pk_fma_f32 {vr(G+k,2)}, {vr(M,2)}, {vr(FCS+k,2)}, {vr(G+k,2)} op_sel_hi:[0,1,1]')
    U = G + 8
    for k in range(0, 8, 2): e(f'v_pk_mul_f32 {vr(S+k,2)}, {vr(G+k,2)}, {vr(M,2)} op_sel:[0,1] op_sel_hi:[1,1]')
    for k in range(8):
        e(f'v_exp_f32 v{S+k}, v{S+k}')
        if k & 1: e(f'v_pk_mul_f32 {vr(G+k-1,2)}, {vr(G+k-1,2)}, {vr(U+k-1,2)}')
    for k in range(0, 8, 2): e(f'v_pk_add_f32 {vr(S+k,2)}, {vr(S+k,2)}, 1.0 op_sel_hi:[1,0]')
    for k in range(8):
        e(f'v_rcp_f32 v{S+k}, v{S+k}')
        if k & 1: e(f'v_pk_mul_f32 {vr(G+k-1,2)}, {vr(G+k-1,2)}, {vr(R2,2)} op_sel_hi:[1,0]')
    for k in range(0, 8, 2): e(f'v_pk_mul_f32 {vr(G+k,2)}, {vr(G+k,2)}, {vr(S+k,2)}')
    for k in range(4): e(cvt(G + k, G + 2*k, G + 2*k + 1))
    e(f'ds_write_b128 v19, {vr(G,4)} offset:{LF_ACT}')
    ORD = [4 * FLT.index(u) + kap for g in range(3) for kap in range(4) for u in (3*g + 1, 3*g + 2)]
    def wrd(i): e(f'ds_read_b128 {vr(WB + 4*(i % 4), 4)}, v{vXw} offset:{ORD[i]*1024}')
    tok = a.mark_l()
    wst(a, tag, 3)
    for i in range(4): wrd(i)
    e(f's_cmp_eq_u32 s{sPend}, 0\ns_cbranch_scc1 {tag}_nr\n{tag}_rs:')
    red_sum(a, RD, D, f'{tag}_ra')
    fin()
    e(f'{tag}_nr:')
    wst(a, tag, 4)
    a.vq = []
    a.wait_l(tok)
    e('s_barrier')
    wst(a, tag, 5)
    for k in range(4): e(f'ds_read_b128 {vr(AF + 4*k, 4)}, v{L16} offset:{LF_ACT + k*1024}')
    e(f'ds_read_b64 {vr(RES,2)}, v{vRes}')
    dm = f_dma(a, tag + 'd')
    for u in range(9):
        e(f'{MF16} {vr(W + 4*u, 4)}, {vr(FD16 + 2*u, 2)}, {vr(AF + 16, 2)}, 0')
        if u in (1, 6): e('\n'.join(dm.pop(0)))
    pend = [f'v_xor_b32 v{r}, {LF_X}, v{r}' for r in (vH, vHs, vRes)]
    i = 0
    for grp in range(3):
        for kap in range(4):
            for u in range(3*grp, 3*grp + 3):
                wv = FDR + 16*grp + 4*kap if u % 3 == 0 else WB + 4*(i % 4)
                e(f'{MF32} {vr(W + 4*u, 4)}, {vr(wv, 4)}, {vr(AF + 4*kap, 4)}, {vr(W + 4*u, 4)}')
                if u % 3:
                    if i + 4 < 24: wrd(i + 4)
                    i += 1
                elif dm:
                    e('\n'.join(dm.pop(0)))
                    if not dm: tokd = a.mark_v()
                if kap >= 1:
                    n = 2 if u % 3 else 3
                    for x in pend[:n]: e(x)
                    pend = pend[n:]
        for u in range(3*grp, 3*grp + 3): pend += proj_epi(u, W, sc)
    for x in pend: e(x)
    wst(a, tag, 6)
    if WST[0] and WST[0][0] == tag: WST[0][1] += 1
    next_slot(a)
    e(f'''s_cmp_lt_u32 s{sTask}, 72
    s_cselect_b32 s{sPend}, 1, 0
    s_mov_b32 s{sFq}, s{sFt}
    s_cmp_lt_u32 s{sK}, 128
    s_cbranch_scc0 {tag}_wait''')
    a.wait_v(tokd)
    wst(a, tag, 7)
    e(f's_branch {tag}_loop')
    a.lq = []; a.vq = []
    e(f'{tag}_wait:\ns_cmp_eq_u32 s{sPend}, 0\ns_cbranch_scc1 {tag}_w2')
    red_ld(a, RD)
    if 'wo' not in OPT:
        for x in f_dma(a, tag + 'v'): e('\n'.join(x))
        e(f's_waitcnt vmcnt(4)'); a.vq = []
    e(f'{tag}_w1:')
    red_sum2(a, RD, D, f'{tag}_wa')
    fin()
    wst(a, tag, 8)
    if 'wo' not in OPT: e(f's_cmp_lt_u32 s{sK}, 128\ns_cbranch_scc0 {FIN}\ns_waitcnt vmcnt(1)\ns_branch {tag}_loop')
    e(f'{tag}_w2:\ns_cmp_lt_u32 s{sK}, 128\ns_cbranch_scc0 {FIN}')
    for x in f_dma(a, tag + 'w'): e('\n'.join(x))
    e(SPIN)
    e(f's_waitcnt vmcnt(0)\ns_branch {tag}_loop')
    a.vq = []
    e(f'{tag}_ra:')
    red_ld(a, RD); e(SPIN)
    e(f's_waitcnt vmcnt(0)\ns_branch {tag}_rs')
    red_again(a, RD, PS, 0, f'{tag}_wa', f'{tag}_w1')
```

```python
import sys
sys.path.insert(0, 'gen')
from asmlib import *
from layout import *
import rec6 as rec2
from rec6 import *
from work import *
NAME = 'sequential_preLN__memory_aug_recurrent_mem_tr__swiglu_ffn__prompt'

MAP = '31204567'
def tstamp(a, k, on):
    if on: a.e(f's_memrealtime s[{96+2*k}:{97+2*k}]\ns_waitcnt lgkmcnt(0)')

def gen(opt=()):
    a = Asm(); e = a.e
    st = 'st' in opt
    force = 1 if 'fb' in opt else None
    DEF = ['lf', 'mf', 'ns', 'pc=38', 'pl=51']
    opt = list(opt) + DEF
    w_ = rec2.opt(opt, 'ws')
    rs = rec2.opt(opt, 'rs'); rs = rs.split('.') if rs else None
    OPT[:] = list(opt)
    WST[0] = [w_.split('.')[0], int(w_.split('.')[1])] if w_ else None
    e(f'''s_cmp_ge_u32 s2, 256
    s_cbranch_scc1 K_exit
    s_load_dwordx8 s[16:23], s[0:1], 0
    s_load_dwordx4 s[24:27], s[0:1], 32
    s_load_dwordx8 s[32:39], s[0:1], 64
    s_load_dwordx4 s[40:43], s[0:1], 96
    v_lshrrev_b32 v1, 6, v0
    v_readfirstlane_b32 s{S_W}, v1''')
    tab = rec2.opt(opt, 'map', MAP)
    e(f'''s_getreg_b32 s{S_G}, hwreg(HW_REG_XCC_ID, 0, 3)
    s_lshl_b32 s{S_G}, s{S_G}, 2
    s_lshr_b32 s{S_G}, 0x{tab[::-1]}, s{S_G}
    s_and_b32 s{S_G}, s{S_G}, 7
    s_lshr_b32 s{S_H}, s2, 3
    s_mov_b32 s{sFB}, 0''')
    e(f'''s_waitcnt lgkmcnt(0)
    s_mov_b32 s{S_WS}, s{P_WSP}
    s_mov_b32 s{S_WS+1}, s{P_WSP+1}
    s_mov_b32 s{S_WS+2}, {WS_BYTES}
    s_mov_b32 s{S_WS+3}, 0x20000''')
    if rec2.opt(opt, 'tpA'): e('s_mov_b32 s78, 63')
    if st:
        for k in range(3): tstamp(a, k, st)
        e('s_memrealtime s[94:95]\ns_waitcnt lgkmcnt(0)')
    e(f'''K_go:
    s_cmp_eq_u32 s{S_G}, 0
    s_cbranch_scc0 W_start''')
    stp = [int(x) for x in rec2.opt(opt, 'stp', '').split('.') if x]
    if rec2.opt(opt, 'hx'): e(f's_xor_b32 s{S_H}, s{S_H}, {rec2.opt(opt, "hx")}')
    rec_setup(a, False, 'ns' in opt)
    arrive(a, 24, None)
    rec_load(a, pre=lambda: gb_ld(a, 16), w0=int(rec2.opt(opt, 'w0', 0)), wn=int(rec2.opt(opt, 'wn', 5)), mod=' nt' if 'rnt' in opt else '', stp=stp, hp=[int(x) for x in rec2.opt(opt, 'hp', '').split('.') if x], tries=[int(x) for x in rec2.opt(opt, 'ey', '12.3.3').split('.')])
    if not stp: tstamp(a, 0, st)
    e(f's_cmp_gt_u32 s{rec2.sRdy}, 1\ns_cbranch_scc1 R_ok')
    gbar(a, 16, rec2.sSpin, rec2.sT0, force)
    e('R_ok:')
    rec_init(a, 0)
    if 'cnt' in opt:
        for k in range(9): e(f's_mov_b32 s{76+2*k}, 0')
    if not stp: tstamp(a, 1, st)
    e(f's_cmp_eq_u32 s{sFB}, 0\ns_cbranch_scc0 RF_disp')
    rec_disp(a, 'R')
    for w in range(4): rec_loop(a, w, rs, FIN, list(opt) + ['pf=37'], tag='R')
    e('RF_disp:')
    rec_disp(a, 'RF')
    for w in range(4): rec_loop(a, w, None, FIN, ['pf=37', 'ns'], tag='RF', cs=' sc1')
    TOP = 163836
    def lane0(): e(f'''v_mbcnt_lo_u32_b32 v0, -1, 0
    v_mbcnt_hi_u32_b32 v0, -1, v0
    s_lshl_b32 s28, s{S_W}, 6
    v_add_u32 v0, s28, v0''')
    e(f'''K_again:
    s_waitcnt vmcnt(0)
    s_barrier
    s_mov_b32 s{sFB}, 1''')
    lane0()
    if 'perm' in opt: e(f's_lshr_b32 s{S_G}, s2, 5\ns_and_b32 s{S_H}, s2, 31')
    else: e(f's_and_b32 s{S_G}, s2, 7')
    e('s_branch K_go')
    e('W_start:')
    a.lq = []; a.vq = []
    w_init(a)
    e(f's_cmp_eq_u32 s{S_G}, 1\ns_cbranch_scc1 Q_start')
    e(f's_sub_u32 s{t0}, s{S_G}, 3\ns_cmp_lt_u32 s{t0}, {NA}\ns_cbranch_scc1 A_start')
    e(f's_cmp_eq_u32 s{S_G}, 2\ns_cbranch_scc0 F_start')
    tch = rec2.opt(opt, 'tch', '')
    touch(a, tch)
    def hfill():
        e(f's_mul_i32 s{t0}, s{S_H}, {4*18432}\ns_add_u32 s{t0}, s{t0}, {H}')
        for n in range(18): e(f'buffer_store_dwordx4 v[12:15], v{T3}, {WS}, s{t0} offen sc1\ns_add_u32 s{t0}, s{t0}, 4096')
    if 'xh' not in opt: hfill()
    e(f'buffer_store_dword v10, v9, {WS}, 0 offen offset:{PROG} sc1')
    if 'mf' in opt:
        e(f's_lshl_b32 s{t0}, s{S_H}, 15\ns_add_u32 s{t0}, s{t0}, {MRING + 3*MSTR}')
        for n in range(6): e(f's_add_u32 s{t1}, s{t0}, {(n // 3)*MSTR + (n % 3)*4096}\nbuffer_store_dwordx4 v[12:15], v{T3}, {WS}, s{t1} offen sc1')
    f4 = int(rec2.opt(opt, 'f4', F4)) < 200
    for x in (PROG + 256, ZW): e(f'buffer_store_dword v10, v9, {WS}, 0 offen offset:{x} sc1')
    rec_setup(a, True)
    arrive(a, 24)
    tstamp(a, 0, st)
    gbar(a, 12, sSpin, t0, force, TOP, 64)
    if int(rec2.opt(opt, 'z0', Z0)) > 63: e(f's_branch {FIN}')
    def waitw(tag, off, n, nap=127):
        e(f'''s_mov_b32 s{sSpin}, 0x1000
        s_cmp_eq_u32 s{S_W}, 0
        s_cbranch_scc0 {tag}_go
        s_branch {tag}_l
        {tag}_w:
        s_sleep {nap}
        {tag}_l:
        buffer_load_dword v32, off, {WS}, 0 offset:{off} sc1
        {SPIN}
        s_waitcnt vmcnt(0)
        v_readfirstlane_b32 s{t0}, v32
        s_cmp_lt_u32 s{t0}, {n}
        s_cbranch_scc1 {tag}_w
        {tag}_go:
        s_barrier''')
    lane0()
    w_init(a)
    if 'xh' in opt: hfill()
    waitw('Y', PROG, rec2.opt(opt, 'yl', 16))
    ring_fill(a, PSA, 9, 8, f4)
    if int(rec2.opt(opt, 'f4', F4)) < 128: ring_fill(a, PS, 5, 9)
    e(f'v_mov_b32 v10, 1\ns_waitcnt vmcnt(0)\ns_barrier\nbuffer_atomic_add v10, v9, {WS}, 0 offen offset:{PROG + 256} sc1')
    if int(rec2.opt(opt, 'f4', F4)) == 199: e(f's_mov_b32 s{S_G}, 1\ns_branch {FIN}')
    waitw('Z', PROG, rec2.opt(opt, 'zl', 40 if f4 else 46))
    waitw('X', PROG + 256, 32, 16)
    e(f's_mov_b32 s{S_G}, 1\ns_branch F_ld' if f4 else 's_branch A_ld')
    e('Q_start:')
    a.lq = []; a.vq = []
    q_load(a)
    tstamp(a, 1, st)
    gbar(a, 16, sSpin, t0, force, TOP)
    tstamp(a, 2, st)
    q_main(a)
    z_put(a)
    if f4:
        ring_fill(a, PSA, 0, 8)
        waitw('V', PROG + 256, 32, 16)
        lane0()
        w_init(a)
        e(f's_mov_b32 s{S_G}, 2\ns_branch A_ld')
    e(f's_branch {FIN}')
    a_flags(a, 'AI')
    e('A_start:')
    a.lq = []; a.vq = []
    def flagw(tag, n):
        if n: e(f'''s_lshl_b32 s{t1}, s{S_H}, 6
        {tag}_w:
        s_sleep 16
        buffer_load_dword v32, off, {WS}, s{t1} sc1
        {SPIN}
        s_waitcnt vmcnt(0)
        v_readfirstlane_b32 s{t0}, v32
        s_cmp_le_u32 s{t0}, {n}
        s_cbranch_scc1 {tag}_w''')
    def late():
        gbar(a, 32, sSpin, t0, force, TOP, 16)
        flagw('A', rec2.opt(opt, 'aw'))
        tstamp(a, 0, st)
    a_load(a, lambda: tstamp(a, 0, st), rec2.opt(opt, 'ao', 'oq'), late if 'la' in opt else None)
    tstamp(a, 1, st)
    if 'la' not in opt: gbar(a, 32, sSpin, t0, force, TOP)
    a_init(a)
    tstamp(a, 2, st)
    e(f's_cmp_eq_u32 s{sFB}, 0\ns_cbranch_scc0 AF_in')
    a_loop(a, 'A', '')
    a_loop(a, 'AF', ' sc1')
    e('F_start:')
    a.lq = []; a.vq = []
    ln1(a, tch)
    arrive(a)
    tstamp(a, 0, st)
    if 'lf' in opt: gbar(a, 32, sSpin, t0, force, TOP, 16)
    flagw('F', rec2.opt(opt, 'fw'))
    e('F_ld:')
    tstamp(a, 1, st)
    f_load(a)
    if 'lf' not in opt: gbar(a, 32, sSpin, t0, force, TOP)
    if f4:
        e(f's_cmp_eq_u32 s{S_G}, 1\ns_cbranch_scc0 U_no')
        waitw('U', PROG, rec2.opt(opt, 'ul', int(rec2.opt(opt, 'f4', F4)) // 2 + 1), 32)
        e('U_no:')
    f_init(a)
    tstamp(a, 2, st)
    e(f's_cmp_eq_u32 s{sFB}, 0\ns_cbranch_scc0 FF_loop')
    f_loop(a, 'F', '')
    f_loop(a, 'FF', ' sc1')
    e(f'{FIN}:')
    if rec2.opt(opt, 'wb'):
        e(f's_lshr_b32 s46, {rec2.opt(opt, "wb")}, s{S_G}\ns_and_b32 s46, s46, 1\ns_cselect_b32 s46, s{S_H}, 1\ns_add_u32 s46, s46, s{S_W}\ns_cmp_eq_u32 s46, 0\ns_cbranch_scc0 K_nw\ns_waitcnt vmcnt(0)')
        a.raw('buffer_wbl2 sc1')
        e('K_nw:')
    if w_ or rs or 'cnt' in opt:
        e(f'''s_waitcnt vmcnt(0) lgkmcnt(0)
        s_lshl_b32 s46, s2, 2
        s_add_u32 s46, s46, s{S_W}
        s_lshl_b32 s46, s46, 6
        s_add_u32 s46, s46, {STAMP - 0x10000}
        v_mov_b32 v12, 0''')
        for k in range(9): e(f'v_mov_b32 v13, s{76+2*k}\nbuffer_store_dword v13, v12, {WS}, s46 offen offset:{4*k}')
    if rec2.opt(opt, 'tpA'):
        e(f'''s_waitcnt vmcnt(0) lgkmcnt(0)
        s_lshl_b64 exec, 1, s78
        v_mov_b32 v0, s76
        s_mov_b64 exec, -1
        s_cmp_eq_u32 s{S_W}, 0
        s_cselect_b32 s46, {STAMP - 0x10000}, {OOB}
        s_lshl_b32 s47, s2, 8
        s_add_u32 s46, s46, s47
        v_mbcnt_lo_u32_b32 v12, -1, 0
        v_mbcnt_hi_u32_b32 v12, -1, v12
        v_lshlrev_b32 v12, 2, v12
        buffer_store_dword v0, v12, {WS}, s46 offen''')
    if st:
        e(f'''s_memrealtime s[92:93]
        s_waitcnt vmcnt(0) lgkmcnt(0)
        s_lshl_b32 s46, s2, 2
        s_add_u32 s46, s46, s{S_W}
        s_lshl_b32 s46, s46, 5
        s_add_u32 s46, s46, {STAMP}
        v_mov_b32 v12, 0''')
        if 'hw' in opt: e(f's_getreg_b32 s{sSpin}, hwreg(HW_REG_HW_ID)')
        for k, s in enumerate(['s94', 's96', 's98', 's100', 's92', f's{S_G}', f's{sSpin}', f's{rec2.sSpin}']):
            e(f'v_mov_b32 v13, {s}\nbuffer_store_dword v13, v12, {WS}, s46 offen offset:{4*k}')
    dg = rec2.opt(opt, 'dg')
    if dg:
        g, k = dg.split('.')
        if k == 'c':
            e('s_memtime s[48:49]\ns_waitcnt lgkmcnt(0)\ns_sub_u32 s48, s48, s98\ns_lshr_b32 s48, s48, 5\ns_add_u32 s48, s48, s94'); k = 48
        e(f'''s_cmp_eq_u32 s{S_G}, {g}
        s_cbranch_scc0 K_dg
        s_add_u32 s46, s{k}, 20000
        K_dl:
        s_memrealtime s[48:49]
        s_waitcnt lgkmcnt(0)
        s_sub_u32 s47, s48, s46
        s_cmp_lt_i32 s47, 0
        s_cbranch_scc1 K_dl
        K_dg:''')
    e('s_waitcnt vmcnt(0)')
    e('K_exit:')
    return a.finish()

def full(body):
    ref = open(f'cdna_kernels/{NAME}.s.ref').read()
    head = ref[:ref.index(f'{NAME}_kernel:\n') + len(NAME) + 9]
    tail = ref[ref.index('s_endpgm'):]
    head = head.replace('; @launch grid=(4608,1,1) block=(256,1,1) lds=0', '; @launch grid=(256,1,1) block=(256,1,1) lds=163840')
    tail = tail.replace('.amdhsa_next_free_vgpr 256', '.amdhsa_next_free_vgpr 512')
    return head + body + tail

if __name__ == '__main__':
    for v in sys.argv[1:]:
        if v == 'final': open(f'cdna_kernels/{NAME}.s', 'w').write(full(gen()))
        elif v[0] == '@': open(f'x_{v[1:].replace("=", "-")}.s', 'w').write(full(gen(v[1:].split('+'))))
        else: open(f'full_{v}.txt', 'w').write(gen(v.split('+')))
```

```python
from asmlib import *
from layout import *

S_WS = 4
S_RA = 8
S_RB = 12
P_X, P_MEM0, P_WQ, P_WK, P_WV, P_WO, P_WG, P_WU, P_WD, P_OUT, P_DBG, P_WSP = 16, 18, 20, 22, 24, 26, 32, 34, 36, 38, 40, 42
S_W = 44
S_H = 45
WS = f's[{S_WS}:{S_WS+3}]'

def srd(a, d, ptr, nbytes):
    a.e(f's_mov_b32 s{d}, s{ptr}\ns_mov_b32 s{d+1}, s{ptr+1}\ns_mov_b32 s{d+2}, {nbytes}\ns_mov_b32 s{d+3}, 0x20000')

L_BLK = 4352
L_QK = 18432
L_SEL = 23040
L_TAB = 23552
L_W0 = 24576
L_WSTR = 34816

vL16, vW, vZ, vXw, vSel, vP, vMst, vPD, vIdx, vT, vZero, vT2 = range(12)
C4 = 4
DW = 3
MB = [12, 16, 20]
QA, KA, VA, VX = 24, 32, 64, 56
SB = [40, 48]
SMF = 'v_smfmac_f32_16x16x64_bf16'
MF32 = 'v_mfma_f32_16x16x32_bf16'
MF16 = 'v_mfma_f32_16x16x16_bf16'

(sStep, sMs, sMo, sMoD, sPrd, sPrD, sKx, sKv, sSpin, sT0, sT1, sT2, sC, sFlg, sRdy) = range(46, 61)
sPg = 61
sOne = 62
sF = 64
sPW = 68
sStamp = 76
(sM1, sM2, sMkD, sPaD, sRedo, sPf, sMst, sMp, sTry) = range(16, 25)

P1SEQ = [(m, 0, t) for m in 'qkv' for t in range(2)]
P1SEQ += [(m, i, t) for i in range(1, 6) for m, t in (('q', 0), ('k', 0), ('q', 1), ('k', 1), ('v', 0), ('v', 1))]
P1SEQ += [('q', 6, 0), ('q', 7, 0), ('q', 6, 1), ('q', 7, 1), ('q', 8, 0), ('q', 8, 1)]
P1SEQ += [('k', i, t) for t in range(2) for i in (6, 7, 8)] + [('v', i, t) for i in (6, 7, 8) for t in range(2)]
P1_LDS_POS = [7, 9, 13, 15, 19, 21, 25, 27, 31, 33, 37, 39]
LDS_P1 = [P1SEQ[p] for p in P1_LDS_POS]
LDS_WO = [('o', 2, 0), ('o', 3, 0), ('o', 2, 1), ('o', 2, 3), ('o', 3, 3)]
STAGES = [(m, f) for m in 'qvk' for f in range(9) if (m, f, 0) not in LDS_P1] + [k[:2] for k in LDS_P1[::2]]

def alloc():
    slots = [('a', 8 * i) for i in range(32)] + [('v', 72 + 8 * i) for i in range(23)]
    reg = {}; lds = {}
    for m, i, t in LDS_P1: lds[(m, i, t)] = (STAGES.index((m, i)) - 1) % 8 * 4096 + t * 2048
    for n, k in enumerate(LDS_WO): lds[k] = (8192, 10240, 12288, 14336, 32768)[n]
    assert len(set(lds.values())) == 17
    assert len(lds) == 17
    k = 0
    for m in 'qkv':
        for i in range(9):
            for t in range(2):
                if (m, i, t) not in lds:
                    reg[(m, i, t)] = slots[k]; k += 1
    park = slots[k:]
    for u in range(4):
        for a in range(4):
            if ('o', u, a) not in lds:
                reg[('o', u, a)] = slots[k]; k += 1
    for a in range(4):
        p, b = slots[k + a // 2]
        reg[('o', 4, a)] = (p, b + 4 * (a & 1))
    k += 2
    assert k == 55
    return reg, lds, park
REG, LDS, PARK = alloc()

def frag_of(i, w):
    return i

def rec_setup(a, fill, ns=False):
    e = a.e
    e(f'''v_and_b32 v12, 63, v0
    v_and_b32 v13, 15, v12
    v_lshrrev_b32 v14, 4, v12
    v_lshlrev_b32 v{vL16}, 4, v12
    v_mov_b32 v{vZero}, 0
    s_mul_i32 s{sT0}, s{S_W}, {L_WSTR}
    s_add_u32 s{sT0}, s{sT0}, {L_W0}
    v_add_u32 v{vW}, s{sT0}, v{vL16}
    v_and_b32 v15, 1, v14
    v_lshrrev_b32 v16, 1, v14
    v_and_b32 v17, 3, v13
    v_lshrrev_b32 v18, 2, v13
    v_mul_u32_u24 v{vXw}, 144, v18
    v_lshl_add_u32 v{vXw}, v14, 5, v{vXw}
    v_lshl_add_u32 v{vXw}, v17, 2, v{vXw}
    s_mul_i32 s{sT0}, s{S_W}, 1152
    s_add_u32 s{sT0}, s{sT0}, {L_QK}
    v_add_u32 v{vXw}, s{sT0}, v{vXw}
    v_and_b32 v{vSel}, 0xf0, v{vL16}''')
    e(f'''v_mul_u32_u24 v{vZ}, 144, v14
    v_lshl_add_u32 v{vZ}, v18, 5, v{vZ}
    v_and_b32 v19, 1, v13
    v_lshl_add_u32 v{vZ}, v19, 4, v{vZ}''')
    e(f'''v_lshrrev_b32 v19, 3, v12
    v_mul_u32_u24 v{vP}, {TS}, v19
    v_and_b32 v19, 7, v12
    v_lshl_add_u32 v{vP}, v19, 3, v{vP}
    v_mul_u32_u24 v{vPD}, {TS}, v14
    v_lshl_add_u32 v{vPD}, v13, 2, v{vPD}
    v_mov_b32 v21, 0x88884444
    v_mov_b32 v22, 0xDDDDEEEE
    v_and_b32 v19, 2, v13
    v_cmp_eq_u32 vcc, 0, v19
    v_cndmask_b32 v{vIdx}, v22, v21, vcc''')
    e(f'''v_lshlrev_b32 v19, 4, v14
    v_lshl_add_u32 v19, v13, 2, v19
    v_mul_u32_u24 v20, 1152, v15
    v_lshl_add_u32 v20, v13, 3, v20
    v_lshl_add_u32 v20, v16, 2, v20
    v_mov_b32 v21, {OOB}
    v_cmp_gt_u32 vcc, 4, v13
    v_cndmask_b32 v28, v21, v19, vcc
    v_cndmask_b32 v20, v21, v20, vcc
    v_add_u32 v19, {2*MSTR - 16}, v19
    v_cmp_eq_u32 vcc, {9 if ns else 1}, v18
    v_cndmask_b32 v{vMst}, v28, v19, vcc''')
    e(f'''s_lshr_b32 s{sT0}, s{S_H}, 3
    s_lshl_b32 s{sT0}, s{sT0}, 1
    s_and_b32 s{sT1}, s{S_H}, 1
    s_add_u32 s{sT0}, s{sT0}, s{sT1}
    s_lshl_b32 s{sT1}, s{S_W}, 3
    s_add_u32 s{sT0}, s{sT0}, s{sT1}
    s_bfe_u32 s{sT1}, s{S_H}, 0x20001
    s_lshl_b32 s{sMo}, s{sT0}, 8
    s_lshl_b32 s{sT2}, s{sT1}, 6
    s_add_u32 s{sMo}, s{sMo}, s{sT2}
    s_mul_i32 s{sT1}, s{sT1}, 2304
    s_lshl_b32 s{sT0}, s{sT0}, 5
    s_add_u32 s{sF}, s{sT0}, s{sT1}''')
    e(f'''s_lshl_b32 s{sMoD}, s{S_H}, 6
    s_add_u32 s{sMoD}, s{sMoD}, 8192
    s_and_b32 s{sT1}, s{S_H}, 3
    s_mul_i32 s{sT1}, s{sT1}, 2304
    s_lshr_b32 s{sT0}, s{S_H}, 2
    s_lshl_b32 s{sT0}, s{sT0}, 5
    s_add_u32 s{sT0}, s{sT0}, s{sT1}
    s_add_u32 s{sF+1}, s{sT0}, 1024
    s_add_u32 s{sT0}, s{S_H}, 128
    s_mul_i32 s{sPrD}, s{sT0}, {TS}
    s_add_u32 s{sPrD}, s{sPrD}, {PRING}
    s_cmp_eq_u32 s{S_W}, {DW}
    s_cselect_b32 s{sT0}, 16, 0
    s_cmp_lt_u32 s{S_H}, s{sT0}
    s_cselect_b32 s{sMoD}, s{sMoD}, {OOB}
    s_cselect_b32 s{sPrD}, s{sPrD}, {OOB}''')
    e(f'''s_lshl_b32 s{sT0}, s{S_W}, 5
    s_add_u32 s{sT0}, s{sT0}, s{S_H}
    s_mul_i32 s{sPrd}, s{sT0}, {TS}
    s_add_u32 s{sPrd}, s{sPrd}, {PRING}
    s_lshl_b32 s{sT1}, s{S_H}, 6
    s_add_u32 s{sT1}, s{sT1}, {PRING}
    s_mul_i32 s{sT0}, s{S_W}, {8*TS}
    s_add_u32 s{sPW}, s{sT0}, s{sT1}
    s_add_u32 s{sPW+1}, s{sPW}, {32*TS}
    s_add_u32 s{sPW+2}, s{sPW}, {64*TS}
    s_add_u32 s{sPW+3}, s{sPW}, {96*TS}
    s_mul_i32 s{sT0}, s{S_W}, {4*TS}
    s_add_u32 s{sT0}, s{sT0}, s{sT1}
    s_add_u32 s{sPW+4}, s{sT0}, {128*TS}''')
    if not fill:
        e(f'''s_add_u32 s{sT0}, s{sPrd}, {32*TS}
        s_add_u32 s{sT1}, s{sMo}, 2048
        s_cmp_eq_u32 s{S_W}, {DW}
        s_cselect_b32 s{sPrD}, s{sPrD}, s{sT0}
        s_cselect_b32 s{sMoD}, s{sMoD}, s{sT1}''')
        return
    srd(a, S_RA, P_MEM0, 9216)
    e(f'''buffer_load_dword v22, v20, s[{S_RA}:{S_RA+3}], s{sF} offen
    buffer_load_dword v23, v20, s[{S_RA}:{S_RA+3}], s{sF+1} offen
    v_mov_b32 v24, 0
    v_mov_b32 v25, 0
    v_mov_b32 v26, 0
    v_mov_b32 v27, 0
    v_mov_b32 v29, -1''')
    for r in (sPrd, sPrD):
        for l in range(2): e(f'buffer_store_dwordx4 v[24:27], v{vL16}, {WS}, s{r} offen offset:{l*1024} sc1')
    for k in (1, 2):
        for r in (sMo, sMoD): e(f's_add_u32 s{sT0}, s{r}, {MRING + k*MSTR}\nbuffer_store_dword v29, v28, {WS}, s{sT0} offen sc1')
    for n, r in enumerate((sMo, sMoD)):
        e(f's_add_u32 s{sT0}, s{r}, {MRING}')
        e(f'buffer_store_dword v{22+n}, v28, {WS}, s{sT0} offen sc1')

def rec_early(a, n, tries):
    e = a.e
    if n == tries[0]:
        e(f'''v_bfe_u32 v18, v{vL16}, 4, 1
        v_xor_b32 v18, s{S_H}, v18
        v_lshlrev_b32 v18, 2, v18
        global_load_dword v{vT}, v18, s[{P_DBG}:{P_DBG+1}] sc1''')
    if n == tries[1]:
        e(f'''v_lshlrev_b32 v18, 4, v18
        v_add_u32 v{vT}, s75, v{vT}
        buffer_load_dword v{vT2}, v18, {WS}, 0 offen sc1''')
    if n == 0:
        e(f'''v_cmp_eq_u32 vcc, 0x11111111, v{vT}
        v_cndmask_b32 v{vT2}, 0, v{vT2}, vcc
        v_readlane_b32 s{sRdy}, v{vT2}, 0
        v_readlane_b32 s{sF}, v{vT2}, 1''')

def rec_load(a, mod='', pre=None, stp=None, w0=0, wn=5, tries=(), hp=()):
    e = a.e
    RA = f's[{S_RA}:{S_RA+3}]'; RB = f's[{S_RB}:{S_RB+3}]'
    NS = 8; L_D = 0
    e(f'''v_lshlrev_b32 v21, 2, v14
    v_xor_b32 v21, v21, v13
    v_lshlrev_b32 v21, 4, v21
    v_lshl_add_u32 v21, v14, 13, v21
    v_lshl_add_u32 v22, v15, 3, v18
    v_lshlrev_b32 v22, 8, v22
    v_xor_b32 v23, s{S_W}, v18
    v_lshl_add_u32 v22, v23, 6, v22
    v_lshrrev_b32 v23, 1, v17
    v_lshl_add_u32 v22, v23, 5, v22
    v_and_b32 v23, 1, v17
    v_lshl_add_u32 v22, v23, 3, v22
    v_mul_u32_u24 v23, {L_WSTR}, v16
    v_add_u32 v22, v22, v23
    v_add_u32 v22, {L_W0}, v22
    v_add_u32 v23, {2*L_WSTR}, v22
    s_lshl_b32 s{sC}, s{S_H}, 8
    s_lshl_b32 s{sT0}, s{S_W}, 17
    s_add_u32 s{sC}, s{sC}, s{sT0}
    s_mul_i32 s{sT2}, s{S_W}, {L_WSTR}
    s_add_u32 s{sT2}, s{sT2}, {L_W0}''')
    srd(a, S_RA, P_WO, 32 * 147456)
    e(f'''v_lshl_add_u32 v19, v15, 1, v16
    v_mul_u32_u24 v19, {4*1152}, v19
    v_lshl_add_u32 v19, v13, 2, v19
    v_add_u32 v20, {16*1152}, v19
    s_mul_i32 s{sT0}, s{S_H}, 147456
    s_lshl_b32 s{sT1}, s{S_W}, 6
    s_add_u32 s{sT0}, s{sT0}, s{sT1}''')
    for k in range(4):
        e(f'''s_xor_b32 s{sT1}, s{S_W}, {k}
        s_mul_i32 s{sT1}, s{sT1}, {32*1152}
        s_add_u32 s{sF+k}, s{sT0}, s{sT1}''')
    e(f'''v_lshrrev_b32 v65, 1, v12
    v_mul_u32_u24 v65, 1152, v65
    v_and_b32 v66, 1, v12
    v_lshl_add_u32 v65, v66, 4, v65
    s_lshl_b32 s{sT1}, s{S_W}, 5
    s_sub_u32 s{sT1}, 1024, s{sT1}
    v_add_u32 v65, s{sT1}, v65
    v_lshlrev_b32 v66, 4, v16
    v_lshl_add_u32 v66, v15, 2, v66
    v_add_u32 v66, v66, v18
    v_lshlrev_b32 v66, 5, v66
    v_lshl_add_u32 v66, v17, 3, v66
    s_lshl_b32 s{sT1}, s{S_W}, 12
    v_add_u32 v66, s{sT1}, v66''')
    tmp = {k: ('v', 24 + 8 * n) for n, k in enumerate(LDS_WO)}
    wol = []
    for u in range(4):
        for k in range(4):
            p, b = tmp.get(('o', u, k)) or REG[('o', u, k)]
            wol += [f'buffer_load_dword {p}{b+rho}, v{19 + (rho >> 2)}, {RA}, s{sF+k} offen offset:{(rho & 3)*1152 + u*256}' for rho in range(8)]
    assert 3*1152 + 2*256 < 4096
    toks = {}
    cur = [None]
    def issue(n):
        m, f = STAGES[n]
        if cur[0] != m: srd(a, S_RB, {'q': P_WQ, 'k': P_WK, 'v': P_WV}[m], 576 * 8192); cur[0] = m
        for k in range(4):
            e(f's_add_u32 m0, s{sT2}, {(n % NS)*4096 + k*1024}')
            e(f's_add_u32 s{sT0}, s{sC}, {(64*f + 4*k)*8192}')
            e(f'buffer_load_dwordx4 v21, {RB}, s{sT0} offen{mod} lds')
        toks[n] = a.mark_v()
        if n == len(STAGES) - 9 and not hp:
            for k in range(4):
                e(f's_add_u32 m0, s{sT1}, {L_D + k*1024}')
                e(f'buffer_load_dwordx4 v65, {RA}, s{sF+k} offen lds')
        for k in range(wn if w0 <= n < len(STAGES) - 1 else 0):
            if wol:
                x = wol.pop(0)
                if len(wol) == 31: e('v_add_u32 v19, 768, v19\nv_add_u32 v20, 768, v20')
                if len(wol) < 32: x = re.sub(r'offset:(\d+)', lambda m_: f'offset:{int(m_.group(1)) - 768}', x)
                e(x)
    for n in range(NS - 1): issue(n)
    for n, (m, f) in enumerate(STAGES):
        a.wait_v(toks[n])
        e('s_waitcnt lgkmcnt(0)\ns_barrier')
        if stp and n in stp: a.raw(f's_memrealtime s[{96+2*stp.index(n)}:{97+2*stp.index(n)}]')
        if n + NS - 1 < len(STAGES): issue(n + NS - 1)
        for t in range(2):
            key = (m, f, t)
            for rho in (0, 2, 4, 6):
                p, b = ('v', (12, 64)[rho >> 2]) if key in LDS else REG[key]
                e(f'ds_read_b64_tr_b16 {vr(b+rho,2,p)}, v{22 + (rho >> 2)} offset:{(n % NS)*4096 + 4*((rho>>1)&1)*256 + 16*t}')
            if key in LDS:
                for hh in range(2): e(f'ds_write_b128 v{vW}, {vr((12, 68)[hh],4)} offset:{LDS[key] + hh*1024}')
                e('s_waitcnt lgkmcnt(0)')
        if n == len(STAGES) - 3 and pre: pre()
        if tries: rec_early(a, len(STAGES) - n, tries)
        if n == len(STAGES) - 7:
            for k in range(4):
                p, b = REG[('o', 4, k)]
                for u in range(2):
                    e(f'ds_read_b64_tr_b16 {vr(b+2*u,2,p)}, v66 offset:{L_D + k*1024 + u*256}')
    assert not wol
    e('s_waitcnt vmcnt(0)\ns_barrier')
    rec_early(a, 0, tries)
    for key, (p, b) in tmp.items():
        for hh in range(2): e(f'ds_write_b128 v{vW}, {vr(b+4*hh,4)} offset:{LDS[key] + hh*1024}')
    e('s_waitcnt lgkmcnt(0)')

def wfrag(key):
    p, b = REG[key]
    return vr(b, 4 if key[:2] == ('o', 4) else 8, p)

def rec_init(a, rdy0=0):
    e = a.e
    e(f'''s_mov_b32 s{sStep}, 0
    s_mov_b32 s{sMs}, {MRING}
    s_lshl_b32 s{sT0}, s{S_H}, 14
    s_lshl_b32 s{sT1}, s{S_W}, 12
    s_add_u32 s{sKx}, s{sT0}, s{sT1}
    s_add_u32 s{sKx}, s{sKx}, {KVX - 256}
    s_mov_b32 s{sPf}, {256 + 32*16384}
    s_mov_b32 s{sRedo}, -1
    s_mov_b32 s{sTry}, -1
    s_cmp_lg_u32 s{sPrD}, {OOB}
    s_cselect_b32 s{sMkD}, 1, 0
    s_lshl_b32 s{sMp}, s{S_H}, 12
    s_add_u32 s{sMp}, s{sMp}, {MRING + 2*MSTR - 256 - 32*16384}
    s_cmp_lt_u32 s{S_H}, 2
    s_cselect_b32 s{sMp}, s{sMp}, {OOB}
    s_mul_i32 s{sT0}, s{S_W}, {L_BLK}
    s_mov_b32 m0, s{sT0}
    s_lshl_b32 s{sKv}, s{S_H}, 12
    s_lshl_b32 s{sFlg}, s{S_H}, 6
    s_mov_b32 s{sPg}, {PROG}
    s_cmp_eq_u32 s{S_H}, 31
    s_cselect_b32 s{sPg}, s{sPg}, {OOB}
    s_add_u32 s{sKv}, s{sKv}, {KV}
    s_mov_b32 s{sC}, 0x3e0293ee
    s_mov_b32 s{sOne}, 0x3f803f80
    s_mov_b32 s{sOne+1}, 0x3f803f80
    s_mov_b32 s{sSpin}, 0x40000''')
    def m32(f):
        m = sum(1 << j for j in range(16) if f(j)); return hex(m | m << 16)
    def sel(r, vm_, masks):
        e(f'v_mov_b32 v{vT}, 0x3f80\ns_mov_b32 vcc_lo, {vm_}\ns_mov_b32 vcc_hi, {vm_}')
        e(f'v_cndmask_b32 v{vT}, v{vT}, 1.0, vcc')
        for q in range(4):
            e(f's_mov_b32 vcc_lo, {masks[q]}\ns_mov_b32 vcc_hi, {masks[q]}\nv_cndmask_b32 v{r+q}, 0, v{vT}, vcc')
    sel(VA, m32(lambda j: j & 1), [m32(lambda j: j >> 2 == q) for q in range(4)])
    sel(VA + 4, m32(lambda j: (j >> 2) & 1), [m32(lambda j: 2 * (j >> 3) + (j & 1) == q) for q in range(4)])
    e(f'''ds_write_b128 v{vSel}, {vr(VA,4)} offset:{L_SEL}
    ds_write_b128 v{vSel}, {vr(VA+4,4)} offset:{L_SEL+256}
    ds_write_b128 v{vL16}, {vr(C4,4)} offset:{L_TAB}
    s_waitcnt lgkmcnt(0)''')
def rec_disp(a, tag):
    for w in range(3):
        a.e(f's_cmp_eq_u32 s{S_W}, {w}\ns_cbranch_scc1 {tag}{w}_in')
    a.e(f's_branch {tag}3_in')

WO = 'p0,s0,w13,w21,l0,w22,l1,p1,w23,%s,s1,w31,w32,p2,w33,%s,s2,w41,w42,p3a,w43,p3b,%s,s3,p4,%s,s4,'
TAIL = {0: WO % ('rd', 'rd', 'rd,r2', '') + 'neg,ra,bar,rb,mst,r2,zq,zk,up,d28,DA,f0,qa,qb,qc,ms2,f1,zv,d60,DB,f2,d40,f3',
        1: WO % ('', '', '', '') + 'neg,bar,r2,zq,zk,up,d60,DA,f0,d60,f1,qa,qb,qc,DC,f2,d20,f3,ms2,zv',
        2: WO % ('', '', '', '') + 'neg,bar,zq,zk,r2,up,d60,DA,f0,d60,f1,qa,qb,qc,DC,f2,d20,f3,ms2,zv',
        3: WO % ('', '', '', '') + 'neg,bar,zq,zk,up,d40,r2,d20,DA,f0,d60,f1,qa,qb,qc,DC,f2,d20,f3,ms2,zv'}
W0 = WO % ('rd', 'rd', 'rd,r2', '') + 'neg,ra,bar,rb,mst,'; W1 = WO % ('', '', '', '') + 'neg,bar,'
RD = {'a': (('rd', 'rd', 'rd,r2', ''), 'rd'), 'b': (('', 'rd', 'rd,r2', ''), 'rd,a0,rd'), 'c': (('', '', 'rd,r2', ''), 'rd,a0,rd,a1,rd,r2'),
      'd': (('rd', 'rd', 'rd,r2', ''), 'rd,a0,rd'), 'e': (('', 'rd', 'rd', ''), 'rd,r2,a0,rd'), 'f': (('', 'rd', 'rd,r2', ''), 'd40,rd,d60,d40,rd'),
      'g': (('', 'rd', 'rd', ''), 'd40,rd,r2,d60,rd'), 'h': (('', '', 'rd', ''), 'rd,r2,d60,rd,d60,rd,d60,rd,r2')}
RD.update(A=(('rd', 'rd', 'rd', ''), 'rd,r2', 'w13'), B=(('rd', 'rd', 'rd', ''), 'rd,r2', 'w21'), C=(('rd', 'rd', 'rd,r2', ''), 'rd', 'w13'), D=(('rd', 'rd', 'rd,r2', ''), 'rd', 's0'),
          E=(('', 'rd', 'rd', ''), 'rd,r2', 'l1'), F=(('rd', 'rd,r2', 'rd', ''), 'rd,r2', 'w13'), G=(('rd', 'rd', 'rd,r2', ''), '', 'w13'), H=(('rd', 'rd,r2', 'rd,r2', ''), '', 'w13'))
def w0(k):
    if k is None: return W0
    x = WO % RD[k][0] + 'neg,' + RD[k][1] + ',ra,bar,rb,mst,'
    return x.replace(RD[k][2] + ',', RD[k][2] + ',rd,') if k.isupper() else x
E1 = {'a': ('a2,r2', '', ''), 'b': ('a2,r2', 'a3,r2', ''), 'c': ('a2,r2', 'a3,r2', 'a4,r2'), 'd': ('a1,r2', 'a2,r2', ''), 'e': ('a3,r2', 'a4,r2', ''), 'f': ('a4,r2', 'a4,r2', 'a4,r2'), '-': ('', '', '')}
def three(x, e1='-', k=1):
    y = {1: 'r2,zq,zk,up,', 2: 'zq,zk,r2,up,', 3: 'zq,zk,up,r2,'}
    return {w: W1.replace('neg,', 'neg,' + E1[e1][w-1] + ',') + (y[w] if k or not E1[e1][w-1] else 'zq,zk,up,') + x for w in y}
TL0 = {'a': 'r2,zq,zk,up,f0,qa,qb,qc,ms2,f1,zv,f2,f3',
      'b': 'r2,up,qa,qb,qc,ms2,f0,f1,zq,zk,zv,d60,f2,d40,f3',
      'c': 'r2,up,zq,qa,f0,qb,qc,ms2,f1,zk,zv,d60,f2,d40,f3',
      'd': 'r2,up,zq,qa,f0,qb,qc,ms2,f1,zk,zv',
      'e': 'r2,zq,zk,up,f0,qa,qb,qc,ms2,f1,zv',
      'i': 'r2,up,qa,qb,qc,ms2,f0,f1,zq,zk,zv,f2,f3',
      'j': 'up,qa,qb,qc,ms2,f0,f1,zq,zk,zv,d60,f2,d40,f3',
      'k': 'r2,up,qa,qb,qc,ms2,f0,f1,zq,zk,zv,d28,f2,d20,f3',
      'l': 'r2,up,qa,b2,qb,qc,ms2,f0,f1,zq,zk,zv,d60,f2,d40,f3',
      'm': 'r2,up,qa,qb,qc,ms2,b2,f0,f1,zq,zk,zv,d60,f2,d40,f3',
      'n': 'r2,up,qa,b2,qb,qc,ms2,f0,f1,zq,zk,zv,am,f2,f3',
      'o': 'r2,up,qa,b2,qb,qc,ms2,f0,f1,zq,zk,zv,b2,f2,f3',
      'p': 'r2,up,qa,qb,b2,qc,ms2,f0,f1,zq,zk,zv,am,f2,f3',
      'q': 'r2,up,qa,qb,qc,ms2,b2,f0,f1,zq,zk,zv,am,f2,f3',
      'r': 'r2,up,qa,qb,qc,ms2,zq,zk,zv,b2,f0,f1,am,f2,f3',
      's': 'r2,up,qa,qb,qc,ms2,zq,zk,zv,d60,b2,f0,f1,am,f2,f3',
      't': 'r2,up,qa,qb,qc,ms2,zq,zk,zv,d60,d60,b2,f0,f1,am,f2,f3',
      'u': 'r2,up,qa,qb,qc,ms2,zq,zk,zv,b2,f0,f1,b2,f2,f3',
      'v': 'r2,up,qa,qb,qc,ms2,zq,zk,zv,b2,f0,f1,f2,f3',
      'w': 'r2,up,qa,b2,qb,qc,ms2,f0,zq,zk,zv,g0,f1,am,f2,f3',
      'x': 'r2,up,b2,qa,f0,qb,qc,ms2,zq,zk,zv,g0,f1,am,f2,f3',
      'y': 'r2,up,qa,b2,qb,qc,ms2,f0,f1,zq,zk,zv,am,g0,g1,f2,f3',
      'g': 'r2,zq,zk,up,d28,f0,qa,qb,qc,ms2,f1,g0,zv,d60,f2,d40,f3',
      'h': 'r2,zq,zk,up,f0,qa,qb,qc,ms2,g0,f1,zv,d60,f2,d40,f3',
      }
TL1 = {'a': 'f0,f1,qa,qb,qc,f2,f3,ms2,zv',
      'b': 'd28,f0,d60,f1,qa,qb,qc,f2,d20,f3,ms2,zv',
      'c': 'd60,f0,d60,f1,qa,qb,qc,ms2,zv',
      'd': 'f0,wr,f1,qa,qb,qc,ms2,zv',
      'i': 'd60,f0,d28,f1,qa,qb,qc,f2,f3,ms2,zv',
      'j': 'd60,f0,f1,qa,qb,qc,f2,f3,ms2,zv',
      'k': 'd40,f0,d60,f1,qa,qb,qc,f2,d20,f3,ms2,zv',
      'l': 'b2,f0,f1,qa,qb,qc,f2,f3,ms2,zv',
      'm': 'b2,f0,wr,f1,qa,qb,qc,f2,f3,ms2,zv',
      'o': 'b2,f0,f1,qa,qb,qc,b2,f2,f3,ms2,zv',
      'p': 'd100,f0,d28,f1,qa,qb,qc,f2,f3,ms2,zv',
      'r': 'wr,b2,f0,f1,qa,qb,qc,f2,f3,ms2,zv',
      's': 'qa,b2,f0,f1,qb,qc,ms2,f2,f3,zv',
      't': 'wr,b2,f0,qa,f1,qb,qc,ms2,f2,f3,zv',
      'u': 'qa,qb,qc,ms2,b2,f0,f1,f2,f3,zv',
      'v': 'qa,qb,qc,ms2,b2,f0,am,f1,f2,f3,zv',
      'q': 'b2,f0,qa,qb,qc,ms2,f1,zv,f2,f3',
      'n': 'qa,b2,f0,qb,qc,ms2,f1,zv,am,f2,f3',
      'w': 'b2,f0,wr,g0,f1,qa,qb,qc,f2,f3,ms2,zv',
      'x': 'b2,f0,qa,g0,f1,qb,qc,f2,f3,ms2,zv',
      'y': 'b2,f0,wr,f1,qa,qb,qc,g0,g1,f2,f3,ms2,zv',
      'z': 'b2,f0,qa,qb,qc,g0,f1,f2,f3,ms2,zv',
      'g': 'd60,f0,d60,f1,qa,g0,qb,qc,f2,d20,f3,ms2,zv',
      'h': 'd28,f0,qa,g0,f1,qb,qc,f2,d20,f3,ms2,zv',
      }
PAR = dict(l2=0, l3=2, l4=6, l5=7, l6=14, l7=18, l8=16, pf=24, qb=49, kv=65)
KD = '12.19.26.34'
CHK = '1.3.5,2.9.11,3.15.17,45.21.23,678.33.35'
def opt(abl, key, d=None):
    for x in abl:
        if x.startswith(key + '='): return x[len(key)+1:]
    return d

def rec_loop(a, w, stamps=None, fin='R_done', abl=(), tag='R', cs=''):
    b = Asm(); b.uid = 10000
    rec_body(b, w, None, fin, abl, tag, cs)
    a.vq = list(b.endq[0]); a.lq = list(b.endq[1])
    rec_body(a, w, stamps, fin, abl, tag, cs)

def rec_body(a, w, stamps, fin, abl, tag, cs):
    drops = [re.compile(x[2:].replace('~', ' ')) for x in abl if x.startswith('x=')]
    if 'nodma' in abl: drops.append(re.compile(r'p1:buffer_load_dwordx4.*lds'))
    sec = ['p1']
    def e(text):
        for line in text.split('\n'):
            line = line.strip()
            if 'free' in abl: line = re.sub(r'v_cmp_(eq_u32|ne_u32|u_f32) vcc', 'v_cmp_f_f32 vcc', line)
            if any(d.search(sec[0] + ':' + line) for d in drops): continue
            a.e(line)
    def stamp(name, at=40):
        if name in ('t0', 'sdone', 'pvdone', 'st0', 'st3'): sec[0] = name
        if stamps is None or name not in stamps: return
        k = stamps.index(name)
        lab = a.newlabel('st')
        at += int(opt(abl, 'at', 40)) - 40
        a.raw(f's_cmp_eq_u32 s{sStep}, {at}'); a.raw(f's_cbranch_scc0 {lab}')
        a.raw(f's_memtime s[{sStamp+2*k}:{sStamp+2*k+1}]'); a.raw(f'{lab}:')
    P_ = {k: int(opt(abl, k, v)) for k, v in PAR.items()}
    def cnt(k):
        if 'cnt' in abl: e(f's_add_u32 s{76+2*k}, s{76+2*k}, 1')
    FB = [MB[0], MB[1], MB[2], VX, VX + 4, MB[0], MB[1], MB[2], C4]
    def ldw(key, buf, hh): return f'ds_read_b128 {vr(buf+4*hh,4)}, v{vW} offset:{LDS[key] + hh*1024}'
    def ldkx(n): return f'ds_read_b128 {vr(KB[n],4)}, v{vL16} offset:{(w ^ (n >> 1))*L_BLK + 256 + (n & 1)*1024}'
    def ldv(n): return f'ds_read_b128 {vr(VX+4*n,4)}, v{vL16} offset:{w*L_BLK + 2304 + n*1024}'
    def ldz(k, r, kq=0): return f'ds_read_b128 {vr(r,4)}, v{vZ} offset:{L_QK + (w ^ k)*1152 + kq*576}'
    def fillr(r, n, val=0): return '\n'.join(f'v_mov_b64 {vr(r+k,2)}, {val}' for k in range(0, n, 2))
    def zero(r, n): e(fillr(r, n))
    lc = ' sc1' if 'lsc' in abl else cs
    km = {'0': '', '1': ' sc1', 'n': ' nt', 's': ' sc0'}; km, pm = km[opt(abl, 'km', '11')[0]], km[opt(abl, 'km', '11')[1]]
    def ldf(i, m=None, r=None):
        return f'buffer_load_dwordx4 {vr(FB[i] if r is None else r,4)}, v{vL16}, {WS}, s{(sMs, sM1, sM2)[i >> 2]} offen offset:{(i & 3)*1024}{lc if m is None else m}'
    def dma(n): return f'buffer_load_dwordx4 v{vL16}, {WS}, s{sKx} offen offset:{256 + n*1024}{km} lds'
    def blind(line, name):
        a.auto = False; e(line); a.auto = True
        a.vq[-1] = {name}
    def add(r): return f'v_add_f32 v{r}, v{r}, v{r+2}'
    def cvt(d, r, r2=None): return f'v_cvt_pk_bf16_f32 v{d}, v{r}, v{r+1 if r2 is None else r2}'
    def upm(): e(f's_add_u32 s{sM1}, s{sMs}, 4096\ns_add_u32 s{sM2}, s{sMs}, 8192')
    spin = f's_sub_u32 s{sSpin}, s{sSpin}, 1\ns_cbranch_scc1 {fin}'
    lbuf = {k: SB[n % 2] for n, k in enumerate(LDS_P1)}
    L = lambda s: f'{tag}{w}_{s}'
    acc = {'q': QA, 'k': KA, 'v': VA}
    X = SB[0]; Tm = SB[0] + 4
    T = [KA, KA + 4]
    Zq = [QA, QA + 4, SB[1], SB[1] + 4]
    Zk = [VA, MB[0], MB[1], VA + 4]
    KB = [Tm, VX, VX + 4, MB[0], MB[1], MB[2], C4, Tm]
    m_ = vT
    fill = {n: [] for n in range(-1, 70)}
    def put(n, *x): fill[n] += list(x)
    put(-1, f'v_cmp_eq_u32 vcc, -1, v{FB[0]+3}', '#got0')
    put(1, f's_cbranch_vccnz {L("f0")}', '#g0')
    put(3, '#wr')
    for k, (n0, n1) in enumerate(((0, 2), (3, 4))): put(n0, ldw(LDS_P1[k], SB[k], 0)); put(n1, ldw(LDS_P1[k], SB[k], 1))
    for k in range(10):
        for hh in range(2): put(P1_LDS_POS[k] + hh, ldw(LDS_P1[k+2], SB[k % 2], hh))
    tl = opt(abl, 'tl', 'nm')
    tw = TAIL[w] if tl[w > 0] == '-' else three(TL1[tl[1]], opt(abl, 'e1', '-'), 'e0' not in abl)[w] if w else w0(opt(abl, 'rd', 'e')) + TL0[tl[0]]
    tail = [x for x in tw.split(',') if x]
    tail = [f'd{opt(abl, x, 0)}' if x[0] == 'D' else x for x in tail]
    lat = {f: -9 if f'f{f}' in tail else int(opt(abl, f'l{f}', PAR.get(f'l{f}'))) for f in range(9)}
    for f in range(1, 9):
        if lat[f] >= 0: put(lat[f], ldf(f))
    pw = opt(abl, 'pw', '02'); mw = int(opt(abl, 'mw', 1))
    pfg = P_['pf']; mg = int(opt(abl, 'mg', 37))
    if w < 3: put(29, f'v_lshl_add_u32 v{vT2}, v{vL16}, 3, s{sPf}')
    for k in range(2):
        if w == int(pw[k]) and 'nopf' not in abl:
            if w != 2 * k: put(30, f's_add_u32 s{sT0}, s{sKx}, {(2*k - w)*4096}')
            put(pfg + (k if pw[0] == pw[1] else 0), f'buffer_load_dword v{vT2}, {WS}, s{sT0 if w != 2 * k else sKx} offen{pm} lds')
    if w == mw and 'nomp' not in abl: put(mg, f'buffer_load_dword v{vT2}, {WS}, s{sMp} offen sc1 lds')
    pgc = opt(abl, 'pc')
    if pgc and w == DW: put(int(pgc), f'v_mov_b32 v{vT}, s{sStep}', f'buffer_store_dword v{vT}, v{vZero}, {WS}, s{sPg} offen sc1')
    kd = [int(x) for x in opt(abl, 'kd', KD).split('.')]
    kb = opt(abl, 'kb', 'a')
    for n in range(4):
        if kd[n] < 65: put(kd[n], dma(n), f'#d{n}')
        else: put(kd[n], dma(n).replace(f's{sKx} ', f's{sT2} '), f'#d{n}')
    if kd[0] >= 65: put(48, f's_add_u32 s{sT2}, s{sKx}, {32*16384}')
    if kb == 'a': fill[36] = ['#kb', ldkx(3)] + fill[36]; put(39, ldkx(2)); put(40, ldkx(0)); put(41, ldkx(1))
    if kb == 'b': put(29, ldkx(1)); put(30, ldkx(2)); put(39, ldkx(3)); put(40, ldkx(0))
    if kb == 'd': fill[36] = ['#kc'] + fill[36]; kb = 'c'
    if kb == 'c': put(47, '#kw', ldkx(0)); put(48, ldkx(1))
    vg = [int(x) for x in opt(abl, 'vg', '60.61').split('.')]
    chk = [x.split('.') for x in (CHK.replace('45.21.23', '4.21.23,5.27.29') if 'c5' in abl else CHK).split(',')]
    for fs, c, b in chk:
        r = [FB[int(f)] + 3 for f in fs]
        if len(r) == 3: put(int(c) - 1, f'v_max_u32 v{vT}, v{r[0]}, v{r[2]}'); r[0] = vT
        put(int(c), f'v_cmp_u_f32 vcc, v{r[0]}, v{r[1]}' if len(r) > 1 else f'v_cmp_eq_u32 vcc, -1, v{r[0]}')
        put(int(b), f's_cbranch_vccnz {L("c" + fs)}', f'{L("g" + fs)}:')
    put(12, '#bar1')
    put(42, add(QA), add(QA + 1))
    put(43, add(QA + 4), add(QA + 5))
    put(44, cvt(X + 1, QA, QA + 4), cvt(X + 3, QA + 1, QA + 5))
    put(45, f'ds_write2_b32 v{vXw}, v{X+1}, v{X+3} offset0:0 offset1:4', '#mw')
    put(46, ldz(0, Zq[0]), add(KA)); put(47, add(KA + 1))
    put(P_['qb'], '#bar', '#qbar')
    if kb == 'c': put(49, ldkx(2)); put(50, ldkx(3))
    put(49, add(KA + 4))
    put(50, ldz(1, Zq[1]), add(KA + 5))
    put(51, ldkx(4), cvt(X, KA, KA + 4))
    put(52, ldkx(5), cvt(X + 2, KA + 1, KA + 5))
    put(53, ldz(2, Zq[2]), ldkx(6), f'ds_write2_b32 v{vXw}, v{X}, v{X+2} offset0:144 offset1:148', '#t0')
    put(54, ldkx(7), '#mw', add(VA)); put(55, ldz(3, Zq[3]), add(VA + 1)); put(vg[0], '#v2', ldv(0)); put(56, cvt(X + 1, VA))
    put(57, ldz(0, Zk[0], 1), add(VA + 4))
    put(58, '#bar', ldz(1, Zk[1], 1), add(VA + 5))
    put(59, ldz(2, Zk[2], 1), cvt(X + 3, VA + 4))
    put(60, ldz(3, Zk[3], 1))
    put(vg[1], '#v3', ldv(1))
    ONE, PmQ, P, LL = MB[0], vZero, VA, MB[2]
    O0, O1 = MB[1], VA + 4
    wb = [QA, SB[1]]
    put(62, f'v_cmp_u_f32 vcc, v{T[0]}, v{T[0]}', f'v_max3_f32 v{m_}, v{T[0]}, v{T[0]+1}, v{T[0]+2}')
    put(63, f'v_max3_f32 v{m_}, v{m_}, v{T[0]+3}, v{T[1]}', f'v_max3_f32 v{m_}, v{m_}, v{T[1]+1}, v{T[1]+2}')
    put(64, f's_cbranch_vccnz {L("fn")}', f'{L("gn")}:')
    if 'nokv' not in abl: put(65, f'buffer_store_dwordx4 {vr(X,4)}, v{vL16}, {WS}, s{sKv} offen offset:{w*1024} sc1')
    put(65, f'ds_read_b128 {vr(C4,4)}, v{vL16} offset:{L_TAB}', ldw(LDS_WO[0], wb[0], 0), fillr(ONE, 4, f's[{sOne}:{sOne+1}]'), f'v_max_f32 v{m_}, v{m_}, v{T[1]+3}')
    tok = {}
    def mf(n):
        if n < 54:
            key = P1SEQ[n]
            m, i, t = key
            wv = vr(lbuf[key], 8) if key in LDS else wfrag(key)
            return f'{SMF} {vr(acc[m]+4*t,4)}, {vr(FB[i],4)}, {wv}, v{vIdx}'
        if n < 62:
            k = n - 54
            return f'{MF32} {vr(T[k & 1],4)}, {vr(KB[k],4)}, {vr(Zq[k >> 1],4)}, {"0" if k < 2 else vr(T[k & 1],4)}'
        k = n - 62
        return f'{MF32} {vr(Tm,4)}, {vr(Zk[k],4)}, {vr(Zq[k],4)}, {"0" if k == 0 else vr(Tm,4)}'
    def ops(n): return Ins(mf(n)).src if n < 66 else set()
    def emit(n):
        pw = False
        for x in fill[n]:
            if x == '#got0': stamp('got0'); stamp('got0n', 41)
            elif x in ('#bar1', '#qbar', '#t0'): stamp(x[1:])
            elif x == '#g0': tok['g0'] = ([len(a.vq) - 1 - k for k, q in enumerate(a.vq) if '#g0' in q] + [0])[0]
            elif x[:2] == '#d': tok[x] = a.mark_v()
            elif x == '#kb':
                if kd[1] < 65: a.wait_v(tok['#d1'])
                a.waitfor(ops(n + 1)); e('s_barrier')
            elif x == '#kc': a.waitfor(ops(n + 1)); e('s_barrier')
            elif x == '#kw': a.wait_v(tok['#d1'])
            elif x[:2] == '#v': a.wait_v(tok['#d' + x[2]])
            elif x == '#mw': tok['mw'] = a.mark_l()
            elif x == '#wr': a.waitfor({f'#r{sPrd}'})
            elif x == '#bar': a.waitfor(tok['mw'] | ops(n + 1)); e('s_barrier')
            else:
                if x[:2] == 'v_' and not pw: a.waitfor(ops(n + 1) | Ins(x.split('\n')[0]).src); pw = True
                e(x)
    e(f'{L("go")}:')
    a.waitfor({f'v{FB[0]}'})
    stamp('go1', 41)
    e(f'{L("go2")}:')
    if 'tr' in abl and w == 3:
        a.raw('s_memrealtime s[76:77]'); a.raw('s_memtime s[78:79]')
    if opt(abl, 'ts'):
        lab = a.newlabel('ts')
        a.raw(f's_cmp_eq_u32 s{sStep}, {opt(abl, "ts")}'); a.raw(f's_cbranch_scc0 {lab}'); a.raw('s_memrealtime s[100:101]'); a.raw('s_memtime s[98:99]'); a.raw(f'{lab}:')
    emit(-1)
    for n in range(66): e(mf(n)); emit(n)
    stamp('sdone')
    e(f'''v_max3_f32 v{Tm+2}, v{m_}, v{Tm}, v{Tm+1}
    v_max3_f32 v{m_}, v{m_}, v{Tm}, v{Tm+1}
    s_add_u32 s{sKv}, s{sKv}, {32*4096}
    s_add_u32 s{sMs}, s{sMs}, {MSTR}
    v_permlane32_swap_b32 v{m_}, v{Tm+2}
    v_max_f32 v{Tm+3}, v{m_}, v{Tm+2}
    v_max_f32 v{m_}, v{m_}, v{Tm+2}
    s_add_u32 s{sMst}, s{sMs}, s{sMo}''')
    e(f'''v_permlane16_swap_b32 v{m_}, v{Tm+3}
    v_max_f32 v{m_}, v{m_}, v{Tm+3}''')
    T0 = T[0]
    def ex(r): e(f'v_exp_f32 v{r}, v{r}')
    e(f'v_mul_f32 v{Tm+2}, s{sC}, v{m_}')
    for r in (Tm, T0, T0 + 2, T0 + 4, T0 + 6):
        e(f'v_pk_fma_f32 {vr(r,2)}, {vr(r,2)}, s[{sC}:{sC+1}], {vr(Tm+2,2)} op_sel_hi:[1,0,0] neg_lo:[0,0,1] neg_hi:[0,0,1]')
    ex(Tm); ex(Tm + 1); ex(T0); e(cvt(PmQ + 1, Tm)); ex(T0 + 1); ex(T0 + 2)
    e(f'{MF16} {vr(O0,4)}, {vr(X,2)}, {vr(PmQ,2)}, 0')
    e(cvt(P, T0)); ex(T0 + 3)
    e(f'{MF16} {vr(O1,4)}, {vr(X+2,2)}, {vr(PmQ,2)}, 0')
    def prog(at):
        if w == DW and pgc and at == 'a':
            e(f's_cmp_ge_u32 s{sStep}, {opt(abl, "pl", 62)}\ns_cselect_b32 s{sT0}, s{sPg}, {OOB}\nv_add_u32 v{vT}, s{sStep}, 1\nbuffer_store_dword v{vT}, v{vMst}, {WS}, s{sT0} offen sc1')
        elif w == DW and opt(abl, 'pg', 'a') == at: e(f'v_add_u32 v{vT}, s{sStep}, 1\nbuffer_store_dword v{vT}, v{vMst}, {WS}, s{sPg} offen sc1')
    prog('a')
    ex(T0 + 4); e(cvt(P + 1, T0 + 2)); ex(T0 + 5)
    e(f'{MF16} {vr(LL,4)}, {vr(PmQ,2)}, {vr(ONE,2)}, 0')
    e(ldw(LDS_WO[0], wb[0], 1))
    ex(T0 + 6); ex(T0 + 7)
    e(cvt(P + 2, T0 + 4)); e(cvt(P + 3, T0 + 6))
    W = [VX, VX + 4, KA, KA + 4, Tm]
    zero(W[2], 4)
    e(f'{MF32} {vr(O0,4)}, {vr(VX,4)}, {vr(P,4)}, {vr(O0,4)}')
    zero(W[3], 4)
    e(f'{MF32} {vr(O1,4)}, {vr(VX+4,4)}, {vr(P,4)}, {vr(O1,4)}')
    zero(W[0], 4)
    e(f'{MF32} {vr(LL,4)}, {vr(P,4)}, {vr(ONE,4)}, {vr(LL,4)}')
    OF = [P, MB[0], MB[1], VA + 4]
    e(cvt(P, O0)); e(cvt(P + 1, O0 + 2)); zero(W[1], 4); e(cvt(P + 2, O1)); e(cvt(P + 3, O1 + 2))
    e(f'ds_write_b128 v{vZ}, {vr(P,4)} offset:{L_QK + w*1152}')
    toko = a.mark_l()
    e(f's_add_u32 s{sKx}, s{sKx}, {32*16384}')
    prog('b')
    stamp('pvdone')
    if 'tr' in abl and w == 3:
        for x in (f'v_mov_b32 v{vT}, s76', f'v_mov_b32 v{vT2}, s78', f's_lshl_b32 s80, s{sStep}, 8', f's_lshl_b32 s81, s{S_H}, 3', 's_add_u32 s80, s80, s81', f's_add_u32 s80, s80, {STAMP + 0x8000}'): a.raw(x)
        e(f'buffer_store_dword v{vT}, v{vZero}, {WS}, s80 offen\nbuffer_store_dword v{vT2}, v{vZero}, {WS}, s80 offen offset:4')
    IV = LL
    wbuf = {k: wb[(0, 1, 0, 1, 0)[n]] for n, k in enumerate(LDS_WO)}
    def wo(u, k):
        key = ('o', u, k)
        if u == 4: e(f'{MF32} {vr(W[4],4)}, {vr(OF[k],4)}, {wfrag(key)}, {"0" if k == 0 else vr(W[4],4)}')
        else: e(f'{SMF} {vr(W[u],4)}, {vr(OF[k],4)}, {vr(wbuf[key], 8) if key in LDS else wfrag(key)}, v{vIdx} abid:1')
    ack = {}
    RDR, SEL, D, R2 = {sPrd: (SB[1], SB[1] + 4), sPrD: (VX, VX + 4)}, VA, X, Tm + 2
    if w == 0 and opt(abl, 'rd', 'a').isupper(): RDR, D = {sPrd: (X, VX), sPrD: (SB[1], SB[1] + 4)}, QA
    def rdl(s): return [f'buffer_load_dwordx4 {vr(RDR[s][l],4)}, v{vL16}, {WS}, s{s} offen offset:{l*1024} sc1' for l in range(2)]
    nrd = {}
    def rd(s):
        nrd[s] = nrd.get(s, 0) + 1
        for x in rdl(s):
            if nrd[s] == 1: e(x)
            else: blind(x, f'#r{s}')
        if len(nrd) == 1 and nrd[s] == 1: stamp('rd', 41)
    def epi(u):
        r = W[u]
        x = [f'v_mul_f32 v{r+k}, v{r+k}, v{IV + (k & 1)}' for k in ((0, 2, 1, 3) if u < 4 else (0, 1))]
        x += [cvt(r, r, r + 2), cvt(r + 1, r + 1, r + 3)] if u < 4 else [cvt(r, r)]
        return x + [f'v_bfi_b32 v{r+k}, 1, s{sStep}, v{r+k}' for k in range(2 if u < 4 else 1)]
    def st(u):
        r = W[u]
        if u < 4: e(f'buffer_store_dwordx2 {vr(r,2)}, v{vP}, {WS}, s{sPW+u} offen{cs}')
        else: e(f'buffer_store_dword v{r}, v{vPD}, {WS}, s{sPW+4} offen{cs}')
        ack[u] = a.mark_v()
        if u in (0, 3): stamp(f'st{u}', 41)
    wo(4, 0)
    e(ldw(LDS_WO[1], wb[1], 0))
    wo(2, 0)
    e(ldw(LDS_WO[1], wb[1], 1)); e(f's_cmp_eq_u32 s{sStep}, 63')
    wo(0, 0)
    e(f's_cbranch_scc1 {fin}')
    a.wait_l(toko); e('s_barrier')
    wo(1, 0)
    for k in (1, 2, 3): e(ldz(k, OF[k]))
    wo(3, 0)
    e(ldw(LDS_WO[2], wb[0], 0)); e(ldw(LDS_WO[2], wb[0], 1))
    e(f'v_rcp_f32 v{IV}, v{IV}\nv_rcp_f32 v{IV+1}, v{IV+1}')
    wo(0, 1); e(ldw(LDS_WO[3], wb[1], 0))
    wo(0, 2); e(ldw(LDS_WO[3], wb[1], 1))
    wo(0, 3); e(f'ds_read_b128 {vr(SEL,4)}, v{vSel} offset:{L_SEL + (256 if w == DW else 0)}')
    wo(1, 1); e(f's_add_u32 s{sStep}, s{sStep}, 1\ns_add_u32 s{sT1}, s{sMs}, s{sMoD}')
    if w == DW: e(f's_and_b32 s{sPaD}, s{sStep}, s{sMkD}')
    wo(1, 2)
    fails = []
    ldfl = f's_load_dword s{sRdy}, s[{P_WSP}:{P_WSP+1}], s{sFlg} glc'
    def rsum(s, part='ab'):
        r = RDR[s]; par = sPaD if w == DW else sStep
        t = (vT, vT2, Tm, Tm + 1)
        if 'a' in part:
            for l in range(2):
                q = r[l]
                for k in range(2): e(f'v_bitop3_b32 v{t[2*l+k]}, v{q+2*k}, v{q+2*k+1}, s{par} bitop3:0x7e')
                e(f'{MF32} {vr(D,4)}, {vr(SEL,4)}, {vr(q,4)}, {"0" if l == 0 else vr(D,4)}')
            e(f'v_or3_b32 v{vT}, v{vT}, v{vT2}, v{Tm}\nv_bitop3_b32 v{vT}, v{vT}, v{Tm+1}, 1 bitop3:0xa8\nv_cmp_ne_u32 vcc, 0, v{vT}')
        if 'b' in part:
            for k in range(2): e(f'v_add_f32_dpp v{D+k}, v{D+k}, v{D+k} row_ror:8 row_mask:0xf bank_mask:0xf')
    def rchk(nm, s):
        e(f's_cbranch_vccnz {L("f" + nm)}\n{L(nm)}:')
        assert ('f0' if s == sPrd else 'f3') not in done and 's4' in done
        fails.append((nm, s, [len(a.vq) - 1 - k for k, q in enumerate(a.vq) if f'#r{s}' in q][1::2]))
    def rfin():
        for k in range(2): e(f'v_add_f32_dpp v{R2+k}, v{D+k}, v{D+k} row_ror:4 row_mask:0xf bank_mask:0x1')
        e(cvt(vT, R2))
    done = []
    assert tail.count('bar') == 1
    for x in tail:
        done.append(x)
        if x == 'ra': rsum(sPrd); rchk('rp', sPrd); stamp('ok', 41)
        elif x == 'qa':
            if w == DW and 'sk' in abl:
                skq = list(a.vq); e(f's_cmp_eq_u32 s{sMkD}, 0\ns_cbranch_scc1 {L("sk")}')
            rsum(sPrD, 'a')
        elif x == 'qb': rsum(sPrD, 'b'); rchk('rq', sPrD)
        elif x in ('rb', 'qc'):
            rfin()
            if x == 'qc' and w == DW and 'sk' in abl:
                e(f'{L("sk")}:'); a.vq = [set() if q & {f'v{VX}', f'v{VX+4}'} else q for q in skq]
        elif x == 'up':
            upm()
            if w == mw: e(f's_add_u32 s{sMp}, s{sMp}, {MSTR}')
        elif x == 'b2': e('s_barrier')
        elif x == 'neg':
            if 'ns' not in abl: e(fillr(R2, 2, -1))
        elif x == 'zq': zero(QA, 8)
        elif x == 'zk': zero(KA, 8)
        elif x == 'zv': zero(VA, 8)
        elif x == 'rd': rd(sPrd)
        elif x == 'r2': rd(sPrD)
        elif x == 'wr': a.wait_v({f'v{RDR[sPrD][0]}'})
        elif x in ('mst', 'ms2'):
            e(f'buffer_store_dword v{vT}, v{vMst}, {WS}, s{sMst if x == "mst" else sT1} offen{cs}')
            if x == 'mst':
                assert done[-4:] == ['ra', 'bar', 'rb', 'mst']
                e(f'{L("yrp")}:')
            ack['m'] = a.mark_v(); stamp('mst' if x == 'mst' or w else 'zrdy', 41)
        elif x == 'bar':
            if w == DW: e(f's_add_u32 s{sT0}, s{sStep}, 1\n{L("fc")}:\ns_cmp_gt_u32 s{sRdy}, s{sT0}\ns_cbranch_scc0 {L("flg")}')
            if kd[1] >= 65: a.wait_v(tok['#d1'])
            e('s_barrier'); stamp('bar', 41)
            if w == DW: a.raw(ldfl)
        elif x[0] == 'f':
            e(ldf(int(x[1])))
            if x == 'f0': stamp('e0', 41)
        elif x[0] == 'g': blind(ldf(int(x[1]), ' sc1'), '#' + x)
        elif x[0] == 'w': wo(int(x[1]), int(x[2]))
        elif x[0] == 'l': e(ldw(LDS_WO[4], wb[0], int(x[1])))
        elif x[0] == 'p':
            y = epi(int(x[1]))
            e('\n'.join(y if len(x) == 2 else y[:2] if x[2] == 'a' else y[2:]))
        elif x[0] == 's': st(int(x[1]))
        elif x[0] == 'a': a.wait_v(ack[int(x[1:]) if x[1:] != 'm' else 'm'])
        elif x[0] == 'd':
            n = int(x[1:]) // 4
            while n > 0:
                k = min(n, 16); e(f's_nop {k-1}'); n -= k
        else: raise ValueError(x)
    a.endq = (list(a.vq), list(a.lq))
    e(f's_branch {L("go")}')
    sec[0] = 'rare'
    def clr(): a.vq = []; a.lq = []
    early = [int(x[1]) for x in tail if x[0] == 'f']
    clr()
    e(f'{L("in")}:\ns_cmp_gt_u32 s{sRdy}, 1\ns_cselect_b32 s{sT0}, s{sF}, 0\ns_cmp_gt_u32 s{sT0}, 0\ns_cbranch_scc1 {L("in1")}')
    e(f's_xor_b32 s{sT0}, s{sFlg}, 64')
    e(f'{L("in0")}:\n{ldfl}\ns_load_dword s{sF}, s[{P_WSP}:{P_WSP+1}], s{sT0} glc\n{spin}\ns_waitcnt lgkmcnt(0)\ns_cmp_gt_u32 s{sRdy}, 1\ns_cbranch_scc0 {L("in0")}')
    e(f'{L("in1")}:')
    upm()
    if 'np' not in abl:
        for f in early: e(ldf(f))
        e(f'v_lshlrev_b32 v{vT2}, 3, v{vL16}\ns_bitcmp1_b32 s{S_H}, 0\ns_cselect_b32 s{sT1}, -1, 1\ns_mul_i32 s{sT1}, s{sT1}, {TS}')
        pfl = lambda x: e(f'buffer_load_dword v{vT2}, {WS}, s{x} offen sc1 lds')
        if not w & 1: e(f's_add_u32 s{sT0}, s{sKx}, 256'); pfl(sT0)
        if w & 1:
            e(f's_add_u32 s{sT0}, s{sKx}, {256 - 4096}\ns_xor_b32 s{sT0}, s{sT0}, 16384\ns_cmp_gt_u32 s{sF}, 0\ns_cselect_b32 s{sT0}, s{sT0}, {OOB}')
            pfl(sT0)
        elif w == 0: e(f's_add_u32 s{sT0}, s{sPrd}, s{sT1}')
        else: e(f's_bfe_u32 s{sT0}, s{S_H}, 0x20002\ns_mul_i32 s{sT0}, s{sT0}, 2304\ns_and_b32 s{sT2}, s{S_H}, 16\ns_lshl_b32 s{sT2}, s{sT2}, 10\ns_add_u32 s{sT0}, s{sT0}, s{sT2}\ns_add_u32 s{sT0}, s{sT0}, s{sMs}')
        e(f's_add_u32 s{sT1}, s{sPrD}, s{sT1}\ns_mov_b64 exec, 0x3ffff')
        if not w & 1: pfl(sT0)
        pfl(sT1)
        e('s_mov_b64 exec, -1')
        zero(QA, 16); zero(VA, 8)
        e(f's_waitcnt vmcnt({3 - (w & 1)})\ns_barrier\ns_branch {L("go2")}')
        clr()
    else:
        for n in range(4): e(dma(n))
    e(f'{L("in2")}:')
    for f in early: e(ldf(f))
    zero(QA, 16); zero(VA, 8)
    e(f's_waitcnt vmcnt(0)\ns_barrier\ns_branch {L("go2")}')
    clr()
    e(f'{L("f0")}:')
    if 'g0' in tail:
        assert tok['g0'] is not None
        a.auto = False
        e(f's_cmp_eq_u32 s{sTry}, s{sStep}\ns_cbranch_scc1 {L("f1")}\ns_mov_b32 s{sTry}, s{sStep}\ns_nop 3'); cnt(4)
        zero(QA, 8)
        e(f's_waitcnt vmcnt({tok["g0"]}) lgkmcnt(0)\ns_branch {L("go2")}\n{L("f1")}:')
        a.auto = True
    seq = [x for x in tail if x[0] in 'fg' or x in ('mst', 'ms2')]
    def again(first, b):
        q = seq + [x for g in range(b + 1) for x in [f'f{f}' for f in range(1, 9) if lat[f] == g] + ['x'] * kd.count(g)]
        q = q[min(q.index(f'f{f}') for f in first):]
        return 1 + max(q.index(f'f{f}') for f in first), [ldf(int(x[1]), ' sc1') if x[0] == 'f' else f'buffer_load_dword v{vZero}, {WS}, s{sMs} offen lds' for x in q]
    fast = 'slow' not in abl
    q = again('0', -1)[1]
    e(q[0]); e(spin); cnt(0); e('s_nop 3')
    zero(QA, 8)
    e('\n'.join(q[1:]))
    e(f's_waitcnt vmcnt({len(q) - 1 if fast else 0}) lgkmcnt(0)\ns_branch {L("go2")}')
    for fs, c, b in chk:
        clr()
        e(f'{L("c" + fs)}:')
        nq, q = again(fs, int(b))
        a.auto = False
        e('\n'.join(q[:nq]))
        e(spin); cnt(min(5, 1 + chk.index([fs, c, b])))
        e('\n'.join(q[nq:]))
        r = [FB[int(f)] + 3 for f in fs] * 3
        e(f's_waitcnt vmcnt({len(q) - nq if fast else 0})\nv_max3_u32 v{vT}, v{r[0]}, v{r[1]}, v{r[2]}\nv_cmp_eq_u32 vcc, -1, v{vT}')
        a.auto = True
        e(f's_cbranch_vccnz {L("c" + fs)}\ns_branch {L("g" + fs)}')
    clr()
    e(f'{L("fn")}:')
    e(f's_cmp_eq_u32 s{sRedo}, s{sStep}\ns_cbranch_scc1 {L("gn")}\ns_mov_b32 s{sRedo}, s{sStep}'); cnt(8)
    e(f's_waitcnt vmcnt(0) lgkmcnt(0)\ns_nop 7\n{L("fl")}:')
    for f in range(9): e(ldf(f, ' sc1', 12 + 4 * f))
    e(spin)
    e(f'v_max_u32 v{vT}, v12, v13')
    for r in range(14, 48, 2): e(f'v_max3_u32 v{vT}, v{vT}, v{r}, v{r+1}')
    e(f'v_cmp_eq_u32 vcc, -1, v{vT}\ns_cbranch_vccnz {L("fl")}')
    e(f's_barrier\nbuffer_inv sc1\ns_waitcnt vmcnt(0)\ns_barrier\ns_branch {L("in2")}')
    for nm, s, pend in fails:
        a.auto = False
        more = rdl(s) + (rdl(sPrD) if s == sPrd else [])
        c = 7 if s == sPrD else 6
        if s == sPrd:
            e(f'{L("xrp")}:'); stamp('ok', 41); rfin()
            e(f'buffer_store_dword v{vT}, v{vMst}, {WS}, s{sMst} offen{cs}')
            e(f's_waitcnt vmcnt({opt(abl, "xw", 5)})\ns_barrier\ns_branch {L("yrp")}')
        ok = L('xrp' if s == sPrd else nm)
        e(f'{L("f" + nm)}:')
        for k, n in enumerate(pend):
            e('\n'.join(more)); cnt(c)
            e(f's_waitcnt vmcnt({n + len(more) * (k + 1)})'); rsum(s); e(f's_cbranch_vccz {ok}')
        e(f'{L("l" + nm)}:'); e('\n'.join(more)); e(spin); cnt(c)
        e(f's_waitcnt vmcnt({len(more) * (len(pend) + 1) - 2})'); rsum(s); e(f's_cbranch_vccz {ok}\ns_branch {L("l" + nm)}')
        a.auto = True
    if w == DW:
        clr(); e(f'{L("flg")}:\n{ldfl}\n{spin}\ns_waitcnt lgkmcnt(0)\ns_branch {L("fc")}')
```

```python
from asmlib import *
from layout import *
from rec6 import S_WS, S_RA, S_RB, S_W, S_H, WS, srd, P_X, P_WQ, P_WK, P_WV, P_WO, P_WG, P_WU, P_WD, P_OUT, P_DBG, MF32, MF16, opt
S_G = 3
RA = f's[{S_RA}:{S_RA+3}]'; RB = f's[{S_RB}:{S_RB+3}]'
MF3 = 'v_mfma_f32_32x32x16_bf16'
L16, LN, LJ, LG, T0, T1, T2, T3 = 1, 2, 3, 4, 5, 6, 7, 8
(t0, t1, t2, t3, sSpin, sK, sA, sB, sC, sD, sE, sF_, sG_, sH_) = range(46, 60)
sFB = 75
sRing = 74
FIN = 'K_end'
SPIN = f's_sub_u32 s{sSpin}, s{sSpin}, 1\ns_cbranch_scc1 {FIN}'

WST = [None]
OPT = []
def wst(a, role, k):
    if opt(OPT, 'tp' + role) == str(k):
        for x in ('s_lshl_b64 exec, 1, s78', 'v_mov_b32 v0, s76', 's_mov_b64 exec, -1', 's_mov_b32 s78, s66', 's_memrealtime s[76:77]'): a.raw(x)
    if WST[0] and WST[0][0] == role and k < 9:
        lab = a.newlabel('ws')
        for x in (f's_cmp_eq_u32 s66, {WST[0][1]}', f's_cbranch_scc0 {lab}', f's_mem{"real" if "wr" in OPT else ""}time s[{76+2*k}:{77+2*k}]', f'{lab}:'): a.raw(x)
def cvt(d, x, y): return f'v_cvt_pk_bf16_f32 v{d}, v{x}, v{y}'

def arrive(a, v=5, n=0):
    lab = a.newlabel('arr')
    if n is not None: a.e(f's_waitcnt vmcnt({n})\ns_barrier')
    vq = list(a.vq)
    a.e(f'''s_cmp_eq_u32 s{S_W}, 0
    s_cbranch_scc0 {lab}
    s_getreg_b32 s28, hwreg(HW_REG_XCC_ID, 0, 3)
    s_cmp_eq_u32 s{sFB}, 0
    s_cselect_b32 s28, s28, s2
    s_lshl_b32 s28, s28, 2
    s_lshl_b32 s28, 1, s28
    s_lshr_b32 s29, s2, 3
    s_lshl_b32 s29, s29, 2
    v_mov_b32 v{v}, s28
    s_lshl_b32 s28, s{sFB}, 7
    s_add_u32 s29, s29, s28
    v_mov_b32 v{v+1}, s29
    s_mov_b64 exec, 1
    global_atomic_add v{v+1}, v{v}, s[{P_DBG}:{P_DBG+1}] sc1
    s_mov_b64 exec, -1
    {lab}:''')
    a.vq = vq

def gb_ld(a, v):
    a.e(f'''v_mbcnt_lo_u32_b32 v{v}, -1, 0
    v_and_b32 v{v}, 31, v{v}
    v_lshlrev_b32 v{v}, 2, v{v}
    v_lshl_add_u32 v{v}, s{sFB}, 7, v{v}
    global_load_dword v{v+1}, v{v}, s[{P_DBG}:{P_DBG+1}] sc1''')
def gbar(a, v, spin, ta, force=None, lds=None, nap=8):
    lab = a.newlabel('gb')
    a.e(f's_mov_b32 s{spin}, 0x40000\ns_mov_b32 s{ta}, 0x11111111')
    if lds is None: a.e(f's_branch {lab}_c')
    else: a.e(f's_cmp_eq_u32 s{S_W}, 0\ns_cbranch_scc0 {lab}_w\ns_branch {lab}_l')
    vq = list(a.vq)
    a.e(f'{lab}:\ns_sleep {nap}\n{lab}_l:')
    gb_ld(a, v)
    a.e(f'''s_sub_u32 s{spin}, s{spin}, 1
    s_cbranch_scc1 {FIN}
    s_waitcnt vmcnt(0)
    {lab}_c:
    v_mul_lo_u32 v{v+2}, v{v+1}, s{ta}
    v_cmp_le_i32 vcc, 0, v{v+2}
    s_cbranch_vccnz {lab}
    v_cmp_ne_u32 vcc, {'0' if force else f's{ta}'}, v{v+1}
    s_cmp_lg_u64 vcc, 0
    s_cselect_b32 s{ta}, 1, 0''')
    if lds is not None:
        a.e(f'''v_mov_b32 v{v}, {lds}
        v_mov_b32 v{v+1}, s{ta}
        ds_write_b32 v{v}, v{v+1}
        s_waitcnt lgkmcnt(0)
        {lab}_w:
        s_barrier
        v_mov_b32 v{v}, {lds}
        ds_read_b32 v{v+1}, v{v}
        s_waitcnt lgkmcnt(0)
        v_readfirstlane_b32 s{ta}, v{v+1}''')
    a.e(f's_cmp_gt_u32 s{ta}, s{sFB}\ns_cbranch_scc1 K_again')
    a.vq = vq

def w_init(a):
    e = a.e
    e(f'''v_and_b32 v{LN}, 63, v0
    v_lshlrev_b32 v{L16}, 4, v{LN}
    v_and_b32 v{LJ}, 15, v{LN}
    v_lshrrev_b32 v{LG}, 4, v{LN}''')
    e(f'''v_mov_b32 v12, -1
    v_mov_b32 v13, -1
    v_mov_b32 v14, -1
    v_mov_b32 v15, -1
    v_lshlrev_b32 v{T3}, 4, v0
    v_mov_b32 v9, {OOB}
    v_cmp_eq_u32 vcc, 0, v0
    v_cndmask_b32 v9, v9, 0, vcc
    v_mov_b32 v10, 0''')

def ring_fill(a, PS, n, g=None, far=False):
    e = a.e
    lab = a.newlabel('rf')
    e(f'''s_lshl_b32 s{t0}, {g or f's{S_G}'}, 22
    s_lshl_b32 s{t1}, s{sFB}, 27
    s_add_u32 s{sRing}, s{t0}, s{t1}
    s_add_u32 s{sRing}, s{sRing}, {RING}''')
    if not n: return
    e(f's_mul_i32 s{t0}, s{S_H}, {PS}\ns_add_u32 s{t0}, s{t0}, s{sRing}')
    if not far: e(f's_cmp_eq_u32 s{sFB}, 0\ns_cbranch_scc0 {lab}_f')
    for sc in ('', ' sc1')[far:]:
        vq = list(a.vq)
        for sl in range(2):
            for k in range(n):
                e(f's_add_u32 s{t1}, s{t0}, {sl*RSLOT + k*4096}\nbuffer_store_dwordx4 v[12:15], v{T3}, {WS}, s{t1} offen{sc}')
        if not sc:
            e(f's_branch {lab}\n{lab}_f:'); a.vq = vq
    e(f'{lab}:')

def touch(a, order='qkv'):
    e = a.e
    e(f'''s_sub_u32 s{t1}, s{S_G}, 4
    s_max_i32 s{t1}, s{t1}, 0
    s_lshl_b32 s{t2}, s{S_H}, 2
    s_add_u32 s{t1}, s{t1}, s{t2}
    s_lshl_b32 s{t1}, s{t1}, 12''')
    a.auto = False
    for m in order:
        srd(a, S_RB, {'q': P_WQ, 'k': P_WK, 'v': P_WV, 'o': P_WO}[m], 576 * 8192)
        for n in range(9): e(f's_add_u32 s{t2}, s{t1}, {n*128*4096}\nbuffer_load_dwordx4 v[24:27], v{T3}, {RB}, s{t2} offen')
    a.auto = True
    return 9 * len(order)

def ln1(a, tch):
    e = a.e
    X0 = 32
    F0 = 72
    srd(a, S_RA, P_X, 2048 * 1152)
    e(f'''s_mul_i32 s{t0}, s{S_H}, 3
    s_add_u32 s{t0}, s{t0}, s{S_G}
    s_sub_u32 s{t0}, s{t0}, 5
    s_mul_i32 s{t0}, s{t0}, 3
    s_add_u32 s{sK}, s{t0}, s{S_W}
    s_cmp_lt_u32 s{S_W}, 3
    s_cselect_b32 s{sK}, s{sK}, 256
    v_and_b32 v{T0}, 7, v{LN}
    v_lshrrev_b32 v{T1}, 3, v{LN}
    v_mul_u32_u24 v{T2}, 1152, v{T0}
    v_lshl_add_u32 v{T2}, v{T1}, 4, v{T2}
    s_mul_i32 s{t0}, s{sK}, {8*1152}''')
    for n in range(9): e(f'buffer_load_dwordx4 {vr(X0+4*n,4)}, v{T2}, {RA}, s{t0} offen offset:{n*128}')
    n = touch(a, tch)
    ring_fill(a, PS, 5)
    e(f'''s_cmp_lt_u32 s{sK}, 256
    s_cbranch_scc0 W_noln_b
    s_waitcnt vmcnt({10 + n})''')
    a.vq = []
    def red(r):
        e(f'''v_add_f32_dpp v{r}, v{r}, v{r} row_ror:8 row_mask:0xf bank_mask:0xf
        v_mov_b32 v17, v{r}
        v_permlane16_swap_b32 v{r}, v17
        v_add_f32 v{r}, v{r}, v17
        v_mov_b32 v17, v{r}
        v_permlane32_swap_b32 v{r}, v17
        v_add_f32 v{r}, v{r}, v17''')
    def unpack(src):
        for k in range(36):
            e(f'v_lshlrev_b32 v{F0+2*k}, 16, v{src+k}\nv_and_b32 v{F0+2*k+1}, 0xffff0000, v{src+k}')
    def rbf(r): e(f'v_cvt_pk_bf16_f32 v{r}, v{r}, v{r}\nv_lshlrev_b32 v{r}, 16, v{r}')
    unpack(X0)
    e(f'v_pk_add_f32 v[20:21], {vr(F0,2)}, {vr(F0+2,2)}')
    for k in range(2, 36): e(f'v_pk_add_f32 v[20:21], v[20:21], {vr(F0+2*k,2)}')
    e('v_add_f32 v16, v20, v21'); red(16)
    e(f'v_mul_f32 v16, {hex(f2u(-1/576))}, v16\nv_mov_b32 v18, 0\nv_mov_b32 v19, 0')
    for k in range(36):
        e(f'v_pk_add_f32 v[20:21], {vr(F0+2*k,2)}, v[16:17] op_sel_hi:[1,0]\nv_pk_fma_f32 v[18:19], v[20:21], v[20:21], v[18:19]')
    e('v_add_f32 v18, v18, v19'); red(18)
    e(f'v_mul_f32 v18, {hex(f2u(1/576))}, v18'); rbf(18)
    e(f'v_add_f32 v18, {hex(f2u(1e-5))}, v18'); rbf(18)
    e('v_sqrt_f32 v18, v18'); rbf(18)
    e('v_rcp_f32 v18, v18'); rbf(16)
    for k in range(36):
        e(f'v_pk_add_f32 v[20:21], {vr(F0+2*k,2)}, v[16:17] op_sel_hi:[1,0]\n' + cvt(X0+k, 20, 21))
    unpack(X0)
    for k in range(36):
        e(f'v_pk_mul_f32 v[20:21], {vr(F0+2*k,2)}, v[18:19] op_sel_hi:[1,0]\n' + cvt(X0+k, 20, 21))
    e(f'''v_lshlrev_b32 v{T2}, 4, v{T0}
    v_lshl_add_u32 v{T2}, v{T1}, 9, v{T2}
    s_lshr_b32 s{t0}, s{sK}, 2
    s_mul_i32 s{t0}, s{t0}, 36864
    s_and_b32 s{t1}, s{sK}, 1
    s_lshl_b32 s{t1}, s{t1}, 8
    s_add_u32 s{t0}, s{t0}, s{t1}
    s_and_b32 s{t1}, s{sK}, 2
    s_lshl_b32 s{t1}, s{t1}, 6
    s_add_u32 s{t0}, s{t0}, s{t1}
    s_add_u32 s{t0}, s{t0}, {XN}''')
    for n in range(9):
        e(f'buffer_store_dwordx4 {vr(X0+4*n,4)}, v{T2}, {WS}, s{t0} offen sc1\ns_add_u32 s{t0}, s{t0}, 4096')
    e('W_noln_b:')
    a.vq = []

import struct
def f2u(x): return struct.unpack('<I', struct.pack('<f', x))[0]

def qfrag(n): return ('a', 4 * n) if n < 64 else ('v', 224 + 4 * (n - 64))
def q_load(a):
    e = a.e
    e(f'''s_lshl_b32 s{sE}, s{S_H}, 6
    buffer_store_dword v10, v9, {WS}, s{sE} offen sc1
    s_cmp_ge_u32 s{S_W}, 2
    s_cselect_b32 s{S_RA}, s{P_WV}, s{P_WK}
    s_cselect_b32 s{S_RA+1}, s{P_WV+1}, s{P_WK+1}
    s_lshl_b32 s{t0}, s{S_H}, 1
    s_and_b32 s{t1}, s{S_W}, 1
    s_add_u32 s{sB}, s{t0}, s{t1}
    s_mov_b32 s{S_RA+2}, {576*8192}
    s_mov_b32 s{S_RA+3}, 0x20000
    v_lshrrev_b32 v{T0}, 3, v{LN}
    v_lshlrev_b32 v{T0}, 13, v{T0}
    v_and_b32 v{T1}, 7, v{LN}
    v_lshl_add_u32 v{T0}, v{T1}, 4, v{T0}
    s_lshl_b32 s{sA}, s{sB}, 7
    s_mul_i32 s{sD}, s{S_W}, {18*2048}''')
    e(f'''v_and_b32 v{T1}, 3, v{LJ}
    v_lshlrev_b32 v{T1}, 3, v{T1}
    v_and_b32 v{T2}, 1, v{LG}
    v_lshl_add_u32 v{T1}, v{T2}, 5, v{T1}
    v_lshrrev_b32 v{T2}, 1, v{LG}
    v_lshrrev_b32 v{T3}, 2, v{LJ}
    v_lshl_add_u32 v{T2}, v{T2}, 3, v{T3}
    v_lshl_add_u32 v{T1}, v{T2}, 7, v{T1}
    v_add_u32 v{T1}, s{sD}, v{T1}''')
    toks = {}
    def issue(n):
        for k in range(2):
            e(f's_add_u32 m0, s{sD}, {(n % 18)*2048 + k*1024}')
            e(f'buffer_load_dwordx4 v{T0}, {RA}, s{sA} offen lds')
            e(f's_add_u32 s{sA}, s{sA}, {8*8192}')
        toks[n] = a.mark_v()
    for n in range(18):
        issue(n)
        if n == 3: arrive(a, 16, 8)
    for n in range(36):
        a.wait_v(toks[n])
        for t in range(2):
            p, b = qfrag(2 * n + t)
            for u in range(2):
                e(f'ds_read_b64_tr_b16 {vr(b+2*u,2,p)}, v{T1} offset:{(n % 18)*2048 + t*64 + u*512}')
        if n + 18 < 36:
            e('s_waitcnt lgkmcnt(0)'); issue(n + 18)
    e('s_waitcnt lgkmcnt(0)')

def q_main(a):
    e = a.e
    XB = 32; NB = 8; PF = 4
    ACC = [64, 96]; OUT = 128
    vA, vS, vFl = T0, T1, 9
    e(f'''v_and_b32 v{vS}, 7, v{LN}
    v_lshrrev_b32 v{T2}, 4, v{LN}
    v_lshl_add_u32 v{vS}, v{T2}, 3, v{vS}
    v_lshlrev_b32 v{vS}, 4, v{vS}
    v_bfe_u32 v{T2}, v{LN}, 3, 1
    v_lshl_add_u32 v{vS}, v{T2}, 10, v{vS}''')
    OSTEP = 32 * 16384
    e(f'''s_mul_i32 s{t0}, s{S_W}, 9216
    s_add_u32 s{sA}, s{t0}, {XN}
    s_lshl_b32 s{t1}, s{sB}, 13
    s_lshr_b32 s{t2}, s{S_W}, 1
    s_lshl_b32 s{t2}, s{t2}, 11
    s_add_u32 s{t1}, s{t1}, s{t2}
    s_add_u32 s{sD}, s{t1}, {KVX - OSTEP}
    s_lshl_b32 s{sC}, s{S_H}, 2
    s_add_u32 s{sC}, s{sC}, s{S_W}
    s_lshl_b32 s{sC}, s{sC}, 10
    s_add_u32 s{sC}, s{sC}, {KV}''')
    def dma(n, m0base):
        return [f's_add_u32 m0, s{m0base}, {n*1024 - (n & 3)*1024}' if (n & 3) == 0 else None,
                f's_add_u32 s{t3}, s{sA}, {n*1024 - (n & 3)*1024}' if (n & 3) == 0 else None,
                f'buffer_load_dwordx4 v{L16}, {WS}, s{t3} offen offset:{(n & 3)*1024} sc1 lds']
    for b in range(2):
        e(f's_add_u32 s{t1}, s{t0}, {b*36864}')
        for n in range(9):
            for x in dma(n, t1):
                if x: e(x)
        e(f's_add_u32 s{sA}, s{sA}, 36864')
    e(f'''s_mov_b32 s{sK}, 0
    s_mov_b32 s{sH_}, 0
    v_mov_b32 v{vA}, v{L16}
    s_waitcnt vmcnt(9)
    s_barrier''')
    def rd(k): return f'ds_read_b128 {vr(XB + 4*(k % NB), 4)}, v{vA} offset:{(k % 36)*1024}'
    for k in range(PF): e(rd(k))
    e(f's_cmp_ge_u32 s{S_W}, 2\ns_cbranch_scc1 QV_loop')
    lq0 = list(a.lq)
    def epi(b, var):
        r = []
        for t in range(2):
            for c in range(2):
                q = ACC[b] + 16*t + 8*c
                r += [[cvt(OUT + 8*t + 4*c + k, *((q + k, q + 4 + k) if var == 'QK' else (q + 2*k, q + 2*k + 1))) for k in range(4)]]
                r += [[f'buffer_store_dwordx4 {vr(OUT + 8*t + 4*c, 4)}, v{vS}, {WS}, s{sD if t == 0 else t2} offen offset:{c*512} sc1']]
        return r
    for var in ('QK', 'QV'):
        a.lq = list(lq0); a.vq = []
        e(f'{var}_loop:')
        for b in range(2):
            fill = {k: [] for k in range(36)}
            fill[0] += [f's_add_u32 s{t2}, s{sD}, 4096', f's_add_u32 s{t1}, s{sH_}, {2*36864}', f's_cmp_ge_u32 s{t1}, {4*36864}',
                        f's_cselect_b32 s{t3}, {4*36864}, 0', f's_sub_u32 s{t1}, s{t1}, s{t3}', f's_add_u32 s{t1}, s{t1}, s{t0}']
            for n, x in enumerate(epi(1 - b, var)): fill[1 + n] += x
            fill[9] += [f'buffer_store_dwordx4 v[12:15], v{L16}, {WS}, s{sC} offen sc1', f's_add_u32 s{sC}, s{sC}, {32*4096}']
            for n in range(9): fill[10 + 2*n] += [x for x in dma(n, t1) if x]
            fill[28] += [f's_add_u32 s{sA}, s{sA}, 36864', f's_add_u32 s{sD}, s{sD}, {OSTEP}', f's_add_u32 s{sH_}, s{sH_}, 36864',
                         f's_cmp_ge_u32 s{sH_}, {4*36864}', f's_cselect_b32 s{sH_}, 0, s{sH_}', f'v_mov_b32 v10, s{sK}']
            fill[30] += ['s_waitcnt vmcnt(9)', 's_barrier', f'buffer_store_dword v10, v{vFl}, {WS}, s{sE} offen sc1', f's_add_u32 s{sK}, s{sK}, 1']
            for k in range(36):
                kk = 36 * b + k
                if k + PF == 36: e(f'v_add_u32 v{vA}, s{sH_}, v{L16}')
                e(rd(kk + PF))
                for t in range(2):
                    p, r = qfrag(2 * k + t)
                    W = vr(r, 4, p); X = vr(XB + 4 * (kk % NB), 4); D = vr(ACC[b] + 16 * t, 16)
                    e(f'{MF3} {D}, {W if var == "QK" else X}, {X if var == "QK" else W}, {"0" if k == 0 else D}')
                for x in fill[k]: e(x)
        e(f's_cmp_lt_u32 s{sK}, 64\ns_cbranch_scc1 {var}_loop')
        e(f's_add_u32 s{t2}, s{sD}, 4096')
        for x in epi(1, var):
            for y in x: e(y)
        if var == 'QK': e('s_branch Q_tail')
    e('Q_tail:')
    e(f'''v_mov_b32 v10, 128
    s_waitcnt vmcnt(0) lgkmcnt(0)
    s_barrier
    buffer_store_dword v10, v{vFl}, {WS}, s{sE} offen sc1''')
    a.vq = []

SEL, NEG = 24, 28
vPS, vP8, vRD, vRes, vXw, vZ, vTr, vMx = 10, 11, 12, 13, 14, 15, 16, 17
(sPW, sPR, sTask, sTW, sTR, sCnt) = range(61, 67)
import os
NA = 2; NF = 3
def red_setup(a, PS=PS):
    e = a.e
    e(f'''v_mov_b32 v{T0}, 0x3f80
    v_mov_b32 v{T1}, 0x3f800000
    v_and_b32 v{T2}, 1, v{LJ}
    v_cmp_eq_u32 vcc, 0, v{T2}
    v_cndmask_b32 v{T0}, v{T1}, v{T0}, vcc
    v_lshrrev_b32 v{T2}, 1, v{LJ}''')
    for q in range(4):
        e(f'v_cmp_eq_u32 vcc, {q}, v{T2}\nv_cndmask_b32 v{SEL+q}, 0, v{T0}, vcc')
    e(f'''v_lshrrev_b32 v{T0}, 1, v{LG}
    v_lshlrev_b32 v{vP8}, 4, v{LJ}
    v_lshl_add_u32 v{vP8}, v{T0}, 8, v{vP8}
    v_and_b32 v{T0}, 1, v{LG}
    v_lshl_add_u32 v{vP8}, v{T0}, 3, v{vP8}
    v_add_u32 v{vP8}, 4096, v{vP8}
    v_mul_u32_u24 v{vRD}, {PS}, v{LG}
    v_lshl_add_u32 v{vRD}, v{LJ}, 4, v{vRD}
    s_mul_i32 s{t1}, s{S_H}, {PS}
    s_add_u32 s{sPW}, s{sRing}, s{t1}
    s_mul_i32 s{t1}, s{S_W}, 4608
    s_add_u32 s{sPW}, s{sPW}, s{t1}
    s_lshl_b32 s{sTask}, s{S_W}, 5
    s_add_u32 s{sTask}, s{sTask}, s{S_H}
    s_lshl_b32 s{t1}, s{sTask}, 8
    s_add_u32 s{sPR}, s{sRing}, s{t1}
    s_mov_b32 s{sTW}, 0
    s_mov_b32 s{sCnt}, 0''')

def tagb(r): return f'v_bfi_b32 v{r}, 1, s{sTW}, v{r}'
def next_slot(a):
    a.e(f'''s_xor_b32 s{sPW}, s{sPW}, {RSLOT}
    s_mov_b32 s{sTR}, s{sTW}
    s_add_u32 s{sCnt}, s{sCnt}, 1
    s_lshr_b32 s{sTW}, s{sCnt}, 1''')
def proj_epi(u, W, sc, sPW=sPW):
    if u == 8:
        return [cvt(W + 32, W + 32, W + 33), cvt(W + 33, W + 34, W + 35), tagb(W + 32), tagb(W + 33), f'buffer_store_dwordx2 {vr(W+32,2)}, v{vP8}, {WS}, s{sPW} offen{sc}']
    if u & 1 == 0: return []
    r = W + 4 * (u - 1)
    return [cvt(r + k, r + 2*k, r + 2*k + 1) for k in range(4)] + [tagb(r + k) for k in range(4)] + [f'buffer_store_dwordx4 {vr(r,4)}, v{L16}, {WS}, s{sPW} offen offset:{(u >> 1)*1024}{sc}']

def red_ld(a, RD, PS=PS, off=0):
    for l in range(8):
        a.e(f's_add_u32 s{t0}, s{sPR}, {4*l*PS + off}\nbuffer_load_dwordx4 {vr(RD+4*l,4)}, v{vRD}, {WS}, s{t0} offen sc1')
def red_sum(a, RD, D, again):
    e = a.e
    for l in range(8):
        r = RD + 4 * l
        e(f'{MF32} {vr(D,4)}, {vr(SEL,4)}, {vr(r,4)}, {"0" if l == 0 else vr(D,4)}')
        for k in range(2): e(f'v_bitop3_b32 v{T2+k}, v{r+2*k}, v{r+2*k+1}, s{sTR} bitop3:0x7e')
        e(f'v_or_b32 v{vMx}, v{T2}, v{T3}' if l == 0 else f'v_or3_b32 v{vMx}, v{vMx}, v{T2}, v{T3}')
    e(f'v_and_b32 v{vMx}, 1, v{vMx}\nv_cmp_ne_u32 vcc, 0, v{vMx}\ns_cbranch_vccnz {again}')
RM = [16, 18, 20, 22, 24, 26, 32, 34]
def red_sum2(a, RD, D, again):
    e = a.e
    for l in range(8):
        r = RD + 4 * l
        e(f'{MF32} {vr(D,4)}, {vr(SEL,4)}, {vr(r,4)}, {"0" if l == 0 else vr(D,4)}')
        for k in range(2): e(f'v_bitop3_b32 v{T2+k}, v{r+2*k}, v{r+2*k+1}, s{sTR} bitop3:0x7e')
        if l > 1: e(f's_or_b64 s[36:37], s[{RM[l-1]}:{RM[l-1]+1}], s[{36 if l > 2 else RM[0]}:{37 if l > 2 else RM[0]+1}]')
        e(f'v_bitop3_b32 v{T2}, v{T2}, v{T3}, 1 bitop3:0xa8\nv_cmp_ne_u32 s[{RM[l]}:{RM[l]+1}], 0, v{T2}')
    e(f's_or_b64 s[36:37], s[36:37], s[{RM[7]}:{RM[7]+1}]\ns_cbranch_scc1 {again}')
def red_again(a, RD, PS, off, lab, back):
    a.e(f'{lab}:')
    for l in range(8):
        a.e(f'''s_cmp_lg_u64 s[{RM[l]}:{RM[l]+1}], 0
        s_cbranch_scc0 {lab}_{l}
        s_add_u32 s{t0}, s{sPR}, {4*l*PS + off}
        buffer_load_dwordx4 {vr(RD+4*l,4)}, v{vRD}, {WS}, s{t0} offen sc1
        {lab}_{l}:''')
    a.e(f'{SPIN}\ns_waitcnt vmcnt(0)\ns_branch {back}')
def red_fin(a, U, D, R):
    e = a.e
    e(cvt(D, D, D + 1)); e(cvt(D + 1, D + 2, D + 3))
    for k in range(2):
        e(f'''v_lshlrev_b32 v{U}, 16, v{D+k}
        v_and_b32 v{U+1}, 0xffff0000, v{D+k}
        v_lshlrev_b32 v{U+2}, 16, v{R+k}
        v_and_b32 v{U+3}, 0xffff0000, v{R+k}
        v_pk_add_f32 {vr(U,2)}, {vr(U,2)}, {vr(U+2,2)}''')
        e(cvt(D + k, U, U + 1))
    e(f'v_permlane16_swap_b32 v{D}, v{D+2}\nv_permlane16_swap_b32 v{D+1}, v{D+3}')
def tr_cols(a, rowexpr):
    a.e(rowexpr)
    a.e(f'''v_mul_u32_u24 v{T0}, 1152, v{T0}
    s_mul_i32 s{t0}, s{S_W}, 288
    v_add_u32 v{T0}, s{t0}, v{T0}
    v_and_b32 v{T1}, 3, v{LJ}
    v_lshl_add_u32 v{vTr}, v{T1}, 4, v{T0}
    v_lshl_add_u32 v{T3}, v{T1}, 3, v{T0}
    v_add_u32 v{T3}, 256, v{T3}''')

LA_Q, LA_O, LA_IM, LA_IK, LA_KV, LA_X = 0, 8192, 16384, 20480, 24576, 40960
def aq(n): return ('a', 144 + 4 * n) if n < 28 else ('v', 224 + 4 * (n - 28))
def a_load(a, st=None, order='oq', late=None):
    e = a.e
    ring_fill(a, PSA, 9)
    if late:
        arrive(a, 18); late()
    e('A_ld:')
    def arr(n, c):
        if n == 7 and c == order[0] and not late:
            e(f's_cmp_eq_u32 s{S_G}, 2\ns_cbranch_scc1 A_ld2')
            arrive(a, 18, 8)
            e('A_ld2:')
            if st: st()
    def lq():
        srd(a, S_RB, P_WQ, 576 * 8192)
        e(f'''v_lshlrev_b32 v{T0}, 2, v{LG}
        v_xor_b32 v{T0}, v{T0}, v{LJ}
        v_lshlrev_b32 v{T0}, 4, v{T0}
        v_lshl_add_u32 v{T0}, v{LG}, 13, v{T0}
        s_mul_i32 s{t1}, s{S_W}, 36864
        s_mul_i32 s{t0}, s{S_W}, {144*8192}
        s_lshl_b32 s{t2}, s{S_H}, 8
        s_add_u32 s{t0}, s{t0}, s{t2}''')
        for n in range(36):
            e(f's_add_u32 m0, s{t1}, {n*1024}\ns_add_u32 s{t2}, s{t0}, {n*4*8192}')
            e(f'buffer_load_dwordx4 v{T0}, {RB}, s{t2} offen lds')
            arr(n, 'q')
        e(f'''v_lshrrev_b32 v{T0}, 2, v{LJ}
        v_xor_b32 v{T1}, s{S_W}, v{T0}
        v_lshlrev_b32 v{T1}, 6, v{T1}
        v_lshl_add_u32 v{T1}, v{T0}, 8, v{T1}
        v_lshrrev_b32 v{T0}, 1, v{LG}
        v_lshl_add_u32 v{T1}, v{T0}, 11, v{T1}
        v_and_b32 v{T0}, 1, v{LG}
        v_lshl_add_u32 v{T1}, v{T0}, 5, v{T1}
        v_and_b32 v{T0}, 3, v{LJ}
        v_lshl_add_u32 v{T1}, v{T0}, 3, v{T1}
        s_waitcnt vmcnt(0)
        s_barrier''')
        for n in range(36):
            p, b = aq(n)
            for u in range(2): e(f'ds_read_b64_tr_b16 {vr(b + 2*u, 2, p)}, v{T1} offset:{(n % 12)*4096 + u*1024}')
            if n % 12 == 11: e(f'v_add_u32 v{T1}, {12*4096}, v{T1}')
    def lo():
        srd(a, S_RA, P_WO, 32 * 147456)
        e(f'''s_mul_i32 s{t0}, s{S_H}, 147456
        s_mul_i32 s{t1}, s{S_W}, 36864
        s_add_u32 s{t0}, s{t0}, s{t1}''')
        for n in range(36):
            if n & 3 == 0: e(f's_add_u32 m0, s{t1}, {n*1024}\ns_add_u32 s{t2}, s{t0}, {n*1024}')
            e(f'buffer_load_dwordx4 v{L16}, {RA}, s{t2} offen offset:{(n & 3)*1024} lds')
            arr(n, 'o')
        tr_cols(a, f'''v_lshrrev_b32 v{T0}, 1, v{LG}
        v_lshlrev_b32 v{T0}, 4, v{T0}
        v_and_b32 v{T1}, 1, v{LG}
        v_lshl_add_u32 v{T0}, v{T1}, 2, v{T0}
        v_lshrrev_b32 v{T1}, 2, v{LJ}
        v_add_u32 v{T0}, v{T0}, v{T1}''')
        e('s_waitcnt vmcnt(0)\ns_barrier')
        for kap in range(4):
            for u in range(9):
                for hh in range(2):
                    off = hh * 8 * 1152 + (0 if u == 8 else (u >> 1) * 64 + (u & 1) * 8)
                    e(f'ds_read_b64_tr_b16 {vr(16*u + 4*kap + 2*hh, 2, "a")}, v{T3 if u == 8 else vTr} offset:{off}')
            e(f'v_add_u32 v{vTr}, {32*1152}, v{vTr}\nv_add_u32 v{T3}, {32*1152}, v{T3}')
    for c in order:
        {'q': lq, 'o': lo}[c]()
        e('s_waitcnt lgkmcnt(0)')
        if c == order[0]: e('s_barrier')
    red_setup(a, PSA)

AKN, ABI, AQ, AK, AV, AS, AZ, AKV, AO, AOF, AW, AXB, ARD, AD, ARS = 28, 32, 40, 56, 88, 104, 116, 132, 56, 56, 140, 104, 148, 212, 220
vQw, vKw, vX, vPg, vHf, vOw = 14, 20, 21, 22, 23, 9
sSeg, sRdy, sProg, sFl, sPW2, sTwo, sE2 = range(67, 74)
sXd, sPnd, sStp, sStq = sK, 60, 30, 31
Z0 = 54
ZW = PROG + 384
sZ, sZm, sEr = 28, 29, 38
def z_get(a, tag, v):
    a.e(f'''{tag}_zl:
    buffer_load_dword v{v}, off, {WS}, 0 offset:{ZW} sc1
    {SPIN}
    s_waitcnt vmcnt(0)
    v_readfirstlane_b32 s{sZ}, v{v}
    {tag}_zg:
    s_cmp_eq_u32 s{sZ}, 0
    s_cbranch_scc1 {tag}_zl
    s_sub_u32 s{sZm}, s{sZ}, 2
    s_add_u32 s{sEr}, s{sZ}, 1''')
def z_put(a):
    z0 = int(opt(OPT, 'z0', Z0)); zp = int(opt(OPT, 'zp', 7))
    a.e(f'''s_cmp_eq_u32 s{S_H}, 0
    s_cbranch_scc0 Z_np
    buffer_load_dword v32, off, {WS}, 0 offset:{PROG} sc1
    v_mov_b32 v33, {z0}
    s_waitcnt vmcnt(0)''')
    for z in range(z0, 60, 3): a.e(f'v_cmp_lt_u32 vcc, {z - zp}, v32\nv_cndmask_b32 v33, v33, {z + 3}, vcc')
    a.e(f'buffer_store_dword v33, v9, {WS}, 0 offen offset:{ZW} sc1\nZ_np:')
    a.vq = []
def a_dmx():
    r = []
    for n in range(9):
        x = f's_add_u32 m0, s{sC}, {n*1024}\n' + (f's_add_u32 s{t2}, s{t2}, 4096\n' if n else '') if n & 3 == 0 else ''
        r.append(x + f'buffer_load_dwordx4 v{L16}, {WS}, s{t2} offen offset:{(n & 3)*1024} sc1 lds')
    return r
def a_dma(a, tag):
    a.e(f'''{tag}_dm:
    s_cmp_gt_u32 s{sRdy}, s{sSeg}
    s_cbranch_scc0 {tag}_fl
    s_cmp_lt_u32 s{sSeg}, 64
    s_cselect_b32 s{t1}, s{sSeg}, 0x800
    s_lshl_b32 s{t0}, s{S_W}, 12
    s_add_u32 m0, s{t0}, {LA_KV}
    s_lshl_b32 s{t2}, s{t1}, 19
    s_add_u32 s{t2}, s{t2}, s{sA}
    s_lshl_b32 s{t1}, s{t1}, 17
    s_add_u32 s{sH_}, s{t1}, s{sD}''')
    return [f'buffer_load_dwordx4 v{L16}, {WS}, s{t2} offen offset:{n*1024} sc1 lds' for n in range(4)]
def a_flags(a, tag):
    a.vq = []; a.lq = []
    a.e(f'''{tag}_fl:
    buffer_load_dword v{vPg}, off, {WS}, s{sFl} sc1
    {SPIN}
    v_readfirstlane_b32 s{sRdy}, v{vPg}
    s_branch {tag}_dm''')

def a_init(a):
    e = a.e
    srd(a, S_RA, P_X, 2048 * 1152)
    e(f's_mov_b32 s{sZm}, 64\ns_mov_b32 s{sEr}, {int(opt(OPT, "z0", Z0)) - 2}\ns_cmp_eq_u32 s{S_G}, 2\ns_cbranch_scc0 AI_zn')
    z_get(a, 'AI', 32)
    e(f'''AI_zn:
    s_sub_u32 s{sSeg}, s{S_G}, 3
    s_cselect_b32 s{sSeg}, s{sZ}, s{sSeg}
    s_mov_b32 s{sStp}, 0
    s_mov_b32 s{sRdy}, 0
    s_mov_b32 s{sProg}, 0
    s_lshl_b32 s{sFl}, s{S_H}, 6
    s_mov_b32 s{sSpin}, 0x100000
    s_barrier
    s_lshl_b32 s{t0}, s{S_H}, 2
    s_add_u32 s{t0}, s{t0}, s{S_W}
    s_lshl_b32 s{sA}, s{t0}, 12
    s_add_u32 s{sA}, s{sA}, {KVX}
    s_mul_i32 s{sC}, s{S_W}, 9216
    s_add_u32 s{sB}, s{sC}, {XN}
    s_add_u32 s{sC}, s{sC}, {LA_X}
    s_lshl_b32 s{sD}, s{t0}, 10
    s_add_u32 s{sD}, s{sD}, {KV}''')
    e(f's_mul_i32 s{t2}, s{sSeg}, 36864\ns_add_u32 s{sB}, s{sB}, s{t2}\ns_mov_b32 s{t2}, s{sB}')
    e('\n'.join(a_dmx()))
    e(f's_mov_b32 s{sXd}, 36864\ns_mov_b32 s{sPnd}, 0')
    e('\n'.join(a_dma(a, 'AI')))
    e(f'''s_mul_i32 s{sE}, s{sSeg}, 36864
    s_lshl_b32 s{t1}, s{sTask}, 8
    s_add_u32 s{sF_}, s{sE}, s{t1}
    s_add_u32 s{sF_}, s{sF_}, {H}
    s_lshl_b32 s{t1}, s{sTask}, 4
    s_add_u32 s{sE}, s{sE}, s{t1}
    s_add_u32 s{sE2}, s{sE}, {18432 + 56*16}
    s_cmp_ge_u32 s{sTask}, 72
    s_cselect_b32 s{t1}, {18432 - 72*16}, 0
    s_add_u32 s{sE}, s{sE}, s{t1}
    s_cmp_lt_u32 s{sTask}, 16
    s_cselect_b32 s{sTwo}, 1, 0
    s_cselect_b32 s{sE2}, s{sE2}, {OOB}
    v_mul_u32_u24 v{vRes}, 1152, v{LJ}
    v_lshl_add_u32 v{vRes}, v{LG}, 3, v{vRes}
    v_mov_b32 v{T0}, {OOB}
    v_cmp_gt_u32 vcc, 2, v{LG}
    v_cndmask_b32 v{vRes}, v{T0}, v{vRes}, vcc
    v_cmp_eq_u32 vcc, 0, v{LG}
    v_cndmask_b32 v{vPS}, v{T0}, v{L16}, vcc
    s_lshl_b32 s{t0}, s{S_W}, 10
    v_add_u32 v{vTr}, s{t0}, v{L16}
    v_add_u32 v{vX}, {LA_X}, v{L16}
    s_lshl_b32 s{t0}, s{S_W}, 11
    v_add_u32 v{vOw}, s{t0}, v{L16}''')
    e(f'''v_and_b32 v{vQw}, 7, v{LN}
    v_lshl_add_u32 v{vQw}, v{LG}, 3, v{vQw}
    v_lshlrev_b32 v{vQw}, 4, v{vQw}
    v_bfe_u32 v{T2}, v{LN}, 3, 1
    v_lshl_add_u32 v{vQw}, v{T2}, 10, v{vQw}
    v_add_u32 v{vQw}, s{t0}, v{vQw}
    s_lshr_b32 s{t3}, s{S_W}, 1
    s_lshl_b32 s{t0}, s{t3}, 10
    v_add_u32 v{vHf}, s{t0}, v{L16}''')
    e(f'''v_lshrrev_b32 v{T1}, 2, v{LJ}
    v_mul_u32_u24 v{vKw}, 144, v{T1}
    v_lshl_add_u32 v{vKw}, v{LG}, 5, v{vKw}
    v_and_b32 v{T0}, 3, v{LJ}
    v_lshl_add_u32 v{vKw}, v{T0}, 2, v{vKw}
    s_mul_i32 s{t0}, s{S_W}, 576
    s_add_u32 s{t0}, s{t0}, {LA_IK}
    v_add_u32 v{vKw}, s{t0}, v{vKw}
    v_mul_u32_u24 v{vZ}, 144, v{LG}
    v_lshl_add_u32 v{vZ}, v{T1}, 5, v{vZ}
    v_and_b32 v{T0}, 1, v{LJ}
    v_lshl_add_u32 v{vZ}, v{T0}, 4, v{vZ}''')
    e(f'''s_lshl_b32 s{t1}, s{t3}, 4
    v_add_u32 v{T0}, s{t1}, v{LJ}
    v_lshlrev_b32 v{T1}, 2, v{LG}
    v_sub_u32 v{T0}, v{T0}, v{T1}
    v_mov_b32 v{T1}, {hex(f2u(-1e30))}
    v_mov_b32 v18, 0''')
    for T in range(2):
        for p in range(4):
            e(f'v_cmp_le_i32 vcc, {16*T + p}, v{T0}\nv_cndmask_b32 v{ABI + 4*T + p}, v{T1}, 0, vcc')
    e(f'''s_and_b32 s{t0}, s{S_W}, 1
    s_lshl_b32 s{t1}, s{t0}, 13
    v_add_u32 v{LN}, s{t1}, v{L16}
    s_lshl_b32 s{t1}, s{t0}, 11
    v_add_u32 v{LJ}, s{t1}, v{L16}
    s_mov_b32 s{sG_}, 0x3e0293ee
    s_waitcnt vmcnt(0)''')

def a_loop(a, tag, sc):
    b = Asm(); b.uid = 20000
    w_ = WST[0]; WST[0] = None
    a_body(b, tag, sc, [])
    WST[0] = w_
    a_body(a, tag, sc, b.endq)
def a_body(a, tag, sc, vq0):
    e = a.e
    sa = opt(OPT, 'sa', 4); z0 = int(opt(OPT, 'z0', Z0)); hf = 'nh' not in OPT
    assert z0 % 3 == 0 and z0 <= 60
    a.lq = []; a.vq = []
    P = AZ; PM = 18
    vV, vVm = LN, LJ
    def rld(k):
        return [f's_add_u32 s{t0}, s{sPR}, {4*l*PSA + 32768*k}\nbuffer_load_dwordx4 {vr(ARD + 32*k + 4*l, 4)}, v{vRD}, {WS}, s{t0} offen sc1' for l in range(8)]
    rare = []
    def rsum(tg, k):
        if k: e(f's_cmp_eq_u32 s{sTwo}, 0\ns_cbranch_scc1 {tg}_e')
        e(f'{tg}_s{k}:')
        a.vq = []
        (red_sum2 if tg[-1] == 'b' else red_sum)(a, ARD + 32*k, AD + 4*k, f'{tg}_r{k}')
        red_fin(a, ARD + 32*k, AD + 4*k, ARS + 2*k)
        if k: e(f's_add_u32 s{t0}, s{sF_}, 32768')
        e(f'buffer_store_dwordx4 {vr(AD + 4*k, 4)}, v{vPS}, {WS}, s{t0 if k else sF_} offen sc1')
        if not k: wst(a, tag, 9)
        rare.append((tg, k))
        if k:
            e(f'{tg}_e:')
            for r in (sE, sE2, sF_): e(f's_add_u32 s{r}, s{r}, s{sStq}')
            e(f's_xor_b32 s{sPR}, s{sPR}, {RSLOT}')
        a.vq = []
    NB = 8; PF = 5
    def rd(k): return f'ds_read_b128 {vr(AXB + 4*(k % NB), 4)}, v{vX} offset:{k*1024}'
    e(f'{tag}_in:\nv_mov_b32 v{vPg}, 0\nv_mov_b32 v{LG}, 0\ns_barrier')
    for k in range(PF): e(rd(k))
    e(f'{tag}_loop:')
    a.vq = list(vq0)
    wst(a, tag, 0)
    kv = [f'ds_read_b128 {vr(AK + 4*n, 4)}, v{L16} offset:{LA_KV + (n >> 1)*4096 + (n & 1)*1024}' for n in range(8)]
    kv += [f'ds_read_b128 {vr(AV + 4*n, 4)}, v{vV} offset:{LA_KV + (n >> 1)*4096 + 2048 + (n & 1)*1024}' for n in range(4)]
    dx = a_dmx()
    for k in range(36):
        if k + PF < 36: e(rd(k + PF))
        p, r = aq(k)
        e(f'{MF3} {vr(AQ,16)}, {vr(r, 4, p)}, {vr(AXB + 4*(k % NB), 4)}, {"0" if k == 0 else vr(AQ,16)}')
        if k & 1 and kv: e(kv.pop(0))
        if k == 0: e(f's_mul_i32 s{sStq}, s{sStp}, 36864\ns_cmp_lt_u32 s{sSeg}, s{sZm}\ns_cselect_b32 s{sStp}, 2, 3\n' + (f's_cmp_eq_u32 s{sSeg}, 61\ns_cselect_b32 s{sStp}, 2, s{sStp}\n' if hf else '') + f's_mul_i32 s{t2}, s{sStp}, 36864\ns_add_u32 s{sB}, s{sB}, s{t2}')
        if k == 1: e(f's_add_u32 s{sC}, s{sC}, s{sXd}\ns_add_u32 s{t2}, s{sSeg}, s{sStp}\ns_cmp_lt_u32 s{t2}, 64\ns_cselect_b32 s{t2}, s{sB}, {OOB}')
        if k == 2: e(f'v_readfirstlane_b32 s{sProg}, v{vPg}\nv_readfirstlane_b32 s{sZ}, v{LG}')
        if k == 3: e(f'''s_cmp_gt_u32 s{sProg}, s{sSeg}
            s_cselect_b32 s{t0}, s{sH_}, {OOB}
            buffer_load_dwordx4 {vr(AKN,4)}, v{L16}, {WS}, s{t0} offen sc1''')
        if k >= 4 and k % 3 == 1 and dx: e(dx.pop(0))
        if k == 32: e(f'v_add_u32 v{vX}, s{sXd}, v{vX}\ns_sub_u32 s{sXd}, 0, s{sXd}')
    assert not dx
    wst(a, tag, 1)
    for c in range(2):
        q = AQ + 8 * c
        for k in range(4): e(cvt(q + k, q + k, q + 4 + k))
        e(f'ds_write_b128 v{vQw}, {vr(q,4)} offset:{LA_Q + c*512}')
    e('s_waitcnt lgkmcnt(0)\ns_barrier')
    wst(a, tag, 2)
    for kap in range(4): e(f'ds_read_b128 {vr(AQ + 4*kap, 4)}, v{vHf} offset:{LA_Q + kap*2048}')
    e(f's_cmp_gt_u32 s{sProg}, s{sSeg}\ns_cbranch_scc0 {tag}_wt')
    a.waitfor({f'v{AKN}'})
    e(f'''{tag}_chk:
    v_max3_u32 v{vMx}, v{AKN}, v{AKN+1}, v{AKN+2}
    v_max_u32 v{vMx}, v{vMx}, v{AKN+3}
    v_cmp_eq_u32 vcc, -1, v{vMx}
    s_cbranch_vccnz {tag}_pollk
    ds_write2_b32 v{vKw}, v{AKN}, v{AKN+2} offset0:0 offset1:4
    ds_write_b128 v{vTr}, {vr(AKN,4)} offset:{LA_IM}
    s_add_u32 s{sSeg}, s{sSeg}, s{sStp}''')
    tok = a.mark_l()
    wst(a, tag, 3)
    sc_ = [f'{MF32} {vr(AS + 4*T, 4)}, {vr(AK + 8*kap + 4*T, 4)}, {vr(AQ + 4*kap, 4)}, {vr((ABI if kap == 0 else AS) + 4*T, 4)}' for kap in range(4) for T in range(2)]
    for x in sc_[:3]: e(x)
    e(f's_cmp_lg_u32 s{sTwo}, 0\ns_cselect_b64 vcc, -1, 0\ns_cmp_eq_u32 s{sPnd}, 0')
    a.wait_l(tok); e('s_barrier')
    zr = [f'ds_read_b128 {vr(AZ + 4*kap, 4)}, v{vZ} offset:{LA_IK + kap*576}' for kap in range(4)]
    zr += [f'ds_read_b128 {vr(AKV + 4*kap, 4)}, v{vVm} offset:{LA_IM + kap*1024}' for kap in range(2)]
    e(zr.pop(0))
    for x in sc_[3:]: e(zr.pop(0)); e(x)
    e(f's_cbranch_scc0 {tag}_sp')
    lq = list(a.lq)
    Tm = AS + 8
    m_, t_ = T0, T1
    Y = []
    def y(x): Y.extend(x.split('\n'))
    mx = [f'v_max3_f32 v{m_}, v{AS}, v{AS+1}, v{AS+2}', f'v_max3_f32 v{m_}, v{m_}, v{AS+3}, v{AS+4}', f'v_max3_f32 v{m_}, v{m_}, v{AS+5}, v{AS+6}', f'v_max_f32 v{m_}, v{m_}, v{AS+7}']
    y('#')
    for kap in range(4):
        y(f'{MF32} {vr(Tm,4)}, {vr(AZ + 4*kap, 4)}, {vr(AQ + 4*kap, 4)}, {"0" if kap == 0 else vr(Tm,4)}')
        y('#' if kap in (0, 3) else '\n'.join(mx[2*kap-2:2*kap]))
    def xl(op):
        y(f'''v_mov_b32 v{t_}, v{m_}
        #
        v_permlane32_swap_b32 v{m_}, v{t_}
        {op} v{m_}, v{m_}, v{t_}
        v_mov_b32 v{t_}, v{m_}
        #
        v_permlane16_swap_b32 v{m_}, v{t_}
        {op} v{m_}, v{m_}, v{t_}''')
    y(f'v_max3_f32 v{m_}, v{m_}, v{Tm}, v{Tm+1}')
    xl('v_max_f32')
    y(f'v_mul_f32 v{T1}, s{sG_}, v{m_}\n#')
    for r in range(AS, AS + 10, 2): y(f'v_pk_fma_f32 {vr(r,2)}, {vr(r,2)}, s[{sG_}:{sG_+1}], {vr(T1,2)} op_sel_hi:[1,0,0] neg_lo:[0,0,1] neg_hi:[0,0,1]')
    for r in range(AS, AS + 10): y(f'v_exp_f32 v{r}, v{r}' + ('\n#' if (r - AS) % 4 == 1 else ''))
    for k in range(4): y(cvt(P + k, AS + 2*k, AS + 2*k + 1))
    y(cvt(PM + 1, Tm, Tm + 1))
    sm = [f'v_pk_add_f32 {vr(Tm+2,2)}, {vr(AS,2)}, {vr(AS+2,2)}'] + [f'v_pk_add_f32 {vr(Tm+2,2)}, {vr(Tm+2,2)}, {vr(r,2)}' for r in range(AS + 4, AS + 10, 2)]
    y(sm.pop(0))
    for n in range(4):
        y(f'{MF32} {vr(AO + 4*n, 4)}, {vr(AV + 4*n, 4)}, {vr(P,4)}, 0')
        y(sm.pop(0) if sm else f'v_add_f32 v{m_}, v{Tm+2}, v{Tm+3}')
    for n in range(4): y(f'{MF16} {vr(AO + 4*n, 4)}, {vr(AKV + 2*n, 2)}, {vr(PM,2)}, {vr(AO + 4*n, 4)}')
    xl('v_add_f32')
    y(f'v_rcp_f32 v{T1}, v{m_}')
    for h in range(2):
        for n in range(4):
            r = AO + 8*h + 2*n
            y(f'v_pk_mul_f32 {vr(r,2)}, {vr(r,2)}, {vr(T1,2)} op_sel_hi:[1,0]')
        for n in range(4): y(cvt(AO + 8*h + n, AO + 8*h + 2*n, AO + 8*h + 2*n + 1))
        y(f'ds_write_b128 v{vOw}, {vr(AO + 8*h, 4)} offset:{LA_O + h*1024}')
    def soft(rl):
        a.lq = list(lq); a.vq = []
        wst(a, tag, 4)
        for x in Y:
            if x.strip() != '#': e(x)
            elif rl: e(rl.pop(0))
        assert not rl
        wst(a, tag, 5)
    soft([])
    e(f'{tag}_jn:')
    a.vq = []
    dm = a_dma(a, tag)
    res = [f'buffer_load_dwordx2 {vr(ARS + 2*k, 2)}, v{vRes}, {RA}, s{(sE, sE2)[k]} offen' for k in range(2)]
    if hf: e(f'''s_cmp_eq_u32 s{sSeg}, 66
    s_cselect_b32 s{t0}, s{S_G}, 2
    s_cmp_lg_u32 s{t0}, 2
    s_cselect_b32 s{t0}, 4096, 0
    v_add_u32 v{T0}, s{t0}, v{L16}
    s_cselect_b32 s{t0}, 18432, 0
    s_add_u32 s{sE}, s{sE}, s{t0}
    s_add_u32 s{sF_}, s{sF_}, s{t0}''')
    e(f's_add_u32 s{sPW2}, s{sPW}, 18432\ns_mov_b32 s{sPnd}, 1\ns_waitcnt lgkmcnt(0)\ns_barrier')
    wst(a, tag, 6)
    h2 = 65 if 'p2' in OPT else 66
    e(f'{tag}_p2:')
    for n in range(8): e(f'ds_read_b128 {vr(AOF + 4*n, 4)}, v{T0 if hf else L16} offset:{LA_O + n*1024}')
    e(dm.pop(0))
    pend = []
    nx = [rd(k) for k in range(PF)]
    for h in range(2):
        W = AW + 36 * h
        for grp in ((0, 1, 2), (3, 4, 5), (6, 7, 8)):
            if h == 1 and grp[0] == 3: e(f's_cmp_lt_u32 s{sSeg}, 64\ns_cselect_b32 s{t0}, 0, {OOB}\nbuffer_load_dword v{LG}, off, {WS}, s{t0} offset:{ZW} sc1\nbuffer_load_dword v{vPg}, off, {WS}, s{t0} offset:{PROG} sc1')
            for kap in range(4):
                for u in grp:
                    e(f'{MF32} {vr(W + 4*u, 4)}, {vr(16*u + 4*kap, 4, "a")}, {vr(AOF + 16*h + 4*kap, 4)}, {"0" if kap == 0 else vr(W + 4*u, 4)}')
                    if kap >= 1:
                        for x in pend[:2]: e(x)
                        pend = pend[2:]
                    if dm and u == 2:
                        e(dm.pop(0)); tokd = a.mark_v()
                    if res and u == 0: e(res.pop(0))
                    if (h, kap, u) == (1, 2, 6): a.wait_v(tokd); e('s_barrier')
                    elif (h, grp[0]) == (1, 6) and kap >= 2: e(nx.pop(0))
            for u in grp: pend += proj_epi(u, W, sc, (sPW, sPW2)[h])
            if (h, grp[0]) == (0, 6) and hf: pend[-1] += f'\ns_cmp_ge_u32 s{sSeg}, {h2}\ns_cbranch_scc1 {tag}_hf'
    assert not nx
    for x in pend: e(x)
    e(f'{tag}_hf:')
    wst(a, tag, 7)
    next_slot(a)
    er = f's{sEr}'
    e(f'{tag}_le:\ns_cmp_lt_u32 s{sSeg}, {er}\ns_cbranch_scc1 {tag}_loop\ns_cmp_eq_u32 s{sZm}, 64\ns_cbranch_scc1 {tag}_zg\ns_mul_i32 s{sStq}, s{sStp}, 36864')
    a.endq = list(a.vq)
    if hf: e(f's_cmp_ge_u32 s{sSeg}, {h2}\ns_cselect_b32 s{sStq}, 18432, s{sStq}\ns_cselect_b32 s{sTwo}, 0, s{sTwo}\ns_cselect_b32 s{t0}, s{sTask}, 0\ns_cmp_ge_u32 s{t0}, 72\ns_cbranch_scc1 {tag}_fe')
    a.lq = []; a.vq = []
    e(f'{tag}_wx:')
    e('\n'.join(rld(0)))
    e(f's_cmp_eq_u32 s{sTwo}, 0\ns_cbranch_scc1 {tag}_n2')
    e('\n'.join(rld(1)))
    akn = f'''v_readfirstlane_b32 s{sProg}, v{vPg}
    s_cmp_gt_u32 s{sProg}, s{sSeg}
    s_cselect_b32 s{t0}, s{sH_}, {OOB}
    buffer_load_dwordx4 {vr(AKN,4)}, v{L16}, {WS}, s{t0} offen sc1'''
    e(f'{tag}_n2:\ns_mov_b32 s{sPnd}, 0')
    if 'wq' in OPT: e(f'buffer_load_dword v{vPg}, off, {WS}, 0 offset:{PROG} sc1\ns_waitcnt vmcnt(1)')
    else: e('s_waitcnt vmcnt(0)\n' + akn)
    rsum(tag + 'b', 0)
    if WST[0] and WST[0][0] == tag: WST[0][1] += 1
    wst(a, tag, 8)
    if WST[0] and WST[0][0] == tag: WST[0][1] -= 1
    rsum(tag + 'b', 1)
    e(f'''s_cmp_lt_u32 s{sSeg}, 64
    s_cbranch_scc1 {tag}_mo
    {tag}_fe:
    s_cmp_eq_u32 s{sSeg}, {65 if hf and h2 == 65 else 0}
    s_cbranch_scc0 {FIN}''')
    for r in (sPW, sPR): e(f's_xor_b32 s{r}, s{r}, {RSLOT}\ns_add_u32 s{r}, s{r}, 18432')
    e(f'''s_mov_b32 s{sTW}, s{sTR}
    s_mov_b32 s{sSeg}, 66
    v_add_u32 v{T0}, 4096, v{L16}
    {'s_barrier' if 'b2' in OPT else ''}
    s_branch {tag}_p2
    {tag}_mo:
    s_cmp_lt_u32 s{sSeg}, {er}
    s_cbranch_scc0 {tag}_loop''')
    if 'wq' in OPT: e(f'''s_waitcnt vmcnt(2)
    s_cmp_eq_u32 s{sTwo}, 0
    s_cbranch_scc0 {tag}_n3
    s_waitcnt vmcnt(1)
    {tag}_n3:
    v_readfirstlane_b32 s{sProg}, v{vPg}
    {tag}_wt:
    s_cmp_eq_u32 s{sPnd}, 0
    s_cbranch_scc0 {tag}_wx''')
    else: e(f'''s_cmp_gt_u32 s{sProg}, s{sSeg}
    s_cbranch_scc0 {tag}_pollk
    s_waitcnt vmcnt(2)
    s_cmp_eq_u32 s{sTwo}, 0
    s_cbranch_scc0 {tag}_chk
    s_waitcnt vmcnt(1)
    s_branch {tag}_chk
    {tag}_wt:
    s_cmp_eq_u32 s{sPnd}, 0
    s_cbranch_scc1 {tag}_pollk
    buffer_load_dword v{vPg}, off, {WS}, 0 offset:{PROG} sc1
    s_branch {tag}_wx''')
    e(f'''{tag}_pollk:
    {SPIN}
    s_cmp_ge_u32 s{sSeg}, {opt(OPT, 'dp', 61)}
    s_cbranch_scc1 {tag}_pk
    s_cmp_gt_u32 s{sProg}, s{sSeg}
    s_cbranch_scc1 {tag}_pk
    buffer_load_dword v{vPg}, off, {WS}, 0 offset:{PROG} sc1
    s_waitcnt vmcnt(0)
    v_readfirstlane_b32 s{sProg}, v{vPg}
    s_cmp_gt_u32 s{sProg}, s{sSeg}
    s_cbranch_scc1 {tag}_pk
    s_cmp_ge_u32 s{sProg}, {opt(OPT, 'ns', 63)}
    s_cbranch_scc1 {tag}_pollk
    s_sleep {sa}
    s_branch {tag}_pollk
    {tag}_pk:
    buffer_load_dwordx4 {vr(AKN,4)}, v{L16}, {WS}, s{sH_} offen sc1
    s_waitcnt vmcnt(0)
    s_branch {tag}_chk''')
    e(f'{tag}_sp:')
    soft([f'{x}\ns_cbranch_vccz {tag}_q{n}\n{z}\n{tag}_q{n}:' for n, (x, z) in enumerate(zip(rld(0), rld(1)))])
    e('s_waitcnt vmcnt(0)')
    rsum(tag + 'a', 0)
    rsum(tag + 'a', 1)
    e(f's_branch {tag}_jn')
    for tg, k in rare:
        if tg[-1] == 'b':
            red_again(a, ARD + 32*k, PSA, 32768 * k, f'{tg}_r{k}', f'{tg}_s{k}'); continue
        e(f'{tg}_r{k}:')
        red_ld(a, ARD + 32*k, PSA, 32768 * k); e(SPIN)
        e(f's_waitcnt vmcnt(0)\ns_branch {tg}_s{k}')
    a.vq = []
    z_get(a, tag, LG)
    e(f's_branch {tag}_le')
    a_flags(a, tag)

def gfrag(q, k):
    n = 4 * k + q if q < 4 else 72 + k
    return vr(4 * n, 4, 'a') if n < 64 else vr(188 + 4 * (n - 64), 4)
def gparts(q, k):
    n = 4 * k + q if q < 4 else 72 + k
    return ('a', 4 * n) if n < 64 else ('v', 188 + 4 * (n - 64))
FD16, FDR, FCS = 170, 122, 102
LF_H = 0; LF_ACT = 18432; LF_SH = 22528; LF_W = 26624; LF_WSTR = 24576
LF_ST = 124928; LF_Z = LF_ST + 512; LF_X = 0x20000
FLT = [1, 2, 4, 5, 7, 8]
def f_load(a):
    e = a.e
    red_setup(a)
    srd(a, S_RA, P_WD, 4608 * 1152)
    tr_cols(a, f'v_lshrrev_b32 v{T0}, 2, v{LJ}\nv_lshl_add_u32 v{T0}, v{LG}, 2, v{T0}')
    e(f's_mul_i32 s{sA}, s{S_H}, {144*1152}')
    for rnd, (row0, nk) in enumerate(((0, 27), (96, 14))):
        e(f's_mul_i32 s{t1}, s{S_W}, {nk*1024}\ns_add_u32 s{t0}, s{sA}, s{t1}\ns_add_u32 s{t0}, s{t0}, {row0*1152}')
        for n in range(nk):
            if n & 3 == 0: e(f's_add_u32 m0, s{t1}, {n*1024}\ns_add_u32 s{t2}, s{t0}, {n*1024}')
            e(f'buffer_load_dwordx4 v{L16}, {RA}, s{t2} offen offset:{(n & 3)*1024} lds')
        e('s_waitcnt vmcnt(0)\ns_barrier')
        for kap in ((0, 1, 2), (3, 4))[rnd]:
            for u in range(9):
                col = 0 if u == 8 else (u >> 1) * 64 + (u & 1) * 8
                ad = T3 if u == 8 else vTr
                if kap == 4:
                    e(f'ds_read_b64_tr_b16 {vr(FD16 + 2*u, 2)}, v{ad} offset:{col}')
                else:
                    p, b = ('v', FDR + 16*(u // 3) + 4*kap) if u % 3 == 0 else ('a', 16*FLT.index(u) + 4*kap)
                    for hh in range(2):
                        e(f'ds_read_b64_tr_b16 {vr(b + 2*hh, 2, p)}, v{ad} offset:{col + hh*16*1152}')
            d = -64 * 1152 if kap == 2 else 32 * 1152
            e(f'v_add_u32 v{vTr}, {d}, v{vTr}\nv_add_u32 v{T3}, {d}, v{T3}')
        e('s_waitcnt lgkmcnt(0)\ns_barrier')
    e(f's_mul_i32 s{t0}, s{S_W}, {LF_WSTR}\ns_add_u32 s{t0}, s{t0}, {LF_W}\nv_add_u32 v{vXw}, s{t0}, v{L16}')
    for n in range(24): e(f'ds_write_b128 v{vXw}, {vr(4*n, 4, "a")} offset:{n*1024}')
    e('s_waitcnt lgkmcnt(0)')
    srd(a, S_RA, P_WG, 576 * 9216); srd(a, S_RB, P_WU, 576 * 9216)
    NS = 7
    e(f'''s_mul_i32 s{sB}, s{S_W}, 6144
    s_lshl_b32 s{sC}, s{S_W}, 13
    s_add_u32 s{sC}, s{sC}, {LF_W + 4*LF_WSTR}
    v_lshrrev_b32 v{T0}, 2, v{LN}
    v_mul_u32_u24 v{T0}, 9216, v{T0}
    v_and_b32 v{T1}, 3, v{LN}
    v_lshl_add_u32 v{T0}, v{T1}, 4, v{T0}
    v_lshrrev_b32 v{T2}, 1, v{LN}
    v_mul_u32_u24 v{T2}, 9216, v{T2}
    v_and_b32 v{T3}, 1, v{LN}
    v_lshl_add_u32 v{T2}, v{T3}, 4, v{T2}
    s_mul_i32 s{sD}, s{S_H}, 288
    s_lshl_b32 s{t0}, s{S_W}, 6
    s_add_u32 s{sA}, s{sD}, s{t0}
    s_and_b32 s{t0}, s{S_W}, 1
    s_mul_i32 s{t0}, s{t0}, {288*9216}
    s_add_u32 s{sD}, s{sD}, s{t0}
    s_add_u32 s{sD}, s{sD}, 256''')
    e(f'''v_lshrrev_b32 v{T3}, 2, v{LJ}
    v_lshl_add_u32 v{T3}, v{LG}, 3, v{T3}
    v_lshlrev_b32 v{T1}, 3, v{T1}
    v_lshl_add_u32 v32, v{T3}, 6, v{T1}
    v_lshl_add_u32 v33, v{T3}, 5, v{T1}
    v_add_u32 v34, s{sC}, v32
    v_add_u32 v35, s{sC}, v33
    v_add_u32 v32, s{sB}, v32
    v_add_u32 v33, s{sB}, v33''')
    blocks = [(m, k) for k in range(18) for m in range(2)] + [(2, k) for k in range(0, 9, 2)]
    toks = {}
    def slot(n):
        s = n % NS
        return (0, s * 2048) if s < 3 else (1, (s - 3) * 2048)
    def issue(n):
        m, k = blocks[n]; hi, off = slot(n)
        if m == 2 and k == 0:
            e(f'''s_cmp_ge_u32 s{S_W}, 2
            s_cselect_b32 s{S_RA}, s{P_WU}, s{P_WG}
            s_cselect_b32 s{S_RA+1}, s{P_WU+1}, s{P_WG+1}''')
        for hh in range(2):
            if m == 2 and k + hh > 8: continue
            e(f's_add_u32 m0, s{sC if hi else sB}, {off + hh*1024}')
            if m < 2:
                e(f's_add_u32 s{t0}, s{sA}, {(32*k + 16*hh)*9216}\nbuffer_load_dwordx4 v{T0}, {RB if m else RA}, s{t0} offen lds')
            else:
                e(f's_add_u32 s{t0}, s{sD}, {32*(k + hh)*9216}\nbuffer_load_dwordx4 v{T2}, {RA}, s{t0} offen lds')
        toks[n] = a.mark_v()
    for n in range(NS): issue(n)
    for n, (m, k) in enumerate(blocks):
        hi, off = slot(n)
        a.wait_v(toks[n])
        for t in range(2):
            if m == 2 and k + t > 8: continue
            p, b = gparts(2 * m + t, k) if m < 2 else gparts(4, k + t)
            for u in range(2):
                if m < 2: e(f'ds_read_b64_tr_b16 {vr(b + 2*u, 2, p)}, v{32 + 2*hi} offset:{off + t*32 + u*256}')
                else: e(f'ds_read_b64_tr_b16 {vr(b + 2*u, 2, p)}, v{33 + 2*hi} offset:{off + t*1024 + u*128}')
        e('s_waitcnt lgkmcnt(0)')
        if n + NS < len(blocks): issue(n + NS)
    for k in range(4): e(f'v_mov_b32 v{32+k}, 0x3f803f80')
    for k in range(18):
        for q in range(5):
            if q == 4 and k >= 9: continue
            e(f'{MF32} {vr(FCS + 4*q, 4)}, {gfrag(q, k)}, v[32:35], {"0" if k == 0 else vr(FCS + 4*q, 4)}')

sPend, sX5, sM0, sWb, sFt, sFq = range(67, 73)
F4 = 199
def f_dma(a, tag):
    r = []
    lab = a.newlabel(tag)
    for n in range(5):
        x = [f's_add_u32 m0, s{sM0}, {n*4096}', f's_add_u32 s{t0}, s{sA}, {n*4096}', f'buffer_load_dwordx4 v{L16}, {WS}, s{t0} offen sc1 lds']
        r.append(x if n < 4 else [f's_cmp_lt_u32 s{S_W}, 2', f's_cbranch_scc0 {lab}'] + x + [f'{lab}:'])
    return [r[4]] + r[:4]

def f_init(a):
    e = a.e
    srd(a, S_RA, P_OUT, 2048 * 1152)
    e(f'''s_sub_u32 s{sK}, s{S_G}, {8 - NF}
    s_cselect_b32 s{sK}, {opt(OPT, 'f4', F4)}, s{sK}
    s_mul_i32 s{sE}, s{sK}, 18432
    s_lshl_b32 s{sM0}, s{S_W}, 10
    s_add_u32 s{sA}, s{sE}, s{sM0}
    s_add_u32 s{sA}, s{sA}, {H}
    s_lshl_b32 s{t1}, s{sTask}, 4
    s_add_u32 s{sE}, s{sE}, s{t1}
    v_mul_u32_u24 v{vPS}, 1152, v{LJ}
    v_mov_b32 v{T0}, {OOB}
    v_cmp_eq_u32 vcc, 0, v{LG}
    v_cndmask_b32 v{vPS}, v{T0}, v{vPS}, vcc
    v_lshlrev_b32 v{vRes}, 4, v{LJ}
    v_and_b32 v{T0}, 1, v{LG}
    v_lshl_add_u32 v{vRes}, v{T0}, 3, v{vRes}
    s_min_u32 s{t1}, s{sTask}, 71
    s_lshl_b32 s{t1}, s{t1}, 8
    v_add_u32 v{vRes}, s{t1}, v{vRes}
    v_mov_b32 v{vTr}, v{L16}
    v_add_u32 v19, s{sM0}, v{L16}
    v_mov_b32 v18, v19
    v_add_u32 v9, 16384, v19
    v_mov_b32 v{T0}, {LF_Z}
    s_cmp_lt_u32 s{S_W}, 2
    s_cselect_b32 s{sX5}, {LF_X}, 0
    s_cselect_b64 vcc, -1, 0
    v_cndmask_b32 v9, v{T0}, v9, vcc
    s_and_b32 s{t0}, s{S_W}, 1
    s_mul_i32 s{t0}, s{t0}, 9216
    v_add_u32 v20, s{t0}, v{L16}
    v_lshlrev_b32 v21, 4, v{LJ}
    v_lshrrev_b32 v{T1}, 2, v{LJ}
    v_lshl_add_u32 v{T1}, v{T1}, 8, v21
    v_and_b32 v{T2}, 3, v{LJ}
    v_lshl_add_u32 v{T1}, v{T2}, 2, v{T1}
    v_add_u32 v21, {LF_ST}, v21
    s_lshl_b32 s{t0}, s{S_W}, 2
    v_add_u32 v{vZ}, s{t0}, v21
    v_mov_b64 v[28:29], 0
    v_mov_b64 v[30:31], 0
    s_mov_b32 s{sB}, 0x3f803f80
    s_mov_b32 s{sC}, {hex(f2u(-1.4426950408889634))}
    s_mov_b32 s{sSpin}, 0x100000
    s_mov_b32 s{sPend}, 0
    s_cmp_eq_u32 s{sTask}, 127
    s_cselect_b32 s{sWb}, {opt(OPT, 'wf', 0)}, -1
    s_barrier
    ds_write_b128 v{T0}, v[28:31]
    v_add_u32 v{T0}, {LF_ACT}, v{T1}''')
    for x in f_dma(a, 'fd'): e('\n'.join(x))
    e('s_waitcnt vmcnt(0) lgkmcnt(0)')

def f_loop(a, tag, sc):
    e = a.e
    a.lq = []; a.vq = []
    G = 32; XB = 52; W = 32; AF = 68; WB = 86; RD = 52; D = 28; RES = 22
    M, CR, R2 = 2, 3, 4
    vH, vHs, vC, vC5 = vTr, 20, 18, 9
    def rbf(r): return [f'v_cvt_pk_bf16_f32 v{r}, v{r}, v{r}', f'v_lshlrev_b32 v{r}, 16, v{r}']
    def fin():
        red_fin(a, RD, D, RES)
        e(f'''buffer_store_dwordx4 {vr(D,4)}, v{vPS}, {RA}, s{sE} offen{' sc1' if 'os' in OPT else ''}
        s_add_u32 s{sE}, s{sE}, s{sFq}
        s_xor_b32 s{sPR}, s{sPR}, {RSLOT}
        s_mov_b32 s{sPend}, 0''')
    e(f'{tag}_loop:')
    wst(a, tag, 0)
    OWN = list(range(WB, WB + 16)) + list(range(D, D + 4))
    for n in range(4): e(f'ds_read_b128 {vr(WB + 4*n, 4)}, v{vC} offset:{n*4096}')
    e(f'ds_read_b128 {vr(D, 4)}, v{vC5}')
    for k in range(4): e(f'v_mov_b32 v{G+k}, s{sB}')
    e(f'v_max_u32 v{vMx}, v{OWN[0]}, v{OWN[1]}')
    for k in range(2, 20, 2): e(f'v_max3_u32 v{vMx}, v{vMx}, v{OWN[k]}, v{OWN[k+1]}')
    e(f'''v_cmp_eq_u32 vcc, -1, v{vMx}
    s_cbranch_vccnz {tag}_wait
    s_barrier''')
    wst(a, tag, 1)
    if opt(OPT, 'wf'):
        e(f's_cmp_eq_u32 s{sCnt}, s{sWb}\ns_cbranch_scc0 {tag}_nw')
        a.raw('buffer_wbl2 sc1')
        e(f'{tag}_nw:')
    def rd(k): return f'ds_read_b128 {vr(XB + 4*(k % 4), 4)}, v{vH} offset:{k*1024}'
    def rds(k): return f'ds_read_b128 {vr(AF + 4*(k % 4), 4)}, v{vHs} offset:{k*1024}'
    S = WB; SH = AF; DS = XB + 12
    pre = [rds(0), rd(0), rds(1), rds(2), rd(1), rds(3), rd(2), f'v_xor_b32 v{vC}, {LF_X}, v{vC}', f'v_xor_b32 v{vC5}, s{sX5}, v{vC5}']
    e(pre.pop(0))
    for n in range(5):
        P = vr(OWN[4*n], 4)
        for A_, D_ in ((vr(G, 4), vr(DS, 4)), (P, vr(WB, 4))):
            if pre: e(pre.pop(0))
            e(f'{MF32} {D_}, {A_}, {P}, {D_ if n else 0}')
    def one(x): return [y for z in x for y in (z, '')]
    st = [f's_cmp_lt_u32 s{sK}, {int(opt(OPT, "f4", F4)) - NF}\ns_cselect_b32 s{sFt}, {NF}, {NF + 1}', f's_add_u32 s{sK}, s{sK}, s{sFt}\ns_mul_i32 s{sFt}, s{sFt}, 18432']
    st += [f's_add_u32 s{sA}, s{sA}, s{sFt}\ns_cmp_lt_u32 s{sK}, 128', f's_cselect_b32 s{sA}, s{sA}, {OOB}\ns_xor_b32 s{sM0}, s{sM0}, {LF_X}']
    st += one([f'ds_write_b32 v{vZ}, v{DS}', f'ds_write_b128 v19, {vr(WB,4)} offset:{LF_ACT}', '#m', rd(3), '', '', '#b'])
    st += one([f'ds_read_b128 {vr(S,4)}, v21'] + [f'ds_read2st64_b32 {vr(S+4+2*k,2)}, v{T0} offset0:{8*k} offset1:{8*k+4}' for k in range(2)] + [''] * 3)
    st += [f'v_add_f32 v{S+k}, v{S+k}, v{S+k+1}' for k in (0, 2, 4, 6)] + [f'v_add_f32 v{M+k}, v{S+4*k}, v{S+4*k+2}' for k in range(2)]
    st += [f'v_mul_f32 v{M}, {hex(f2u(-1/576))}, v{M}', f'v_mul_f32 v{CR}, {hex(f2u(1/576))}, v{CR}']
    st += one([f'v_fma_f32 v{CR}, -v{M}, v{M}, v{CR}'] + rbf(M) + [f'v_max_f32 v{CR}, 0, v{CR}'] + rbf(CR))
    assert len(st) <= 54, len(st)
    st += [''] * (54 - len(st))
    st += [f'v_fma_f32 v{G+16+q}, v{M}, v{FCS+16+q}, v{G+16+q}' for q in range(4)] + ['', '', f'ds_write_b128 v19, {vr(G+16,4)} offset:{LF_SH}', '#m']
    st += one([f'v_add_f32 v{CR}, {hex(f2u(1e-5))}, v{CR}'] + rbf(CR) + [f'v_sqrt_f32 v{CR}, v{CR}', '#b'])
    for k, x in enumerate(rbf(CR) + [f'v_rcp_f32 v{CR}, v{CR}', '']): st += [f'ds_read_b128 {vr(SH + 4*k, 4)}, v{L16} offset:{LF_SH + k*1024}', x]
    st += one([f'v_mul_f32 v{R2}, v{CR}, v{CR}', f'v_mul_f32 v{CR}, s{sC}, v{CR}', ''])
    g, tm, u_ = SH, SH + 4, SH + 8
    def mix(x):
        for z in x:
            if len(st) & 1 and ((len(st) // 2 - 29) % 4 == 0 or st[-1].startswith(TRANS) or z.startswith(TRANS)): st.append('')
            if z.startswith(TRANS) and (len(st) // 2 - 29) % 4 == 0 and len(st) < 2 * (29 + 40): st.extend(['', ''])
            st.append(z)
    mix([f'v_add_f32 v{g+k}, v{g+k}, v{g+4+k}' for k in range(4)] + [f'v_mul_f32 v{tm+k}, v{g+k}, v{CR}' for k in range(4)])
    mix([f'v_exp_f32 v{tm+k}, v{tm+k}' for k in range(4)] + [f'v_add_f32 v{u_+k}, v{u_+k}, v{u_+4+k}' for k in range(4)])
    mix([f'v_add_f32 v{tm+k}, 1.0, v{tm+k}' for k in range(4)] + [f'v_mul_f32 v{g+k}, v{g+k}, v{u_+k}' for k in range(4)])
    mix([f'v_rcp_f32 v{tm+k}, v{tm+k}' for k in range(4)] + [f'v_mul_f32 v{g+k}, v{g+k}, v{R2}' for k in range(4)])
    mix([f'v_mul_f32 v{g+k}, v{g+k}, v{tm+k}' for k in range(4)] + [cvt(AF + 16, g, g + 1), cvt(AF + 17, g + 2, g + 3)])
    tk = [None]
    def gap():
        for x in st[:2]:
            if x == '#m': tk[0] = a.mark_l()
            elif x == '#b': a.wait_l(tk[0]); e('s_barrier')
            else: e(x)
        del st[:2]
    for k in range(18):
        X = XB + 4 * (k % 4)
        for q in range(4):
            kk = 2 * k + q // 2
            if q & 1 == 0 and kk < 9:
                e(f'{MF32} {vr(G + 16, 4)}, {gfrag(4, kk)}, {vr(AF + 4*(kk % 4), 4)}, {"0" if kk == 0 else vr(G + 16, 4)}')
                gap()
            e(f'{MF32} {vr(G + 4*q, 4)}, {gfrag(q, k)}, {vr(X,4)}, {"0" if k == 0 else vr(G + 4*q, 4)}')
            if q == 0 and 3 < k + 3 < 18: e(rd(k + 3))
            if q & 1 and kk + 4 < 9: e(rds(kk + 4))
            gap()
    assert not st, len(st)
    wst(a, tag, 2)
    e(f's_cmp_eq_u32 s{sPend}, 0\ns_cbranch_scc1 {tag}_nl')
    red_ld(a, RD)
    vq = list(a.vq)
    e(f'{tag}_nl:')
    for k in range(0, 16, 2): e(f'v_pk_fma_f32 {vr(G+k,2)}, {vr(M,2)}, {vr(FCS+k,2)}, {vr(G+k,2)} op_sel_hi:[0,1,1]')
    U = G + 8
    for k in range(0, 8, 2): e(f'v_pk_mul_f32 {vr(S+k,2)}, {vr(G+k,2)}, {vr(M,2)} op_sel:[0,1] op_sel_hi:[1,1]')
    for k in range(8):
        e(f'v_exp_f32 v{S+k}, v{S+k}')
        if k & 1: e(f'v_pk_mul_f32 {vr(G+k-1,2)}, {vr(G+k-1,2)}, {vr(U+k-1,2)}')
    for k in range(0, 8, 2): e(f'v_pk_add_f32 {vr(S+k,2)}, {vr(S+k,2)}, 1.0 op_sel_hi:[1,0]')
    for k in range(8):
        e(f'v_rcp_f32 v{S+k}, v{S+k}')
        if k & 1: e(f'v_pk_mul_f32 {vr(G+k-1,2)}, {vr(G+k-1,2)}, {vr(R2,2)} op_sel_hi:[1,0]')
    for k in range(0, 8, 2): e(f'v_pk_mul_f32 {vr(G+k,2)}, {vr(G+k,2)}, {vr(S+k,2)}')
    for k in range(4): e(cvt(G + k, G + 2*k, G + 2*k + 1))
    e(f'ds_write_b128 v19, {vr(G,4)} offset:{LF_ACT}')
    ORD = [4 * FLT.index(u) + kap for g in range(3) for kap in range(4) for u in (3*g + 1, 3*g + 2)]
    def wrd(i): e(f'ds_read_b128 {vr(WB + 4*(i % 4), 4)}, v{vXw} offset:{ORD[i]*1024}')
    tok = a.mark_l()
    wst(a, tag, 3)
    for i in range(4): wrd(i)
    e(f's_cmp_eq_u32 s{sPend}, 0\ns_cbranch_scc1 {tag}_nr\n{tag}_rs:')
    red_sum(a, RD, D, f'{tag}_ra')
    fin()
    e(f'{tag}_nr:')
    wst(a, tag, 4)
    a.vq = []
    a.wait_l(tok)
    e('s_barrier')
    wst(a, tag, 5)
    for k in range(4): e(f'ds_read_b128 {vr(AF + 4*k, 4)}, v{L16} offset:{LF_ACT + k*1024}')
    e(f'ds_read_b64 {vr(RES,2)}, v{vRes}')
    dm = f_dma(a, tag + 'd')
    for u in range(9):
        e(f'{MF16} {vr(W + 4*u, 4)}, {vr(FD16 + 2*u, 2)}, {vr(AF + 16, 2)}, 0')
        if u in (1, 6): e('\n'.join(dm.pop(0)))
    pend = [f'v_xor_b32 v{r}, {LF_X}, v{r}' for r in (vH, vHs, vRes)]
    i = 0
    for grp in range(3):
        for kap in range(4):
            for u in range(3*grp, 3*grp + 3):
                wv = FDR + 16*grp + 4*kap if u % 3 == 0 else WB + 4*(i % 4)
                e(f'{MF32} {vr(W + 4*u, 4)}, {vr(wv, 4)}, {vr(AF + 4*kap, 4)}, {vr(W + 4*u, 4)}')
                if u % 3:
                    if i + 4 < 24: wrd(i + 4)
                    i += 1
                elif dm:
                    e('\n'.join(dm.pop(0)))
                    if not dm: tokd = a.mark_v()
                if kap >= 1:
                    n = 2 if u % 3 else 3
                    for x in pend[:n]: e(x)
                    pend = pend[n:]
        for u in range(3*grp, 3*grp + 3): pend += proj_epi(u, W, sc)
    for x in pend: e(x)
    wst(a, tag, 6)
    if WST[0] and WST[0][0] == tag: WST[0][1] += 1
    next_slot(a)
    e(f'''s_cmp_lt_u32 s{sTask}, 72
    s_cselect_b32 s{sPend}, 1, 0
    s_mov_b32 s{sFq}, s{sFt}
    s_cmp_lt_u32 s{sK}, 128
    s_cbranch_scc0 {tag}_wait''')
    a.wait_v(tokd)
    wst(a, tag, 7)
    e(f's_branch {tag}_loop')
    a.lq = []; a.vq = []
    e(f'{tag}_wait:\ns_cmp_eq_u32 s{sPend}, 0\ns_cbranch_scc1 {tag}_w2')
    red_ld(a, RD)
    if 'wo' not in OPT:
        for x in f_dma(a, tag + 'v'): e('\n'.join(x))
        e(f's_waitcnt vmcnt(4)'); a.vq = []
    e(f'{tag}_w1:')
    red_sum2(a, RD, D, f'{tag}_wa')
    fin()
    wst(a, tag, 8)
    if 'wo' not in OPT: e(f's_cmp_lt_u32 s{sK}, 128\ns_cbranch_scc0 {FIN}\ns_waitcnt vmcnt(1)\ns_branch {tag}_loop')
    e(f'{tag}_w2:\ns_cmp_lt_u32 s{sK}, 128\ns_cbranch_scc0 {FIN}')
    for x in f_dma(a, tag + 'w'): e('\n'.join(x))
    e(SPIN)
    e(f's_waitcnt vmcnt(0)\ns_branch {tag}_loop')
    a.vq = []
    e(f'{tag}_ra:')
    red_ld(a, RD); e(SPIN)
    e(f's_waitcnt vmcnt(0)\ns_branch {tag}_rs')
    red_again(a, RD, PS, 0, f'{tag}_wa', f'{tag}_w1')
```

```python
from asmlib import *
from layout import *
from rec6 import S_WS, S_RA, S_RB, S_W, S_H, WS, srd, P_X, P_WQ, P_WK, P_WV, P_WO, P_WG, P_WU, P_WD, P_OUT, P_DBG, MF32, MF16, opt
S_G = 3
RA = f's[{S_RA}:{S_RA+3}]'; RB = f's[{S_RB}:{S_RB+3}]'
MF3 = 'v_mfma_f32_32x32x16_bf16'
L16, LN, LJ, LG, T0, T1, T2, T3 = 1, 2, 3, 4, 5, 6, 7, 8
(t0, t1, t2, t3, sSpin, sK, sA, sB, sC, sD, sE, sF_, sG_, sH_) = range(46, 60)
sFB = 75
sRing = 74
FIN = 'K_end'
SPIN = f's_sub_u32 s{sSpin}, s{sSpin}, 1\ns_cbranch_scc1 {FIN}'

WST = [None]
PB = ''; MA = '1.0'; MP = '122.1.0'
OPT = []
def wst(a, role, k):
    if opt(OPT, 'tp' + role) == str(k):
        for x in ('s_lshl_b64 exec, 1, s78', 'v_mov_b32 v0, s76', 's_mov_b64 exec, -1', 's_mov_b32 s78, s66', 's_memrealtime s[76:77]'): a.raw(x)
    if WST[0] and WST[0][0] == role and k < 9:
        lab = a.newlabel('ws')
        for x in (f's_cmp_eq_u32 s66, {WST[0][1]}', f's_cbranch_scc0 {lab}', f's_mem{"real" if "wr" in OPT else ""}time s[{76+2*k}:{77+2*k}]', f'{lab}:'): a.raw(x)
def cvt(d, x, y): return f'v_cvt_pk_bf16_f32 v{d}, v{x}, v{y}'

def arrive(a, v=5, n=0):
    lab = a.newlabel('arr')
    if n is not None: a.e(f's_waitcnt vmcnt({n})\ns_barrier')
    vq = list(a.vq)
    a.e(f'''s_cmp_eq_u32 s{S_W}, 0
    s_cbranch_scc0 {lab}
    s_getreg_b32 s28, hwreg(HW_REG_XCC_ID, 0, 3)
    s_cmp_eq_u32 s{sFB}, 0
    s_cselect_b32 s28, s28, s2
    s_lshl_b32 s28, s28, 2
    s_lshl_b32 s28, 1, s28
    s_lshr_b32 s29, s2, 3
    s_lshl_b32 s29, s29, 2
    v_mov_b32 v{v}, s28
    s_lshl_b32 s28, s{sFB}, 7
    s_add_u32 s29, s29, s28
    v_mov_b32 v{v+1}, s29
    s_mov_b64 exec, 1
    global_atomic_add v{v+1}, v{v}, s[{P_DBG}:{P_DBG+1}] sc1
    s_mov_b64 exec, -1
    {lab}:''')
    a.vq = vq

def gb_ld(a, v):
    a.e(f'''v_mbcnt_lo_u32_b32 v{v}, -1, 0
    v_and_b32 v{v}, 31, v{v}
    v_lshlrev_b32 v{v}, 2, v{v}
    v_lshl_add_u32 v{v}, s{sFB}, 7, v{v}
    global_load_dword v{v+1}, v{v}, s[{P_DBG}:{P_DBG+1}] sc1''')
def gbar(a, v, spin, ta, force=None, lds=None, nap=8):
    lab = a.newlabel('gb')
    a.e(f's_mov_b32 s{spin}, 0x40000\ns_mov_b32 s{ta}, 0x11111111')
    if lds is None: a.e(f's_branch {lab}_c')
    else: a.e(f's_cmp_eq_u32 s{S_W}, 0\ns_cbranch_scc0 {lab}_w\ns_branch {lab}_l')
    vq = list(a.vq)
    a.e(f'{lab}:\ns_sleep {nap}\n{lab}_l:')
    gb_ld(a, v)
    a.e(f'''s_sub_u32 s{spin}, s{spin}, 1
    s_cbranch_scc1 {FIN}
    s_waitcnt vmcnt(0)
    {lab}_c:
    v_mul_lo_u32 v{v+2}, v{v+1}, s{ta}
    v_cmp_le_i32 vcc, 0, v{v+2}
    s_cbranch_vccnz {lab}
    v_cmp_ne_u32 vcc, {'0' if force else f's{ta}'}, v{v+1}
    s_cmp_lg_u64 vcc, 0
    s_cselect_b32 s{ta}, 1, 0''')
    if lds is not None:
        a.e(f'''v_mov_b32 v{v}, {lds}
        v_mov_b32 v{v+1}, s{ta}
        ds_write_b32 v{v}, v{v+1}
        s_waitcnt lgkmcnt(0)
        {lab}_w:
        s_barrier
        v_mov_b32 v{v}, {lds}
        ds_read_b32 v{v+1}, v{v}
        s_waitcnt lgkmcnt(0)
        v_readfirstlane_b32 s{ta}, v{v+1}''')
    a.e(f's_cmp_gt_u32 s{ta}, s{sFB}\ns_cbranch_scc1 K_again')
    a.vq = vq

def w_init(a):
    e = a.e
    e(f'''v_and_b32 v{LN}, 63, v0
    v_lshlrev_b32 v{L16}, 4, v{LN}
    v_and_b32 v{LJ}, 15, v{LN}
    v_lshrrev_b32 v{LG}, 4, v{LN}''')
    e(f'''v_mov_b32 v12, -1
    v_mov_b32 v13, -1
    v_mov_b32 v14, -1
    v_mov_b32 v15, -1
    v_lshlrev_b32 v{T3}, 4, v0
    v_mov_b32 v9, {OOB}
    v_cmp_eq_u32 vcc, 0, v0
    v_cndmask_b32 v9, v9, 0, vcc
    v_mov_b32 v10, 0''')

def ring_fill(a, PS, n, g=None, far=False):
    e = a.e
    lab = a.newlabel('rf')
    e(f'''s_lshl_b32 s{t0}, {g or f's{S_G}'}, 22
    s_lshl_b32 s{t1}, s{sFB}, 27
    s_add_u32 s{sRing}, s{t0}, s{t1}
    s_add_u32 s{sRing}, s{sRing}, {RING}''')
    if not n: return
    e(f's_mul_i32 s{t0}, s{S_H}, {PS}\ns_add_u32 s{t0}, s{t0}, s{sRing}')
    if not far: e(f's_cmp_eq_u32 s{sFB}, 0\ns_cbranch_scc0 {lab}_f')
    for sc in ('', ' sc1')[far:]:
        vq = list(a.vq)
        for sl in range(2):
            for k in range(n):
                e(f's_add_u32 s{t1}, s{t0}, {sl*RSLOT + k*4096}\nbuffer_store_dwordx4 v[12:15], v{T3}, {WS}, s{t1} offen{sc}')
        if not sc:
            e(f's_branch {lab}\n{lab}_f:'); a.vq = vq
    e(f'{lab}:')

def touch(a, order='qkv'):
    e = a.e
    e(f'''s_sub_u32 s{t1}, s{S_G}, 4
    s_max_i32 s{t1}, s{t1}, 0
    s_lshl_b32 s{t2}, s{S_H}, 2
    s_add_u32 s{t1}, s{t1}, s{t2}
    s_lshl_b32 s{t1}, s{t1}, 12''')
    a.auto = False
    for m in order:
        srd(a, S_RB, {'q': P_WQ, 'k': P_WK, 'v': P_WV, 'o': P_WO}[m], 576 * 8192)
        for n in range(9): e(f's_add_u32 s{t2}, s{t1}, {n*128*4096}\nbuffer_load_dwordx4 v[24:27], v{T3}, {RB}, s{t2} offen')
    a.auto = True
    return 9 * len(order)

def ln1(a, tch):
    e = a.e
    X0 = 32
    F0 = 72
    srd(a, S_RA, P_X, 2048 * 1152)
    e(f'''s_mul_i32 s{t0}, s{S_H}, 3
    s_add_u32 s{t0}, s{t0}, s{S_G}
    s_sub_u32 s{t0}, s{t0}, 5
    s_mul_i32 s{t0}, s{t0}, 3
    s_add_u32 s{sK}, s{t0}, s{S_W}
    s_cmp_lt_u32 s{S_W}, 3
    s_cselect_b32 s{sK}, s{sK}, 256
    v_and_b32 v{T0}, 7, v{LN}
    v_lshrrev_b32 v{T1}, 3, v{LN}
    v_mul_u32_u24 v{T2}, 1152, v{T0}
    v_lshl_add_u32 v{T2}, v{T1}, 4, v{T2}
    s_mul_i32 s{t0}, s{sK}, {8*1152}''')
    for n in range(9): e(f'buffer_load_dwordx4 {vr(X0+4*n,4)}, v{T2}, {RA}, s{t0} offen offset:{n*128}')
    n = touch(a, tch)
    ring_fill(a, PS, 5)
    e(f'''s_cmp_lt_u32 s{sK}, 256
    s_cbranch_scc0 W_noln_b
    s_waitcnt vmcnt({10 + n})''')
    a.vq = []
    def red(r):
        e(f'''v_add_f32_dpp v{r}, v{r}, v{r} row_ror:8 row_mask:0xf bank_mask:0xf
        v_mov_b32 v17, v{r}
        v_permlane16_swap_b32 v{r}, v17
        v_add_f32 v{r}, v{r}, v17
        v_mov_b32 v17, v{r}
        v_permlane32_swap_b32 v{r}, v17
        v_add_f32 v{r}, v{r}, v17''')
    def unpack(src):
        for k in range(36):
            e(f'v_lshlrev_b32 v{F0+2*k}, 16, v{src+k}\nv_and_b32 v{F0+2*k+1}, 0xffff0000, v{src+k}')
    def rbf(r): e(f'v_cvt_pk_bf16_f32 v{r}, v{r}, v{r}\nv_lshlrev_b32 v{r}, 16, v{r}')
    unpack(X0)
    e(f'v_pk_add_f32 v[20:21], {vr(F0,2)}, {vr(F0+2,2)}')
    for k in range(2, 36): e(f'v_pk_add_f32 v[20:21], v[20:21], {vr(F0+2*k,2)}')
    e('v_add_f32 v16, v20, v21'); red(16)
    e(f'v_mul_f32 v16, {hex(f2u(-1/576))}, v16\nv_mov_b32 v18, 0\nv_mov_b32 v19, 0')
    for k in range(36):
        e(f'v_pk_add_f32 v[20:21], {vr(F0+2*k,2)}, v[16:17] op_sel_hi:[1,0]\nv_pk_fma_f32 v[18:19], v[20:21], v[20:21], v[18:19]')
    e('v_add_f32 v18, v18, v19'); red(18)
    e(f'v_mul_f32 v18, {hex(f2u(1/576))}, v18'); rbf(18)
    e(f'v_add_f32 v18, {hex(f2u(1e-5))}, v18'); rbf(18)
    e('v_sqrt_f32 v18, v18'); rbf(18)
    e('v_rcp_f32 v18, v18'); rbf(16)
    for k in range(36):
        e(f'v_pk_add_f32 v[20:21], {vr(F0+2*k,2)}, v[16:17] op_sel_hi:[1,0]\n' + cvt(X0+k, 20, 21))
    unpack(X0)
    for k in range(36):
        e(f'v_pk_mul_f32 v[20:21], {vr(F0+2*k,2)}, v[18:19] op_sel_hi:[1,0]\n' + cvt(X0+k, 20, 21))
    e(f'''v_lshlrev_b32 v{T2}, 4, v{T0}
    v_lshl_add_u32 v{T2}, v{T1}, 9, v{T2}
    s_lshr_b32 s{t0}, s{sK}, 2
    s_mul_i32 s{t0}, s{t0}, 36864
    s_and_b32 s{t1}, s{sK}, 1
    s_lshl_b32 s{t1}, s{t1}, 8
    s_add_u32 s{t0}, s{t0}, s{t1}
    s_and_b32 s{t1}, s{sK}, 2
    s_lshl_b32 s{t1}, s{t1}, 6
    s_add_u32 s{t0}, s{t0}, s{t1}
    s_add_u32 s{t0}, s{t0}, {XN}''')
    for n in range(9):
        e(f'buffer_store_dwordx4 {vr(X0+4*n,4)}, v{T2}, {WS}, s{t0} offen sc1\ns_add_u32 s{t0}, s{t0}, 4096')
    e('W_noln_b:')
    a.vq = []

import struct
def f2u(x): return struct.unpack('<I', struct.pack('<f', x))[0]

def qfrag(n): return ('a', 4 * n) if n < 64 else ('v', 224 + 4 * (n - 64))
def q_load(a):
    e = a.e
    e(f'''s_lshl_b32 s{sE}, s{S_H}, 6
    buffer_store_dword v10, v9, {WS}, s{sE} offen sc1
    s_cmp_ge_u32 s{S_W}, 2
    s_cselect_b32 s{S_RA}, s{P_WV}, s{P_WK}
    s_cselect_b32 s{S_RA+1}, s{P_WV+1}, s{P_WK+1}
    s_lshl_b32 s{t0}, s{S_H}, 1
    s_and_b32 s{t1}, s{S_W}, 1
    s_add_u32 s{sB}, s{t0}, s{t1}
    s_mov_b32 s{S_RA+2}, {576*8192}
    s_mov_b32 s{S_RA+3}, 0x20000
    v_lshrrev_b32 v{T0}, 3, v{LN}
    v_lshlrev_b32 v{T0}, 13, v{T0}
    v_and_b32 v{T1}, 7, v{LN}
    v_lshl_add_u32 v{T0}, v{T1}, 4, v{T0}
    s_lshl_b32 s{sA}, s{sB}, 7
    s_mul_i32 s{sD}, s{S_W}, {18*2048}''')
    e(f'''v_and_b32 v{T1}, 3, v{LJ}
    v_lshlrev_b32 v{T1}, 3, v{T1}
    v_and_b32 v{T2}, 1, v{LG}
    v_lshl_add_u32 v{T1}, v{T2}, 5, v{T1}
    v_lshrrev_b32 v{T2}, 1, v{LG}
    v_lshrrev_b32 v{T3}, 2, v{LJ}
    v_lshl_add_u32 v{T2}, v{T2}, 3, v{T3}
    v_lshl_add_u32 v{T1}, v{T2}, 7, v{T1}
    v_add_u32 v{T1}, s{sD}, v{T1}''')
    toks = {}
    def issue(n):
        for k in range(2):
            e(f's_add_u32 m0, s{sD}, {(n % 18)*2048 + k*1024}')
            e(f'buffer_load_dwordx4 v{T0}, {RA}, s{sA} offen lds')
            e(f's_add_u32 s{sA}, s{sA}, {8*8192}')
        toks[n] = a.mark_v()
    for n in range(18):
        issue(n)
        if n == 3: arrive(a, 16, 8)
    for n in range(36):
        a.wait_v(toks[n])
        for t in range(2):
            p, b = qfrag(2 * n + t)
            for u in range(2):
                e(f'ds_read_b64_tr_b16 {vr(b+2*u,2,p)}, v{T1} offset:{(n % 18)*2048 + t*64 + u*512}')
        if n + 18 < 36:
            e('s_waitcnt lgkmcnt(0)'); issue(n + 18)
    e('s_waitcnt lgkmcnt(0)')

def q_main(a):
    e = a.e
    XB = 32; NB = 8; PF = 4
    ACC = [64, 96]; OUT = 128
    vA, vS, vFl = T0, T1, 9
    e(f'''v_and_b32 v{vS}, 7, v{LN}
    v_lshrrev_b32 v{T2}, 4, v{LN}
    v_lshl_add_u32 v{vS}, v{T2}, 3, v{vS}
    v_lshlrev_b32 v{vS}, 4, v{vS}
    v_bfe_u32 v{T2}, v{LN}, 3, 1
    v_lshl_add_u32 v{vS}, v{T2}, 10, v{vS}''')
    OSTEP = 32 * 16384
    e(f'''s_mul_i32 s{t0}, s{S_W}, 9216
    s_add_u32 s{sA}, s{t0}, {XN}
    s_lshl_b32 s{t1}, s{sB}, 13
    s_lshr_b32 s{t2}, s{S_W}, 1
    s_lshl_b32 s{t2}, s{t2}, 11
    s_add_u32 s{t1}, s{t1}, s{t2}
    s_add_u32 s{sD}, s{t1}, {KVX - OSTEP}
    s_lshl_b32 s{sC}, s{S_H}, 2
    s_add_u32 s{sC}, s{sC}, s{S_W}
    s_lshl_b32 s{sC}, s{sC}, 10
    s_add_u32 s{sC}, s{sC}, {KV}''')
    def dma(n, m0base):
        return [f's_add_u32 m0, s{m0base}, {n*1024 - (n & 3)*1024}' if (n & 3) == 0 else None,
                f's_add_u32 s{t3}, s{sA}, {n*1024 - (n & 3)*1024}' if (n & 3) == 0 else None,
                f'buffer_load_dwordx4 v{L16}, {WS}, s{t3} offen offset:{(n & 3)*1024} sc1 lds']
    for b in range(2):
        e(f's_add_u32 s{t1}, s{t0}, {b*36864}')
        for n in range(9):
            for x in dma(n, t1):
                if x: e(x)
        e(f's_add_u32 s{sA}, s{sA}, 36864')
    e(f'''s_mov_b32 s{sK}, 0
    s_mov_b32 s{sH_}, 0
    v_mov_b32 v{vA}, v{L16}
    s_waitcnt vmcnt(9)
    s_barrier''')
    def rd(k): return f'ds_read_b128 {vr(XB + 4*(k % NB), 4)}, v{vA} offset:{(k % 36)*1024}'
    for k in range(PF): e(rd(k))
    e(f's_cmp_ge_u32 s{S_W}, 2\ns_cbranch_scc1 QV_loop')
    lq0 = list(a.lq)
    def epi(b, var):
        r = []
        for t in range(2):
            for c in range(2):
                q = ACC[b] + 16*t + 8*c
                r += [[cvt(OUT + 8*t + 4*c + k, *((q + k, q + 4 + k) if var == 'QK' else (q + 2*k, q + 2*k + 1))) for k in range(4)]]
                r += [[f'buffer_store_dwordx4 {vr(OUT + 8*t + 4*c, 4)}, v{vS}, {WS}, s{sD if t == 0 else t2} offen offset:{c*512} sc1']]
        return r
    for var in ('QK', 'QV'):
        a.lq = list(lq0); a.vq = []
        e(f'{var}_loop:')
        for b in range(2):
            fill = {k: [] for k in range(36)}
            fill[0] += [f's_add_u32 s{t2}, s{sD}, 4096', f's_add_u32 s{t1}, s{sH_}, {2*36864}', f's_cmp_ge_u32 s{t1}, {4*36864}',
                        f's_cselect_b32 s{t3}, {4*36864}, 0', f's_sub_u32 s{t1}, s{t1}, s{t3}', f's_add_u32 s{t1}, s{t1}, s{t0}']
            for n, x in enumerate(epi(1 - b, var)): fill[1 + n] += x
            fill[9] += [f'buffer_store_dwordx4 v[12:15], v{L16}, {WS}, s{sC} offen sc1', f's_add_u32 s{sC}, s{sC}, {32*4096}']
            for n in range(9): fill[10 + 2*n] += [x for x in dma(n, t1) if x]
            fill[28] += [f's_add_u32 s{sA}, s{sA}, 36864', f's_add_u32 s{sD}, s{sD}, {OSTEP}', f's_add_u32 s{sH_}, s{sH_}, 36864',
                         f's_cmp_ge_u32 s{sH_}, {4*36864}', f's_cselect_b32 s{sH_}, 0, s{sH_}', f'v_mov_b32 v10, s{sK}']
            fill[30] += ['s_waitcnt vmcnt(9)', 's_barrier', f'buffer_store_dword v10, v{vFl}, {WS}, s{sE} offen sc1', f's_add_u32 s{sK}, s{sK}, 1']
            for k in range(36):
                kk = 36 * b + k
                if k + PF == 36: e(f'v_add_u32 v{vA}, s{sH_}, v{L16}')
                e(rd(kk + PF))
                for t in range(2):
                    p, r = qfrag(2 * k + t)
                    W = vr(r, 4, p); X = vr(XB + 4 * (kk % NB), 4); D = vr(ACC[b] + 16 * t, 16)
                    e(f'{MF3} {D}, {W if var == "QK" else X}, {X if var == "QK" else W}, {"0" if k == 0 else D}')
                for x in fill[k]: e(x)
        e(f's_cmp_lt_u32 s{sK}, 64\ns_cbranch_scc1 {var}_loop')
        e(f's_add_u32 s{t2}, s{sD}, 4096')
        for x in epi(1, var):
            for y in x: e(y)
        if var == 'QK': e('s_branch Q_tail')
    e('Q_tail:')
    e(f'''v_mov_b32 v10, 128
    s_waitcnt vmcnt(0) lgkmcnt(0)
    s_barrier
    buffer_store_dword v10, v{vFl}, {WS}, s{sE} offen sc1''')
    a.vq = []

SEL, NEG = 24, 28
vPS, vP8, vRD, vRes, vXw, vZ, vTr, vMx = 10, 11, 12, 13, 14, 15, 16, 17
(sPW, sPR, sTask, sTW, sTR, sCnt) = range(61, 67)
import os
NA = 2; NF = 3
def red_setup(a, PS=PS):
    e = a.e
    e(f'''v_mov_b32 v{T0}, 0x3f80
    v_mov_b32 v{T1}, 0x3f800000
    v_and_b32 v{T2}, 1, v{LJ}
    v_cmp_eq_u32 vcc, 0, v{T2}
    v_cndmask_b32 v{T0}, v{T1}, v{T0}, vcc
    v_lshrrev_b32 v{T2}, 1, v{LJ}''')
    for q in range(4):
        e(f'v_cmp_eq_u32 vcc, {q}, v{T2}\nv_cndmask_b32 v{SEL+q}, 0, v{T0}, vcc')
    e(f'''v_lshrrev_b32 v{T0}, 1, v{LG}
    v_lshlrev_b32 v{vP8}, 4, v{LJ}
    v_lshl_add_u32 v{vP8}, v{T0}, 8, v{vP8}
    v_and_b32 v{T0}, 1, v{LG}
    v_lshl_add_u32 v{vP8}, v{T0}, 3, v{vP8}
    v_add_u32 v{vP8}, 4096, v{vP8}
    v_mul_u32_u24 v{vRD}, {PS}, v{LG}
    v_lshl_add_u32 v{vRD}, v{LJ}, 4, v{vRD}
    s_mul_i32 s{t1}, s{S_H}, {PS}
    s_add_u32 s{sPW}, s{sRing}, s{t1}
    s_mul_i32 s{t1}, s{S_W}, 4608
    s_add_u32 s{sPW}, s{sPW}, s{t1}
    s_lshl_b32 s{sTask}, s{S_W}, 5
    s_add_u32 s{sTask}, s{sTask}, s{S_H}
    s_lshl_b32 s{t1}, s{sTask}, 8
    s_add_u32 s{sPR}, s{sRing}, s{t1}
    s_mov_b32 s{sTW}, 0
    s_mov_b32 s{sCnt}, 0''')

def tagb(r): return f'v_bfi_b32 v{r}, 1, s{sTW}, v{r}'
def next_slot(a):
    a.e(f'''s_xor_b32 s{sPW}, s{sPW}, {RSLOT}
    s_mov_b32 s{sTR}, s{sTW}
    s_add_u32 s{sCnt}, s{sCnt}, 1
    s_lshr_b32 s{sTW}, s{sCnt}, 1''')
def proj_epi(u, W, sc, sPW=sPW):
    if u == 8:
        return [cvt(W + 32, W + 32, W + 33), cvt(W + 33, W + 34, W + 35), tagb(W + 32), tagb(W + 33), f'buffer_store_dwordx2 {vr(W+32,2)}, v{vP8}, {WS}, s{sPW} offen{sc}']
    if u & 1 == 0: return []
    r = W + 4 * (u - 1)
    return [cvt(r + k, r + 2*k, r + 2*k + 1) for k in range(4)] + [tagb(r + k) for k in range(4)] + [f'buffer_store_dwordx4 {vr(r,4)}, v{L16}, {WS}, s{sPW} offen offset:{(u >> 1)*1024}{sc}']

def red_ld(a, RD, PS=PS, off=0):
    for l in range(8):
        a.e(f's_add_u32 s{t0}, s{sPR}, {4*l*PS + off}\nbuffer_load_dwordx4 {vr(RD+4*l,4)}, v{vRD}, {WS}, s{t0} offen sc1')
def red_sum(a, RD, D, again):
    e = a.e
    for l in range(8):
        r = RD + 4 * l
        e(f'{MF32} {vr(D,4)}, {vr(SEL,4)}, {vr(r,4)}, {"0" if l == 0 else vr(D,4)}')
        for k in range(2): e(f'v_bitop3_b32 v{T2+k}, v{r+2*k}, v{r+2*k+1}, s{sTR} bitop3:0x7e')
        e(f'v_or_b32 v{vMx}, v{T2}, v{T3}' if l == 0 else f'v_or3_b32 v{vMx}, v{vMx}, v{T2}, v{T3}')
    e(f'v_and_b32 v{vMx}, 1, v{vMx}\nv_cmp_ne_u32 vcc, 0, v{vMx}\ns_cbranch_vccnz {again}')
RM = [16, 18, 20, 22, 24, 26, 32, 34]
def red_sum2(a, RD, D, again):
    e = a.e
    for l in range(8):
        r = RD + 4 * l
        e(f'{MF32} {vr(D,4)}, {vr(SEL,4)}, {vr(r,4)}, {"0" if l == 0 else vr(D,4)}')
        for k in range(2): e(f'v_bitop3_b32 v{T2+k}, v{r+2*k}, v{r+2*k+1}, s{sTR} bitop3:0x7e')
        if l > 1: e(f's_or_b64 s[36:37], s[{RM[l-1]}:{RM[l-1]+1}], s[{36 if l > 2 else RM[0]}:{37 if l > 2 else RM[0]+1}]')
        e(f'v_bitop3_b32 v{T2}, v{T2}, v{T3}, 1 bitop3:0xa8\nv_cmp_ne_u32 s[{RM[l]}:{RM[l]+1}], 0, v{T2}')
    e(f's_or_b64 s[36:37], s[36:37], s[{RM[7]}:{RM[7]+1}]\ns_cbranch_scc1 {again}')
def red_again(a, RD, PS, off, lab, back):
    a.e(f'{lab}:')
    for l in range(8):
        a.e(f'''s_cmp_lg_u64 s[{RM[l]}:{RM[l]+1}], 0
        s_cbranch_scc0 {lab}_{l}
        s_add_u32 s{t0}, s{sPR}, {4*l*PS + off}
        buffer_load_dwordx4 {vr(RD+4*l,4)}, v{vRD}, {WS}, s{t0} offen sc1
        {lab}_{l}:''')
    a.e(f'{SPIN}\ns_waitcnt vmcnt(0)\ns_branch {back}')
def red_fin(a, U, D, R):
    e = a.e
    e(cvt(D, D, D + 1)); e(cvt(D + 1, D + 2, D + 3))
    for k in range(2):
        e(f'''v_lshlrev_b32 v{U}, 16, v{D+k}
        v_and_b32 v{U+1}, 0xffff0000, v{D+k}
        v_lshlrev_b32 v{U+2}, 16, v{R+k}
        v_and_b32 v{U+3}, 0xffff0000, v{R+k}
        v_pk_add_f32 {vr(U,2)}, {vr(U,2)}, {vr(U+2,2)}''')
        e(cvt(D + k, U, U + 1))
    e(f'v_permlane16_swap_b32 v{D}, v{D+2}\nv_permlane16_swap_b32 v{D+1}, v{D+3}')
def tr_cols(a, rowexpr):
    a.e(rowexpr)
    a.e(f'''v_mul_u32_u24 v{T0}, 1152, v{T0}
    s_mul_i32 s{t0}, s{S_W}, 288
    v_add_u32 v{T0}, s{t0}, v{T0}
    v_and_b32 v{T1}, 3, v{LJ}
    v_lshl_add_u32 v{vTr}, v{T1}, 4, v{T0}
    v_lshl_add_u32 v{T3}, v{T1}, 3, v{T0}
    v_add_u32 v{T3}, 256, v{T3}''')

LA_Q, LA_O, LA_IM, LA_IK, LA_KV, LA_X = 0, 8192, 16384, 20480, 24576, 40960
def aq(n): return ('a', 144 + 4 * n) if n < 28 else ('v', 224 + 4 * (n - 28))
def a_load(a, st=None, order='oq', late=None):
    e = a.e
    ring_fill(a, PSA, 9)
    if late:
        arrive(a, 18); late()
    e('A_ld:')
    def arr(n, c):
        if n == 7 and c == order[0] and not late:
            e(f's_cmp_eq_u32 s{S_G}, 2\ns_cbranch_scc1 A_ld2')
            arrive(a, 18, 8)
            e('A_ld2:')
            if st: st()
    def lq():
        srd(a, S_RB, P_WQ, 576 * 8192)
        e(f'''v_lshlrev_b32 v{T0}, 2, v{LG}
        v_xor_b32 v{T0}, v{T0}, v{LJ}
        v_lshlrev_b32 v{T0}, 4, v{T0}
        v_lshl_add_u32 v{T0}, v{LG}, 13, v{T0}
        s_mul_i32 s{t1}, s{S_W}, 36864
        s_mul_i32 s{t0}, s{S_W}, {144*8192}
        s_lshl_b32 s{t2}, s{S_H}, 8
        s_add_u32 s{t0}, s{t0}, s{t2}''')
        for n in range(36):
            e(f's_add_u32 m0, s{t1}, {n*1024}\ns_add_u32 s{t2}, s{t0}, {n*4*8192}')
            e(f'buffer_load_dwordx4 v{T0}, {RB}, s{t2} offen lds')
            arr(n, 'q')
        e(f'''v_lshrrev_b32 v{T0}, 2, v{LJ}
        v_xor_b32 v{T1}, s{S_W}, v{T0}
        v_lshlrev_b32 v{T1}, 6, v{T1}
        v_lshl_add_u32 v{T1}, v{T0}, 8, v{T1}
        v_lshrrev_b32 v{T0}, 1, v{LG}
        v_lshl_add_u32 v{T1}, v{T0}, 11, v{T1}
        v_and_b32 v{T0}, 1, v{LG}
        v_lshl_add_u32 v{T1}, v{T0}, 5, v{T1}
        v_and_b32 v{T0}, 3, v{LJ}
        v_lshl_add_u32 v{T1}, v{T0}, 3, v{T1}
        s_waitcnt vmcnt(0)
        s_barrier''')
        for n in range(36):
            p, b = aq(n)
            for u in range(2): e(f'ds_read_b64_tr_b16 {vr(b + 2*u, 2, p)}, v{T1} offset:{(n % 12)*4096 + u*1024}')
            if n % 12 == 11: e(f'v_add_u32 v{T1}, {12*4096}, v{T1}')
    def lo():
        srd(a, S_RA, P_WO, 32 * 147456)
        e(f'''s_mul_i32 s{t0}, s{S_H}, 147456
        s_mul_i32 s{t1}, s{S_W}, 36864
        s_add_u32 s{t0}, s{t0}, s{t1}''')
        for n in range(36):
            if n & 3 == 0: e(f's_add_u32 m0, s{t1}, {n*1024}\ns_add_u32 s{t2}, s{t0}, {n*1024}')
            e(f'buffer_load_dwordx4 v{L16}, {RA}, s{t2} offen offset:{(n & 3)*1024} lds')
            arr(n, 'o')
        tr_cols(a, f'''v_lshrrev_b32 v{T0}, 1, v{LG}
        v_lshlrev_b32 v{T0}, 4, v{T0}
        v_and_b32 v{T1}, 1, v{LG}
        v_lshl_add_u32 v{T0}, v{T1}, 2, v{T0}
        v_lshrrev_b32 v{T1}, 2, v{LJ}
        v_add_u32 v{T0}, v{T0}, v{T1}''')
        e('s_waitcnt vmcnt(0)\ns_barrier')
        for kap in range(4):
            for u in range(9):
                for hh in range(2):
                    off = hh * 8 * 1152 + (0 if u == 8 else (u >> 1) * 64 + (u & 1) * 8)
                    e(f'ds_read_b64_tr_b16 {vr(16*u + 4*kap + 2*hh, 2, "a")}, v{T3 if u == 8 else vTr} offset:{off}')
            e(f'v_add_u32 v{vTr}, {32*1152}, v{vTr}\nv_add_u32 v{T3}, {32*1152}, v{T3}')
    for c in order:
        {'q': lq, 'o': lo}[c]()
        e('s_waitcnt lgkmcnt(0)')
        if c == order[0]: e('s_barrier')
    red_setup(a, PSA)

AKN, ABI, AQ, AK, AV, AS, AZ, AKV, AO, AOF, AW, AXB, ARD, AD, ARS = 28, 32, 40, 56, 88, 104, 116, 132, 56, 56, 140, 104, 148, 212, 220
vQw, vKw, vX, vPg, vHf, vOw = 14, 20, 21, 22, 23, 9
sSeg, sRdy, sProg, sFl, sPW2, sTwo, sE2 = range(67, 74)
sXd, sPnd, sStp, sStq = sK, 60, 30, 31
Z0 = 54
ZW = PROG + 384
sZ, sZm, sEr = 28, 29, 38
def z_get(a, tag, v):
    a.e(f'''{tag}_zl:
    buffer_load_dword v{v}, off, {WS}, 0 offset:{ZW} sc1
    {SPIN}
    s_waitcnt vmcnt(0)
    v_readfirstlane_b32 s{sZ}, v{v}
    {tag}_zg:
    s_cmp_eq_u32 s{sZ}, 0
    s_cbranch_scc1 {tag}_zl
    s_sub_u32 s{sZm}, s{sZ}, 2
    s_add_u32 s{sEr}, s{sZ}, 1''')
def z_put(a):
    z0 = int(opt(OPT, 'z0', Z0)); zp = int(opt(OPT, 'zp', 7))
    a.e(f'''s_cmp_eq_u32 s{S_H}, 0
    s_cbranch_scc0 Z_np
    buffer_load_dword v32, off, {WS}, 0 offset:{PROG} sc1
    v_mov_b32 v33, {z0}
    s_waitcnt vmcnt(0)''')
    for z in range(z0, 60, 3): a.e(f'v_cmp_lt_u32 vcc, {z - zp}, v32\nv_cndmask_b32 v33, v33, {z + 3}, vcc')
    a.e(f'buffer_store_dword v33, v9, {WS}, 0 offen offset:{ZW} sc1\nZ_np:')
    a.vq = []
def a_dmx():
    r = []
    for n in range(9):
        x = f's_add_u32 m0, s{sC}, {n*1024}\n' + (f's_add_u32 s{t2}, s{t2}, 4096\n' if n else '') if n & 3 == 0 else ''
        r.append(x + f'buffer_load_dwordx4 v{L16}, {WS}, s{t2} offen offset:{(n & 3)*1024} sc1 lds')
    return r
def a_dma(a, tag):
    a.e(f'''{tag}_dm:
    s_cmp_gt_u32 s{sRdy}, s{sSeg}
    s_cbranch_scc0 {tag}_fl
    s_cmp_lt_u32 s{sSeg}, 64
    s_cselect_b32 s{t1}, s{sSeg}, 0x800
    s_lshl_b32 s{t0}, s{S_W}, 12
    s_add_u32 m0, s{t0}, {LA_KV}
    s_lshl_b32 s{t2}, s{t1}, 19
    s_add_u32 s{t2}, s{t2}, s{sA}
    s_lshl_b32 s{t1}, s{t1}, 17
    s_add_u32 s{sH_}, s{t1}, s{sD}''')
    return [f'buffer_load_dwordx4 v{L16}, {WS}, s{t2} offen offset:{n*1024} sc1 lds' for n in range(4)]
def a_flags(a, tag):
    a.vq = []; a.lq = []
    a.e(f'''{tag}_fl:
    buffer_load_dword v{vPg}, off, {WS}, s{sFl} sc1
    {SPIN}
    v_readfirstlane_b32 s{sRdy}, v{vPg}
    s_branch {tag}_dm''')

def a_init(a):
    e = a.e
    srd(a, S_RA, P_X, 2048 * 1152)
    e(f's_mov_b32 s{sZm}, 64\ns_mov_b32 s{sEr}, {int(opt(OPT, "z0", Z0)) - 2}\ns_cmp_eq_u32 s{S_G}, 2\ns_cbranch_scc0 AI_zn')
    z_get(a, 'AI', 32)
    e(f'''AI_zn:
    s_sub_u32 s{sSeg}, s{S_G}, 3
    s_cselect_b32 s{sSeg}, s{sZ}, s{sSeg}
    s_mov_b32 s{sStp}, 0
    s_mov_b32 s{sRdy}, 0
    s_mov_b32 s{sProg}, 0
    s_lshl_b32 s{sFl}, s{S_H}, 6
    s_mov_b32 s{sSpin}, 0x100000
    s_barrier
    s_lshl_b32 s{t0}, s{S_H}, 2
    s_add_u32 s{t0}, s{t0}, s{S_W}
    s_lshl_b32 s{sA}, s{t0}, 12
    s_add_u32 s{sA}, s{sA}, {KVX}
    s_mul_i32 s{sC}, s{S_W}, 9216
    s_add_u32 s{sB}, s{sC}, {XN}
    s_add_u32 s{sC}, s{sC}, {LA_X}
    s_lshl_b32 s{sD}, s{t0}, 10
    s_add_u32 s{sD}, s{sD}, {KV}''')
    e(f's_mul_i32 s{t2}, s{sSeg}, 36864\ns_add_u32 s{sB}, s{sB}, s{t2}\ns_mov_b32 s{t2}, s{sB}')
    e('\n'.join(a_dmx()))
    e(f's_mov_b32 s{sXd}, 36864\ns_mov_b32 s{sPnd}, 0')
    e('\n'.join(a_dma(a, 'AI')))
    e(f'''s_mul_i32 s{sE}, s{sSeg}, 36864
    s_lshl_b32 s{t1}, s{sTask}, 8
    s_add_u32 s{sF_}, s{sE}, s{t1}
    s_add_u32 s{sF_}, s{sF_}, {H}
    s_lshl_b32 s{t1}, s{sTask}, 4
    s_add_u32 s{sE}, s{sE}, s{t1}
    s_add_u32 s{sE2}, s{sE}, {18432 + 56*16}
    s_cmp_ge_u32 s{sTask}, 72
    s_cselect_b32 s{t1}, {18432 - 72*16}, 0
    s_add_u32 s{sE}, s{sE}, s{t1}
    s_cmp_lt_u32 s{sTask}, 16
    s_cselect_b32 s{sTwo}, 1, 0
    s_cselect_b32 s{sE2}, s{sE2}, {OOB}
    v_mul_u32_u24 v{vRes}, 1152, v{LJ}
    v_lshl_add_u32 v{vRes}, v{LG}, 3, v{vRes}
    v_mov_b32 v{T0}, {OOB}
    v_cmp_gt_u32 vcc, 2, v{LG}
    v_cndmask_b32 v{vRes}, v{T0}, v{vRes}, vcc
    v_cmp_eq_u32 vcc, 0, v{LG}
    v_cndmask_b32 v{vPS}, v{T0}, v{L16}, vcc
    s_lshl_b32 s{t0}, s{S_W}, 10
    v_add_u32 v{vTr}, s{t0}, v{L16}
    v_add_u32 v{vX}, {LA_X}, v{L16}
    s_lshl_b32 s{t0}, s{S_W}, 11
    v_add_u32 v{vOw}, s{t0}, v{L16}''')
    e(f'''v_and_b32 v{vQw}, 7, v{LN}
    v_lshl_add_u32 v{vQw}, v{LG}, 3, v{vQw}
    v_lshlrev_b32 v{vQw}, 4, v{vQw}
    v_bfe_u32 v{T2}, v{LN}, 3, 1
    v_lshl_add_u32 v{vQw}, v{T2}, 10, v{vQw}
    v_add_u32 v{vQw}, s{t0}, v{vQw}
    s_lshr_b32 s{t3}, s{S_W}, 1
    s_lshl_b32 s{t0}, s{t3}, 10
    v_add_u32 v{vHf}, s{t0}, v{L16}''')
    e(f'''v_lshrrev_b32 v{T1}, 2, v{LJ}
    v_mul_u32_u24 v{vKw}, 144, v{T1}
    v_lshl_add_u32 v{vKw}, v{LG}, 5, v{vKw}
    v_and_b32 v{T0}, 3, v{LJ}
    v_lshl_add_u32 v{vKw}, v{T0}, 2, v{vKw}
    s_mul_i32 s{t0}, s{S_W}, 576
    s_add_u32 s{t0}, s{t0}, {LA_IK}
    v_add_u32 v{vKw}, s{t0}, v{vKw}
    v_mul_u32_u24 v{vZ}, 144, v{LG}
    v_lshl_add_u32 v{vZ}, v{T1}, 5, v{vZ}
    v_and_b32 v{T0}, 1, v{LJ}
    v_lshl_add_u32 v{vZ}, v{T0}, 4, v{vZ}''')
    e(f'''s_lshl_b32 s{t1}, s{t3}, 4
    v_add_u32 v{T0}, s{t1}, v{LJ}
    v_lshlrev_b32 v{T1}, 2, v{LG}
    v_sub_u32 v{T0}, v{T0}, v{T1}
    v_mov_b32 v{T1}, {hex(f2u(-1e30))}
    v_mov_b32 v18, 0''')
    for T in range(2):
        for p in range(4):
            e(f'v_cmp_le_i32 vcc, {16*T + p}, v{T0}\nv_cndmask_b32 v{ABI + 4*T + p}, v{T1}, 0, vcc')
    e(f'''s_and_b32 s{t0}, s{S_W}, 1
    s_lshl_b32 s{t1}, s{t0}, 13
    v_add_u32 v{LN}, s{t1}, v{L16}
    s_lshl_b32 s{t1}, s{t0}, 11
    v_add_u32 v{LJ}, s{t1}, v{L16}
    s_mov_b32 s{sG_}, 0x3e0293ee
    s_waitcnt vmcnt(0)''')

def a_loop(a, tag, sc):
    b = Asm(); b.uid = 20000
    w_ = WST[0]; WST[0] = None
    a_body(b, tag, sc, [])
    WST[0] = w_
    a_body(a, tag, sc, b.endq)
def a_body(a, tag, sc, vq0):
    e = a.e
    sa = opt(OPT, 'sa', 4); z0 = int(opt(OPT, 'z0', Z0)); hf = 'nh' not in OPT
    assert z0 % 3 == 0 and z0 <= 60
    a.lq = []; a.vq = []
    P = AZ; PM = 18
    vV, vVm = LN, LJ
    def rld(k):
        return [f's_add_u32 s{t0}, s{sPR}, {4*l*PSA + 32768*k}\nbuffer_load_dwordx4 {vr(ARD + 32*k + 4*l, 4)}, v{vRD}, {WS}, s{t0} offen sc1' for l in range(8)]
    rare = []
    def rsum(tg, k):
        if k: e(f's_cmp_eq_u32 s{sTwo}, 0\ns_cbranch_scc1 {tg}_e')
        e(f'{tg}_s{k}:')
        a.vq = []
        (red_sum2 if tg[-1] == 'b' else red_sum)(a, ARD + 32*k, AD + 4*k, f'{tg}_r{k}')
        red_fin(a, ARD + 32*k, AD + 4*k, ARS + 2*k)
        if k: e(f's_add_u32 s{t0}, s{sF_}, 32768')
        e(f'buffer_store_dwordx4 {vr(AD + 4*k, 4)}, v{vPS}, {WS}, s{t0 if k else sF_} offen sc1')
        if not k: wst(a, tag, 9)
        rare.append((tg, k))
        if k:
            e(f'{tg}_e:')
            for r in (sE, sE2, sF_): e(f's_add_u32 s{r}, s{r}, s{sStq}')
            e(f's_xor_b32 s{sPR}, s{sPR}, {RSLOT}')
        a.vq = []
    NB = 8; PF = 5
    def rd(k): return f'ds_read_b128 {vr(AXB + 4*(k % NB), 4)}, v{vX} offset:{k*1024}'
    e(f'{tag}_in:\nv_mov_b32 v{vPg}, 0\nv_mov_b32 v{LG}, 0\ns_barrier')
    for k in range(PF): e(rd(k))
    e(f'{tag}_loop:')
    a.vq = list(vq0)
    wst(a, tag, 0)
    kv = [f'ds_read_b128 {vr(AK + 4*n, 4)}, v{L16} offset:{LA_KV + (n >> 1)*4096 + (n & 1)*1024}' for n in range(8)]
    kv += [f'ds_read_b128 {vr(AV + 4*n, 4)}, v{vV} offset:{LA_KV + (n >> 1)*4096 + 2048 + (n & 1)*1024}' for n in range(4)]
    dx = a_dmx()
    for k in range(36):
        if k + PF < 36: e(rd(k + PF))
        p, r = aq(k)
        e(f'{MF3} {vr(AQ,16)}, {vr(r, 4, p)}, {vr(AXB + 4*(k % NB), 4)}, {"0" if k == 0 else vr(AQ,16)}')
        if k & 1 and kv: e(kv.pop(0))
        if k == 0: e(f's_mul_i32 s{sStq}, s{sStp}, 36864\ns_cmp_lt_u32 s{sSeg}, s{sZm}\ns_cselect_b32 s{sStp}, 2, 3\n' + (f's_cmp_eq_u32 s{sSeg}, 61\ns_cselect_b32 s{sStp}, 2, s{sStp}\n' if hf else '') + f's_mul_i32 s{t2}, s{sStp}, 36864\ns_add_u32 s{sB}, s{sB}, s{t2}')
        if k == 1: e(f's_add_u32 s{sC}, s{sC}, s{sXd}\ns_add_u32 s{t2}, s{sSeg}, s{sStp}\ns_cmp_lt_u32 s{t2}, 64\ns_cselect_b32 s{t2}, s{sB}, {OOB}')
        if k == 2: e(f'v_readfirstlane_b32 s{sProg}, v{vPg}\nv_readfirstlane_b32 s{sZ}, v{LG}')
        if k == 3: e(f'''s_cmp_gt_u32 s{sProg}, s{sSeg}
            s_cselect_b32 s{t0}, s{sH_}, {OOB}
            buffer_load_dwordx4 {vr(AKN,4)}, v{L16}, {WS}, s{t0} offen sc1''')
        if k >= 4 and k % 3 == 1 and dx: e(dx.pop(0))
        if k == 32: e(f'v_add_u32 v{vX}, s{sXd}, v{vX}\ns_sub_u32 s{sXd}, 0, s{sXd}')
    assert not dx
    wst(a, tag, 1)
    for c in range(2):
        q = AQ + 8 * c
        for k in range(4): e(cvt(q + k, q + k, q + 4 + k))
        e(f'ds_write_b128 v{vQw}, {vr(q,4)} offset:{LA_Q + c*512}')
    e('s_waitcnt lgkmcnt(0)\ns_barrier')
    wst(a, tag, 2)
    for kap in range(4): e(f'ds_read_b128 {vr(AQ + 4*kap, 4)}, v{vHf} offset:{LA_Q + kap*2048}')
    e(f's_cmp_gt_u32 s{sProg}, s{sSeg}\ns_cbranch_scc0 {tag}_wt')
    a.waitfor({f'v{AKN}'})
    e(f'''{tag}_chk:
    v_max3_u32 v{vMx}, v{AKN}, v{AKN+1}, v{AKN+2}
    v_max_u32 v{vMx}, v{vMx}, v{AKN+3}
    v_cmp_eq_u32 vcc, -1, v{vMx}
    s_cbranch_vccnz {tag}_pollk
    ds_write2_b32 v{vKw}, v{AKN}, v{AKN+2} offset0:0 offset1:4
    ds_write_b128 v{vTr}, {vr(AKN,4)} offset:{LA_IM}
    s_add_u32 s{sSeg}, s{sSeg}, s{sStp}''')
    tok = a.mark_l()
    wst(a, tag, 3)
    sc_ = [f'{MF32} {vr(AS + 4*T, 4)}, {vr(AK + 8*kap + 4*T, 4)}, {vr(AQ + 4*kap, 4)}, {vr((ABI if kap == 0 else AS) + 4*T, 4)}' for kap in range(4) for T in range(2)]
    for x in sc_[:3]: e(x)
    e(f's_cmp_lg_u32 s{sTwo}, 0\ns_cselect_b64 vcc, -1, 0\ns_cmp_eq_u32 s{sPnd}, 0')
    a.wait_l(tok); e('s_barrier')
    zr = [f'ds_read_b128 {vr(AZ + 4*kap, 4)}, v{vZ} offset:{LA_IK + kap*576}' for kap in range(4)]
    zr += [f'ds_read_b128 {vr(AKV + 4*kap, 4)}, v{vVm} offset:{LA_IM + kap*1024}' for kap in range(2)]
    e(zr.pop(0))
    for x in sc_[3:]: e(zr.pop(0)); e(x)
    e(f's_cbranch_scc0 {tag}_sp')
    lq = list(a.lq)
    Tm = AS + 8
    m_, t_ = T0, T1
    Y = []
    def y(x): Y.extend(x.split('\n'))
    mx = [f'v_max3_f32 v{m_}, v{AS}, v{AS+1}, v{AS+2}', f'v_max3_f32 v{m_}, v{m_}, v{AS+3}, v{AS+4}', f'v_max3_f32 v{m_}, v{m_}, v{AS+5}, v{AS+6}', f'v_max_f32 v{m_}, v{m_}, v{AS+7}']
    y('#')
    for kap in range(4):
        y(f'{MF32} {vr(Tm,4)}, {vr(AZ + 4*kap, 4)}, {vr(AQ + 4*kap, 4)}, {"0" if kap == 0 else vr(Tm,4)}')
        y('#' if kap in (0, 3) else '\n'.join(mx[2*kap-2:2*kap]))
    def xl(op):
        y(f'''v_mov_b32 v{t_}, v{m_}
        #
        v_permlane32_swap_b32 v{m_}, v{t_}
        {op} v{m_}, v{m_}, v{t_}
        v_mov_b32 v{t_}, v{m_}
        #
        v_permlane16_swap_b32 v{m_}, v{t_}
        {op} v{m_}, v{m_}, v{t_}''')
    y(f'v_max3_f32 v{m_}, v{m_}, v{Tm}, v{Tm+1}')
    xl('v_max_f32')
    y(f'v_mul_f32 v{T1}, s{sG_}, v{m_}\n#')
    for r in range(AS, AS + 10, 2): y(f'v_pk_fma_f32 {vr(r,2)}, {vr(r,2)}, s[{sG_}:{sG_+1}], {vr(T1,2)} op_sel_hi:[1,0,0] neg_lo:[0,0,1] neg_hi:[0,0,1]')
    for r in range(AS, AS + 10): y(f'v_exp_f32 v{r}, v{r}' + ('\n#' if (r - AS) % 4 == 1 else ''))
    for k in range(4): y(cvt(P + k, AS + 2*k, AS + 2*k + 1))
    y(cvt(PM + 1, Tm, Tm + 1))
    sm = [f'v_pk_add_f32 {vr(Tm+2,2)}, {vr(AS,2)}, {vr(AS+2,2)}'] + [f'v_pk_add_f32 {vr(Tm+2,2)}, {vr(Tm+2,2)}, {vr(r,2)}' for r in range(AS + 4, AS + 10, 2)]
    y(sm.pop(0))
    for n in range(4):
        y(f'{MF32} {vr(AO + 4*n, 4)}, {vr(AV + 4*n, 4)}, {vr(P,4)}, 0')
        y(sm.pop(0) if sm else f'v_add_f32 v{m_}, v{Tm+2}, v{Tm+3}')
    for n in range(4): y(f'{MF16} {vr(AO + 4*n, 4)}, {vr(AKV + 2*n, 2)}, {vr(PM,2)}, {vr(AO + 4*n, 4)}')
    xl('v_add_f32')
    y(f'v_rcp_f32 v{T1}, v{m_}')
    for h in range(2):
        for n in range(4):
            r = AO + 8*h + 2*n
            y(f'v_pk_mul_f32 {vr(r,2)}, {vr(r,2)}, {vr(T1,2)} op_sel_hi:[1,0]')
        for n in range(4): y(cvt(AO + 8*h + n, AO + 8*h + 2*n, AO + 8*h + 2*n + 1))
        y(f'ds_write_b128 v{vOw}, {vr(AO + 8*h, 4)} offset:{LA_O + h*1024}')
    def soft(rl):
        a.lq = list(lq); a.vq = []
        wst(a, tag, 4)
        for x in Y:
            if x.strip() != '#': e(x)
            elif rl: e(rl.pop(0))
        assert not rl
        wst(a, tag, 5)
    soft([])
    e(f'{tag}_jn:')
    a.vq = []
    dm = a_dma(a, tag)
    res = [f'buffer_load_dwordx2 {vr(ARS + 2*k, 2)}, v{vRes}, {RA}, s{(sE, sE2)[k]} offen' for k in range(2)]
    if hf: e(f'''s_cmp_eq_u32 s{sSeg}, 66
    s_cselect_b32 s{t0}, s{S_G}, 2
    s_cmp_lg_u32 s{t0}, 2
    s_cselect_b32 s{t0}, 4096, 0
    v_add_u32 v{T0}, s{t0}, v{L16}
    s_cselect_b32 s{t0}, 18432, 0
    s_add_u32 s{sE}, s{sE}, s{t0}
    s_add_u32 s{sF_}, s{sF_}, s{t0}''')
    e(f's_add_u32 s{sPW2}, s{sPW}, 18432\ns_mov_b32 s{sPnd}, 1\ns_waitcnt lgkmcnt(0)\ns_barrier')
    wst(a, tag, 6)
    h2 = 65 if 'p2' in OPT else 66
    e(f'{tag}_p2:')
    for n in range(8): e(f'ds_read_b128 {vr(AOF + 4*n, 4)}, v{T0 if hf else L16} offset:{LA_O + n*1024}')
    e(dm.pop(0))
    pend = []
    nx = [rd(k) for k in range(PF)]
    for h in range(2):
        W = AW + 36 * h
        for grp in ((0, 1, 2), (3, 4, 5), (6, 7, 8)):
            if h == 1 and grp[0] == 3: e(f's_cmp_lt_u32 s{sSeg}, 64\ns_cselect_b32 s{t0}, 0, {OOB}\nbuffer_load_dword v{LG}, off, {WS}, s{t0} offset:{ZW} sc1\nbuffer_load_dword v{vPg}, off, {WS}, s{t0} offset:{PROG} sc1')
            for kap in range(4):
                for u in grp:
                    e(f'{MF32} {vr(W + 4*u, 4)}, {vr(16*u + 4*kap, 4, "a")}, {vr(AOF + 16*h + 4*kap, 4)}, {"0" if kap == 0 else vr(W + 4*u, 4)}')
                    if kap >= 1:
                        for x in pend[:2]: e(x)
                        pend = pend[2:]
                    if dm and u == 2:
                        e(dm.pop(0)); tokd = a.mark_v()
                    if res and u == 0: e(res.pop(0))
                    if (h, kap, u) == (1, 2, 6): a.wait_v(tokd); e('s_barrier')
                    elif (h, grp[0]) == (1, 6) and kap >= 2: e(nx.pop(0))
            for u in grp: pend += proj_epi(u, W, sc, (sPW, sPW2)[h])
            if (h, grp[0]) == (0, 6) and hf: pend[-1] += f'\ns_cmp_ge_u32 s{sSeg}, {h2}\ns_cbranch_scc1 {tag}_hf'
    assert not nx
    for x in pend: e(x)
    e(f'{tag}_hf:')
    wst(a, tag, 7)
    next_slot(a)
    er = f's{sEr}'
    e(f'{tag}_le:\ns_cmp_lt_u32 s{sSeg}, {er}\ns_cbranch_scc1 {tag}_loop\ns_cmp_eq_u32 s{sZm}, 64\ns_cbranch_scc1 {tag}_zg\ns_mul_i32 s{sStq}, s{sStp}, 36864')
    a.endq = list(a.vq)
    if hf: e(f's_cmp_ge_u32 s{sSeg}, {h2}\ns_cselect_b32 s{sStq}, 18432, s{sStq}\ns_cselect_b32 s{sTwo}, 0, s{sTwo}\ns_cselect_b32 s{t0}, s{sTask}, 0\ns_cmp_ge_u32 s{t0}, 72\ns_cbranch_scc1 {tag}_fe')
    a.lq = []; a.vq = []
    e(f'{tag}_wx:')
    e('\n'.join(rld(0)))
    e(f's_cmp_eq_u32 s{sTwo}, 0\ns_cbranch_scc1 {tag}_n2')
    e('\n'.join(rld(1)))
    akn = f'''v_readfirstlane_b32 s{sProg}, v{vPg}
    s_cmp_gt_u32 s{sProg}, s{sSeg}
    s_cselect_b32 s{t0}, s{sH_}, {OOB}
    buffer_load_dwordx4 {vr(AKN,4)}, v{L16}, {WS}, s{t0} offen sc1'''
    e(f'{tag}_n2:\ns_mov_b32 s{sPnd}, 0')
    if 'wq' in OPT: e(f'buffer_load_dword v{vPg}, off, {WS}, 0 offset:{PROG} sc1\ns_waitcnt vmcnt(1)')
    else: e('s_waitcnt vmcnt(0)\n' + akn)
    rsum(tag + 'b', 0)
    if WST[0] and WST[0][0] == tag: WST[0][1] += 1
    wst(a, tag, 8)
    if WST[0] and WST[0][0] == tag: WST[0][1] -= 1
    rsum(tag + 'b', 1)
    e(f'''s_cmp_lt_u32 s{sSeg}, 64
    s_cbranch_scc1 {tag}_mo
    {tag}_fe:
    s_cmp_eq_u32 s{sSeg}, {65 if hf and h2 == 65 else 0}
    s_cbranch_scc0 {FIN}''')
    for r in (sPW, sPR): e(f's_xor_b32 s{r}, s{r}, {RSLOT}\ns_add_u32 s{r}, s{r}, 18432')
    e(f'''s_mov_b32 s{sTW}, s{sTR}
    s_mov_b32 s{sSeg}, 66
    v_add_u32 v{T0}, 4096, v{L16}
    {'s_barrier' if 'b2' in OPT else ''}
    s_branch {tag}_p2
    {tag}_mo:
    s_cmp_lt_u32 s{sSeg}, {er}
    s_cbranch_scc0 {tag}_loop''')
    if 'wq' in OPT: e(f'''s_waitcnt vmcnt(2)
    s_cmp_eq_u32 s{sTwo}, 0
    s_cbranch_scc0 {tag}_n3
    s_waitcnt vmcnt(1)
    {tag}_n3:
    v_readfirstlane_b32 s{sProg}, v{vPg}
    {tag}_wt:
    s_cmp_eq_u32 s{sPnd}, 0
    s_cbranch_scc0 {tag}_wx''')
    else: e(f'''s_cmp_gt_u32 s{sProg}, s{sSeg}
    s_cbranch_scc0 {tag}_pollk
    s_waitcnt vmcnt(2)
    s_cmp_eq_u32 s{sTwo}, 0
    s_cbranch_scc0 {tag}_chk
    s_waitcnt vmcnt(1)
    s_branch {tag}_chk
    {tag}_wt:
    s_cmp_eq_u32 s{sPnd}, 0
    s_cbranch_scc1 {tag}_pollk
    buffer_load_dword v{vPg}, off, {WS}, 0 offset:{PROG} sc1
    s_branch {tag}_wx''')
    e(f'''{tag}_pollk:
    {SPIN}
    s_cmp_ge_u32 s{sSeg}, {opt(OPT, 'dp', 61)}
    s_cbranch_scc1 {tag}_pm
    s_cmp_gt_u32 s{sProg}, s{sSeg}
    s_cbranch_scc1 {tag}_pk
    buffer_load_dword v{vPg}, off, {WS}, 0 offset:{PROG} sc1
    s_waitcnt vmcnt(0)
    v_readfirstlane_b32 s{sProg}, v{vPg}
    s_cmp_gt_u32 s{sProg}, s{sSeg}
    s_cbranch_scc1 {tag}_pk
    s_cmp_ge_u32 s{sProg}, {opt(OPT, 'ns', 63)}
    s_cbranch_scc1 {tag}_pollk
    s_sleep {sa}
    s_branch {tag}_pollk
    {tag}_pk:
    buffer_load_dwordx4 {vr(AKN,4)}, v{L16}, {WS}, s{sH_} offen sc1
    s_waitcnt vmcnt(0)
    s_branch {tag}_chk''')
    md, mn = [int(x) for x in opt(OPT, 'ma', MA).split('.')]
    ldk = f'buffer_load_dwordx4 {vr(AKN,4)}, v{L16}, {WS}, s{sH_} offen sc1'
    a.auto = False
    e(f'{tag}_pm:')
    for k in range(md - 1): e(f'{ldk}\ns_sleep {mn}')
    e(f'''{tag}_pl:
    {ldk}
    {SPIN}
    s_waitcnt vmcnt({md - 1})
    v_max3_u32 v{vMx}, v{AKN}, v{AKN+1}, v{AKN+2}
    v_max_u32 v{vMx}, v{vMx}, v{AKN+3}
    v_cmp_eq_u32 vcc, -1, v{vMx}
    s_cbranch_vccnz {tag}_pl
    s_branch {tag}_chk''')
    a.auto = True; a.vq = []
    e(f'{tag}_sp:')
    soft([f'{x}\ns_cbranch_vccz {tag}_q{n}\n{z}\n{tag}_q{n}:' for n, (x, z) in enumerate(zip(rld(0), rld(1)))])
    e('s_waitcnt vmcnt(0)')
    rsum(tag + 'a', 0)
    rsum(tag + 'a', 1)
    e(f's_branch {tag}_jn')
    for tg, k in rare:
        if tg[-1] == 'b':
            red_again(a, ARD + 32*k, PSA, 32768 * k, f'{tg}_r{k}', f'{tg}_s{k}'); continue
        e(f'{tg}_r{k}:')
        red_ld(a, ARD + 32*k, PSA, 32768 * k); e(SPIN)
        e(f's_waitcnt vmcnt(0)\ns_branch {tg}_s{k}')
    a.vq = []
    z_get(a, tag, LG)
    e(f's_branch {tag}_le')
    a_flags(a, tag)

def gfrag(q, k):
    n = 4 * k + q if q < 4 else 72 + k
    return vr(4 * n, 4, 'a') if n < 64 else vr(188 + 4 * (n - 64), 4)
def gparts(q, k):
    n = 4 * k + q if q < 4 else 72 + k
    return ('a', 4 * n) if n < 64 else ('v', 188 + 4 * (n - 64))
FD16, FDR, FCS = 170, 122, 102
LF_H = 0; LF_ACT = 18432; LF_SH = 22528; LF_W = 26624; LF_WSTR = 24576
LF_ST = 124928; LF_Z = LF_ST + 512; LF_X = 0x20000
FLT = [1, 2, 4, 5, 7, 8]
def f_load(a):
    e = a.e
    red_setup(a)
    srd(a, S_RA, P_WD, 4608 * 1152)
    tr_cols(a, f'v_lshrrev_b32 v{T0}, 2, v{LJ}\nv_lshl_add_u32 v{T0}, v{LG}, 2, v{T0}')
    e(f's_mul_i32 s{sA}, s{S_H}, {144*1152}')
    for rnd, (row0, nk) in enumerate(((0, 27), (96, 14))):
        e(f's_mul_i32 s{t1}, s{S_W}, {nk*1024}\ns_add_u32 s{t0}, s{sA}, s{t1}\ns_add_u32 s{t0}, s{t0}, {row0*1152}')
        for n in range(nk):
            if n & 3 == 0: e(f's_add_u32 m0, s{t1}, {n*1024}\ns_add_u32 s{t2}, s{t0}, {n*1024}')
            e(f'buffer_load_dwordx4 v{L16}, {RA}, s{t2} offen offset:{(n & 3)*1024} lds')
        e('s_waitcnt vmcnt(0)\ns_barrier')
        for kap in ((0, 1, 2), (3, 4))[rnd]:
            for u in range(9):
                col = 0 if u == 8 else (u >> 1) * 64 + (u & 1) * 8
                ad = T3 if u == 8 else vTr
                if kap == 4:
                    e(f'ds_read_b64_tr_b16 {vr(FD16 + 2*u, 2)}, v{ad} offset:{col}')
                else:
                    p, b = ('v', FDR + 16*(u // 3) + 4*kap) if u % 3 == 0 else ('a', 16*FLT.index(u) + 4*kap)
                    for hh in range(2):
                        e(f'ds_read_b64_tr_b16 {vr(b + 2*hh, 2, p)}, v{ad} offset:{col + hh*16*1152}')
            d = -64 * 1152 if kap == 2 else 32 * 1152
            e(f'v_add_u32 v{vTr}, {d}, v{vTr}\nv_add_u32 v{T3}, {d}, v{T3}')
        e('s_waitcnt lgkmcnt(0)\ns_barrier')
    e(f's_mul_i32 s{t0}, s{S_W}, {LF_WSTR}\ns_add_u32 s{t0}, s{t0}, {LF_W}\nv_add_u32 v{vXw}, s{t0}, v{L16}')
    for n in range(24): e(f'ds_write_b128 v{vXw}, {vr(4*n, 4, "a")} offset:{n*1024}')
    e('s_waitcnt lgkmcnt(0)')
    srd(a, S_RA, P_WG, 576 * 9216); srd(a, S_RB, P_WU, 576 * 9216)
    NS = 7
    e(f'''s_mul_i32 s{sB}, s{S_W}, 6144
    s_lshl_b32 s{sC}, s{S_W}, 13
    s_add_u32 s{sC}, s{sC}, {LF_W + 4*LF_WSTR}
    v_lshrrev_b32 v{T0}, 2, v{LN}
    v_mul_u32_u24 v{T0}, 9216, v{T0}
    v_and_b32 v{T1}, 3, v{LN}
    v_lshl_add_u32 v{T0}, v{T1}, 4, v{T0}
    v_lshrrev_b32 v{T2}, 1, v{LN}
    v_mul_u32_u24 v{T2}, 9216, v{T2}
    v_and_b32 v{T3}, 1, v{LN}
    v_lshl_add_u32 v{T2}, v{T3}, 4, v{T2}
    s_mul_i32 s{sD}, s{S_H}, 288
    s_lshl_b32 s{t0}, s{S_W}, 6
    s_add_u32 s{sA}, s{sD}, s{t0}
    s_and_b32 s{t0}, s{S_W}, 1
    s_mul_i32 s{t0}, s{t0}, {288*9216}
    s_add_u32 s{sD}, s{sD}, s{t0}
    s_add_u32 s{sD}, s{sD}, 256''')
    e(f'''v_lshrrev_b32 v{T3}, 2, v{LJ}
    v_lshl_add_u32 v{T3}, v{LG}, 3, v{T3}
    v_lshlrev_b32 v{T1}, 3, v{T1}
    v_lshl_add_u32 v32, v{T3}, 6, v{T1}
    v_lshl_add_u32 v33, v{T3}, 5, v{T1}
    v_add_u32 v34, s{sC}, v32
    v_add_u32 v35, s{sC}, v33
    v_add_u32 v32, s{sB}, v32
    v_add_u32 v33, s{sB}, v33''')
    blocks = [(m, k) for k in range(18) for m in range(2)] + [(2, k) for k in range(0, 9, 2)]
    toks = {}
    def slot(n):
        s = n % NS
        return (0, s * 2048) if s < 3 else (1, (s - 3) * 2048)
    def issue(n):
        m, k = blocks[n]; hi, off = slot(n)
        if m == 2 and k == 0:
            e(f'''s_cmp_ge_u32 s{S_W}, 2
            s_cselect_b32 s{S_RA}, s{P_WU}, s{P_WG}
            s_cselect_b32 s{S_RA+1}, s{P_WU+1}, s{P_WG+1}''')
        for hh in range(2):
            if m == 2 and k + hh > 8: continue
            e(f's_add_u32 m0, s{sC if hi else sB}, {off + hh*1024}')
            if m < 2:
                e(f's_add_u32 s{t0}, s{sA}, {(32*k + 16*hh)*9216}\nbuffer_load_dwordx4 v{T0}, {RB if m else RA}, s{t0} offen lds')
            else:
                e(f's_add_u32 s{t0}, s{sD}, {32*(k + hh)*9216}\nbuffer_load_dwordx4 v{T2}, {RA}, s{t0} offen lds')
        toks[n] = a.mark_v()
    for n in range(NS): issue(n)
    for n, (m, k) in enumerate(blocks):
        hi, off = slot(n)
        a.wait_v(toks[n])
        for t in range(2):
            if m == 2 and k + t > 8: continue
            p, b = gparts(2 * m + t, k) if m < 2 else gparts(4, k + t)
            for u in range(2):
                if m < 2: e(f'ds_read_b64_tr_b16 {vr(b + 2*u, 2, p)}, v{32 + 2*hi} offset:{off + t*32 + u*256}')
                else: e(f'ds_read_b64_tr_b16 {vr(b + 2*u, 2, p)}, v{33 + 2*hi} offset:{off + t*1024 + u*128}')
        e('s_waitcnt lgkmcnt(0)')
        if n + NS < len(blocks): issue(n + NS)
    for k in range(4): e(f'v_mov_b32 v{32+k}, 0x3f803f80')
    for k in range(18):
        for q in range(5):
            if q == 4 and k >= 9: continue
            e(f'{MF32} {vr(FCS + 4*q, 4)}, {gfrag(q, k)}, v[32:35], {"0" if k == 0 else vr(FCS + 4*q, 4)}')

sPend, sX5, sM0, sWb, sFt, sFq = range(67, 73)
F4 = 199
def f_dma(a, tag):
    r = []
    lab = a.newlabel(tag)
    for n in range(5):
        x = [f's_add_u32 m0, s{sM0}, {n*4096}', f's_add_u32 s{t0}, s{sA}, {n*4096}', f'buffer_load_dwordx4 v{L16}, {WS}, s{t0} offen sc1 lds']
        r.append(x if n < 4 else [f's_cmp_lt_u32 s{S_W}, 2', f's_cbranch_scc0 {lab}'] + x + [f'{lab}:'])
    return [r[4]] + r[:4]

def f_init(a):
    e = a.e
    srd(a, S_RA, P_OUT, 2048 * 1152)
    e(f'''s_sub_u32 s{sK}, s{S_G}, {8 - NF}
    s_cselect_b32 s{sK}, {opt(OPT, 'f4', F4)}, s{sK}
    s_mul_i32 s{sE}, s{sK}, 18432
    s_lshl_b32 s{sM0}, s{S_W}, 10
    s_add_u32 s{sA}, s{sE}, s{sM0}
    s_add_u32 s{sA}, s{sA}, {H}
    s_lshl_b32 s{t1}, s{sTask}, 4
    s_add_u32 s{sE}, s{sE}, s{t1}
    v_mul_u32_u24 v{vPS}, 1152, v{LJ}
    v_mov_b32 v{T0}, {OOB}
    v_cmp_eq_u32 vcc, 0, v{LG}
    v_cndmask_b32 v{vPS}, v{T0}, v{vPS}, vcc
    v_lshlrev_b32 v{vRes}, 4, v{LJ}
    v_and_b32 v{T0}, 1, v{LG}
    v_lshl_add_u32 v{vRes}, v{T0}, 3, v{vRes}
    s_min_u32 s{t1}, s{sTask}, 71
    s_lshl_b32 s{t1}, s{t1}, 8
    v_add_u32 v{vRes}, s{t1}, v{vRes}
    v_mov_b32 v{vTr}, v{L16}
    v_add_u32 v19, s{sM0}, v{L16}
    v_mov_b32 v18, v19
    v_add_u32 v9, 16384, v19
    v_mov_b32 v{T0}, {LF_Z}
    s_cmp_lt_u32 s{S_W}, 2
    s_cselect_b32 s{sX5}, {LF_X}, 0
    s_cselect_b64 vcc, -1, 0
    v_cndmask_b32 v9, v{T0}, v9, vcc
    s_and_b32 s{t0}, s{S_W}, 1
    s_mul_i32 s{t0}, s{t0}, 9216
    v_add_u32 v20, s{t0}, v{L16}
    v_lshlrev_b32 v21, 4, v{LJ}
    v_lshrrev_b32 v{T1}, 2, v{LJ}
    v_lshl_add_u32 v{T1}, v{T1}, 8, v21
    v_and_b32 v{T2}, 3, v{LJ}
    v_lshl_add_u32 v{T1}, v{T2}, 2, v{T1}
    v_add_u32 v21, {LF_ST}, v21
    s_lshl_b32 s{t0}, s{S_W}, 2
    v_add_u32 v{vZ}, s{t0}, v21
    v_mov_b64 v[28:29], 0
    v_mov_b64 v[30:31], 0
    s_mov_b32 s{sB}, 0x3f803f80
    s_mov_b32 s{sC}, {hex(f2u(-1.4426950408889634))}
    s_mov_b32 s{sSpin}, 0x100000
    s_mov_b32 s{sPend}, 0
    s_cmp_eq_u32 s{sTask}, 127
    s_cselect_b32 s{sWb}, {opt(OPT, 'wf', 0)}, -1
    s_barrier
    ds_write_b128 v{T0}, v[28:31]
    v_add_u32 v{T0}, {LF_ACT}, v{T1}''')
    for x in f_dma(a, 'fd'): e('\n'.join(x))
    e('s_waitcnt vmcnt(0) lgkmcnt(0)')

def f_loop(a, tag, sc):
    e = a.e
    a.lq = []; a.vq = []
    G = 32; XB = 52; W = 32; AF = 68; WB = 86; RD = 52; D = 28; RES = 22
    M, CR, R2 = 2, 3, 4
    vH, vHs, vC, vC5 = vTr, 20, 18, 9
    def rbf(r): return [f'v_cvt_pk_bf16_f32 v{r}, v{r}, v{r}', f'v_lshlrev_b32 v{r}, 16, v{r}']
    def fin():
        red_fin(a, RD, D, RES)
        e(f'''buffer_store_dwordx4 {vr(D,4)}, v{vPS}, {RA}, s{sE} offen{' sc1' if 'os' in OPT else ''}
        s_add_u32 s{sE}, s{sE}, s{sFq}
        s_xor_b32 s{sPR}, s{sPR}, {RSLOT}
        s_mov_b32 s{sPend}, 0''')
    e(f'{tag}_loop:')
    wst(a, tag, 0)
    OWN = list(range(WB, WB + 16)) + list(range(D, D + 4))
    for n in range(4): e(f'ds_read_b128 {vr(WB + 4*n, 4)}, v{vC} offset:{n*4096}')
    e(f'ds_read_b128 {vr(D, 4)}, v{vC5}')
    for k in range(4): e(f'v_mov_b32 v{G+k}, s{sB}')
    e(f'v_max_u32 v{vMx}, v{OWN[0]}, v{OWN[1]}')
    for k in range(2, 20, 2): e(f'v_max3_u32 v{vMx}, v{vMx}, v{OWN[k]}, v{OWN[k+1]}')
    e(f'''v_cmp_eq_u32 vcc, -1, v{vMx}
    s_cbranch_vccnz {tag}_wait
    s_barrier''')
    wst(a, tag, 1)
    if opt(OPT, 'wf'):
        e(f's_cmp_eq_u32 s{sCnt}, s{sWb}\ns_cbranch_scc0 {tag}_nw')
        a.raw('buffer_wbl2 sc1')
        e(f'{tag}_nw:')
    def rd(k): return f'ds_read_b128 {vr(XB + 4*(k % 4), 4)}, v{vH} offset:{k*1024}'
    def rds(k): return f'ds_read_b128 {vr(AF + 4*(k % 4), 4)}, v{vHs} offset:{k*1024}'
    S = WB; SH = AF; DS = XB + 12
    pre = [rds(0), rd(0), rds(1), rds(2), rd(1), rds(3), rd(2), f'v_xor_b32 v{vC}, {LF_X}, v{vC}', f'v_xor_b32 v{vC5}, s{sX5}, v{vC5}']
    e(pre.pop(0))
    for n in range(5):
        P = vr(OWN[4*n], 4)
        for A_, D_ in ((vr(G, 4), vr(DS, 4)), (P, vr(WB, 4))):
            if pre: e(pre.pop(0))
            e(f'{MF32} {D_}, {A_}, {P}, {D_ if n else 0}')
    def one(x): return [y for z in x for y in (z, '')]
    st = [f's_cmp_lt_u32 s{sK}, {int(opt(OPT, "f4", F4)) - NF}\ns_cselect_b32 s{sFt}, {NF}, {NF + 1}', f's_add_u32 s{sK}, s{sK}, s{sFt}\ns_mul_i32 s{sFt}, s{sFt}, 18432']
    if 'fo' in OPT: st[0] = f's_cmp_eq_u32 s{sK}, 124\ns_cselect_b32 s{sFt}, 1, {NF}\ns_cmp_eq_u32 s{sK}, 122\ns_cselect_b32 s{sFt}, 5, s{sFt}'
    st += [f's_add_u32 s{sA}, s{sA}, s{sFt}\ns_cmp_lt_u32 s{sK}, 128', f's_cselect_b32 s{sA}, s{sA}, {OOB}\ns_xor_b32 s{sM0}, s{sM0}, {LF_X}']
    st += one([f'ds_write_b32 v{vZ}, v{DS}', f'ds_write_b128 v19, {vr(WB,4)} offset:{LF_ACT}', '#m', rd(3), '', '', '#b'])
    st += one([f'ds_read_b128 {vr(S,4)}, v21'] + [f'ds_read2st64_b32 {vr(S+4+2*k,2)}, v{T0} offset0:{8*k} offset1:{8*k+4}' for k in range(2)] + [''] * 3)
    st += [f'v_add_f32 v{S+k}, v{S+k}, v{S+k+1}' for k in (0, 2, 4, 6)] + [f'v_add_f32 v{M+k}, v{S+4*k}, v{S+4*k+2}' for k in range(2)]
    st += [f'v_mul_f32 v{M}, {hex(f2u(-1/576))}, v{M}', f'v_mul_f32 v{CR}, {hex(f2u(1/576))}, v{CR}']
    st += one([f'v_fma_f32 v{CR}, -v{M}, v{M}, v{CR}'] + rbf(M) + [f'v_max_f32 v{CR}, 0, v{CR}'] + rbf(CR))
    assert len(st) <= 54, len(st)
    st += [''] * (54 - len(st))
    st += [f'v_fma_f32 v{G+16+q}, v{M}, v{FCS+16+q}, v{G+16+q}' for q in range(4)] + ['', '', f'ds_write_b128 v19, {vr(G+16,4)} offset:{LF_SH}', '#m']
    st += one([f'v_add_f32 v{CR}, {hex(f2u(1e-5))}, v{CR}'] + rbf(CR) + [f'v_sqrt_f32 v{CR}, v{CR}', '#b'])
    for k, x in enumerate(rbf(CR) + [f'v_rcp_f32 v{CR}, v{CR}', '']): st += [f'ds_read_b128 {vr(SH + 4*k, 4)}, v{L16} offset:{LF_SH + k*1024}', x]
    st += one([f'v_mul_f32 v{R2}, v{CR}, v{CR}', f'v_mul_f32 v{CR}, s{sC}, v{CR}', ''])
    g, tm, u_ = SH, SH + 4, SH + 8
    def mix(x):
        for z in x:
            if len(st) & 1 and ((len(st) // 2 - 29) % 4 == 0 or st[-1].startswith(TRANS) or z.startswith(TRANS)): st.append('')
            if z.startswith(TRANS) and (len(st) // 2 - 29) % 4 == 0 and len(st) < 2 * (29 + 40): st.extend(['', ''])
            st.append(z)
    mix([f'v_add_f32 v{g+k}, v{g+k}, v{g+4+k}' for k in range(4)] + [f'v_mul_f32 v{tm+k}, v{g+k}, v{CR}' for k in range(4)])
    mix([f'v_exp_f32 v{tm+k}, v{tm+k}' for k in range(4)] + [f'v_add_f32 v{u_+k}, v{u_+k}, v{u_+4+k}' for k in range(4)])
    mix([f'v_add_f32 v{tm+k}, 1.0, v{tm+k}' for k in range(4)] + [f'v_mul_f32 v{g+k}, v{g+k}, v{u_+k}' for k in range(4)])
    mix([f'v_rcp_f32 v{tm+k}, v{tm+k}' for k in range(4)] + [f'v_mul_f32 v{g+k}, v{g+k}, v{R2}' for k in range(4)])
    mix([f'v_mul_f32 v{g+k}, v{g+k}, v{tm+k}' for k in range(4)] + [cvt(AF + 16, g, g + 1), cvt(AF + 17, g + 2, g + 3)])
    tk = [None]
    def gap():
        for x in st[:2]:
            if x == '#m': tk[0] = a.mark_l()
            elif x == '#b': a.wait_l(tk[0]); e('s_barrier')
            else: e(x)
        del st[:2]
    for k in range(18):
        X = XB + 4 * (k % 4)
        for q in range(4):
            kk = 2 * k + q // 2
            if q & 1 == 0 and kk < 9:
                e(f'{MF32} {vr(G + 16, 4)}, {gfrag(4, kk)}, {vr(AF + 4*(kk % 4), 4)}, {"0" if kk == 0 else vr(G + 16, 4)}')
                gap()
            e(f'{MF32} {vr(G + 4*q, 4)}, {gfrag(q, k)}, {vr(X,4)}, {"0" if k == 0 else vr(G + 4*q, 4)}')
            if q == 0 and 3 < k + 3 < 18: e(rd(k + 3))
            if q & 1 and kk + 4 < 9: e(rds(kk + 4))
            gap()
    assert not st, len(st)
    wst(a, tag, 2)
    e(f's_cmp_eq_u32 s{sPend}, 0\ns_cbranch_scc1 {tag}_nl')
    red_ld(a, RD)
    vq = list(a.vq)
    e(f'{tag}_nl:')
    for k in range(0, 16, 2): e(f'v_pk_fma_f32 {vr(G+k,2)}, {vr(M,2)}, {vr(FCS+k,2)}, {vr(G+k,2)} op_sel_hi:[0,1,1]')
    U = G + 8
    for k in range(0, 8, 2): e(f'v_pk_mul_f32 {vr(S+k,2)}, {vr(G+k,2)}, {vr(M,2)} op_sel:[0,1] op_sel_hi:[1,1]')
    for k in range(8):
        e(f'v_exp_f32 v{S+k}, v{S+k}')
        if k & 1: e(f'v_pk_mul_f32 {vr(G+k-1,2)}, {vr(G+k-1,2)}, {vr(U+k-1,2)}')
    for k in range(0, 8, 2): e(f'v_pk_add_f32 {vr(S+k,2)}, {vr(S+k,2)}, 1.0 op_sel_hi:[1,0]')
    for k in range(8):
        e(f'v_rcp_f32 v{S+k}, v{S+k}')
        if k & 1: e(f'v_pk_mul_f32 {vr(G+k-1,2)}, {vr(G+k-1,2)}, {vr(R2,2)} op_sel_hi:[1,0]')
    for k in range(0, 8, 2): e(f'v_pk_mul_f32 {vr(G+k,2)}, {vr(G+k,2)}, {vr(S+k,2)}')
    for k in range(4): e(cvt(G + k, G + 2*k, G + 2*k + 1))
    e(f'ds_write_b128 v19, {vr(G,4)} offset:{LF_ACT}')
    ORD = [4 * FLT.index(u) + kap for g in range(3) for kap in range(4) for u in (3*g + 1, 3*g + 2)]
    def wrd(i): e(f'ds_read_b128 {vr(WB + 4*(i % 4), 4)}, v{vXw} offset:{ORD[i]*1024}')
    tok = a.mark_l()
    wst(a, tag, 3)
    for i in range(4): wrd(i)
    e(f's_cmp_eq_u32 s{sPend}, 0\ns_cbranch_scc1 {tag}_nr\n{tag}_rs:')
    red_sum(a, RD, D, f'{tag}_ra')
    fin()
    e(f'{tag}_nr:')
    wst(a, tag, 4)
    a.vq = []
    a.wait_l(tok)
    e('s_barrier')
    wst(a, tag, 5)
    for k in range(4): e(f'ds_read_b128 {vr(AF + 4*k, 4)}, v{L16} offset:{LF_ACT + k*1024}')
    e(f'ds_read_b64 {vr(RES,2)}, v{vRes}')
    dm = f_dma(a, tag + 'd')
    for u in range(9):
        e(f'{MF16} {vr(W + 4*u, 4)}, {vr(FD16 + 2*u, 2)}, {vr(AF + 16, 2)}, 0')
        if u in (1, 6): e('\n'.join(dm.pop(0)))
    pend = [f'v_xor_b32 v{r}, {LF_X}, v{r}' for r in (vH, vHs, vRes)]
    i = 0
    for grp in range(3):
        for kap in range(4):
            for u in range(3*grp, 3*grp + 3):
                wv = FDR + 16*grp + 4*kap if u % 3 == 0 else WB + 4*(i % 4)
                e(f'{MF32} {vr(W + 4*u, 4)}, {vr(wv, 4)}, {vr(AF + 4*kap, 4)}, {vr(W + 4*u, 4)}')
                if u % 3:
                    if i + 4 < 24: wrd(i + 4)
                    i += 1
                elif dm:
                    e('\n'.join(dm.pop(0)))
                    if not dm: tokd = a.mark_v()
                if kap >= 1:
                    n = 2 if u % 3 else 3
                    for x in pend[:n]: e(x)
                    pend = pend[n:]
        for u in range(3*grp, 3*grp + 3): pend += proj_epi(u, W, sc)
    for x in pend: e(x)
    wst(a, tag, 6)
    if WST[0] and WST[0][0] == tag: WST[0][1] += 1
    next_slot(a)
    e(f'''s_cmp_lt_u32 s{sTask}, 72
    s_cselect_b32 s{sPend}, 1, 0
    s_mov_b32 s{sFq}, s{sFt}
    s_cmp_lt_u32 s{sK}, 128
    s_cbranch_scc0 {tag}_wait''')
    a.wait_v(tokd)
    wst(a, tag, 7)
    e(f's_branch {tag}_loop')
    a.lq = []; a.vq = []
    e(f'{tag}_wait:\ns_cmp_eq_u32 s{sPend}, 0\ns_cbranch_scc1 {tag}_w2')
    red_ld(a, RD)
    if 'wo' not in OPT:
        for x in f_dma(a, tag + 'v'): e('\n'.join(x))
        e(f's_waitcnt vmcnt(4)'); a.vq = []
    e(f'{tag}_w1:')
    red_sum2(a, RD, D, f'{tag}_wa')
    fin()
    wst(a, tag, 8)
    if 'wo' not in OPT: e(f's_cmp_lt_u32 s{sK}, 128\ns_cbranch_scc0 {FIN}\ns_waitcnt vmcnt(1)\ns_branch {tag}_loop')
    e(f'{tag}_w2:\ns_cmp_lt_u32 s{sK}, 128\ns_cbranch_scc0 {FIN}')
    if opt(OPT, 'pb', PB):
        pt, pd, pn = [int(x) for x in opt(OPT, 'pb', PB).split('.')]
        ldp = f'buffer_load_dword v{RD+1}, v{RD}, {WS}, s{sA} offen offset:252 sc1'
        a.auto = False
        e(f'''s_cmp_lt_u32 s{sK}, {pt}
        s_cbranch_scc1 {tag}_w4
        s_cmp_eq_u32 s{sWb}, s{sK}
        s_cbranch_scc1 {tag}_w4
        s_mov_b32 s{sWb}, s{sK}
        v_bfe_u32 v{RD+1}, v{L16}, 4, 2
        v_bfe_u32 v{RD}, v{L16}, 6, 2
        v_lshlrev_b32 v{RD+1}, 8, v{RD+1}
        v_lshl_add_u32 v{RD}, v{RD}, 12, v{RD+1}''')
        for k in range(pd - 1): e(f'{ldp}\ns_sleep {pn}')
        e(f'{tag}_w5:\n{ldp}\n{SPIN}\ns_waitcnt vmcnt({pd - 1})\nv_cmp_eq_u32 vcc, -1, v{RD+1}\ns_cbranch_vccnz {tag}_w5')
        for x in f_dma(a, tag + 'p'): e('\n'.join(x).replace(' sc1', '' if 'pp' in OPT else ' sc0' if 'p0' in OPT else ' sc1'))
        e(f's_waitcnt vmcnt(0)\ns_branch {tag}_loop\n{tag}_w4:')
        a.auto = True; a.vq = []
    for x in f_dma(a, tag + 'w'): e('\n'.join(x))
    e(SPIN)
    mt, md, mn = [int(x) for x in opt(OPT, 'mp', MP).split('.')]
    if md > 1: e(f's_cmp_lt_u32 s{sK}, {mt}\ns_cbranch_scc1 {tag}_w3\ns_sleep {mn}\ns_waitcnt vmcnt({4*(md-1)})\ns_branch {tag}_loop\n{tag}_w3:')
    e(f's_waitcnt vmcnt(0)\ns_branch {tag}_loop')
    a.vq = []
    e(f'{tag}_ra:')
    red_ld(a, RD); e(SPIN)
    e(f's_waitcnt vmcnt(0)\ns_branch {tag}_rs')
    red_again(a, RD, PS, 0, f'{tag}_wa', f'{tag}_w1')
```
